```python
import torch

def _softmax(x, axis=-1):
    return torch.softmax(x, dim=axis)

def _gelu(x):
    return torch.nn.functional.gelu(x, approximate='tanh')

def _silu(x):
    return torch.nn.functional.silu(x)

def _sigmoid(x):
    return torch.sigmoid(x)

def _layernorm(x, axis=-1, eps=1e-05):
    m = x.mean(dim=axis, keepdim=True)
    v = x.var(dim=axis, keepdim=True, unbiased=False)
    return (x - m) / torch.sqrt(v + eps)

def _scatter_add(tgt, idx, src, axis=0):
    return tgt.clone().index_add_(axis, idx, src)

def _segment_sum(src, seg, n):
    out = torch.zeros((n,) + src.shape[1:], dtype=src.dtype)
    return out.index_add_(0, seg, src)

def _pad(x, pw):
    flat = tuple((v for pair in reversed(pw) for v in pair))
    return torch.nn.functional.pad(x, flat)
kernel_name = 'standalone__swin_window_attn__vision'

def setup_inputs():

    _w = lambda a: (lambda t: t.to(torch.bfloat16) if t.is_floating_point() else t)(torch.as_tensor(a))
    H = W = 512 // 7 * 7
    C, win = (192, 7)
    return {'x': _w((lambda *s: torch.randn(*s, dtype=torch.bfloat16) * 0.2)(1, H, W, C)), 'wqkv': _w((lambda *s: torch.randn(*s, dtype=torch.bfloat16) * 0.2)(C, 3 * C)), 'wo': _w((lambda *s: torch.randn(*s, dtype=torch.bfloat16) * 0.05)(C, C))}

def reference(x, wqkv, wo):
    B, H, W, C = x.shape
    win = 7
    nh, nw = (H // win, W // win)
    xw = (lambda x, *d: x.permute(*d))(x.reshape(B, nh, win, nw, win, C), 0, 1, 3, 2, 4, 5)
    xw = xw.reshape(B * nh * nw, win * win, C)
    qkv = xw @ wqkv
    q, k, v = (qkv[..., :C].clone(), qkv[..., C:2 * C].clone(), qkv[..., 2 * C:].clone())
    scale = C ** (-0.5)
    p = _softmax(torch.einsum('bqc,bkc->bqk', q, k) * scale, axis=-1)
    o = torch.einsum('bqk,bkc->bqc', p, v) @ wo
    o = (lambda x, *d: x.permute(*d))(o.reshape(B, nh, nw, win, win, C), 0, 1, 3, 2, 4, 5)
    return o.reshape(B, H, W, C)
```

```python
import re


def R(bank, lo, n=1):
    return [f"{bank}{lo + i}" for i in range(n)]


def T(bank, lo, n=1):
    return f"{bank}{lo}" if n == 1 else f"{bank}[{lo}:{lo + n - 1}]"


class Inst:
    __slots__ = ("text", "kind", "defs", "uses", "srcC", "srcAB", "passes", "release", "deadline",
                 "idx", "tag", "cost", "time", "pin", "wide", "prio")

    def __init__(self, text, kind, defs=(), uses=(), srcC=(), srcAB=(), passes=0,
                 release=None, deadline=None, tag="", wide=False):
        self.text = text
        self.kind = kind
        self.defs = list(defs)
        self.uses = list(uses)
        self.srcC = list(srcC)
        self.srcAB = list(srcAB)
        self.passes = passes
        self.release = release
        self.deadline = deadline
        self.tag = tag
        self.wide = wide
        self.cost = {"mfma": 8, "trans": 8}.get(kind, 4)
        self.time = None
        self.prio = 0

    def __repr__(self):
        return f"<{self.text}>"


VALU_KINDS = ("valu", "trans", "perm")
VMEM_KINDS = ("vload", "vstore", "ldsdma")


def is_vreg(r):
    return r[0] in "va" and r[1:].isdigit()


def is_sreg(r):
    return (r[0] == "s" and r[1:].isdigit()) or r in ("vcc",)


def hazard_slots(p, c):
    need = 0
    pd, cu, cd = set(p.defs), set(c.uses), set(c.defs)
    if p.kind in VALU_KINDS:
        vd = {r for r in pd if is_vreg(r)}
        sd = {r for r in pd if is_sreg(r)}
        if c.kind == "mfma" and vd & cu:
            need = max(need, 2)
        if c.kind == "perm" and vd & cu:
            need = max(need, 2)
        if p.kind == "trans" and c.kind in ("valu", "perm", "mfma") and vd & cu:
            need = max(need, 1)
        if p.kind == "trans" and c.kind in VMEM_KINDS + ("dsw", "dsr") and vd & cu:
            need = max(need, 1)
        if c.text.startswith(("v_readfirstlane", "v_readlane")) and vd & cu:
            need = max(need, 1)
        if "dpp" in c.text or "row_" in c.text:
            if vd & cu:
                need = max(need, 2)
        if sd & cu:
            if c.kind in VALU_KINDS:
                need = max(need, 2)
            if c.kind in VMEM_KINDS:
                need = max(need, 5)
            if c.kind == "salu":
                need = max(need, 1)
        if "exec" in pd and c.kind == "mfma":
            need = max(need, 4)
    if p.kind == "mfma":
        ps = p.passes
        t_ab = {2: 5, 4: 8, 8: 12, 16: 20}[ps]
        t_ov = {2: 4, 4: 6, 8: 10, 16: 18}[ps]
        t_war = {2: 1, 4: 3, 8: 7, 16: 15}[ps]
        if c.kind == "mfma":
            if pd & set(c.srcAB):
                need = max(need, t_ab)
            if pd & set(c.srcC):
                if c.srcC == p.defs and c.passes == p.passes:
                    need = max(need, 2 if ps == 2 else 0)
                else:
                    need = max(need, t_ov)
            if pd & cd and c.defs != p.defs:
                need = max(need, t_ov)
        else:
            if pd & (cu | cd):
                need = max(need, t_ab)
            if c.kind in VALU_KINDS and set(p.srcC) & cd:
                need = max(need, t_war)
    if p.kind == "vstore" and p.wide:
        data = {r for r in p.uses if is_vreg(r)}
        if data & cd:
            need = max(need, 2)
    if p.kind == "salu" and "m0" in pd and c.kind == "ldsdma":
        need = max(need, 1)
    return need


def nop_states(i):
    if i.kind == "nop":
        return int(i.text.split()[1]) + 1
    if i.kind in ("label", "comment"):
        return 0
    return 1


def insert_nops(stream, pre=None, window=24):
    alts = pre if pre else [[]]
    out = []
    for c in stream:
        if c.kind in ("label", "comment"):
            out.append(c)
            continue
        worst = 0
        for alt in alts:
            hist = (alt + out)[-60:]
            dist = 0
            for p in reversed(hist):
                if dist >= window:
                    break
                n = hazard_slots(p, c)
                if n > dist:
                    worst = max(worst, n - dist)
                dist += nop_states(p)
        while worst > 0:
            k = min(worst, 16)
            out.append(Inst(f"s_nop {k - 1}", "nop"))
            worst -= k
        out.append(c)
    return out


def insert_waits(stream, pre=None, early_lgkm=0, final=False):
    vq = []
    lq = []

    def apply_wait(i):
        m = re.search(r"vmcnt\((\d+)\)", i.text)
        if m:
            n = int(m.group(1))
            del vq[:max(0, len(vq) - n)]
        m = re.search(r"lgkmcnt\((\d+)\)", i.text)
        if m:
            n = int(m.group(1))
            del lq[:max(0, len(lq) - n)]

    def issue(i):
        if i.kind in VMEM_KINDS:
            vq.append((set(i.defs), i))
        elif i.kind in ("dsr", "dsw"):
            lq.append((set(i.defs), i))
        elif i.kind == "smem":
            raise RuntimeError("smem inside auto-wait region")

    for i in (pre or []):
        if i.kind == "wait":
            apply_wait(i)
        else:
            issue(i)
    out = []
    for c in stream:
        if c.kind == "wait":
            apply_wait(c)
            out.append(c)
            continue
        touch = set(c.uses) | set(c.defs)
        nv = nl = None
        for k, (d, p) in enumerate(vq):
            if d & touch:
                nv = len(vq) - 1 - k
        for k, (d, p) in enumerate(lq):
            if d & touch:
                nl = len(lq) - 1 - k
        if nl is not None and early_lgkm and c.time is not None:
            for k, (d, p) in enumerate(lq):
                if p.time is not None:
                    age = c.time - p.time
                    if age < 0:
                        age += early_lgkm[1]
                    if age >= early_lgkm[0]:
                        nl = min(nl, len(lq) - 1 - k)
        parts = []
        if nv is not None:
            parts.append(f"vmcnt({min(nv, 63)})")
        if nl is not None:
            parts.append(f"lgkmcnt({min(nl, 15)})")
        if parts:
            w = Inst("s_waitcnt " + " ".join(parts), "wait")
            w.time = c.time
            apply_wait(w)
            out.append(w)
        issue(c)
        out.append(c)
    return out


LAT = {"dsr": 190, "vload": 600, "mfma_valu": 72, "valu": 4, "trans": 8}


def build_deps(prog):
    n = len(prog)
    preds = [dict() for _ in range(n)]
    lastw = {}
    readers = {}

    def add(i, j, cyc):
        if i == j:
            return
        sl = hazard_slots(prog[i], prog[j])
        old = preds[j].get(i)
        if old:
            preds[j][i] = (max(old[0], sl), max(old[1], cyc))
        else:
            preds[j][i] = (sl, cyc)

    prev_mfma = None
    for j, c in enumerate(prog):
        for r in c.uses:
            if r in lastw:
                i = lastw[r]
                p = prog[i]
                if p.kind == "dsr":
                    cyc = LAT["dsr"]
                elif p.kind == "vload":
                    cyc = LAT["vload"]
                elif p.kind == "mfma":
                    if c.kind == "mfma" and r in c.srcC and c.srcC == p.defs:
                        cyc = 0
                    else:
                        cyc = p.passes * 4 + 40
                else:
                    cyc = p.cost
                add(i, j, cyc)
        for r in c.defs:
            if r in lastw:
                i = lastw[r]
                p = prog[i]
                cyc = 0
                if p.kind == "mfma" and c.kind != "mfma":
                    cyc = p.passes * 4 + 40
                add(i, j, cyc)
            for i in readers.get(r, ()):
                add(i, j, 0)
        for r in c.uses:
            readers.setdefault(r, []).append(j)
        for r in c.defs:
            lastw[r] = j
            readers[r] = []
        if c.kind == "mfma":
            if prev_mfma is not None:
                add(prev_mfma, j, 0)
            prev_mfma = j
    return preds


def schedule(prog, gap_budget=24, verbose=False, keep_order_kinds=("vload", "vstore", "dsr")):
    n = len(prog)
    preds = build_deps(prog)
    last = {}
    for j, c in enumerate(prog):
        cls = "vm" if c.kind in VMEM_KINDS else c.kind
        if c.kind in keep_order_kinds:
            if cls in last:
                preds[j].setdefault(last[cls], (0, 0))
            last[cls] = j
    succs = [[] for _ in range(n)]
    for j in range(n):
        for i, (sl, cyc) in preds[j].items():
            succs[i].append((j, sl, cyc))
    t = 0
    ideal = {}
    for j, c in enumerate(prog):
        if c.kind == "mfma":
            ideal[j] = t
            t += c.passes * 4
    total = t
    dl = [None] * n
    for j in range(n - 1, -1, -1):
        c = prog[j]
        d = ideal.get(j)
        if d is None:
            d = c.deadline if c.deadline is not None else total + 10000
            for (k, sl, cyc) in succs[j]:
                d = min(d, dl[k] - max(cyc, sl * 4, c.cost))
        dl[j] = d
    issued_t = [None] * n
    issued_slot = [None] * n
    npred = [len(preds[j]) for j in range(n)]
    ready = {j for j in range(n) if npred[j] == 0}
    order = []
    now = 0
    pipe_free = 0
    slot = 0
    mf = [j for j, c in enumerate(prog) if c.kind == "mfma"]
    mi = 0
    gap_used = 0
    stall = 0

    def earliest(j):
        tt = prog[j].release if prog[j].release is not None else 0
        ss = 0
        for i, (sl, cyc) in preds[j].items():
            tt = max(tt, issued_t[i] + cyc)
            ss = max(ss, issued_slot[i] + 1 + sl)
        return tt, ss

    def emit(j):
        nonlocal now, slot, pipe_free, gap_used
        c = prog[j]
        issued_t[j] = now
        issued_slot[j] = slot
        c.time = now
        order.append(c)
        ready.discard(j)
        for (k, sl, cyc) in succs[j]:
            npred[k] -= 1
            if npred[k] == 0:
                ready.add(k)
        slot += 1
        if c.kind == "mfma":
            pipe_free = now + c.passes * 4
            gap_used = 0
        else:
            gap_used += c.cost
        now += c.cost

    while len(order) < n:
        m = mf[mi] if mi < len(mf) else None
        m_ok = False
        if m is not None and m in ready:
            tt, ss = earliest(m)
            m_ok = tt <= max(now, pipe_free) and ss <= slot
        if m_ok and now >= pipe_free:
            emit(m)
            mi += 1
            continue
        best = None
        for j in ready:
            c = prog[j]
            if c.kind == "mfma":
                continue
            tt, ss = earliest(j)
            if tt > now or ss > slot:
                continue
            if m_ok and (now + c.cost > pipe_free or gap_used + c.cost > gap_budget):
                continue
            key = (dl[j], j)
            if best is None or key < best[0]:
                best = (key, j)
        if best is not None:
            emit(best[1])
            continue
        if m_ok:
            now = pipe_free
            emit(m)
            mi += 1
            continue
        cand = []
        for j in ready:
            tt, ss = earliest(j)
            cand.append((tt, ss, j))
        tmin = min(max(tt, now) for tt, ss, j in cand)
        if tmin > now:
            if now >= pipe_free:
                stall += max(0, tmin - max(now, pipe_free))
            now = tmin
        else:
            nop = Inst("s_nop 0", "nop")
            nop.time = now
            order.append(nop)
            n += 1
            issued_t.append(now)
            issued_slot.append(slot)
            slot += 1
            now += 4
            gap_used += 4
    end = max(now, pipe_free)
    if verbose:
        print(f"; schedule: {len(order)} insts, ideal {total} cyc, model {end} cyc")
    return order, end
```

```python
import sys, math, struct, argparse
from asmlib import *

NAME = "standalone__swin_window_attn__vision"
NWIN = 5329
XBYTES = 100270464
ROWB = 196224
WINROW = 7 * ROWB
MAGIC73 = (1 << 32) // 73 + 1
for w in range(0, 8192):
    assert (w * MAGIC73) >> 32 == w // 73
ALPHA = (192 ** -0.5) * math.log2(math.e)
WS_TIME_OFF = 1 << 20


def f32bits(x):
    return struct.unpack("<I", struct.pack("<f", x))[0]


def mfma(bd, d, ba, a, bb, b, first):
    c = "0" if first else T(bd, d, 16)
    D = R(bd, d, 16)
    AB = R(ba, a, 4) + R(bb, b, 4)
    return Inst(f"v_mfma_f32_32x32x16_bf16 {T(bd, d, 16)}, {T(ba, a, 4)}, {T(bb, b, 4)}, {c}", "mfma",
                defs=D, uses=AB + ([] if first else D), srcC=([] if first else D), srcAB=AB, passes=8)


def valu(text, defs, uses, kind="valu", **kw):
    return Inst(text, kind, defs=defs, uses=uses, **kw)


def cvtpk(d, a, b):
    bt = f"v{b}" if b is not None else "0"
    return valu(f"v_cvt_pk_bf16_f32 v{d}, v{a}, {bt}", [f"v{d}"], [f"v{a}"] + ([f"v{b}"] if b is not None else []))


def salu(text, defs, uses, **kw):
    return Inst(text, "salu", defs=defs, uses=uses, **kw)


def raw(text, kind="other", defs=(), uses=()):
    return Inst(text, kind, defs=defs, uses=uses)


def v3(op, d, *srcs):
    uses = [s for s in srcs if isinstance(s, str) and (is_vreg(s) or is_sreg(s))]
    return valu(f"{op} {d}, " + ", ".join(str(s) for s in srcs), [d], uses)


def gen_prep():
    p = []
    a = p.append
    a(raw("s_cmp_ge_u32 s2, 72", "salu", ["scc"], ["s2"]))
    a(raw("s_cbranch_scc1 L_prep_done"))
    a(raw("s_load_dwordx4 s[4:7], s[0:1], 8"))
    a(raw("s_load_dwordx2 s[8:9], s[0:1], 40"))
    a(salu("s_cmp_ge_u32 s2, 36", ["scc"], ["s2"]))
    a(salu("s_cselect_b32 s20, 1, 0", ["s20"], ["scc"]))
    a(salu("s_mul_i32 s21, s20, 36", ["s21"], ["s20"]))
    a(salu("s_sub_u32 s21, s2, s21", ["s21", "scc"], ["s2", "s21"]))
    a(salu("s_mul_i32 s22, s21, 43", ["s22"], ["s21"]))
    a(salu("s_lshr_b32 s22, s22, 8", ["s22", "scc"], ["s22"]))
    for r in range(36):
        assert (r * 43) >> 8 == r // 6
    a(salu("s_mul_i32 s23, s22, 6", ["s23"], ["s22"]))
    a(salu("s_sub_u32 s23, s21, s23", ["s23", "scc"], ["s21", "s23"]))
    a(v3("v_and_b32", "v1", "31", "v0"))
    a(v3("v_lshrrev_b32", "v2", "5", "v0"))
    a(v3("v_and_b32", "v3", "0x13", "v1"))
    a(v3("v_and_b32", "v4", "4", "v1"))
    a(v3("v_lshl_or_b32", "v3", "v4", "1", "v3"))
    a(v3("v_and_b32", "v4", "8", "v1"))
    a(v3("v_lshrrev_b32", "v4", "1", "v4"))
    a(v3("v_or_b32", "v3", "v3", "v4"))
    a(salu("s_movk_i32 s24, 1152", ["s24"], []))
    a(v3("v_mul_lo_u32", "v5", "v3", "s24"))
    a(v3("v_lshl_add_u32", "v5", "v2", "4", "v5"))
    a(salu("s_mul_i32 s25, s22, 36864", ["s25"], ["s22"]))
    a(salu("s_mul_i32 s26, s20, 768", ["s26"], ["s20"]))
    a(salu("s_add_u32 s25, s25, s26", ["s25", "scc"], ["s25", "s26"]))
    a(salu("s_mul_i32 s26, s23, 36864", ["s26"], ["s23"]))
    a(salu("s_add_u32 s26, s26, 384", ["s26", "scc"], ["s26"]))
    a(raw("s_waitcnt lgkmcnt(0)", "wait"))
    for (dst, src, nb) in ((12, 4, 192 * 576 * 2), (16, 6, 192 * 192 * 2), (28, 8, 147456)):
        a(salu(f"s_mov_b32 s{dst}, s{src}", [f"s{dst}"], [f"s{src}"]))
        a(salu(f"s_and_b32 s{dst+1}, s{src+1}, 0xffff", [f"s{dst+1}", "scc"], [f"s{src+1}"]))
        a(salu(f"s_mov_b32 s{dst+2}, {nb}", [f"s{dst+2}"], []))
        a(salu(f"s_mov_b32 s{dst+3}, 0x20000", [f"s{dst+3}"], []))
    for s in range(12):
        a(Inst(f"buffer_load_dwordx4 {T('v', 16 + 4 * s, 4)}, v5, s[12:15], s25 offen offset:{32 * s}", "vload",
               defs=R('v', 16 + 4 * s, 4), uses=["v5", "s25"]))
    a(salu("s_cmp_eq_u32 s20, 1", ["scc"], ["s20"]))
    a(raw("s_cbranch_scc1 L_prep_n"))
    for s in range(12):
        a(Inst(f"buffer_load_dwordx4 {T('v', 64 + 4 * s, 4)}, v5, s[12:15], s26 offen offset:{32 * s}", "vload",
               defs=R('v', 64 + 4 * s, 4), uses=["v5", "s26"]))
    a(salu(f"s_mov_b32 s27, 0x{f32bits(ALPHA):08x}", ["s27"], []))
    a(raw("s_waitcnt vmcnt(0)", "wait"))
    a(raw("s_branch L_prep_mm"))
    a(raw("L_prep_n:", "label"))
    a(v3("v_mul_u32_u24", "v6", "6", "v1"))
    a(v3("v_add_u32", "v6", "s23", "v6"))
    a(v3("v_lshlrev_b32", "v6", "1", "v6"))
    a(v3("v_mul_u32_u24", "v7", "0xc00", "v2"))
    a(v3("v_add_u32", "v6", "v6", "v7"))
    for s in range(12):
        a(salu(f"s_movk_i32 s27, {s * 6144 if s * 6144 < 32768 else 0}", ["s27"], []) if s * 6144 < 32768 else
          salu(f"s_mov_b32 s27, {s * 6144}", ["s27"], []))
        for j in range(8):
            r = 128 + 8 * s + j
            a(Inst(f"buffer_load_ushort v{r}, v6, s[16:19], s27 offen offset:{384 * j}", "vload",
                   defs=[f"v{r}"], uses=["v6", "s27"]))
    a(salu("s_mov_b32 s27, 1.0", ["s27"], []))
    a(raw("s_waitcnt vmcnt(0)", "wait"))
    for s in range(12):
        for jj in range(4):
            lo, hi = 128 + 8 * s + 2 * jj, 128 + 8 * s + 2 * jj + 1
            a(v3("v_lshl_or_b32", f"v{64 + 4 * s + jj}", f"v{hi}", "16", f"v{lo}"))
    a(raw("L_prep_mm:", "label"))
    a(raw("s_nop 1", "nop"))
    for s in range(12):
        a(mfma("v", 112, "v", 16 + 4 * s, "v", 64 + 4 * s, s == 0))
    a(salu("s_mul_i32 s24, s20, 72", ["s24"], ["s20"]))
    a(salu("s_mul_i32 s25, s23, 12", ["s25"], ["s23"]))
    a(salu("s_add_u32 s24, s24, s25", ["s24", "scc"], ["s24", "s25"]))
    a(salu("s_lshl_b32 s25, s22, 1", ["s25", "scc"], ["s22"]))
    a(salu("s_add_u32 s24, s24, s25", ["s24", "scc"], ["s24", "s25"]))
    a(salu("s_lshl_b32 s24, s24, 10", ["s24", "scc"], ["s24"]))
    a(v3("v_lshlrev_b32", "v8", "4", "v0"))
    for r in range(16):
        a(v3("v_mul_f32", f"v{112 + r}", "s27", f"v{112 + r}"))
    for r in range(8):
        a(cvtpk(16 + r, 112 + 2 * r, 113 + 2 * r))
    a(Inst("buffer_store_dwordx4 v[16:19], v8, s[28:31], s24 offen", "vstore", uses=R('v', 16, 4) + ["v8"], wide=True))
    a(Inst("buffer_store_dwordx4 v[20:23], v8, s[28:31], s24 offen offset:1024", "vstore", uses=R('v', 20, 4) + ["v8"], wide=True))
    a(raw("L_prep_done:", "label"))
    a(raw("s_endpgm"))
    return insert_nops(p)


AX, AXN, AW = 0, 96, 192
B = [0, 16, 32, 48]
TA, TB = 64, 80
CB = [96, 104]
PB = 112
OPK = 144
HOLE = [OPK + 4 * i + 3 for i in range(25)]
V_LDS = [244, 245, 246]
V_X = [247, 248]
V_STA, V_STB, V_STC = 249, 250, 251
V_BIAS = 252
V_M, V_T, V_R = 253, 254, 255
V_S = [HOLE[0], HOLE[1], HOLE[2], HOLE[3]]
V_TIME = HOLE[4]
S_WCUR, S_LB, S_CB, S_ROW = 16, 17, 18, 20
S_IT = 28


def xr(q, s, nxt=False):
    return (AXN if nxt else AX) + 48 * q + 4 * s


def wfrag_read(mat, t, s, **kw):
    off = (mat * 72 + t * 12 + s) * 1024
    base, imm = divmod(off, 65536)
    d = AW + 4 * s
    return Inst(f"ds_read_b128 {T('a', d, 4)}, v{V_LDS[base]} offset:{imm}", "dsr", defs=R('a', d, 4),
                uses=[f"v{V_LDS[base]}"], **kw)


def xload(q, s, dst, sbase, **kw):
    return Inst(f"buffer_load_dwordx4 {T('a', dst, 4)}, v{V_X[q]}, s[4:7], s{sbase} offen offset:{32 * s}" + kw.pop("flags", ""),
                "vload", defs=R('a', dst, 4), uses=[f"v{V_X[q]}", f"s{sbase}", "s6"], **kw)


def store_desc(sig):
    if sig <= 20:
        return V_STA, sig // 3, 2 * (sig % 3) * 384
    if sig <= 23:
        return V_STB, 2 * (sig - 21), 6 * 384
    return V_STC, 6, 6 * 384


def sig_to_qr(sig):
    q, rem = divmod(sig, 16)
    return q, rem


def o_mfmas(t):
    out = []
    for ks in range(4):
        for q in range(2):
            out.append(mfma("v", B[2 * q + (t & 1)], "v", PB + 16 * q + 4 * ks, "v", CB[ks >> 1] + 4 * (ks & 1), ks == 0))
    return out


def o_pack(u):
    out = []
    for sig in range(25):
        q, r = sig_to_qr(sig)
        out.append(cvtpk(OPK + 4 * sig + u, B[2 * q] + r, B[2 * q + 1] + r))
    return out


def o_stores(rel0=None, step=0, flags=""):
    out = []
    for sig in range(25):
        vo, row, imm = store_desc(sig)
        d = OPK + 4 * sig
        out.append(Inst(f"buffer_store_dwordx3 {T('v', d, 3)}, v{vo}, s[8:11], s{S_ROW + row} offen offset:{imm}{flags}",
                        "vstore", uses=R('v', d, 3) + [f"v{vo}", f"s{S_ROW + row}", "s10"], wide=True,
                        release=None if rel0 is None else rel0 + step * sig))
    return out


def cvt_acc(acc, cb, n=8):
    return [cvtpk(cb + r, acc + 2 * r, acc + 2 * r + 1) for r in range(n)]


def softmax(q):
    SA, SB = B[2 * q], B[2 * q + 1]
    regs = [SA + r for r in range(16)] + [SB + r for r in range(9)]
    p = []
    p.append(v3("v_add_f32", f"v{SB + 8}", f"v{SB + 8}", f"v{V_BIAS}"))
    m0, m1 = V_M, V_T
    p.append(v3("v_max3_f32", f"v{m0}", f"v{regs[0]}", f"v{regs[1]}", f"v{regs[2]}"))
    p.append(v3("v_max3_f32", f"v{m1}", f"v{regs[3]}", f"v{regs[4]}", f"v{regs[5]}"))
    k = 6
    tog = 0
    while k + 1 < 24:
        m = (m0, m1)[tog]
        p.append(v3("v_max3_f32", f"v{m}", f"v{m}", f"v{regs[k]}", f"v{regs[k + 1]}"))
        k += 2
        tog ^= 1
    assert k == 24
    p.append(v3("v_max3_f32", f"v{m0}", f"v{m0}", f"v{m1}", f"v{regs[24]}"))
    p.append(v3("v_mov_b32", f"v{m1}", f"v{m0}"))
    p.append(valu(f"v_permlane32_swap_b32 v{m0}, v{m1}", [f"v{m0}", f"v{m1}"], [f"v{m0}", f"v{m1}"], kind="perm"))
    p.append(v3("v_max_f32", f"v{m0}", f"v{m0}", f"v{m1}"))
    for r in regs:
        p.append(v3("v_sub_f32", f"v{r}", f"v{r}", f"v{m0}"))
        p.append(valu(f"v_exp_f32 v{r}, v{r}", [f"v{r}"], [f"v{r}"], kind="trans"))
    for c in range(4):
        p.append(v3("v_add_f32", f"v{V_S[c]}", f"v{regs[2 * c]}", f"v{regs[2 * c + 1]}"))
    for k in range(8, 25):
        c = k & 3
        p.append(v3("v_add_f32", f"v{V_S[c]}", f"v{V_S[c]}", f"v{regs[k]}"))
    p.append(v3("v_add_f32", f"v{V_S[0]}", f"v{V_S[0]}", f"v{V_S[1]}"))
    p.append(v3("v_add_f32", f"v{V_S[2]}", f"v{V_S[2]}", f"v{V_S[3]}"))
    p.append(v3("v_add_f32", f"v{V_S[0]}", f"v{V_S[0]}", f"v{V_S[2]}"))
    p.append(v3("v_mov_b32", f"v{V_S[1]}", f"v{V_S[0]}"))
    p.append(valu(f"v_permlane32_swap_b32 v{V_S[0]}, v{V_S[1]}", [f"v{V_S[0]}", f"v{V_S[1]}"],
                  [f"v{V_S[0]}", f"v{V_S[1]}"], kind="perm"))
    p.append(v3("v_add_f32", f"v{V_S[0]}", f"v{V_S[0]}", f"v{V_S[1]}"))
    p.append(valu(f"v_rcp_f32 v{V_R}, v{V_S[0]}", [f"v{V_R}"], [f"v{V_S[0]}"], kind="trans"))
    for k in range(0, 24, 2):
        p.append(v3("v_mul_f32", f"v{regs[k]}", f"v{regs[k]}", f"v{V_R}"))
        p.append(v3("v_mul_f32", f"v{regs[k + 1]}", f"v{regs[k + 1]}", f"v{V_R}"))
        p.append(cvtpk(PB + 16 * q + k // 2, regs[k], regs[k + 1]))
    p.append(v3("v_mul_f32", f"v{regs[24]}", f"v{regs[24]}", f"v{V_R}"))
    p.append(cvtpk(PB + 16 * q + 12, regs[24], None))
    return p


def win_base(dst, w, tmp):
    return [
        salu(f"s_mul_hi_u32 s{tmp}, s{w}, s29", [f"s{tmp}"], [f"s{w}", "s29"]),
        salu(f"s_mul_i32 s{dst}, s{tmp}, 73", [f"s{dst}"], [f"s{tmp}"]),
        salu(f"s_sub_u32 s{dst}, s{w}, s{dst}", [f"s{dst}", "scc"], [f"s{w}", f"s{dst}"]),
        salu(f"s_mul_i32 s{dst}, s{dst}, 2688", [f"s{dst}"], [f"s{dst}"]),
        salu(f"s_mul_i32 s{tmp}, s{tmp}, {WINROW}", [f"s{tmp}"], [f"s{tmp}"]),
        salu(f"s_add_u32 s{dst}, s{dst}, s{tmp}", [f"s{dst}", "scc"], [f"s{dst}", f"s{tmp}"]),
    ]


def row_bases():
    out = [salu(f"s_mov_b32 s{S_ROW}, s{S_CB}", [f"s{S_ROW}"], [f"s{S_CB}"])]
    for r in range(1, 7):
        out.append(salu(f"s_add_u32 s{S_ROW + r}, s{S_CB}, {r * ROWB}", [f"s{S_ROW + r}", "scc"], [f"s{S_CB}"]))
    return out


def xmove(q):
    return [valu(f"v_accvgpr_mov_b32 a{xr(q, 0) + i}, a{xr(q, 0, True) + i}", [f"a{xr(q, 0) + i}"], [f"a{xr(q, 0, True) + i}"])
            for i in range(48)]


def gen_body(o):
    p = []
    ext = p.extend
    p.append(salu(f"s_add_u32 s{S_WCUR}, s{S_WCUR}, 1024", [f"s{S_WCUR}", "scc"], [f"s{S_WCUR}"], deadline=0))
    ext(win_base(S_LB, S_WCUR, 30))
    p.append(salu(f"s_cmp_lt_u32 s{S_WCUR}, {NWIN}", ["scc"], [f"s{S_WCUR}"]))
    p.append(salu(f"s_cselect_b32 s6, s31, 0", ["s6"], ["scc", "s31"]))
    for s in range(12):
        p.append(xload(0, s, xr(0, s, True), S_LB, release=o.ld0_rel + o.ld_step * s, deadline=o.ld0_rel + o.ld_step * s + 64, flags=o.ld_flags))
    ext(cvt_acc(TB, CB[1], 5))

    def chain_T(c):
        q, t = divmod(c, 6)
        acc = (TA, TB)[c & 1]
        out = []
        for s in range(12):
            out.append(mfma("v", acc, "a", AW + 4 * s, "a", xr(q, s), s == 0))
            if c < 11:
                out.append(wfrag_read(0, (c + 1) % 6, s))
            else:
                out.append(wfrag_read(1, 0, s))
        return out

    def s_mf(c):
        q, t = divmod(c, 6)
        out = []
        for u in range(2):
            for k in range(2):
                out.append(mfma("v", B[2 * q + k], "a", xr(k, 2 * t + u), "v", CB[c & 1] + 4 * u, t == 0 and u == 0))
        return out

    def chain_V(k, t):
        acc = (TA, TB)[k]
        out = []
        for s in range(12):
            out.append(mfma("v", acc, "a", xr(k, s), "a", AW + 4 * s, s == 0))
            if k == 1:
                if t < 5:
                    out.append(wfrag_read(1, t + 1, s))
                else:
                    out.append(wfrag_read(0, 0, s, deadline=384 * 32 + 32 * s - 200))
        return out

    ext(chain_T(0))
    ext(o_mfmas(5))
    ext(xmove(1))
    for s in range(12):
        p.append(xload(1, s, xr(1, s, True), S_LB, release=o.ld1_rel + o.ld_step * s, deadline=o.ld1_rel + o.ld_step * s + 64, flags=o.ld_flags))
    ext(o_pack(2))
    st = o_stores(o.st_rel, o.st_step, o.st_flags)
    for i in st:
        i.deadline = i.release + 64
    ext(st)
    ext(row_bases())
    p.append(salu("s_mov_b32 s10, s31", ["s10"], ["s31"]))
    p.append(salu(f"s_mov_b32 s{S_CB}, s{S_LB}", [f"s{S_CB}"], [f"s{S_LB}"]))
    ext(cvt_acc(TA, CB[0]))
    for c in range(1, 12):
        ext(chain_T(c))
        ext(s_mf(c - 1))
        if c - 1 == 5:
            ext(softmax(0))
        ext(cvt_acc((TA, TB)[c & 1], CB[c & 1]))
    ext(chain_V(0, 0))
    ext(s_mf(11))
    ext(softmax(1))
    ext(cvt_acc(TA, CB[0]))
    ext(chain_V(1, 0))
    ext(cvt_acc(TB, CB[1], 5))
    ext(chain_V(0, 1))
    ext(chain_V(1, 1))
    ext(o_mfmas(0))
    ext(cvt_acc(TA, CB[0]))
    ext(cvt_acc(TB, CB[1], 5))
    for t in range(2, 6):
        ext(chain_V(0, t))
        ext(o_mfmas(t - 1))
        if (t - 1) & 1:
            ext(o_pack((t - 1) >> 1))
        ext(cvt_acc(TA, CB[0]))
        if t == 5:
            mv = xmove(0)
            for i, m in enumerate(mv):
                m.deadline = 384 * 32 + 32 * (i // 4) - 16
            ext(mv)
        ext(chain_V(1, t))
        if t < 5:
            ext(cvt_acc(TB, CB[1], 5))
    return p


def gen_epilogue():
    p = []
    p.extend(cvt_acc(TB, CB[1], 5))
    p.extend(o_mfmas(5))
    p.extend(o_pack(2))
    p.extend(o_stores())
    return p


def gen_prologue(o):
    p = []
    a = p.append
    a(raw("s_cmp_ge_u32 s2, 256", "salu", ["scc"], ["s2"]))
    a(raw("s_cbranch_scc1 L_main_done"))
    a(raw("s_load_dwordx2 s[32:33], s[0:1], 0"))
    a(raw("s_load_dwordx2 s[34:35], s[0:1], 24"))
    a(raw("s_load_dwordx2 s[36:37], s[0:1], 40"))
    if o.diag:
        a(raw("s_memtime s[44:45]"))
    a(v3("v_and_b32", "v1", "63", "v0"))
    a(v3("v_lshrrev_b32", "v2", "6", "v0"))
    a(raw("s_nop 0", "nop"))
    a(valu("v_readfirstlane_b32 s38, v2", ["s38"], ["v2"]))
    a(v3("v_and_b32", "v3", "31", "v1"))
    a(v3("v_lshrrev_b32", "v4", "5", "v1"))
    a(v3("v_lshlrev_b32", f"v{V_LDS[0]}", "4", "v1"))
    a(v3("v_add_u32", f"v{V_LDS[1]}", "0x10000", f"v{V_LDS[0]}"))
    a(v3("v_add_u32", f"v{V_LDS[2]}", "0x20000", f"v{V_LDS[0]}"))
    a(salu("s_lshl_b32 s16, s2, 2", ["s16", "scc"], ["s2"]))
    a(salu("s_add_u32 s16, s16, s38", ["s16", "scc"], ["s16", "s38"]))
    a(salu(f"s_mov_b32 s29, {MAGIC73}", ["s29"], []))
    a(salu(f"s_mov_b32 s31, {XBYTES}", ["s31"], []))
    p.extend(win_base(S_CB, S_WCUR, 30))
    a(v3("v_lshrrev_b32", "v5", "3", "v3"))
    a(v3("v_and_b32", "v6", "3", "v3"))
    a(v3("v_lshl_add_u32", "v5", "v5", "2", "v6"))
    a(v3("v_bfe_u32", "v6", "v3", "2", "1"))
    a(salu(f"s_mov_b32 s39, {ROWB}", ["s39"], []))
    a(salu("s_movk_i32 s40, 384", ["s40"], []))
    for sg in range(32):
        assert (sg * 43) >> 7 == sg // 3
    for q in range(2):
        a(v3("v_add_u32", "v7", str(16 * q), "v5"))
        a(v3("v_mul_u32_u24", "v8", "43", "v7"))
        a(v3("v_lshrrev_b32", "v8", "7", "v8"))
        a(v3("v_mul_u32_u24", "v9", "3", "v8"))
        a(v3("v_sub_u32", "v9", "v7", "v9"))
        a(v3("v_lshl_add_u32", "v9", "v9", "1", "v6"))
        if q == 1:
            a(v3("v_subrev_u32", "v10", "21", "v7"))
            a(v3("v_lshl_add_u32", "v10", "v10", "1", "v6"))
            a(valu("v_cmp_lt_u32 vcc, 20, v7", ["vcc"], ["v7"]))
            a(v3("v_mov_b32", "v11", "6"))
            a(valu("v_cndmask_b32 v8, v8, v10, vcc", ["v8"], ["v8", "v10", "vcc"]))
            a(valu("v_cndmask_b32 v9, v9, v11, vcc", ["v9"], ["v9", "v11", "vcc"]))
        a(v3("v_mul_lo_u32", "v10", "v8", "s39"))
        a(v3("v_mul_lo_u32", "v11", "v9", "s40"))
        a(v3("v_add_u32", "v10", "v10", "v11"))
        a(v3("v_lshl_add_u32", f"v{V_X[q]}", "v4", "4", "v10"))
        if q == 1:
            a(valu("v_cmp_lt_u32 vcc, 6, v8", ["vcc"], ["v8"]))
            a(v3("v_mov_b32", "v11", "0x80000000"))
            a(valu(f"v_cndmask_b32 v{V_X[1]}, v{V_X[1]}, v11, vcc", [f"v{V_X[1]}"], [f"v{V_X[1]}", "v11", "vcc"]))
    a(v3("v_mul_u32_u24", "v10", "12", "v3"))
    a(v3("v_mul_u32_u24", "v11", "0x180", "v4"))
    a(v3("v_add_u32", f"v{V_STA}", "v10", "v11"))
    a(v3("v_mul_lo_u32", "v11", "v4", "s39"))
    a(v3("v_add_u32", f"v{V_STB}", "v10", "v11"))
    a(v3("v_lshlrev_b32", "v11", "31", "v4"))
    a(v3("v_or_b32", f"v{V_STC}", "v10", "v11"))
    a(v3("v_mul_lo_u32", f"v{V_BIAS}", "v4", "s41") if False else salu("s_mov_b32 s41, 0xff800000", ["s41"], []))
    a(v3("v_mul_lo_u32", f"v{V_BIAS}", "v4", "s41"))
    for q in range(2):
        for r in range(13, 16):
            a(v3("v_mov_b32", f"v{PB + 16 * q + r}", "0"))
    a(raw("s_waitcnt lgkmcnt(0)", "wait"))
    for (dst, src, nb) in ((4, 32, "s31"), (8, 34, "0"), (12, 36, "147456" if not o.diag else str(WS_TIME_OFF + 1024 * 256))):
        a(salu(f"s_mov_b32 s{dst}, s{src}", [f"s{dst}"], [f"s{src}"]))
        a(salu(f"s_and_b32 s{dst+1}, s{src+1}, 0xffff", [f"s{dst+1}", "scc"], [f"s{src+1}"]))
        a(salu(f"s_mov_b32 s{dst+2}, {nb}", [f"s{dst+2}"], []))
        a(salu(f"s_mov_b32 s{dst+3}, 0x20000", [f"s{dst+3}"], []))
    for r in range(7):
        a(salu(f"s_mov_b32 s{S_ROW + r}, 0", [f"s{S_ROW + r}"], []))
    a(salu("s_mul_i32 s42, s38, 18432", ["s42"], ["s38"]))
    for mat in range(2):
        for g0 in range(0, 18, 4):
            a(salu(f"s_add_u32 s43, s42, {mat * 73728 + g0 * 1024}", ["s43", "scc"], ["s42"]))
            a(salu("s_mov_b32 m0, s43", ["m0"], ["s43"]))
            for k in range(min(4, 18 - g0)):
                a(Inst(f"buffer_load_dwordx4 v{V_LDS[0]}, s[12:15], s43 offen offset:{1024 * k} lds", "ldsdma",
                       uses=[f"v{V_LDS[0]}", "s43", "m0"]))
        if mat == 0 and o.x_between:
            for q in range(2):
                for s in range(12):
                    a(xload(q, s, xr(q, s, q == 1), S_CB, flags=o.ld_flags))
    if not o.x_between:
        for q in range(2):
            for s in range(12):
                a(xload(q, s, xr(q, s, q == 1), S_CB, flags=o.ld_flags))
    a(raw("s_waitcnt vmcnt(0)", "wait"))
    a(raw("s_barrier"))
    for s in range(12):
        a(wfrag_read(0, 0, s))
    if o.diag:
        a(salu(f"s_mov_b32 s{S_IT}, 1", [f"s{S_IT}"], []))
        a(v3("v_mov_b32", f"v{V_TIME}", "s44"))
    a(raw("s_waitcnt lgkmcnt(0)", "wait"))
    return p


def stamp():
    return [raw("s_memtime s[44:45]"), salu(f"s_mov_b32 m0, s{S_IT}", ["m0"], [f"s{S_IT}"]), raw("s_waitcnt lgkmcnt(0)", "wait"),
            valu(f"v_writelane_b32 v{V_TIME}, s44, m0", [f"v{V_TIME}"], ["s44", "m0"]),
            salu(f"s_add_u32 s{S_IT}, s{S_IT}, 1", [f"s{S_IT}", "scc"], [f"s{S_IT}"])]


def gen_main(o):
    pro = insert_nops(gen_prologue(o))
    body = gen_body(o)
    if o.sched:
        body, cyc = schedule(body, gap_budget=o.gap, verbose=True)
    else:
        cyc = 0
    tail = [salu(f"s_cmp_lt_u32 s{S_WCUR}, {NWIN}", ["scc"], [f"s{S_WCUR}"]), raw("s_cbranch_scc1 L_loop")]
    head = stamp() if o.diag else []
    body = head + body + tail
    el = (o.early, cyc) if (o.sched and o.early) else 0
    b1 = insert_waits(body, early_lgkm=el)
    b2 = insert_waits(body, pre=b1, early_lgkm=el)
    b3 = insert_waits(body, pre=b2, early_lgkm=el)
    assert [i.text for i in b2] == [i.text for i in b3]
    n1 = insert_nops(b2, pre=[pro])
    n2 = insert_nops(b2, pre=[pro, n1])
    n3 = insert_nops(b2, pre=[pro, n2])
    assert [i.text for i in n2] == [i.text for i in n3]
    epi = gen_epilogue()
    epi = insert_waits(epi, pre=b2)
    if o.diag:
        epi += stamp()
        epi += [raw("s_waitcnt vmcnt(0)", "wait")] + stamp()
        epi += [v3("v_lshlrev_b32", "v0", "2", f"v{V_LDS[0]}"), v3("v_lshrrev_b32", "v0", "4", "v0"),
                salu("s_lshl_b32 s42, s2, 2", ["s42", "scc"], ["s2"]),
                salu("s_add_u32 s42, s42, s38", ["s42", "scc"], ["s42", "s38"]),
                salu("s_lshl_b32 s42, s42, 8", ["s42", "scc"], ["s42"]),
                salu(f"s_add_u32 s42, s42, {WS_TIME_OFF}", ["s42", "scc"], ["s42"]),
                Inst(f"buffer_store_dword v{V_TIME}, v0, s[12:15], s42 offen", "vstore", uses=[f"v{V_TIME}", "v0", "s42"])]
    epi = insert_nops(epi, pre=[n2])
    stats = {}
    for i in n2:
        stats[i.kind] = stats.get(i.kind, 0) + 1
    print("; body stats", stats, file=sys.stderr)
    return pro, n2, epi


def emit(insts):
    out = []
    for i in insts:
        out.append(i.text if i.kind == "label" else "    " + i.text)
    return "\n".join(out)


HEADER = """; Swin window attention: folded projections (M = a*Wq*Wk^T, N = Wv*Wo), one wave per window.
; @launch kernel=swin_prep_kernel grid=(72,1,1) block=(64,1,1) lds=0
; @launch kernel={name}_kernel grid=(256,1,1) block=(256,1,1) lds=147456
.amdgcn_target "amdgcn-amd-amdhsa--gfx950"
.text
"""

KD = """.amdhsa_kernel {k}
  .amdhsa_next_free_vgpr {nv}
  .amdhsa_next_free_sgpr {ns}
  .amdhsa_accum_offset {ao}
  .amdhsa_group_segment_fixed_size 0
  .amdhsa_kernarg_size 48
  .amdhsa_user_sgpr_count 2
  .amdhsa_user_sgpr_kernarg_segment_ptr 1
  .amdhsa_system_sgpr_workgroup_id_x 1
.end_amdhsa_kernel
"""


def main():
    ap = argparse.ArgumentParser()
    ap.add_argument("-o", default="cdna_kernels/" + NAME + ".s")
    ap.add_argument("--nosched", dest="sched", action="store_false")
    ap.add_argument("--diag", action="store_true")
    ap.add_argument("--gap", type=int, default=24)
    ap.add_argument("--early", type=int, default=230)
    ap.add_argument("--ld0_rel", type=int, default=32)
    ap.add_argument("--ld1_rel", type=int, default=1000)
    ap.add_argument("--ld_step", type=int, default=64)
    ap.add_argument("--st_rel", type=int, default=1900)
    ap.add_argument("--st_step", type=int, default=96)
    ap.add_argument("--ld_flags", default="")
    ap.add_argument("--st_flags", default="")
    ap.add_argument("--x_between", action="store_true")
    o = ap.parse_args()
    if o.ld_flags:
        o.ld_flags = " " + o.ld_flags
    if o.st_flags:
        o.st_flags = " " + o.st_flags
    old = sys.stdout
    sys.stdout = sys.stderr
    prep = gen_prep()
    pro, body, epi = gen_main(o)
    sys.stdout = old
    s = HEADER.format(name=NAME)
    s += ".globl swin_prep_kernel\n.p2align 8\n.type swin_prep_kernel,@function\nswin_prep_kernel:\n"
    s += emit(prep) + "\n"
    k = NAME + "_kernel"
    s += f".globl {k}\n.p2align 8\n.type {k},@function\n{k}:\n"
    s += emit(pro) + "\n.p2align 6\nL_loop:\n" + emit(body) + "\n" + emit(epi) + "\nL_main_done:\n    s_endpgm\n"
    s += '.section .rodata,"a"\n.p2align 6\n'
    s += KD.format(k="swin_prep_kernel", nv=224, ns=40, ao=224)
    s += ".p2align 6\n"
    s += KD.format(k=k, nv=496, ns=48, ao=256)
    open(o.o, "w").write(s)


if __name__ == "__main__":
    main()
```

```python
import re


def R(bank, lo, n=1):
    return [f"{bank}{lo + i}" for i in range(n)]


def T(bank, lo, n=1):
    return f"{bank}{lo}" if n == 1 else f"{bank}[{lo}:{lo + n - 1}]"


class Inst:
    __slots__ = ("text", "kind", "defs", "uses", "srcC", "srcAB", "passes", "release", "deadline",
                 "idx", "tag", "cost", "time", "pin", "wide", "prio")

    def __init__(self, text, kind, defs=(), uses=(), srcC=(), srcAB=(), passes=0,
                 release=None, deadline=None, tag="", wide=False):
        self.text = text
        self.kind = kind
        self.defs = list(defs)
        self.uses = list(uses)
        self.srcC = list(srcC)
        self.srcAB = list(srcAB)
        self.passes = passes
        self.release = release
        self.deadline = deadline
        self.tag = tag
        self.wide = wide
        self.cost = {"mfma": 8, "trans": 8}.get(kind, 4)
        self.time = None
        self.prio = 0

    def __repr__(self):
        return f"<{self.text}>"


VALU_KINDS = ("valu", "trans", "perm")
VMEM_KINDS = ("vload", "vstore", "ldsdma")


def is_vreg(r):
    return r[0] in "va" and r[1:].isdigit()


def is_sreg(r):
    return (r[0] == "s" and r[1:].isdigit()) or r in ("vcc",)


def hazard_slots(p, c):
    need = 0
    pd, cu, cd = set(p.defs), set(c.uses), set(c.defs)
    if p.kind in VALU_KINDS:
        vd = {r for r in pd if is_vreg(r)}
        sd = {r for r in pd if is_sreg(r)}
        if c.kind == "mfma" and vd & cu:
            need = max(need, 2)
        if c.kind == "perm" and vd & cu:
            need = max(need, 2)
        if p.kind == "trans" and c.kind in ("valu", "perm", "mfma") and vd & cu:
            need = max(need, 1)
        if p.kind == "trans" and c.kind in VMEM_KINDS + ("dsw", "dsr") and vd & cu:
            need = max(need, 1)
        if c.text.startswith(("v_readfirstlane", "v_readlane")) and vd & cu:
            need = max(need, 1)
        if "dpp" in c.text or "row_" in c.text:
            if vd & cu:
                need = max(need, 2)
        if sd & cu:
            if c.kind in VALU_KINDS:
                need = max(need, 2)
            if c.kind in VMEM_KINDS:
                need = max(need, 5)
            if c.kind == "salu":
                need = max(need, 1)
        if "exec" in pd and c.kind == "mfma":
            need = max(need, 4)
    if p.kind == "mfma":
        ps = p.passes
        t_ab = {2: 5, 4: 8, 8: 12, 16: 20}[ps]
        t_ov = {2: 4, 4: 6, 8: 10, 16: 18}[ps]
        t_war = {2: 1, 4: 3, 8: 7, 16: 15}[ps]
        if c.kind == "mfma":
            if pd & set(c.srcAB):
                need = max(need, t_ab)
            if pd & set(c.srcC):
                if c.srcC == p.defs and c.passes == p.passes:
                    need = max(need, 2 if ps == 2 else 0)
                else:
                    need = max(need, t_ov)
            if pd & cd and c.defs != p.defs:
                need = max(need, t_ov)
        else:
            if pd & (cu | cd):
                need = max(need, t_ab)
            if c.kind in VALU_KINDS and set(p.srcC) & cd:
                need = max(need, t_war)
    if p.kind == "vstore" and p.wide:
        data = {r for r in p.uses if is_vreg(r)}
        if data & cd:
            need = max(need, 2)
    if p.kind == "salu" and "m0" in pd and c.kind == "ldsdma":
        need = max(need, 1)
    return need


def nop_states(i):
    if i.kind == "nop":
        return int(i.text.split()[1]) + 1
    if i.kind in ("label", "comment"):
        return 0
    return 1


def insert_nops(stream, pre=None, window=24):
    alts = pre if pre else [[]]
    out = []
    for c in stream:
        if c.kind in ("label", "comment"):
            out.append(c)
            continue
        worst = 0
        for alt in alts:
            hist = (alt + out)[-60:]
            dist = 0
            for p in reversed(hist):
                if dist >= window:
                    break
                n = hazard_slots(p, c)
                if n > dist:
                    worst = max(worst, n - dist)
                dist += nop_states(p)
        while worst > 0:
            k = min(worst, 16)
            out.append(Inst(f"s_nop {k - 1}", "nop"))
            worst -= k
        out.append(c)
    return out


def insert_waits(stream, pre=None, early_lgkm=0, early_vm=0):
    vq = []
    lq = []

    def apply_wait(i):
        m = re.search(r"vmcnt\((\d+)\)", i.text)
        if m:
            n = int(m.group(1))
            del vq[:max(0, len(vq) - n)]
        m = re.search(r"lgkmcnt\((\d+)\)", i.text)
        if m:
            n = int(m.group(1))
            del lq[:max(0, len(lq) - n)]

    def issue(i):
        if i.kind in VMEM_KINDS:
            vq.append((set(i.defs), i))
        elif i.kind in ("dsr", "dsw"):
            lq.append((set(i.defs), i))
        elif i.kind == "smem":
            raise RuntimeError("smem inside auto-wait region")

    for i in (pre or []):
        if i.kind == "wait":
            apply_wait(i)
        else:
            issue(i)
    out = []
    for c in stream:
        if c.kind == "wait":
            apply_wait(c)
            out.append(c)
            continue
        touch = set(c.uses) | set(c.defs)
        nv = nl = None
        for k, (d, p) in enumerate(vq):
            if d & touch:
                nv = len(vq) - 1 - k
        for k, (d, p) in enumerate(lq):
            if d & touch:
                nl = len(lq) - 1 - k
        if nl is not None and early_lgkm and c.time is not None:
            for k, (d, p) in enumerate(lq):
                if p.time is not None:
                    age = c.time - p.time
                    if age < 0:
                        age += early_lgkm[1]
                    if age >= early_lgkm[0]:
                        nl = min(nl, len(lq) - 1 - k)
        if nv is not None and early_vm and c.time is not None:
            for k, (d, p) in enumerate(vq):
                if p.time is not None:
                    age = c.time - p.time
                    if age < 0:
                        age += early_vm[1]
                    if age >= early_vm[0]:
                        nv = min(nv, len(vq) - 1 - k)
        parts = []
        if nv is not None:
            parts.append(f"vmcnt({min(nv, 63)})")
        if nl is not None:
            parts.append(f"lgkmcnt({min(nl, 15)})")
        if parts:
            w = Inst("s_waitcnt " + " ".join(parts), "wait")
            w.time = c.time
            apply_wait(w)
            out.append(w)
        issue(c)
        out.append(c)
    return out


LAT = {"dsr": 190, "vload": 600, "mfma_valu": 72, "valu": 4, "trans": 8}


def build_deps(prog):
    n = len(prog)
    preds = [dict() for _ in range(n)]
    lastw = {}
    readers = {}

    def add(i, j, cyc):
        if i == j:
            return
        sl = hazard_slots(prog[i], prog[j])
        old = preds[j].get(i)
        if old:
            preds[j][i] = (max(old[0], sl), max(old[1], cyc))
        else:
            preds[j][i] = (sl, cyc)

    prev_mfma = None
    for j, c in enumerate(prog):
        for r in c.uses:
            if r in lastw:
                i = lastw[r]
                p = prog[i]
                if p.kind == "dsr":
                    cyc = LAT["dsr"]
                elif p.kind == "vload":
                    cyc = LAT["vload"]
                elif p.kind == "mfma":
                    if c.kind == "mfma" and r in c.srcC and c.srcC == p.defs:
                        cyc = 0
                    else:
                        cyc = p.passes * 4 + 40
                else:
                    cyc = p.cost
                add(i, j, cyc)
        for r in c.defs:
            if r in lastw:
                i = lastw[r]
                p = prog[i]
                cyc = 0
                if p.kind == "mfma" and c.kind != "mfma":
                    cyc = p.passes * 4 + 40
                add(i, j, cyc)
            for i in readers.get(r, ()):
                add(i, j, 0)
        for r in c.uses:
            readers.setdefault(r, []).append(j)
        for r in c.defs:
            lastw[r] = j
            readers[r] = []
        if c.kind == "mfma":
            if prev_mfma is not None:
                add(prev_mfma, j, 0)
            prev_mfma = j
    return preds


def schedule(prog, gap_budget=24, verbose=False, keep_order_kinds=("dsr",)):
    n = len(prog)
    preds = build_deps(prog)
    last = {}
    for j, c in enumerate(prog):
        cls = "vm" if c.kind in VMEM_KINDS else c.kind
        if c.kind in keep_order_kinds:
            if cls in last:
                preds[j].setdefault(last[cls], (0, 0))
            last[cls] = j
    succs = [[] for _ in range(n)]
    for j in range(n):
        for i, (sl, cyc) in preds[j].items():
            succs[i].append((j, sl, cyc))
    t = 0
    ideal = {}
    for j, c in enumerate(prog):
        if c.kind == "mfma":
            ideal[j] = t
            t += c.passes * 4
    total = t
    dl = [None] * n
    for j in range(n - 1, -1, -1):
        c = prog[j]
        d = ideal.get(j)
        if d is None:
            d = c.deadline if c.deadline is not None else total + 10000
            for (k, sl, cyc) in succs[j]:
                d = min(d, dl[k] - max(cyc, sl * 4, c.cost))
        dl[j] = d
    issued_t = [None] * n
    issued_slot = [None] * n
    npred = [len(preds[j]) for j in range(n)]
    ready = {j for j in range(n) if npred[j] == 0}
    order = []
    now = 0
    pipe_free = 0
    slot = 0
    mf = [j for j, c in enumerate(prog) if c.kind == "mfma"]
    mi = 0
    gap_used = 0
    stall = 0

    def earliest(j):
        tt = prog[j].release if prog[j].release is not None else 0
        ss = 0
        for i, (sl, cyc) in preds[j].items():
            tt = max(tt, issued_t[i] + cyc)
            ss = max(ss, issued_slot[i] + 1 + sl)
        return tt, ss

    def emit(j):
        nonlocal now, slot, pipe_free, gap_used
        c = prog[j]
        issued_t[j] = now
        issued_slot[j] = slot
        c.time = now
        order.append(c)
        ready.discard(j)
        for (k, sl, cyc) in succs[j]:
            npred[k] -= 1
            if npred[k] == 0:
                ready.add(k)
        slot += 1
        if c.kind == "mfma":
            pipe_free = now + c.passes * 4
            gap_used = 0
        else:
            gap_used += c.cost
        now += c.cost

    while len(order) < n:
        m = mf[mi] if mi < len(mf) else None
        m_ok = False
        if m is not None and m in ready:
            tt, ss = earliest(m)
            m_ok = tt <= max(now, pipe_free) and ss <= slot
        if m_ok and now >= pipe_free:
            emit(m)
            mi += 1
            continue
        best = None
        for j in ready:
            c = prog[j]
            if c.kind == "mfma":
                continue
            tt, ss = earliest(j)
            if tt > now or ss > slot:
                continue
            if m_ok and (now + c.cost > pipe_free or gap_used + c.cost > gap_budget):
                continue
            key = (dl[j], j)
            if best is None or key < best[0]:
                best = (key, j)
        if best is not None:
            emit(best[1])
            continue
        if m_ok:
            now = pipe_free
            emit(m)
            mi += 1
            continue
        cand = []
        for j in ready:
            tt, ss = earliest(j)
            cand.append((tt, ss, j))
        tmin = min(max(tt, now) for tt, ss, j in cand)
        if tmin > now:
            if now >= pipe_free:
                stall += max(0, tmin - max(now, pipe_free))
            now = tmin
        else:
            nop = Inst("s_nop 0", "nop")
            nop.time = now
            order.append(nop)
            n += 1
            issued_t.append(now)
            issued_slot.append(slot)
            slot += 1
            now += 4
            gap_used += 4
    end = max(now, pipe_free)
    if verbose:
        print(f"; schedule: {len(order)} insts, ideal {total} cyc, model {end} cyc")
    return order, end
```

```python
import sys, math, struct, argparse
from asmlib import *

NAME = "standalone__swin_window_attn__vision"
NWIN = 5329
XBYTES = 100270464
ROWB = 196224
WINROW = 7 * ROWB
MAGIC73 = (1 << 32) // 73 + 1
for w in range(0, 8192):
    assert (w * MAGIC73) >> 32 == w // 73
ALPHA = (192 ** -0.5) * math.log2(math.e)
WS_TIME_OFF = 1 << 20


def f32bits(x):
    return struct.unpack("<I", struct.pack("<f", x))[0]


def mfma(bd, d, ba, a, bb, b, first):
    c = "0" if first else T(bd, d, 16)
    D = R(bd, d, 16)
    AB = R(ba, a, 4) + R(bb, b, 4)
    return Inst(f"v_mfma_f32_32x32x16_bf16 {T(bd, d, 16)}, {T(ba, a, 4)}, {T(bb, b, 4)}, {c}", "mfma",
                defs=D, uses=AB + ([] if first else D), srcC=([] if first else D), srcAB=AB, passes=8)


def valu(text, defs, uses, kind="valu", **kw):
    return Inst(text, kind, defs=defs, uses=uses, **kw)


def cvtpk(d, a, b):
    bt = f"v{b}" if b is not None else "0"
    return valu(f"v_cvt_pk_bf16_f32 v{d}, v{a}, {bt}", [f"v{d}"], [f"v{a}"] + ([f"v{b}"] if b is not None else []))


def salu(text, defs, uses, **kw):
    return Inst(text, "salu", defs=defs, uses=uses, **kw)


def raw(text, kind="other", defs=(), uses=()):
    return Inst(text, kind, defs=defs, uses=uses)


def v3(op, d, *srcs):
    uses = [s for s in srcs if isinstance(s, str) and (is_vreg(s) or is_sreg(s))]
    return valu(f"{op} {d}, " + ", ".join(str(s) for s in srcs), [d], uses)


def gen_prep():
    p = []
    a = p.append
    a(raw("s_cmp_ge_u32 s2, 72", "salu", ["scc"], ["s2"]))
    a(raw("s_cbranch_scc1 L_prep_done"))
    a(raw("s_load_dwordx4 s[4:7], s[0:1], 8"))
    a(raw("s_load_dwordx2 s[8:9], s[0:1], 40"))
    a(salu("s_cmp_ge_u32 s2, 36", ["scc"], ["s2"]))
    a(salu("s_cselect_b32 s20, 1, 0", ["s20"], ["scc"]))
    a(salu("s_mul_i32 s21, s20, 36", ["s21"], ["s20"]))
    a(salu("s_sub_u32 s21, s2, s21", ["s21", "scc"], ["s2", "s21"]))
    a(salu("s_mul_i32 s22, s21, 43", ["s22"], ["s21"]))
    a(salu("s_lshr_b32 s22, s22, 8", ["s22", "scc"], ["s22"]))
    for r in range(36):
        assert (r * 43) >> 8 == r // 6
    a(salu("s_mul_i32 s23, s22, 6", ["s23"], ["s22"]))
    a(salu("s_sub_u32 s23, s21, s23", ["s23", "scc"], ["s21", "s23"]))
    a(v3("v_and_b32", "v1", "31", "v0"))
    a(v3("v_lshrrev_b32", "v2", "5", "v0"))
    a(v3("v_and_b32", "v3", "0x13", "v1"))
    a(v3("v_and_b32", "v4", "4", "v1"))
    a(v3("v_lshl_or_b32", "v3", "v4", "1", "v3"))
    a(v3("v_and_b32", "v4", "8", "v1"))
    a(v3("v_lshrrev_b32", "v4", "1", "v4"))
    a(v3("v_or_b32", "v3", "v3", "v4"))
    a(salu("s_movk_i32 s24, 1152", ["s24"], []))
    a(v3("v_mul_lo_u32", "v5", "v3", "s24"))
    a(v3("v_lshl_add_u32", "v5", "v2", "4", "v5"))
    a(salu("s_mul_i32 s25, s22, 36864", ["s25"], ["s22"]))
    a(salu("s_mul_i32 s26, s20, 768", ["s26"], ["s20"]))
    a(salu("s_add_u32 s25, s25, s26", ["s25", "scc"], ["s25", "s26"]))
    a(salu("s_mul_i32 s26, s23, 36864", ["s26"], ["s23"]))
    a(salu("s_add_u32 s26, s26, 384", ["s26", "scc"], ["s26"]))
    a(raw("s_waitcnt lgkmcnt(0)", "wait"))
    for (dst, src, nb) in ((12, 4, 192 * 576 * 2), (16, 6, 192 * 192 * 2), (28, 8, 147456)):
        a(salu(f"s_mov_b32 s{dst}, s{src}", [f"s{dst}"], [f"s{src}"]))
        a(salu(f"s_and_b32 s{dst+1}, s{src+1}, 0xffff", [f"s{dst+1}", "scc"], [f"s{src+1}"]))
        a(salu(f"s_mov_b32 s{dst+2}, {nb}", [f"s{dst+2}"], []))
        a(salu(f"s_mov_b32 s{dst+3}, 0x20000", [f"s{dst+3}"], []))
    for s in range(12):
        a(Inst(f"buffer_load_dwordx4 {T('v', 16 + 4 * s, 4)}, v5, s[12:15], s25 offen offset:{32 * s}", "vload",
               defs=R('v', 16 + 4 * s, 4), uses=["v5", "s25"]))
    a(salu("s_cmp_eq_u32 s20, 1", ["scc"], ["s20"]))
    a(raw("s_cbranch_scc1 L_prep_n"))
    for s in range(12):
        a(Inst(f"buffer_load_dwordx4 {T('v', 64 + 4 * s, 4)}, v5, s[12:15], s26 offen offset:{32 * s}", "vload",
               defs=R('v', 64 + 4 * s, 4), uses=["v5", "s26"]))
    a(salu(f"s_mov_b32 s27, 0x{f32bits(ALPHA):08x}", ["s27"], []))
    a(raw("s_waitcnt vmcnt(0)", "wait"))
    a(raw("s_branch L_prep_mm"))
    a(raw("L_prep_n:", "label"))
    a(v3("v_mul_u32_u24", "v6", "6", "v1"))
    a(v3("v_add_u32", "v6", "s23", "v6"))
    a(v3("v_lshlrev_b32", "v6", "1", "v6"))
    a(v3("v_mul_u32_u24", "v7", "0xc00", "v2"))
    a(v3("v_add_u32", "v6", "v6", "v7"))
    for s in range(12):
        a(salu(f"s_movk_i32 s27, {s * 6144 if s * 6144 < 32768 else 0}", ["s27"], []) if s * 6144 < 32768 else
          salu(f"s_mov_b32 s27, {s * 6144}", ["s27"], []))
        for j in range(8):
            r = 128 + 8 * s + j
            a(Inst(f"buffer_load_ushort v{r}, v6, s[16:19], s27 offen offset:{384 * j}", "vload",
                   defs=[f"v{r}"], uses=["v6", "s27"]))
    a(salu("s_mov_b32 s27, 1.0", ["s27"], []))
    a(raw("s_waitcnt vmcnt(0)", "wait"))
    for s in range(12):
        for jj in range(4):
            lo, hi = 128 + 8 * s + 2 * jj, 128 + 8 * s + 2 * jj + 1
            a(v3("v_lshl_or_b32", f"v{64 + 4 * s + jj}", f"v{hi}", "16", f"v{lo}"))
    a(raw("L_prep_mm:", "label"))
    a(raw("s_nop 1", "nop"))
    for s in range(12):
        a(mfma("v", 112, "v", 16 + 4 * s, "v", 64 + 4 * s, s == 0))
    a(salu("s_mul_i32 s24, s20, 72", ["s24"], ["s20"]))
    a(salu("s_mul_i32 s25, s23, 12", ["s25"], ["s23"]))
    a(salu("s_add_u32 s24, s24, s25", ["s24", "scc"], ["s24", "s25"]))
    a(salu("s_lshl_b32 s25, s22, 1", ["s25", "scc"], ["s22"]))
    a(salu("s_add_u32 s24, s24, s25", ["s24", "scc"], ["s24", "s25"]))
    a(salu("s_lshl_b32 s24, s24, 10", ["s24", "scc"], ["s24"]))
    a(v3("v_lshlrev_b32", "v8", "4", "v0"))
    for r in range(16):
        a(v3("v_mul_f32", f"v{112 + r}", "s27", f"v{112 + r}"))
    for r in range(8):
        a(cvtpk(16 + r, 112 + 2 * r, 113 + 2 * r))
    a(Inst("buffer_store_dwordx4 v[16:19], v8, s[28:31], s24 offen", "vstore", uses=R('v', 16, 4) + ["v8"], wide=True))
    a(Inst("buffer_store_dwordx4 v[20:23], v8, s[28:31], s24 offen offset:1024", "vstore", uses=R('v', 20, 4) + ["v8"], wide=True))
    a(raw("L_prep_done:", "label"))
    a(raw("s_endpgm"))
    return insert_nops(p)


AX, AXN, AW = 0, 96, 192
B = [0, 16, 32, 48]
TA, TB = 64, 80
CB = [96, 104]
PB = 112
OPK = 144
HOLE = [OPK + 4 * i + 3 for i in range(25)]
V_LDS = [244, 245, 246]
V_X = [247, 248]
V_STA, V_STB, V_STC = 249, 250, 251
V_BIAS = 252
V_M, V_T, V_R = 253, 254, 255
V_S = [HOLE[0], HOLE[1], HOLE[2], HOLE[3]]
V_TIME = HOLE[4]
V_PF = HOLE[5]
V_PD = [HOLE[6], HOLE[7], HOLE[8]]
S_WCUR, S_LB, S_CB, S_ROW = 16, 17, 18, 20
S_IT = 28


def xr(q, s, nxt=False):
    return (AXN if nxt else AX) + 48 * q + 4 * s


def wfrag_read(mat, t, s, **kw):
    off = (mat * 72 + t * 12 + s) * 1024
    base, imm = divmod(off, 65536)
    d = AW + 4 * s
    return Inst(f"ds_read_b128 {T('a', d, 4)}, v{V_LDS[base]} offset:{imm}", "dsr", defs=R('a', d, 4),
                uses=[f"v{V_LDS[base]}"], **kw)


def xload(q, s, dst, sbase, **kw):
    return Inst(f"buffer_load_dwordx4 {T('a', dst, 4)}, v{V_X[q]}, s[4:7], s{sbase} offen offset:{32 * s}" + kw.pop("flags", ""),
                "vload", defs=R('a', dst, 4), uses=[f"v{V_X[q]}", f"s{sbase}", "s6"], **kw)


def prefetch(j, sbase, flags="", **kw):
    return Inst(f"buffer_load_dword v{V_PD[j]}, v{V_PF}, s[4:7], s{sbase} offen offset:{128 * j}{flags}", "vload",
                defs=[f"v{V_PD[j]}"], uses=[f"v{V_PF}", f"s{sbase}", "s6"], **kw)


def store_desc(sig):
    if sig <= 20:
        return V_STA, sig // 3, 2 * (sig % 3) * 384
    if sig <= 23:
        return V_STB, 2 * (sig - 21), 6 * 384
    return V_STC, 6, 6 * 384


def sig_to_qr(sig):
    q, rem = divmod(sig, 16)
    return q, rem


def o_mfmas(t):
    out = []
    for ks in range(4):
        for q in range(2):
            out.append(mfma("v", B[2 * q + (t & 1)], "v", PB + 16 * q + 4 * ks, "v", CB[ks >> 1] + 4 * (ks & 1), ks == 0))
    return out


def o_pack(u):
    out = []
    for sig in range(25):
        q, r = sig_to_qr(sig)
        out.append(cvtpk(OPK + 4 * sig + u, B[2 * q] + r, B[2 * q + 1] + r))
    return out


def o_stores(rel0=None, step=0, flags=""):
    out = []
    for sig in range(25):
        vo, row, imm = store_desc(sig)
        d = OPK + 4 * sig
        out.append(Inst(f"buffer_store_dwordx3 {T('v', d, 3)}, v{vo}, s[8:11], s{S_ROW + row} offen offset:{imm}{flags}",
                        "vstore", uses=R('v', d, 3) + [f"v{vo}", f"s{S_ROW + row}", "s10"], wide=True,
                        release=None if rel0 is None else rel0 + step * sig))
    return out


def cvt_acc(acc, cb, n=8):
    return [cvtpk(cb + r, acc + 2 * r, acc + 2 * r + 1) for r in range(n)]


def softmax(q):
    SA, SB = B[2 * q], B[2 * q + 1]
    regs = [SA + r for r in range(16)] + [SB + r for r in range(9)]
    p = []
    p.append(v3("v_add_f32", f"v{SB + 8}", f"v{SB + 8}", f"v{V_BIAS}"))
    m0, m1 = V_M, V_T
    p.append(v3("v_max3_f32", f"v{m0}", f"v{regs[0]}", f"v{regs[1]}", f"v{regs[2]}"))
    p.append(v3("v_max3_f32", f"v{m1}", f"v{regs[3]}", f"v{regs[4]}", f"v{regs[5]}"))
    k = 6
    tog = 0
    while k + 1 < 24:
        m = (m0, m1)[tog]
        p.append(v3("v_max3_f32", f"v{m}", f"v{m}", f"v{regs[k]}", f"v{regs[k + 1]}"))
        k += 2
        tog ^= 1
    assert k == 24
    p.append(v3("v_max3_f32", f"v{m0}", f"v{m0}", f"v{m1}", f"v{regs[24]}"))
    p.append(v3("v_mov_b32", f"v{m1}", f"v{m0}"))
    p.append(valu(f"v_permlane32_swap_b32 v{m0}, v{m1}", [f"v{m0}", f"v{m1}"], [f"v{m0}", f"v{m1}"], kind="perm"))
    p.append(v3("v_max_f32", f"v{m0}", f"v{m0}", f"v{m1}"))
    for r in regs:
        p.append(v3("v_sub_f32", f"v{r}", f"v{r}", f"v{m0}"))
        p.append(valu(f"v_exp_f32 v{r}, v{r}", [f"v{r}"], [f"v{r}"], kind="trans"))
    for c in range(4):
        p.append(v3("v_add_f32", f"v{V_S[c]}", f"v{regs[2 * c]}", f"v{regs[2 * c + 1]}"))
    for k in range(8, 25):
        c = k & 3
        p.append(v3("v_add_f32", f"v{V_S[c]}", f"v{V_S[c]}", f"v{regs[k]}"))
    p.append(v3("v_add_f32", f"v{V_S[0]}", f"v{V_S[0]}", f"v{V_S[1]}"))
    p.append(v3("v_add_f32", f"v{V_S[2]}", f"v{V_S[2]}", f"v{V_S[3]}"))
    p.append(v3("v_add_f32", f"v{V_S[0]}", f"v{V_S[0]}", f"v{V_S[2]}"))
    p.append(v3("v_mov_b32", f"v{V_S[1]}", f"v{V_S[0]}"))
    p.append(valu(f"v_permlane32_swap_b32 v{V_S[0]}, v{V_S[1]}", [f"v{V_S[0]}", f"v{V_S[1]}"],
                  [f"v{V_S[0]}", f"v{V_S[1]}"], kind="perm"))
    p.append(v3("v_add_f32", f"v{V_S[0]}", f"v{V_S[0]}", f"v{V_S[1]}"))
    p.append(valu(f"v_rcp_f32 v{V_R}, v{V_S[0]}", [f"v{V_R}"], [f"v{V_S[0]}"], kind="trans"))
    for k in range(0, 24, 2):
        p.append(v3("v_mul_f32", f"v{regs[k]}", f"v{regs[k]}", f"v{V_R}"))
        p.append(v3("v_mul_f32", f"v{regs[k + 1]}", f"v{regs[k + 1]}", f"v{V_R}"))
        p.append(cvtpk(PB + 16 * q + k // 2, regs[k], regs[k + 1]))
    p.append(v3("v_mul_f32", f"v{regs[24]}", f"v{regs[24]}", f"v{V_R}"))
    p.append(cvtpk(PB + 16 * q + 12, regs[24], None))
    return p


def win_base(dst, w, tmp):
    return [
        salu(f"s_mul_hi_u32 s{tmp}, s{w}, s29", [f"s{tmp}"], [f"s{w}", "s29"]),
        salu(f"s_mul_i32 s{dst}, s{tmp}, 73", [f"s{dst}"], [f"s{tmp}"]),
        salu(f"s_sub_u32 s{dst}, s{w}, s{dst}", [f"s{dst}", "scc"], [f"s{w}", f"s{dst}"]),
        salu(f"s_mul_i32 s{dst}, s{dst}, 2688", [f"s{dst}"], [f"s{dst}"]),
        salu(f"s_mul_i32 s{tmp}, s{tmp}, {WINROW}", [f"s{tmp}"], [f"s{tmp}"]),
        salu(f"s_add_u32 s{dst}, s{dst}, s{tmp}", [f"s{dst}", "scc"], [f"s{dst}", f"s{tmp}"]),
    ]


def row_bases():
    out = [salu(f"s_mov_b32 s{S_ROW}, s{S_CB}", [f"s{S_ROW}"], [f"s{S_CB}"])]
    for r in range(1, 7):
        out.append(salu(f"s_add_u32 s{S_ROW + r}, s{S_CB}, {r * ROWB}", [f"s{S_ROW + r}", "scc"], [f"s{S_CB}"]))
    return out


def xmove(q):
    return [valu(f"v_accvgpr_mov_b32 a{xr(q, 0) + i}, a{xr(q, 0, True) + i}", [f"a{xr(q, 0) + i}"], [f"a{xr(q, 0, True) + i}"])
            for i in range(48)]


def gen_body(o):
    p = []
    ext = p.extend
    p.append(salu(f"s_add_u32 s{S_WCUR}, s{S_WCUR}, 1024", [f"s{S_WCUR}", "scc"], [f"s{S_WCUR}"], deadline=0))
    ext(win_base(S_LB, S_WCUR, 30))
    p.append(salu(f"s_cmp_lt_u32 s{S_WCUR}, {NWIN}", ["scc"], [f"s{S_WCUR}"]))
    p.append(salu(f"s_cselect_b32 s6, {'0' if o.noload else 's31'}, 0", ["s6"], ["scc", "s31"]))
    if o.pf:
        for j in range(3):
            p.append(prefetch(j, S_LB, o.pf_flags, release=o.pf_rel + o.pf_step * j, deadline=o.pf_rel + o.pf_step * j + 64))
    else:
        for s in range(12):
            p.append(xload(0, s, xr(0, s, True), S_LB, release=o.ld0_rel + o.ld_step * s, deadline=o.ld0_rel + o.ld_step * s + 64, flags=o.ld_flags))
    ext(cvt_acc(TB, CB[1], 5))

    def chain_T(c):
        q, t = divmod(c, 6)
        acc = (TA, TB)[c & 1]
        out = []
        for s in range(12):
            out.append(mfma("v", acc, "a", AW + 4 * s, "a", xr(q, s), s == 0))
            if c < 11:
                out.append(wfrag_read(0, (c + 1) % 6, s))
            else:
                out.append(wfrag_read(1, 0, s))
        return out

    def s_mf(c):
        q, t = divmod(c, 6)
        out = []
        for u in range(2):
            for k in range(2):
                out.append(mfma("v", B[2 * q + k], "a", xr(k, 2 * t + u), "v", CB[c & 1] + 4 * u, t == 0 and u == 0))
        return out

    def chain_V(k, t):
        acc = (TA, TB)[k]
        out = []
        for s in range(12):
            out.append(mfma("v", acc, "a", xr(k, s), "a", AW + 4 * s, s == 0))
            if k == 1:
                if t < 5:
                    out.append(wfrag_read(1, t + 1, s))
                else:
                    out.append(wfrag_read(0, 0, s, deadline=384 * 32 + 32 * s - 200))
        return out

    ext(chain_T(0))
    ext(o_mfmas(5))
    ext(xmove(1))
    if not o.pf:
        for s in range(12):
            p.append(xload(1, s, xr(1, s, True), S_LB, release=o.ld1_rel + o.ld_step * s, deadline=o.ld1_rel + o.ld_step * s + 64, flags=o.ld_flags))
    ext(o_pack(2))
    st = o_stores(o.st_rel, o.st_step, o.st_flags)
    for i in st:
        i.deadline = i.release + 64
    ext(st)
    if o.pf:
        k = 0
        for j in range(3):
            for q in range(2):
                for s in range(4 * j, 4 * j + 4):
                    rel = o.ld0_rel + o.ld_step * k + o.ld_gstep * j
                    p.append(xload(q, s, xr(q, s, True), S_LB, release=rel, deadline=rel + 64, flags=o.ld_flags))
                    k += 1
    ext(row_bases())
    p.append(salu(f"s_mov_b32 s10, {'0' if o.nostore else 's31'}", ["s10"], ["s31"]))
    p.append(salu(f"s_mov_b32 s{S_CB}, s{S_LB}", [f"s{S_CB}"], [f"s{S_LB}"]))
    ext(cvt_acc(TA, CB[0]))
    for c in range(1, 12):
        ext(chain_T(c))
        ext(s_mf(c - 1))
        if c - 1 == 5:
            ext(softmax(0))
        ext(cvt_acc((TA, TB)[c & 1], CB[c & 1]))
    ext(chain_V(0, 0))
    ext(s_mf(11))
    ext(softmax(1))
    ext(cvt_acc(TA, CB[0]))
    ext(chain_V(1, 0))
    ext(cvt_acc(TB, CB[1], 5))
    ext(chain_V(0, 1))
    ext(chain_V(1, 1))
    ext(o_mfmas(0))
    ext(cvt_acc(TA, CB[0]))
    ext(cvt_acc(TB, CB[1], 5))
    for t in range(2, 6):
        ext(chain_V(0, t))
        ext(o_mfmas(t - 1))
        if (t - 1) & 1:
            ext(o_pack((t - 1) >> 1))
        ext(cvt_acc(TA, CB[0]))
        if t == 5:
            mv = xmove(0)
            for i, m in enumerate(mv):
                m.deadline = 384 * 32 + 32 * (i // 4) - 16
            ext(mv)
        ext(chain_V(1, t))
        if t < 5:
            ext(cvt_acc(TB, CB[1], 5))
    if o.rmload:
        p = [i for i in p if i.kind != "vload"]
    if o.rmstore:
        p = [i for i in p if i.kind != "vstore"]
    return p


def gen_epilogue():
    p = []
    p.extend(cvt_acc(TB, CB[1], 5))
    p.extend(o_mfmas(5))
    p.extend(o_pack(2))
    p.extend(o_stores())
    return p


def gen_prologue(o):
    p = []
    a = p.append
    a(raw("s_cmp_ge_u32 s2, 256", "salu", ["scc"], ["s2"]))
    a(raw("s_cbranch_scc1 L_main_done"))
    a(raw("s_load_dwordx2 s[32:33], s[0:1], 0"))
    a(raw("s_load_dwordx2 s[34:35], s[0:1], 24"))
    a(raw("s_load_dwordx2 s[36:37], s[0:1], 40"))
    if o.diag:
        a(raw("s_memtime s[44:45]"))
        a(raw("s_memrealtime s[46:47]"))
    a(v3("v_and_b32", "v1", "63", "v0"))
    a(v3("v_lshrrev_b32", "v2", "6", "v0"))
    a(raw("s_nop 0", "nop"))
    a(valu("v_readfirstlane_b32 s38, v2", ["s38"], ["v2"]))
    a(v3("v_and_b32", "v3", "31", "v1"))
    a(v3("v_lshrrev_b32", "v4", "5", "v1"))
    a(v3("v_lshlrev_b32", f"v{V_LDS[0]}", "4", "v1"))
    a(v3("v_add_u32", f"v{V_LDS[1]}", "0x10000", f"v{V_LDS[0]}"))
    a(v3("v_add_u32", f"v{V_LDS[2]}", "0x20000", f"v{V_LDS[0]}"))
    a(salu("s_lshl_b32 s16, s2, 2", ["s16", "scc"], ["s2"]))
    a(salu("s_add_u32 s16, s16, s38", ["s16", "scc"], ["s16", "s38"]))
    a(salu(f"s_mov_b32 s29, {MAGIC73}", ["s29"], []))
    a(salu(f"s_mov_b32 s31, {XBYTES}", ["s31"], []))
    p.extend(win_base(S_CB, S_WCUR, 30))
    a(v3("v_lshrrev_b32", "v5", "3", "v3"))
    a(v3("v_and_b32", "v6", "3", "v3"))
    a(v3("v_lshl_add_u32", "v5", "v5", "2", "v6"))
    a(v3("v_bfe_u32", "v6", "v3", "2", "1"))
    a(salu(f"s_mov_b32 s39, {ROWB}", ["s39"], []))
    a(salu("s_movk_i32 s40, 384", ["s40"], []))
    for sg in range(32):
        assert (sg * 43) >> 7 == sg // 3
    for q in range(2):
        a(v3("v_add_u32", "v7", str(16 * q), "v5"))
        a(v3("v_mul_u32_u24", "v8", "43", "v7"))
        a(v3("v_lshrrev_b32", "v8", "7", "v8"))
        a(v3("v_mul_u32_u24", "v9", "3", "v8"))
        a(v3("v_sub_u32", "v9", "v7", "v9"))
        a(v3("v_lshl_add_u32", "v9", "v9", "1", "v6"))
        if q == 1:
            a(v3("v_subrev_u32", "v10", "21", "v7"))
            a(v3("v_lshl_add_u32", "v10", "v10", "1", "v6"))
            a(valu("v_cmp_lt_u32 vcc, 20, v7", ["vcc"], ["v7"]))
            a(v3("v_mov_b32", "v11", "6"))
            a(valu("v_cndmask_b32 v8, v8, v10, vcc", ["v8"], ["v8", "v10", "vcc"]))
            a(valu("v_cndmask_b32 v9, v9, v11, vcc", ["v9"], ["v9", "v11", "vcc"]))
        a(v3("v_mul_lo_u32", "v10", "v8", "s39"))
        a(v3("v_mul_lo_u32", "v11", "v9", "s40"))
        a(v3("v_add_u32", "v10", "v10", "v11"))
        a(v3("v_lshl_add_u32", f"v{V_X[q]}", "v4", "4", "v10"))
        if q == 1:
            a(valu("v_cmp_lt_u32 vcc, 6, v8", ["vcc"], ["v8"]))
            a(v3("v_mov_b32", "v11", "0x80000000"))
            a(valu(f"v_cndmask_b32 v{V_X[1]}, v{V_X[1]}, v11, vcc", [f"v{V_X[1]}"], [f"v{V_X[1]}", "v11", "vcc"]))
    a(valu("v_cmp_eq_u32 vcc, 1, v4", ["vcc"], ["v4"]))
    a(v3("v_subrev_u32", "v11", "16", f"v{V_X[1]}"))
    a(v3("v_or_b32", "v11", "v11", "v11"))
    a(valu(f"v_cndmask_b32 v{V_PF}, v{V_X[0]}, v11, vcc", [f"v{V_PF}"], [f"v{V_X[0]}", "v11", "vcc"]))
    a(v3("v_mul_u32_u24", "v10", "12", "v3"))
    a(v3("v_mul_u32_u24", "v11", "0x180", "v4"))
    a(v3("v_add_u32", f"v{V_STA}", "v10", "v11"))
    a(v3("v_mul_lo_u32", "v11", "v4", "s39"))
    a(v3("v_add_u32", f"v{V_STB}", "v10", "v11"))
    a(v3("v_lshlrev_b32", "v11", "31", "v4"))
    a(v3("v_or_b32", f"v{V_STC}", "v10", "v11"))
    a(v3("v_mul_lo_u32", f"v{V_BIAS}", "v4", "s41") if False else salu("s_mov_b32 s41, 0xff800000", ["s41"], []))
    a(v3("v_mul_lo_u32", f"v{V_BIAS}", "v4", "s41"))
    for q in range(2):
        for r in range(13, 16):
            a(v3("v_mov_b32", f"v{PB + 16 * q + r}", "0"))
    a(raw("s_waitcnt lgkmcnt(0)", "wait"))
    for (dst, src, nb) in ((4, 32, "s31"), (8, 34, "0"), (12, 36, "147456" if not o.diag else str(WS_TIME_OFF + 1024 * 256))):
        a(salu(f"s_mov_b32 s{dst}, s{src}", [f"s{dst}"], [f"s{src}"]))
        a(salu(f"s_and_b32 s{dst+1}, s{src+1}, 0xffff", [f"s{dst+1}", "scc"], [f"s{src+1}"]))
        a(salu(f"s_mov_b32 s{dst+2}, {nb}", [f"s{dst+2}"], []))
        a(salu(f"s_mov_b32 s{dst+3}, 0x20000", [f"s{dst+3}"], []))
    for r in range(7):
        a(salu(f"s_mov_b32 s{S_ROW + r}, 0", [f"s{S_ROW + r}"], []))
    if o.pf:
        for j in range(3):
            a(prefetch(j, S_CB, o.pf_flags))
    a(salu("s_lshr_b32 s42, s2, 3", ["s42", "scc"], ["s2"]))
    if o.norot:
        a(salu("s_mov_b32 s42, 0", ["s42"], []))
    a(salu("s_mul_i32 s43, s38, 6", ["s43"], ["s38"]))
    a(salu("s_add_u32 s42, s42, s43", ["s42", "scc"], ["s42", "s43"]))
    for _ in range(2):
        a(salu("s_sub_u32 s43, s42, 24", ["s43", "scc"], ["s42"]))
        a(salu("s_cselect_b32 s42, s42, s43", ["s42"], ["scc", "s42", "s43"]))
    a(salu("s_mul_i32 s42, s42, 3072", ["s42"], ["s42"]))
    for mat in range(2):
        for g in range(6):
            if mat or g:
                a(salu("s_add_u32 s42, s42, 3072", ["s42", "scc"], ["s42"]))
                a(salu("s_cmp_eq_u32 s42, 73728", ["scc"], ["s42"]))
                a(salu("s_cselect_b32 s42, 0, s42", ["s42"], ["scc", "s42"]))
            if mat == 1 and g == 0:
                pass
            a(salu(f"s_add_u32 s43, s42, {mat * 73728}", ["s43", "scc"], ["s42"]))
            a(salu("s_mov_b32 m0, s43", ["m0"], ["s43"]))
            for k in range(3):
                a(Inst(f"buffer_load_dwordx4 v{V_LDS[0]}, s[12:15], s43 offen offset:{1024 * k} lds", "ldsdma",
                       uses=[f"v{V_LDS[0]}", "s43", "m0"]))
    for j in range(3):
        for q in range(2):
            for s in range(4 * j, 4 * j + 4):
                a(xload(q, s, xr(q, s, q == 1), S_CB, flags=o.ld_flags))
    a(raw("s_waitcnt vmcnt(0)", "wait"))
    a(raw("s_barrier"))
    for s in range(12):
        a(wfrag_read(0, 0, s))
    if o.diag:
        a(salu(f"s_mov_b32 s{S_IT}, 1", [f"s{S_IT}"], []))
        a(v3("v_mov_b32", f"v{V_TIME}", "s44"))
        a(valu(f"v_writelane_b32 v{V_TIME}, s46, 62", [f"v{V_TIME}"], ["s46"]))
    a(raw("s_waitcnt lgkmcnt(0)", "wait"))
    return p


def stamp():
    return [raw("s_memtime s[44:45]"), salu(f"s_mov_b32 m0, s{S_IT}", ["m0"], [f"s{S_IT}"]), raw("s_waitcnt lgkmcnt(0)", "wait"),
            valu(f"v_writelane_b32 v{V_TIME}, s44, m0", [f"v{V_TIME}"], ["s44", "m0"]),
            salu(f"s_add_u32 s{S_IT}, s{S_IT}, 1", [f"s{S_IT}", "scc"], [f"s{S_IT}"])]


def gen_main(o):
    pro = insert_nops(gen_prologue(o))
    body = gen_body(o)
    if o.sched:
        body, cyc = schedule(body, gap_budget=o.gap, verbose=True)
    else:
        cyc = 0
    tail = [salu(f"s_cmp_lt_u32 s{S_WCUR}, {NWIN}", ["scc"], [f"s{S_WCUR}"]), raw("s_cbranch_scc1 L_loop")]
    head = stamp() if o.diag else []
    body = head + body + tail
    el = (o.early, cyc) if (o.sched and o.early) else 0
    ev = (o.early_vm, cyc) if (o.sched and o.early_vm) else 0
    b1 = insert_waits(body, early_lgkm=el, early_vm=ev)
    b2 = insert_waits(body, pre=b1, early_lgkm=el, early_vm=ev)
    b3 = insert_waits(body, pre=b2, early_lgkm=el, early_vm=ev)
    assert [i.text for i in b2] == [i.text for i in b3]
    n1 = insert_nops(b2, pre=[pro])
    n2 = insert_nops(b2, pre=[pro, n1])
    n3 = insert_nops(b2, pre=[pro, n2])
    assert [i.text for i in n2] == [i.text for i in n3]
    epi = gen_epilogue()
    epi = insert_waits(epi, pre=b2)
    if o.diag:
        epi += stamp()
        epi += [raw("s_waitcnt vmcnt(0)", "wait")] + stamp()
        epi += [raw("s_memrealtime s[46:47]"), raw("s_waitcnt lgkmcnt(0)", "wait"),
                valu(f"v_writelane_b32 v{V_TIME}, s46, 63", [f"v{V_TIME}"], ["s46"])]
        epi += [v3("v_lshlrev_b32", "v0", "2", f"v{V_LDS[0]}"), v3("v_lshrrev_b32", "v0", "4", "v0"),
                salu("s_lshl_b32 s42, s2, 2", ["s42", "scc"], ["s2"]),
                salu("s_add_u32 s42, s42, s38", ["s42", "scc"], ["s42", "s38"]),
                salu("s_lshl_b32 s42, s42, 8", ["s42", "scc"], ["s42"]),
                salu(f"s_add_u32 s42, s42, {WS_TIME_OFF}", ["s42", "scc"], ["s42"]),
                Inst(f"buffer_store_dword v{V_TIME}, v0, s[12:15], s42 offen", "vstore", uses=[f"v{V_TIME}", "v0", "s42"])]
    epi = insert_nops(epi, pre=[n2])
    stats = {}
    for i in n2:
        stats[i.kind] = stats.get(i.kind, 0) + 1
    print("; body stats", stats, file=sys.stderr)
    return pro, n2, epi


def emit(insts):
    out = []
    for i in insts:
        out.append(i.text if i.kind == "label" else "    " + i.text)
    return "\n".join(out)


HEADER = """; Swin window attention: folded projections (M = a*Wq*Wk^T, N = Wv*Wo), one wave per window.
; @launch kernel=swin_prep_kernel grid=(72,1,1) block=(64,1,1) lds=0
; @launch kernel={name}_kernel grid=(256,1,1) block=(256,1,1) lds=147456
.amdgcn_target "amdgcn-amd-amdhsa--gfx950"
.text
"""

KD = """.amdhsa_kernel {k}
  .amdhsa_next_free_vgpr {nv}
  .amdhsa_next_free_sgpr {ns}
  .amdhsa_accum_offset {ao}
  .amdhsa_group_segment_fixed_size 0
  .amdhsa_kernarg_size 48
  .amdhsa_user_sgpr_count 2
  .amdhsa_user_sgpr_kernarg_segment_ptr 1
  .amdhsa_system_sgpr_workgroup_id_x 1
.end_amdhsa_kernel
"""


def main():
    ap = argparse.ArgumentParser()
    ap.add_argument("-o", default="cdna_kernels/" + NAME + ".s")
    ap.add_argument("--nosched", dest="sched", action="store_false")
    ap.add_argument("--diag", action="store_true")
    ap.add_argument("--gap", type=int, default=24)
    ap.add_argument("--early", type=int, default=230)
    ap.add_argument("--early_vm", type=int, default=1800)
    ap.add_argument("--ld0_rel", type=int, default=32)
    ap.add_argument("--ld1_rel", type=int, default=1000)
    ap.add_argument("--ld_step", type=int, default=64)
    ap.add_argument("--st_rel", type=int, default=1900)
    ap.add_argument("--st_step", type=int, default=96)
    ap.add_argument("--ld_flags", default="")
    ap.add_argument("--st_flags", default="")
    ap.add_argument("--x_between", action="store_true")
    ap.add_argument("--pf_rel", type=int, default=64)
    ap.add_argument("--pf_step", type=int, default=64)
    ap.add_argument("--ld_gstep", type=int, default=0)
    ap.add_argument("--pf_flags", default="")
    for f in ("noload", "nostore", "rmload", "rmstore", "pf", "norot"):
        ap.add_argument("--" + f, action="store_true")
    o = ap.parse_args()
    if o.ld_flags:
        o.ld_flags = " " + o.ld_flags
    if o.pf_flags:
        o.pf_flags = " " + o.pf_flags
    if o.st_flags:
        o.st_flags = " " + o.st_flags
    old = sys.stdout
    sys.stdout = sys.stderr
    prep = gen_prep()
    pro, body, epi = gen_main(o)
    sys.stdout = old
    s = HEADER.format(name=NAME)
    s += ".globl swin_prep_kernel\n.p2align 8\n.type swin_prep_kernel,@function\nswin_prep_kernel:\n"
    s += emit(prep) + "\n"
    k = NAME + "_kernel"
    s += f".globl {k}\n.p2align 8\n.type {k},@function\n{k}:\n"
    s += emit(pro) + "\n.p2align 6\nL_loop:\n" + emit(body) + "\n" + emit(epi) + "\nL_main_done:\n    s_endpgm\n"
    s += '.section .rodata,"a"\n.p2align 6\n'
    s += KD.format(k="swin_prep_kernel", nv=224, ns=40, ao=224)
    s += ".p2align 6\n"
    s += KD.format(k=k, nv=496, ns=48, ao=256)
    open(o.o, "w").write(s)


if __name__ == "__main__":
    main()
```

```python
import re


def R(bank, lo, n=1):
    return [f"{bank}{lo + i}" for i in range(n)]


def T(bank, lo, n=1):
    return f"{bank}{lo}" if n == 1 else f"{bank}[{lo}:{lo + n - 1}]"


class Inst:
    __slots__ = ("text", "kind", "defs", "uses", "srcC", "srcAB", "passes", "release", "deadline",
                 "idx", "tag", "cost", "time", "pin", "wide", "prio")

    def __init__(self, text, kind, defs=(), uses=(), srcC=(), srcAB=(), passes=0,
                 release=None, deadline=None, tag="", wide=False):
        self.text = text
        self.kind = kind
        self.defs = list(defs)
        self.uses = list(uses)
        self.srcC = list(srcC)
        self.srcAB = list(srcAB)
        self.passes = passes
        self.release = release
        self.deadline = deadline
        self.tag = tag
        self.wide = wide
        self.cost = {"mfma": 8, "trans": 8, "dsw": 16}.get(kind, 4)
        self.time = None
        self.prio = 0

    def __repr__(self):
        return f"<{self.text}>"


VALU_KINDS = ("valu", "trans", "perm")
VMEM_KINDS = ("vload", "vstore", "ldsdma")


def is_vreg(r):
    return r[0] in "va" and r[1:].isdigit()


def is_sreg(r):
    return (r[0] == "s" and r[1:].isdigit()) or r in ("vcc",)


def hazard_slots(p, c):
    need = 0
    pd, cu, cd = set(p.defs), set(c.uses), set(c.defs)
    if p.kind in VALU_KINDS:
        vd = {r for r in pd if is_vreg(r)}
        sd = {r for r in pd if is_sreg(r)}
        if c.kind == "mfma" and vd & cu:
            need = max(need, 2)
        if c.kind == "perm" and vd & cu:
            need = max(need, 2)
        if p.kind == "trans" and c.kind in ("valu", "perm", "mfma") and vd & cu:
            need = max(need, 1)
        if p.kind == "trans" and c.kind in VMEM_KINDS + ("dsw", "dsr") and vd & cu:
            need = max(need, 1)
        if c.text.startswith(("v_readfirstlane", "v_readlane")) and vd & cu:
            need = max(need, 1)
        if "dpp" in c.text or "row_" in c.text:
            if vd & cu:
                need = max(need, 2)
        if sd & cu:
            if c.kind in VALU_KINDS:
                need = max(need, 2)
            if c.kind in VMEM_KINDS:
                need = max(need, 5)
            if c.kind == "salu":
                need = max(need, 1)
        if "exec" in pd and c.kind == "mfma":
            need = max(need, 4)
    if p.kind == "mfma":
        ps = p.passes
        t_ab = {2: 5, 4: 8, 8: 12, 16: 20}[ps]
        t_ov = {2: 4, 4: 6, 8: 10, 16: 18}[ps]
        t_war = {2: 1, 4: 3, 8: 7, 16: 15}[ps]
        if c.kind == "mfma":
            if pd & set(c.srcAB):
                need = max(need, t_ab)
            if pd & set(c.srcC):
                if c.srcC == p.defs and c.passes == p.passes:
                    need = max(need, 2 if ps == 2 else 0)
                else:
                    need = max(need, t_ov)
            if pd & cd and c.defs != p.defs:
                need = max(need, t_ov)
        else:
            if pd & (cu | cd):
                need = max(need, t_ab)
            if c.kind in VALU_KINDS and set(p.srcC) & cd:
                need = max(need, t_war)
    if p.kind == "vstore" and p.wide:
        data = {r for r in p.uses if is_vreg(r)}
        if data & cd:
            need = max(need, 2)
    if p.kind == "salu" and "m0" in pd and c.kind == "ldsdma":
        need = max(need, 1)
    return need


def nop_states(i):
    if i.kind == "nop":
        return int(i.text.split()[1]) + 1
    if i.kind in ("label", "comment"):
        return 0
    return 1


def insert_nops(stream, pre=None, window=24):
    alts = pre if pre else [[]]
    out = []
    for c in stream:
        if c.kind in ("label", "comment"):
            out.append(c)
            continue
        worst = 0
        for alt in alts:
            hist = (alt + out)[-60:]
            dist = 0
            for p in reversed(hist):
                if dist >= window:
                    break
                n = hazard_slots(p, c)
                if n > dist:
                    worst = max(worst, n - dist)
                dist += nop_states(p)
        while worst > 0:
            k = min(worst, 16)
            out.append(Inst(f"s_nop {k - 1}", "nop"))
            worst -= k
        out.append(c)
    return out


def insert_waits(stream, pre=None, early_lgkm=0, early_vm=0):
    vq = []
    lq = []

    def apply_wait(i):
        m = re.search(r"vmcnt\((\d+)\)", i.text)
        if m:
            n = int(m.group(1))
            del vq[:max(0, len(vq) - n)]
        m = re.search(r"lgkmcnt\((\d+)\)", i.text)
        if m:
            n = int(m.group(1))
            del lq[:max(0, len(lq) - n)]

    def issue(i):
        if i.kind in VMEM_KINDS:
            vq.append((set(i.defs), i))
        elif i.kind in ("dsr", "dsw"):
            lq.append((set(i.defs), i))
        elif i.kind == "smem":
            raise RuntimeError("smem inside auto-wait region")

    for i in (pre or []):
        if i.kind == "wait":
            apply_wait(i)
        else:
            issue(i)
    out = []
    for c in stream:
        if c.kind == "wait":
            apply_wait(c)
            out.append(c)
            continue
        touch = {r for r in set(c.uses) | set(c.defs) if r[0] != "~"}
        nv = nl = None
        for k, (d, p) in enumerate(vq):
            if d & touch:
                nv = len(vq) - 1 - k
        for k, (d, p) in enumerate(lq):
            if d & touch:
                nl = len(lq) - 1 - k
        if nl is not None and early_lgkm and c.time is not None:
            for k, (d, p) in enumerate(lq):
                if p.time is not None:
                    age = c.time - p.time
                    if age < 0:
                        age += early_lgkm[1]
                    if age >= early_lgkm[0]:
                        nl = min(nl, len(lq) - 1 - k)
        if nv is not None and early_vm and c.time is not None:
            for k, (d, p) in enumerate(vq):
                if p.time is not None and p.kind == "vload":
                    age = c.time - p.time
                    if age < 0:
                        age += early_vm[1]
                    if age >= early_vm[0]:
                        nv = min(nv, len(vq) - 1 - k)
        parts = []
        if nv is not None:
            parts.append(f"vmcnt({min(nv, 63)})")
        if nl is not None:
            parts.append(f"lgkmcnt({min(nl, 15)})")
        if parts:
            w = Inst("s_waitcnt " + " ".join(parts), "wait")
            w.time = c.time
            apply_wait(w)
            out.append(w)
        issue(c)
        out.append(c)
    return out


LAT = {"dsr": 190, "vload": 600, "mfma_valu": 72, "valu": 4, "trans": 8}


def build_deps(prog):
    n = len(prog)
    preds = [dict() for _ in range(n)]
    lastw = {}
    readers = {}

    def add(i, j, cyc):
        if i == j:
            return
        sl = hazard_slots(prog[i], prog[j])
        old = preds[j].get(i)
        if old:
            preds[j][i] = (max(old[0], sl), max(old[1], cyc))
        else:
            preds[j][i] = (sl, cyc)

    prev_mfma = None
    for j, c in enumerate(prog):
        for r in c.uses:
            if r in lastw:
                i = lastw[r]
                p = prog[i]
                if r[0] == "~":
                    cyc = 0
                elif p.kind == "dsr":
                    cyc = LAT["dsr"]
                elif p.kind == "vload":
                    cyc = LAT["vload"]
                elif p.kind == "mfma":
                    if c.kind == "mfma" and r in c.srcC and c.srcC == p.defs:
                        cyc = 0
                    else:
                        cyc = p.passes * 4 + 40
                else:
                    cyc = p.cost
                add(i, j, cyc)
        for r in c.defs:
            if r in lastw:
                i = lastw[r]
                p = prog[i]
                cyc = 0
                if p.kind == "mfma" and c.kind != "mfma":
                    cyc = p.passes * 4 + 40
                add(i, j, cyc)
            for i in readers.get(r, ()):
                add(i, j, 0)
        for r in c.uses:
            readers.setdefault(r, []).append(j)
        for r in c.defs:
            lastw[r] = j
            readers[r] = []
        if c.kind == "mfma":
            if prev_mfma is not None:
                add(prev_mfma, j, 0)
            prev_mfma = j
    return preds


def schedule(prog, gap_budget=24, verbose=False, keep_order_kinds=("dsr",)):
    n = len(prog)
    preds = build_deps(prog)
    last = {}
    for j, c in enumerate(prog):
        cls = "vm" if c.kind in VMEM_KINDS else c.kind
        if c.kind in keep_order_kinds and c.tag != "x":
            if cls in last:
                preds[j].setdefault(last[cls], (0, 0))
            last[cls] = j
    succs = [[] for _ in range(n)]
    for j in range(n):
        for i, (sl, cyc) in preds[j].items():
            succs[i].append((j, sl, cyc))
    t = 0
    ideal = {}
    for j, c in enumerate(prog):
        if c.kind == "mfma":
            ideal[j] = t
            t += c.passes * 4
    total = t
    dl = [None] * n
    for j in range(n - 1, -1, -1):
        c = prog[j]
        d = ideal.get(j)
        if d is None:
            d = c.deadline if c.deadline is not None else total + 10000
            for (k, sl, cyc) in succs[j]:
                d = min(d, dl[k] - max(cyc, sl * 4, c.cost))
        dl[j] = d
    issued_t = [None] * n
    issued_slot = [None] * n
    npred = [len(preds[j]) for j in range(n)]
    ready = {j for j in range(n) if npred[j] == 0}
    order = []
    now = 0
    pipe_free = 0
    slot = 0
    mf = [j for j, c in enumerate(prog) if c.kind == "mfma"]
    mi = 0
    gap_used = 0
    stall = 0

    def earliest(j):
        tt = prog[j].release if prog[j].release is not None else 0
        ss = 0
        for i, (sl, cyc) in preds[j].items():
            tt = max(tt, issued_t[i] + cyc)
            ss = max(ss, issued_slot[i] + 1 + sl)
        return tt, ss

    def emit(j):
        nonlocal now, slot, pipe_free, gap_used
        c = prog[j]
        issued_t[j] = now
        issued_slot[j] = slot
        c.time = now
        order.append(c)
        ready.discard(j)
        for (k, sl, cyc) in succs[j]:
            npred[k] -= 1
            if npred[k] == 0:
                ready.add(k)
        slot += 1
        if c.kind == "mfma":
            pipe_free = now + c.passes * 4
            gap_used = 0
        else:
            gap_used += c.cost
        now += c.cost

    while len(order) < n:
        m = mf[mi] if mi < len(mf) else None
        m_ok = False
        if m is not None and m in ready:
            tt, ss = earliest(m)
            m_ok = tt <= max(now, pipe_free) and ss <= slot
        if m_ok and now >= pipe_free:
            emit(m)
            mi += 1
            continue
        best = None
        for j in ready:
            c = prog[j]
            if c.kind == "mfma":
                continue
            tt, ss = earliest(j)
            if tt > now or ss > slot:
                continue
            if m_ok and (now + c.cost > pipe_free or gap_used + c.cost > gap_budget):
                continue
            key = (dl[j], j)
            if best is None or key < best[0]:
                best = (key, j)
        if best is not None:
            emit(best[1])
            continue
        if m_ok:
            now = pipe_free
            emit(m)
            mi += 1
            continue
        cand = []
        for j in ready:
            tt, ss = earliest(j)
            cand.append((tt, ss, j))
        tmin = min(max(tt, now) for tt, ss, j in cand)
        if tmin > now:
            if now >= pipe_free:
                stall += max(0, tmin - max(now, pipe_free))
            now = tmin
        else:
            nop = Inst("s_nop 0", "nop")
            nop.time = now
            order.append(nop)
            n += 1
            issued_t.append(now)
            issued_slot.append(slot)
            slot += 1
            now += 4
            gap_used += 4
    end = max(now, pipe_free)
    if verbose:
        print(f"; schedule: {len(order)} insts, ideal {total} cyc, model {end} cyc")
    return order, end
```

```python
import sys, math, struct, argparse
from asmlib import *

NAME = "standalone__swin_window_attn__vision"
NWIN = 5329
XBYTES = 100270464
ROWB = 196224
WINROW = 7 * ROWB
MAGIC73 = (1 << 32) // 73 + 1
for w in range(0, 8192):
    assert (w * MAGIC73) >> 32 == w // 73
ALPHA = (192 ** -0.5) * math.log2(math.e)
WS_TIME_OFF = 1 << 20


def f32bits(x):
    return struct.unpack("<I", struct.pack("<f", x))[0]


def mfma(bd, d, ba, a, bb, b, first):
    c = "0" if first else T(bd, d, 16)
    D = R(bd, d, 16)
    AB = R(ba, a, 4) + R(bb, b, 4)
    return Inst(f"v_mfma_f32_32x32x16_bf16 {T(bd, d, 16)}, {T(ba, a, 4)}, {T(bb, b, 4)}, {c}", "mfma",
                defs=D, uses=AB + ([] if first else D), srcC=([] if first else D), srcAB=AB, passes=8)


def valu(text, defs, uses, kind="valu", **kw):
    return Inst(text, kind, defs=defs, uses=uses, **kw)


def cvtpk(d, a, b):
    bt = f"v{b}" if b is not None else "0"
    return valu(f"v_cvt_pk_bf16_f32 v{d}, v{a}, {bt}", [f"v{d}"], [f"v{a}"] + ([f"v{b}"] if b is not None else []))


def salu(text, defs, uses, **kw):
    return Inst(text, "salu", defs=defs, uses=uses, **kw)


def raw(text, kind="other", defs=(), uses=()):
    return Inst(text, kind, defs=defs, uses=uses)


def v3(op, d, *srcs):
    uses = [s for s in srcs if isinstance(s, str) and (is_vreg(s) or is_sreg(s))]
    return valu(f"{op} {d}, " + ", ".join(str(s) for s in srcs), [d], uses)


def gen_prep():
    p = []
    a = p.append
    a(raw("s_cmp_ge_u32 s2, 72", "salu", ["scc"], ["s2"]))
    a(raw("s_cbranch_scc1 L_prep_done"))
    a(raw("s_load_dwordx4 s[4:7], s[0:1], 8"))
    a(raw("s_load_dwordx2 s[8:9], s[0:1], 40"))
    a(salu("s_cmp_ge_u32 s2, 36", ["scc"], ["s2"]))
    a(salu("s_cselect_b32 s20, 1, 0", ["s20"], ["scc"]))
    a(salu("s_mul_i32 s21, s20, 36", ["s21"], ["s20"]))
    a(salu("s_sub_u32 s21, s2, s21", ["s21", "scc"], ["s2", "s21"]))
    a(salu("s_mul_i32 s22, s21, 43", ["s22"], ["s21"]))
    a(salu("s_lshr_b32 s22, s22, 8", ["s22", "scc"], ["s22"]))
    for r in range(36):
        assert (r * 43) >> 8 == r // 6
    a(salu("s_mul_i32 s23, s22, 6", ["s23"], ["s22"]))
    a(salu("s_sub_u32 s23, s21, s23", ["s23", "scc"], ["s21", "s23"]))
    a(v3("v_and_b32", "v1", "31", "v0"))
    a(v3("v_lshrrev_b32", "v2", "5", "v0"))
    a(v3("v_and_b32", "v3", "0x13", "v1"))
    a(v3("v_and_b32", "v4", "4", "v1"))
    a(v3("v_lshl_or_b32", "v3", "v4", "1", "v3"))
    a(v3("v_and_b32", "v4", "8", "v1"))
    a(v3("v_lshrrev_b32", "v4", "1", "v4"))
    a(v3("v_or_b32", "v3", "v3", "v4"))
    a(salu("s_movk_i32 s24, 1152", ["s24"], []))
    a(v3("v_mul_lo_u32", "v5", "v3", "s24"))
    a(v3("v_lshl_add_u32", "v5", "v2", "4", "v5"))
    a(salu("s_mul_i32 s25, s22, 36864", ["s25"], ["s22"]))
    a(salu("s_mul_i32 s26, s20, 768", ["s26"], ["s20"]))
    a(salu("s_add_u32 s25, s25, s26", ["s25", "scc"], ["s25", "s26"]))
    a(salu("s_mul_i32 s26, s23, 36864", ["s26"], ["s23"]))
    a(salu("s_add_u32 s26, s26, 384", ["s26", "scc"], ["s26"]))
    a(raw("s_waitcnt lgkmcnt(0)", "wait"))
    for (dst, src, nb) in ((12, 4, 192 * 576 * 2), (16, 6, 192 * 192 * 2), (28, 8, 147456)):
        a(salu(f"s_mov_b32 s{dst}, s{src}", [f"s{dst}"], [f"s{src}"]))
        a(salu(f"s_and_b32 s{dst+1}, s{src+1}, 0xffff", [f"s{dst+1}", "scc"], [f"s{src+1}"]))
        a(salu(f"s_mov_b32 s{dst+2}, {nb}", [f"s{dst+2}"], []))
        a(salu(f"s_mov_b32 s{dst+3}, 0x20000", [f"s{dst+3}"], []))
    for s in range(12):
        a(Inst(f"buffer_load_dwordx4 {T('v', 16 + 4 * s, 4)}, v5, s[12:15], s25 offen offset:{32 * s}", "vload",
               defs=R('v', 16 + 4 * s, 4), uses=["v5", "s25"]))
    a(salu("s_cmp_eq_u32 s20, 1", ["scc"], ["s20"]))
    a(raw("s_cbranch_scc1 L_prep_n"))
    for s in range(12):
        a(Inst(f"buffer_load_dwordx4 {T('v', 64 + 4 * s, 4)}, v5, s[12:15], s26 offen offset:{32 * s}", "vload",
               defs=R('v', 64 + 4 * s, 4), uses=["v5", "s26"]))
    a(salu(f"s_mov_b32 s27, 0x{f32bits(ALPHA):08x}", ["s27"], []))
    a(raw("s_waitcnt vmcnt(0)", "wait"))
    a(raw("s_branch L_prep_mm"))
    a(raw("L_prep_n:", "label"))
    a(v3("v_mul_u32_u24", "v6", "6", "v1"))
    a(v3("v_add_u32", "v6", "s23", "v6"))
    a(v3("v_lshlrev_b32", "v6", "1", "v6"))
    a(v3("v_mul_u32_u24", "v7", "0xc00", "v2"))
    a(v3("v_add_u32", "v6", "v6", "v7"))
    for s in range(12):
        a(salu(f"s_movk_i32 s27, {s * 6144 if s * 6144 < 32768 else 0}", ["s27"], []) if s * 6144 < 32768 else
          salu(f"s_mov_b32 s27, {s * 6144}", ["s27"], []))
        for j in range(8):
            r = 128 + 8 * s + j
            a(Inst(f"buffer_load_ushort v{r}, v6, s[16:19], s27 offen offset:{384 * j}", "vload",
                   defs=[f"v{r}"], uses=["v6", "s27"]))
    a(salu("s_mov_b32 s27, 1.0", ["s27"], []))
    a(raw("s_waitcnt vmcnt(0)", "wait"))
    for s in range(12):
        for jj in range(4):
            lo, hi = 128 + 8 * s + 2 * jj, 128 + 8 * s + 2 * jj + 1
            a(v3("v_lshl_or_b32", f"v{64 + 4 * s + jj}", f"v{hi}", "16", f"v{lo}"))
    a(raw("L_prep_mm:", "label"))
    a(raw("s_nop 1", "nop"))
    for s in range(12):
        a(mfma("v", 112, "v", 16 + 4 * s, "v", 64 + 4 * s, s == 0))
    a(salu("s_mul_i32 s24, s20, 72", ["s24"], ["s20"]))
    a(salu("s_mul_i32 s25, s23, 12", ["s25"], ["s23"]))
    a(salu("s_add_u32 s24, s24, s25", ["s24", "scc"], ["s24", "s25"]))
    a(salu("s_lshl_b32 s25, s22, 1", ["s25", "scc"], ["s22"]))
    a(salu("s_add_u32 s24, s24, s25", ["s24", "scc"], ["s24", "s25"]))
    a(salu("s_lshl_b32 s24, s24, 10", ["s24", "scc"], ["s24"]))
    a(v3("v_lshlrev_b32", "v8", "4", "v0"))
    for r in range(16):
        a(v3("v_mul_f32", f"v{112 + r}", "s27", f"v{112 + r}"))
    for r in range(8):
        a(cvtpk(16 + r, 112 + 2 * r, 113 + 2 * r))
    a(Inst("buffer_store_dwordx4 v[16:19], v8, s[28:31], s24 offen", "vstore", uses=R('v', 16, 4) + ["v8"], wide=True))
    a(Inst("buffer_store_dwordx4 v[20:23], v8, s[28:31], s24 offen offset:1024", "vstore", uses=R('v', 20, 4) + ["v8"], wide=True))
    a(raw("L_prep_done:", "label"))
    a(raw("s_endpgm"))
    return insert_nops(p)


AX, AXN, AW = 0, 96, 192
B = [0, 16, 32, 48]
TA, TB = 64, 80
CB = [96, 104]
PB = 112
OPK = 144
HOLE = [OPK + 4 * i + 3 for i in range(25)]
V_LDS = [244, 245, 246]
V_X = [247, 248]
V_STA, V_STB, V_STC = 249, 250, 251
V_BIAS = 252
V_M, V_T, V_R = 253, 254, 255
V_S = [HOLE[0], HOLE[1], HOLE[2], HOLE[3]]
V_TIME = HOLE[4]
V_G = [247, 248] + HOLE[5:10]
V_WR = HOLE[10]
V_RD = HOLE[11:15]
STAGE = 147456
S_WCUR, S_LB, S_CB, S_ROW = 16, 17, 18, 20
S_IT = 28


def xr(q, s, nxt=False):
    return (AXN if nxt else AX) + 48 * q + 4 * s


def wfrag_read(mat, t, s, **kw):
    off = (mat * 72 + t * 12 + s) * 1024
    base, imm = divmod(off, 65536)
    d = AW + 4 * s
    return Inst(f"ds_read_b128 {T('a', d, 4)}, v{V_LDS[base]} offset:{imm}", "dsr", defs=R('a', d, 4),
                uses=[f"v{V_LDS[base]}"], **kw)


def sreg(g, j):
    return AXN + 4 * (7 * j + g)


def xload(g, j, sbase, **kw):
    fl = kw.pop("flags", "")
    d = sreg(g, j)
    return Inst(f"buffer_load_dwordx4 {T('a', d, 4)}, v{V_G[g]}, s[4:7], s{sbase} offen offset:{128 * j}" + fl,
                "vload", defs=R('a', d, 4), uses=[f"v{V_G[g]}", f"s{sbase}", "s6"], **kw)


def xtrans(q, dl=None, rel=None):
    out = []
    for j in range(3):
        for i in range(4 if q == 0 else 3):
            d = sreg(4 * q + i, j)
            out.append(Inst(f"ds_write_b128 v{V_WR}, {T('a', d, 4)} offset:{1024 * i}", "dsw", defs=[f"~st{i}"],
                            uses=R('a', d, 4) + [f"v{V_WR}"], tag="x", release=rel))
        for u in range(4):
            d = xr(q, 4 * j + u)
            out.append(Inst(f"ds_read_b128 {T('a', d, 4)}, v{V_RD[u]}", "dsr", defs=R('a', d, 4),
                            uses=[f"v{V_RD[u]}"] + [f"~st{i}" for i in range(4)], tag="x",
                            deadline=None if dl is None else dl + 32 * (4 * j + u)))
    return out


def store_desc(sig):
    if sig <= 20:
        return V_STA, sig // 3, 2 * (sig % 3) * 384
    if sig <= 23:
        return V_STB, 2 * (sig - 21), 6 * 384
    return V_STC, 6, 6 * 384


def sig_to_qr(sig):
    q, rem = divmod(sig, 16)
    return q, rem


def o_mfmas(t):
    out = []
    for ks in range(4):
        for q in range(2):
            out.append(mfma("v", B[2 * q + (t & 1)], "v", PB + 16 * q + 4 * ks, "v", CB[ks >> 1] + 4 * (ks & 1), ks == 0))
    return out


def o_pack(u):
    out = []
    for sig in range(25):
        q, r = sig_to_qr(sig)
        out.append(cvtpk(OPK + 4 * sig + u, B[2 * q] + r, B[2 * q + 1] + r))
    return out


def o_stores(rel0=None, step=0, flags=""):
    out = []
    for sig in range(25):
        vo, row, imm = store_desc(sig)
        d = OPK + 4 * sig
        out.append(Inst(f"buffer_store_dwordx3 {T('v', d, 3)}, v{vo}, s[8:11], s{S_ROW + row} offen offset:{imm}{flags}",
                        "vstore", uses=R('v', d, 3) + [f"v{vo}", f"s{S_ROW + row}", "s10"], wide=True,
                        release=None if rel0 is None else rel0 + step * sig))
    return out


def cvt_acc(acc, cb, n=8):
    return [cvtpk(cb + r, acc + 2 * r, acc + 2 * r + 1) for r in range(n)]


def softmax(q):
    SA, SB = B[2 * q], B[2 * q + 1]
    regs = [SA + r for r in range(16)] + [SB + r for r in range(9)]
    p = []
    p.append(v3("v_add_f32", f"v{SB + 8}", f"v{SB + 8}", f"v{V_BIAS}"))
    m0, m1 = V_M, V_T
    p.append(v3("v_max3_f32", f"v{m0}", f"v{regs[0]}", f"v{regs[1]}", f"v{regs[2]}"))
    p.append(v3("v_max3_f32", f"v{m1}", f"v{regs[3]}", f"v{regs[4]}", f"v{regs[5]}"))
    k = 6
    tog = 0
    while k + 1 < 24:
        m = (m0, m1)[tog]
        p.append(v3("v_max3_f32", f"v{m}", f"v{m}", f"v{regs[k]}", f"v{regs[k + 1]}"))
        k += 2
        tog ^= 1
    assert k == 24
    p.append(v3("v_max3_f32", f"v{m0}", f"v{m0}", f"v{m1}", f"v{regs[24]}"))
    p.append(v3("v_mov_b32", f"v{m1}", f"v{m0}"))
    p.append(valu(f"v_permlane32_swap_b32 v{m0}, v{m1}", [f"v{m0}", f"v{m1}"], [f"v{m0}", f"v{m1}"], kind="perm"))
    p.append(v3("v_max_f32", f"v{m0}", f"v{m0}", f"v{m1}"))
    for r in regs:
        p.append(v3("v_sub_f32", f"v{r}", f"v{r}", f"v{m0}"))
        p.append(valu(f"v_exp_f32 v{r}, v{r}", [f"v{r}"], [f"v{r}"], kind="trans"))
    for c in range(4):
        p.append(v3("v_add_f32", f"v{V_S[c]}", f"v{regs[2 * c]}", f"v{regs[2 * c + 1]}"))
    for k in range(8, 25):
        c = k & 3
        p.append(v3("v_add_f32", f"v{V_S[c]}", f"v{V_S[c]}", f"v{regs[k]}"))
    p.append(v3("v_add_f32", f"v{V_S[0]}", f"v{V_S[0]}", f"v{V_S[1]}"))
    p.append(v3("v_add_f32", f"v{V_S[2]}", f"v{V_S[2]}", f"v{V_S[3]}"))
    p.append(v3("v_add_f32", f"v{V_S[0]}", f"v{V_S[0]}", f"v{V_S[2]}"))
    p.append(v3("v_mov_b32", f"v{V_S[1]}", f"v{V_S[0]}"))
    p.append(valu(f"v_permlane32_swap_b32 v{V_S[0]}, v{V_S[1]}", [f"v{V_S[0]}", f"v{V_S[1]}"],
                  [f"v{V_S[0]}", f"v{V_S[1]}"], kind="perm"))
    p.append(v3("v_add_f32", f"v{V_S[0]}", f"v{V_S[0]}", f"v{V_S[1]}"))
    p.append(valu(f"v_rcp_f32 v{V_R}, v{V_S[0]}", [f"v{V_R}"], [f"v{V_S[0]}"], kind="trans"))
    for k in range(0, 24, 2):
        p.append(v3("v_mul_f32", f"v{regs[k]}", f"v{regs[k]}", f"v{V_R}"))
        p.append(v3("v_mul_f32", f"v{regs[k + 1]}", f"v{regs[k + 1]}", f"v{V_R}"))
        p.append(cvtpk(PB + 16 * q + k // 2, regs[k], regs[k + 1]))
    p.append(v3("v_mul_f32", f"v{regs[24]}", f"v{regs[24]}", f"v{V_R}"))
    p.append(cvtpk(PB + 16 * q + 12, regs[24], None))
    return p


def win_base(dst, w, tmp):
    return [
        salu(f"s_mul_hi_u32 s{tmp}, s{w}, s29", [f"s{tmp}"], [f"s{w}", "s29"]),
        salu(f"s_mul_i32 s{dst}, s{tmp}, 73", [f"s{dst}"], [f"s{tmp}"]),
        salu(f"s_sub_u32 s{dst}, s{w}, s{dst}", [f"s{dst}", "scc"], [f"s{w}", f"s{dst}"]),
        salu(f"s_mul_i32 s{dst}, s{dst}, 2688", [f"s{dst}"], [f"s{dst}"]),
        salu(f"s_mul_i32 s{tmp}, s{tmp}, {WINROW}", [f"s{tmp}"], [f"s{tmp}"]),
        salu(f"s_add_u32 s{dst}, s{dst}, s{tmp}", [f"s{dst}", "scc"], [f"s{dst}", f"s{tmp}"]),
    ]


def row_bases():
    out = [salu(f"s_mov_b32 s{S_ROW}, s{S_CB}", [f"s{S_ROW}"], [f"s{S_CB}"])]
    for r in range(1, 7):
        out.append(salu(f"s_add_u32 s{S_ROW + r}, s{S_CB}, {r * ROWB}", [f"s{S_ROW + r}", "scc"], [f"s{S_CB}"]))
    return out


def gen_body(o):
    p = []
    ext = p.extend
    p.append(salu(f"s_add_u32 s{S_WCUR}, s{S_WCUR}, 1024", [f"s{S_WCUR}", "scc"], [f"s{S_WCUR}"], deadline=0))
    ext(win_base(S_LB, S_WCUR, 30))
    p.append(salu(f"s_cmp_lt_u32 s{S_WCUR}, {NWIN}", ["scc"], [f"s{S_WCUR}"]))
    p.append(salu(f"s_cselect_b32 s6, {'0' if o.noload else 's31'}, 0", ["s6"], ["scc", "s31"]))
    k = 0
    for g in range(4):
        for j in range(3):
            p.append(xload(g, j, S_LB, release=o.ld0_rel + o.ld_step * k, deadline=o.ld0_rel + o.ld_step * k + 64, flags=o.ld_flags))
            k += 1
    ext(cvt_acc(TB, CB[1], 5))

    def chain_T(c):
        q, t = divmod(c, 6)
        acc = (TA, TB)[c & 1]
        out = []
        for s in range(12):
            out.append(mfma("v", acc, "a", AW + 4 * s, "a", xr(q, s), s == 0))
            if c < 11:
                out.append(wfrag_read(0, (c + 1) % 6, s))
            else:
                out.append(wfrag_read(1, 0, s))
        return out

    def s_mf(c):
        q, t = divmod(c, 6)
        out = []
        for u in range(2):
            for k in range(2):
                out.append(mfma("v", B[2 * q + k], "a", xr(k, 2 * t + u), "v", CB[c & 1] + 4 * u, t == 0 and u == 0))
        return out

    def chain_V(k, t):
        acc = (TA, TB)[k]
        out = []
        for s in range(12):
            out.append(mfma("v", acc, "a", xr(k, s), "a", AW + 4 * s, s == 0))
            if k == 1:
                if t < 5:
                    out.append(wfrag_read(1, t + 1, s))
                else:
                    out.append(wfrag_read(0, 0, s, deadline=384 * 32 + 32 * s - 200))
        return out

    ext(chain_T(0))
    ext(o_mfmas(5))
    ext(xtrans(1))
    k = 0
    for g in range(4, 7):
        for j in range(3):
            p.append(xload(g, j, S_LB, release=o.ld1_rel + o.ld_step * k, deadline=o.ld1_rel + o.ld_step * k + 64, flags=o.ld_flags))
            k += 1
    ext(o_pack(2))
    st = o_stores(o.st_rel, o.st_step, o.st_flags)
    for i in st:
        i.deadline = i.release + 64
    ext(st)
    ext(row_bases())
    p.append(salu(f"s_mov_b32 s10, {'0' if o.nostore else 's31'}", ["s10"], ["s31"]))
    p.append(salu(f"s_mov_b32 s{S_CB}, s{S_LB}", [f"s{S_CB}"], [f"s{S_LB}"]))
    ext(cvt_acc(TA, CB[0]))
    for c in range(1, 12):
        ext(chain_T(c))
        ext(s_mf(c - 1))
        if c - 1 == 5:
            ext(softmax(0))
        ext(cvt_acc((TA, TB)[c & 1], CB[c & 1]))
    ext(chain_V(0, 0))
    ext(s_mf(11))
    for r in range(5, 8):
        p.append(v3("v_mov_b32", f"v{CB[1] + r}", "0"))
    ext(softmax(1))
    ext(cvt_acc(TA, CB[0]))
    ext(chain_V(1, 0))
    ext(cvt_acc(TB, CB[1], 5))
    ext(chain_V(0, 1))
    ext(chain_V(1, 1))
    ext(o_mfmas(0))
    ext(cvt_acc(TA, CB[0]))
    ext(cvt_acc(TB, CB[1], 5))
    for t in range(2, 6):
        ext(chain_V(0, t))
        ext(o_mfmas(t - 1))
        if (t - 1) & 1:
            ext(o_pack((t - 1) >> 1))
        ext(cvt_acc(TA, CB[0]))
        if t == 5:
            ext(xtrans(0, 384 * 32 - 200, o.xw_rel))
        ext(chain_V(1, t))
        if t < 5:
            ext(cvt_acc(TB, CB[1], 5))
    if o.rmload:
        p = [i for i in p if i.kind != "vload"]
    if o.rmstore:
        p = [i for i in p if i.kind != "vstore"]
    return p


def gen_epilogue():
    p = []
    p.extend(cvt_acc(TB, CB[1], 5))
    p.extend(o_mfmas(5))
    p.extend(o_pack(2))
    p.extend(o_stores())
    return p


def gen_prologue(o):
    p = []
    a = p.append
    a(raw("s_cmp_ge_u32 s2, 256", "salu", ["scc"], ["s2"]))
    a(raw("s_cbranch_scc1 L_main_done"))
    a(raw("s_load_dwordx2 s[32:33], s[0:1], 0"))
    a(raw("s_load_dwordx2 s[34:35], s[0:1], 24"))
    a(raw("s_load_dwordx2 s[36:37], s[0:1], 40"))
    if o.diag:
        a(raw("s_memtime s[44:45]"))
        a(raw("s_memrealtime s[46:47]"))
    a(v3("v_and_b32", "v1", "63", "v0"))
    a(v3("v_lshrrev_b32", "v2", "6", "v0"))
    a(raw("s_nop 0", "nop"))
    a(valu("v_readfirstlane_b32 s38, v2", ["s38"], ["v2"]))
    a(v3("v_and_b32", "v3", "31", "v1"))
    a(v3("v_lshrrev_b32", "v4", "5", "v1"))
    a(v3("v_lshlrev_b32", f"v{V_LDS[0]}", "4", "v1"))
    a(v3("v_add_u32", f"v{V_LDS[1]}", "0x10000", f"v{V_LDS[0]}"))
    a(v3("v_add_u32", f"v{V_LDS[2]}", "0x20000", f"v{V_LDS[0]}"))
    a(salu("s_lshl_b32 s16, s2, 2", ["s16", "scc"], ["s2"]))
    a(salu("s_add_u32 s16, s16, s38", ["s16", "scc"], ["s16", "s38"]))
    a(salu(f"s_mov_b32 s29, {MAGIC73}", ["s29"], []))
    a(salu(f"s_mov_b32 s31, {XBYTES}", ["s31"], []))
    p.extend(win_base(S_CB, S_WCUR, 30))
    a(salu(f"s_mov_b32 s39, {ROWB}", ["s39"], []))
    a(salu("s_movk_i32 s40, 384", ["s40"], []))
    a(v3("v_bfe_u32", "v5", "v1", "3", "2"))
    a(v3("v_lshrrev_b32", "v6", "4", "v1"))
    a(v3("v_and_b32", "v12", "7", "v1"))
    a(v3("v_xor_b32", "v12", "v12", "v6"))
    a(v3("v_xor_b32", "v13", "4", "v12"))
    for sg in range(32):
        assert (sg * 43) >> 7 == sg // 3
    for g in range(7):
        a(v3("v_add_u32", "v7", str(4 * g), "v5"))
        a(v3("v_mul_u32_u24", "v8", "43", "v7"))
        a(v3("v_lshrrev_b32", "v8", "7", "v8"))
        a(v3("v_mul_u32_u24", "v9", "3", "v8"))
        a(v3("v_sub_u32", "v9", "v7", "v9"))
        a(v3("v_lshl_add_u32", "v9", "v9", "1", "v4"))
        if g >= 5:
            a(v3("v_subrev_u32", "v10", "21", "v7"))
            a(v3("v_lshl_add_u32", "v10", "v10", "1", "v4"))
            a(valu("v_cmp_lt_u32 vcc, 20, v7", ["vcc"], ["v7"]))
            a(v3("v_mov_b32", "v11", "6"))
            a(valu("v_cndmask_b32 v8, v8, v10, vcc", ["v8"], ["v8", "v10", "vcc"]))
            a(valu("v_cndmask_b32 v9, v9, v11, vcc", ["v9"], ["v9", "v11", "vcc"]))
        a(v3("v_mul_lo_u32", "v10", "v8", "s39"))
        a(v3("v_mul_lo_u32", "v11", "v9", "s40"))
        a(v3("v_add_u32", "v10", "v10", "v11"))
        a(v3("v_lshl_add_u32", f"v{V_G[g]}", ("v12", "v13")[g & 1], "4", "v10"))
        if g == 6:
            a(valu("v_cmp_lt_u32 vcc, 6, v8", ["vcc"], ["v8"]))
            a(v3("v_mov_b32", "v11", "0x80000000"))
            a(valu(f"v_cndmask_b32 v{V_G[g]}, v{V_G[g]}, v11, vcc", [f"v{V_G[g]}"], [f"v{V_G[g]}", "v11", "vcc"]))
    a(salu("s_lshl_b32 s41, s38, 12", ["s41", "scc"], ["s38"]))
    a(salu(f"s_add_u32 s41, s41, {STAGE}", ["s41", "scc"], ["s41"]))
    a(v3("v_add_u32", f"v{V_WR}", "s41", f"v{V_LDS[0]}"))
    a(v3("v_bfe_u32", "v5", "v3", "1", "3"))
    a(v3("v_xor_b32", "v5", "v5", "v4"))
    a(v3("v_lshlrev_b32", "v5", "4", "v5"))
    a(v3("v_lshl_add_u32", "v5", "v3", "7", "v5"))
    a(v3("v_add_u32", f"v{V_RD[0]}", "s41", "v5"))
    for u in range(1, 4):
        a(v3("v_xor_b32", f"v{V_RD[u]}", str(32 * u) if 32 * u <= 64 else "0x60", f"v{V_RD[0]}"))
    a(v3("v_mul_u32_u24", "v10", "12", "v3"))
    a(v3("v_mul_u32_u24", "v11", "0x180", "v4"))
    a(v3("v_add_u32", f"v{V_STA}", "v10", "v11"))
    a(v3("v_mul_lo_u32", "v11", "v4", "s39"))
    a(v3("v_add_u32", f"v{V_STB}", "v10", "v11"))
    a(v3("v_lshlrev_b32", "v11", "31", "v4"))
    a(v3("v_or_b32", f"v{V_STC}", "v10", "v11"))
    a(v3("v_mul_lo_u32", f"v{V_BIAS}", "v4", "s41") if False else salu("s_mov_b32 s41, 0xff800000", ["s41"], []))
    a(v3("v_mul_lo_u32", f"v{V_BIAS}", "v4", "s41"))
    for q in range(2):
        for r in range(13, 16):
            a(v3("v_mov_b32", f"v{PB + 16 * q + r}", "0"))
    a(raw("s_waitcnt lgkmcnt(0)", "wait"))
    for (dst, src, nb) in ((4, 32, "s31"), (8, 34, "0"), (12, 36, "147456" if not o.diag else str(WS_TIME_OFF + 1024 * 256))):
        a(salu(f"s_mov_b32 s{dst}, s{src}", [f"s{dst}"], [f"s{src}"]))
        a(salu(f"s_and_b32 s{dst+1}, s{src+1}, 0xffff", [f"s{dst+1}", "scc"], [f"s{src+1}"]))
        a(salu(f"s_mov_b32 s{dst+2}, {nb}", [f"s{dst+2}"], []))
        a(salu(f"s_mov_b32 s{dst+3}, 0x20000", [f"s{dst+3}"], []))
    for r in range(7):
        a(salu(f"s_mov_b32 s{S_ROW + r}, 0", [f"s{S_ROW + r}"], []))
    for g in range(7):
        for j in range(3):
            a(xload(g, j, S_CB, flags=o.ld_flags))
    a(salu("s_lshr_b32 s42, s2, 3", ["s42", "scc"], ["s2"]))
    if o.norot:
        a(salu("s_mov_b32 s42, 0", ["s42"], []))
    a(salu("s_mul_i32 s43, s38, 6", ["s43"], ["s38"]))
    a(salu("s_add_u32 s42, s42, s43", ["s42", "scc"], ["s42", "s43"]))
    for _ in range(2):
        a(salu("s_sub_u32 s43, s42, 24", ["s43", "scc"], ["s42"]))
        a(salu("s_cselect_b32 s42, s42, s43", ["s42"], ["scc", "s42", "s43"]))
    a(salu("s_mul_i32 s42, s42, 3072", ["s42"], ["s42"]))
    for mat in range(2):
        for g in range(6):
            if mat or g:
                a(salu("s_add_u32 s42, s42, 3072", ["s42", "scc"], ["s42"]))
                a(salu("s_cmp_eq_u32 s42, 73728", ["scc"], ["s42"]))
                a(salu("s_cselect_b32 s42, 0, s42", ["s42"], ["scc", "s42"]))
            if mat == 1 and g == 0:
                pass
            a(salu(f"s_add_u32 s43, s42, {mat * 73728}", ["s43", "scc"], ["s42"]))
            a(salu("s_mov_b32 m0, s43", ["m0"], ["s43"]))
            for k in range(3):
                a(Inst(f"buffer_load_dwordx4 v{V_LDS[0]}, s[12:15], s43 offen offset:{1024 * k} lds", "ldsdma",
                       uses=[f"v{V_LDS[0]}", "s43", "m0"]))
    a(raw("s_waitcnt vmcnt(36)", "wait"))
    p.extend(xtrans(0))
    a(raw("s_waitcnt vmcnt(0)", "wait"))
    a(raw("s_barrier"))
    for s in range(12):
        a(wfrag_read(0, 0, s))
    if o.diag:
        a(salu(f"s_mov_b32 s{S_IT}, 1", [f"s{S_IT}"], []))
        a(v3("v_mov_b32", f"v{V_TIME}", "s44"))
        a(valu(f"v_writelane_b32 v{V_TIME}, s46, 62", [f"v{V_TIME}"], ["s46"]))
    a(raw("s_waitcnt lgkmcnt(0)", "wait"))
    return p


def stamp():
    return [raw("s_memtime s[44:45]"), salu(f"s_mov_b32 m0, s{S_IT}", ["m0"], [f"s{S_IT}"]), raw("s_waitcnt lgkmcnt(0)", "wait"),
            valu(f"v_writelane_b32 v{V_TIME}, s44, m0", [f"v{V_TIME}"], ["s44", "m0"]),
            salu(f"s_add_u32 s{S_IT}, s{S_IT}, 1", [f"s{S_IT}", "scc"], [f"s{S_IT}"])]


def gen_main(o):
    pro = insert_nops(gen_prologue(o))
    body = gen_body(o)
    if o.sched:
        body, cyc = schedule(body, gap_budget=o.gap, verbose=True)
    else:
        cyc = 0
    tail = [salu(f"s_cmp_lt_u32 s{S_WCUR}, {NWIN}", ["scc"], [f"s{S_WCUR}"]), raw("s_cbranch_scc1 L_loop")]
    head = stamp() if o.diag else []
    body = head + body + tail
    el = (o.early, cyc) if (o.sched and o.early) else 0
    ev = (o.early_vm, cyc) if (o.sched and o.early_vm) else 0
    b1 = insert_waits(body, early_lgkm=el, early_vm=ev)
    b2 = insert_waits(body, pre=b1, early_lgkm=el, early_vm=ev)
    b3 = insert_waits(body, pre=b2, early_lgkm=el, early_vm=ev)
    assert [i.text for i in b2] == [i.text for i in b3]
    n1 = insert_nops(b2, pre=[pro])
    n2 = insert_nops(b2, pre=[pro, n1])
    n3 = insert_nops(b2, pre=[pro, n2])
    assert [i.text for i in n2] == [i.text for i in n3]
    epi = gen_epilogue()
    epi = insert_waits(epi, pre=b2)
    if o.diag:
        epi += stamp()
        epi += [raw("s_waitcnt vmcnt(0)", "wait")] + stamp()
        epi += [raw("s_memrealtime s[46:47]"), raw("s_waitcnt lgkmcnt(0)", "wait"),
                valu(f"v_writelane_b32 v{V_TIME}, s46, 63", [f"v{V_TIME}"], ["s46"])]
        epi += [v3("v_lshlrev_b32", "v0", "2", f"v{V_LDS[0]}"), v3("v_lshrrev_b32", "v0", "4", "v0"),
                salu("s_lshl_b32 s42, s2, 2", ["s42", "scc"], ["s2"]),
                salu("s_add_u32 s42, s42, s38", ["s42", "scc"], ["s42", "s38"]),
                salu("s_lshl_b32 s42, s42, 8", ["s42", "scc"], ["s42"]),
                salu(f"s_add_u32 s42, s42, {WS_TIME_OFF}", ["s42", "scc"], ["s42"]),
                Inst(f"buffer_store_dword v{V_TIME}, v0, s[12:15], s42 offen", "vstore", uses=[f"v{V_TIME}", "v0", "s42"])]
    epi = insert_nops(epi, pre=[n2])
    stats = {}
    for i in n2:
        stats[i.kind] = stats.get(i.kind, 0) + 1
    print("; body stats", stats, file=sys.stderr)
    return pro, n2, epi


def emit(insts):
    out = []
    for i in insts:
        out.append(i.text if i.kind == "label" else "    " + i.text)
    return "\n".join(out)


HEADER = """; Swin window attention: folded projections (M = a*Wq*Wk^T, N = Wv*Wo), one wave per window.
; @launch kernel=swin_prep_kernel grid=(72,1,1) block=(64,1,1) lds=0
; @launch kernel={name}_kernel grid=(256,1,1) block=(256,1,1) lds=163840
.amdgcn_target "amdgcn-amd-amdhsa--gfx950"
.text
"""

KD = """.amdhsa_kernel {k}
  .amdhsa_next_free_vgpr {nv}
  .amdhsa_next_free_sgpr {ns}
  .amdhsa_accum_offset {ao}
  .amdhsa_group_segment_fixed_size 0
  .amdhsa_kernarg_size 48
  .amdhsa_user_sgpr_count 2
  .amdhsa_user_sgpr_kernarg_segment_ptr 1
  .amdhsa_system_sgpr_workgroup_id_x 1
.end_amdhsa_kernel
"""


def main():
    ap = argparse.ArgumentParser()
    ap.add_argument("-o", default="cdna_kernels/" + NAME + ".s")
    ap.add_argument("--nosched", dest="sched", action="store_false")
    ap.add_argument("--diag", action="store_true")
    ap.add_argument("--gap", type=int, default=24)
    ap.add_argument("--early", type=int, default=230)
    ap.add_argument("--early_vm", type=int, default=1800)
    ap.add_argument("--ld0_rel", type=int, default=32)
    ap.add_argument("--ld1_rel", type=int, default=1000)
    ap.add_argument("--ld_step", type=int, default=64)
    ap.add_argument("--st_rel", type=int, default=1900)
    ap.add_argument("--st_step", type=int, default=96)
    ap.add_argument("--ld_flags", default="nt")
    ap.add_argument("--st_flags", default="")
    ap.add_argument("--xw_rel", type=int, default=11000)
    ap.add_argument("--pf_rel", type=int, default=64)
    ap.add_argument("--pf_step", type=int, default=64)
    ap.add_argument("--ld_gstep", type=int, default=0)
    ap.add_argument("--pf_flags", default="")
    for f in ("noload", "nostore", "rmload", "rmstore", "pf", "norot"):
        ap.add_argument("--" + f, action="store_true")
    o = ap.parse_args()
    if o.ld_flags:
        o.ld_flags = " " + o.ld_flags
    if o.pf_flags:
        o.pf_flags = " " + o.pf_flags
    if o.st_flags:
        o.st_flags = " " + o.st_flags
    old = sys.stdout
    sys.stdout = sys.stderr
    prep = gen_prep()
    pro, body, epi = gen_main(o)
    sys.stdout = old
    s = HEADER.format(name=NAME)
    s += ".globl swin_prep_kernel\n.p2align 8\n.type swin_prep_kernel,@function\nswin_prep_kernel:\n"
    s += emit(prep) + "\n"
    k = NAME + "_kernel"
    s += f".globl {k}\n.p2align 8\n.type {k},@function\n{k}:\n"
    s += emit(pro) + "\n.p2align 6\nL_loop:\n" + emit(body) + "\n" + emit(epi) + "\nL_main_done:\n    s_endpgm\n"
    s += '.section .rodata,"a"\n.p2align 6\n'
    s += KD.format(k="swin_prep_kernel", nv=224, ns=40, ao=224)
    s += ".p2align 6\n"
    s += KD.format(k=k, nv=496, ns=48, ao=256)
    open(o.o, "w").write(s)


if __name__ == "__main__":
    main()
```

```python
import re


def R(bank, lo, n=1):
    return [f"{bank}{lo + i}" for i in range(n)]


def T(bank, lo, n=1):
    return f"{bank}{lo}" if n == 1 else f"{bank}[{lo}:{lo + n - 1}]"


class Inst:
    __slots__ = ("text", "kind", "defs", "uses", "srcC", "srcAB", "passes", "release", "deadline",
                 "idx", "tag", "cost", "time", "pin", "wide", "prio")

    def __init__(self, text, kind, defs=(), uses=(), srcC=(), srcAB=(), passes=0,
                 release=None, deadline=None, tag="", wide=False):
        self.text = text
        self.kind = kind
        self.defs = list(defs)
        self.uses = list(uses)
        self.srcC = list(srcC)
        self.srcAB = list(srcAB)
        self.passes = passes
        self.release = release
        self.deadline = deadline
        self.tag = tag
        self.wide = wide
        self.cost = {"mfma": 8, "trans": 8, "dsw": 8}.get(kind, 4)
        self.time = None
        self.prio = 0

    def __repr__(self):
        return f"<{self.text}>"


VALU_KINDS = ("valu", "trans", "perm")
VMEM_KINDS = ("vload", "vstore", "ldsdma")


def is_vreg(r):
    return r[0] in "va" and r[1:].isdigit()


def is_sreg(r):
    return (r[0] == "s" and r[1:].isdigit()) or r in ("vcc",)


def hazard_slots(p, c):
    need = 0
    pd, cu, cd = set(p.defs), set(c.uses), set(c.defs)
    if p.kind in VALU_KINDS:
        vd = {r for r in pd if is_vreg(r)}
        sd = {r for r in pd if is_sreg(r)}
        if c.kind == "mfma" and vd & cu:
            need = max(need, 2)
        if c.kind == "perm" and vd & cu:
            need = max(need, 2)
        if p.kind == "trans" and c.kind in ("valu", "perm", "mfma") and vd & cu:
            need = max(need, 1)
        if p.kind == "trans" and c.kind in VMEM_KINDS + ("dsw", "dsr") and vd & cu:
            need = max(need, 1)
        if c.text.startswith(("v_readfirstlane", "v_readlane")) and vd & cu:
            need = max(need, 1)
        if "dpp" in c.text or "row_" in c.text:
            if vd & cu:
                need = max(need, 2)
        if sd & cu:
            if c.kind in VALU_KINDS:
                need = max(need, 2)
            if c.kind in VMEM_KINDS:
                need = max(need, 5)
            if c.kind == "salu":
                need = max(need, 1)
        if "exec" in pd and c.kind == "mfma":
            need = max(need, 4)
    if p.kind == "mfma":
        ps = p.passes
        t_ab = {2: 5, 4: 8, 8: 12, 16: 20}[ps]
        t_ov = {2: 4, 4: 6, 8: 10, 16: 18}[ps]
        t_war = {2: 1, 4: 3, 8: 7, 16: 15}[ps]
        if c.kind == "mfma":
            if pd & set(c.srcAB):
                need = max(need, t_ab)
            if pd & set(c.srcC):
                if c.srcC == p.defs and c.passes == p.passes:
                    need = max(need, 2 if ps == 2 else 0)
                else:
                    need = max(need, t_ov)
            if pd & cd and c.defs != p.defs:
                need = max(need, t_ov)
        else:
            if pd & (cu | cd):
                need = max(need, t_ab)
            if c.kind in VALU_KINDS and set(p.srcC) & cd:
                need = max(need, t_war)
    if p.kind == "vstore" and p.wide:
        data = {r for r in p.uses if is_vreg(r)}
        if data & cd:
            need = max(need, 2)
    if p.kind == "salu" and "m0" in pd and c.kind == "ldsdma":
        need = max(need, 1)
    return need


def nop_states(i):
    if i.kind == "nop":
        return int(i.text.split()[1]) + 1
    if i.kind in ("label", "comment"):
        return 0
    return 1


def insert_nops(stream, pre=None, window=24):
    alts = pre if pre else [[]]
    out = []
    for c in stream:
        if c.kind in ("label", "comment"):
            out.append(c)
            continue
        worst = 0
        for alt in alts:
            hist = (alt + out)[-60:]
            dist = 0
            for p in reversed(hist):
                if dist >= window:
                    break
                n = hazard_slots(p, c)
                if n > dist:
                    worst = max(worst, n - dist)
                dist += nop_states(p)
        while worst > 0:
            k = min(worst, 16)
            out.append(Inst(f"s_nop {k - 1}", "nop"))
            worst -= k
        out.append(c)
    return out


def insert_waits(stream, pre=None, early_lgkm=0, early_vm=0):
    vq = []
    lq = []

    def apply_wait(i):
        m = re.search(r"vmcnt\((\d+)\)", i.text)
        if m:
            n = int(m.group(1))
            del vq[:max(0, len(vq) - n)]
        m = re.search(r"lgkmcnt\((\d+)\)", i.text)
        if m:
            n = int(m.group(1))
            del lq[:max(0, len(lq) - n)]

    def issue(i):
        if i.kind in VMEM_KINDS:
            vq.append((set(i.defs), i))
        elif i.kind in ("dsr", "dsw"):
            lq.append((set(i.defs), i))
        elif i.kind == "smem":
            raise RuntimeError("smem inside auto-wait region")

    for i in (pre or []):
        if i.kind == "wait":
            apply_wait(i)
        else:
            issue(i)
    out = []
    for c in stream:
        if c.kind == "wait":
            apply_wait(c)
            out.append(c)
            continue
        touch = {r for r in set(c.uses) | set(c.defs) if r[0] != "~"}
        nv = nl = None
        for k, (d, p) in enumerate(vq):
            if d & touch:
                nv = len(vq) - 1 - k
        for k, (d, p) in enumerate(lq):
            if d & touch:
                nl = len(lq) - 1 - k
        if nl is not None and early_lgkm and c.time is not None:
            for k, (d, p) in enumerate(lq):
                if p.time is not None:
                    age = c.time - p.time
                    if age < 0:
                        age += early_lgkm[1]
                    if age >= early_lgkm[0]:
                        nl = min(nl, len(lq) - 1 - k)
        if nv is not None and early_vm and c.time is not None:
            for k, (d, p) in enumerate(vq):
                if p.time is not None and p.kind == "vload":
                    age = c.time - p.time
                    if age < 0:
                        age += early_vm[1]
                    if age >= early_vm[0]:
                        nv = min(nv, len(vq) - 1 - k)
        parts = []
        if nv is not None:
            parts.append(f"vmcnt({min(nv, 63)})")
        if nl is not None:
            parts.append(f"lgkmcnt({min(nl, 15)})")
        if parts:
            w = Inst("s_waitcnt " + " ".join(parts), "wait")
            w.time = c.time
            apply_wait(w)
            out.append(w)
        issue(c)
        out.append(c)
    return out


LAT = {"dsr": 190, "vload": 600, "mfma_valu": 72, "valu": 4, "trans": 8}


def build_deps(prog):
    n = len(prog)
    preds = [dict() for _ in range(n)]
    lastw = {}
    readers = {}

    def add(i, j, cyc):
        if i == j:
            return
        sl = hazard_slots(prog[i], prog[j])
        old = preds[j].get(i)
        if old:
            preds[j][i] = (max(old[0], sl), max(old[1], cyc))
        else:
            preds[j][i] = (sl, cyc)

    prev_mfma = None
    for j, c in enumerate(prog):
        for r in c.uses:
            if r in lastw:
                i = lastw[r]
                p = prog[i]
                if r[0] == "~":
                    cyc = 0
                elif p.kind == "dsr":
                    cyc = LAT["dsr"]
                elif p.kind == "vload":
                    cyc = LAT["vload"]
                elif p.kind == "mfma":
                    if c.kind == "mfma" and r in c.srcC and c.srcC == p.defs:
                        cyc = 0
                    else:
                        cyc = p.passes * 4 + 40
                else:
                    cyc = p.cost
                add(i, j, cyc)
        for r in c.defs:
            if r in lastw:
                i = lastw[r]
                p = prog[i]
                cyc = 0
                if p.kind == "mfma" and c.kind != "mfma":
                    cyc = p.passes * 4 + 40
                add(i, j, cyc)
            for i in readers.get(r, ()):
                add(i, j, 0)
        for r in c.uses:
            readers.setdefault(r, []).append(j)
        for r in c.defs:
            lastw[r] = j
            readers[r] = []
        if c.kind == "mfma":
            if prev_mfma is not None:
                add(prev_mfma, j, 0)
            prev_mfma = j
    return preds


def schedule(prog, gap_budget=24, verbose=False, keep_order_kinds=("dsr",)):
    n = len(prog)
    preds = build_deps(prog)
    last = {}
    for j, c in enumerate(prog):
        cls = "vm" if c.kind in VMEM_KINDS else c.kind
        if c.kind in keep_order_kinds and c.tag != "x":
            if cls in last:
                preds[j].setdefault(last[cls], (0, 0))
            last[cls] = j
    succs = [[] for _ in range(n)]
    for j in range(n):
        for i, (sl, cyc) in preds[j].items():
            succs[i].append((j, sl, cyc))
    t = 0
    ideal = {}
    for j, c in enumerate(prog):
        if c.kind == "mfma":
            ideal[j] = t
            t += c.passes * 4
    total = t
    dl = [None] * n
    for j in range(n - 1, -1, -1):
        c = prog[j]
        d = ideal.get(j)
        if d is None:
            d = c.deadline if c.deadline is not None else total + 10000
            for (k, sl, cyc) in succs[j]:
                d = min(d, dl[k] - max(cyc, sl * 4, c.cost))
        dl[j] = d
    issued_t = [None] * n
    issued_slot = [None] * n
    npred = [len(preds[j]) for j in range(n)]
    ready = {j for j in range(n) if npred[j] == 0}
    order = []
    now = 0
    pipe_free = 0
    slot = 0
    mf = [j for j, c in enumerate(prog) if c.kind == "mfma"]
    mi = 0
    gap_used = 0
    stall = 0

    def earliest(j):
        tt = prog[j].release if prog[j].release is not None else 0
        ss = 0
        for i, (sl, cyc) in preds[j].items():
            tt = max(tt, issued_t[i] + cyc)
            ss = max(ss, issued_slot[i] + 1 + sl)
        return tt, ss

    def emit(j):
        nonlocal now, slot, pipe_free, gap_used
        c = prog[j]
        issued_t[j] = now
        issued_slot[j] = slot
        c.time = now
        order.append(c)
        ready.discard(j)
        for (k, sl, cyc) in succs[j]:
            npred[k] -= 1
            if npred[k] == 0:
                ready.add(k)
        slot += 1
        if c.kind == "mfma":
            pipe_free = now + c.passes * 4
            gap_used = 0
        else:
            gap_used += c.cost
        now += c.cost

    while len(order) < n:
        m = mf[mi] if mi < len(mf) else None
        m_ok = False
        if m is not None and m in ready:
            tt, ss = earliest(m)
            m_ok = tt <= max(now, pipe_free) and ss <= slot
        if m_ok and now >= pipe_free:
            emit(m)
            mi += 1
            continue
        best = None
        for j in ready:
            c = prog[j]
            if c.kind == "mfma":
                continue
            tt, ss = earliest(j)
            if tt > now or ss > slot:
                continue
            if m_ok and (now + c.cost > pipe_free or gap_used + c.cost > gap_budget):
                continue
            key = (dl[j], j)
            if best is None or key < best[0]:
                best = (key, j)
        if best is not None:
            emit(best[1])
            continue
        if m_ok:
            now = pipe_free
            emit(m)
            mi += 1
            continue
        cand = []
        for j in ready:
            tt, ss = earliest(j)
            cand.append((tt, ss, j))
        tmin = min(max(tt, now) for tt, ss, j in cand)
        if tmin > now:
            if now >= pipe_free:
                stall += max(0, tmin - max(now, pipe_free))
            now = tmin
        else:
            nop = Inst("s_nop 0", "nop")
            nop.time = now
            order.append(nop)
            n += 1
            issued_t.append(now)
            issued_slot.append(slot)
            slot += 1
            now += 4
            gap_used += 4
    end = max(now, pipe_free)
    if verbose:
        print(f"; schedule: {len(order)} insts, ideal {total} cyc, model {end} cyc")
        prev = 0
        for k, j in enumerate(mf):
            d = issued_t[j] - ideal[j]
            if d != prev:
                print(f";   mfma {k} late by {d} (+{d - prev}): {prog[j].text}")
                prev = d
    return order, end
```

```python
import sys, math, struct, argparse
from asmlib import *

NAME = "standalone__swin_window_attn__vision"
NWIN = 5329
XBYTES = 100270464
ROWB = 196224
WINROW = 7 * ROWB
MAGIC73 = (1 << 32) // 73 + 1
for w in range(0, 16384):
    assert (w * MAGIC73) >> 32 == w // 73
ALPHA = (192 ** -0.5) * math.log2(math.e)
WS_TIME_OFF = 1 << 20
STAGE = 147456


def f32bits(x):
    return struct.unpack("<I", struct.pack("<f", x))[0]


def mfma(bd, d, ba, a, bb, b, first):
    c = "0" if first else T(bd, d, 4)
    D = R(bd, d, 4)
    AB = R(ba, a, 4) + R(bb, b, 4)
    return Inst(f"v_mfma_f32_16x16x32_bf16 {T(bd, d, 4)}, {T(ba, a, 4)}, {T(bb, b, 4)}, {c}", "mfma",
                defs=D, uses=AB + ([] if first else D), srcC=([] if first else D), srcAB=AB, passes=4)


def valu(text, defs, uses, kind="valu", **kw):
    return Inst(text, kind, defs=defs, uses=uses, **kw)


def cvtpk(d, a, b, **kw):
    bt = f"v{b}" if b is not None else "0"
    return valu(f"v_cvt_pk_bf16_f32 v{d}, v{a}, {bt}", [f"v{d}"], [f"v{a}"] + ([f"v{b}"] if b is not None else []), **kw)


def salu(text, defs, uses, **kw):
    return Inst(text, "salu", defs=defs, uses=uses, **kw)


def raw(text, kind="other", defs=(), uses=()):
    return Inst(text, kind, defs=defs, uses=uses)


def v3(op, d, *srcs, **kw):
    uses = [s for s in srcs if isinstance(s, str) and (is_vreg(s) or is_sreg(s))]
    return valu(f"{op} {d}, " + ", ".join(str(s) for s in srcs), [d], uses, **kw)


def cnd(d, a, b, m):
    return valu(f"v_cndmask_b32 {d}, {a}, {b}, s[{m}:{m+1}]", [d], [a, b, f"s{m}", f"s{m+1}"])


def srd(a, dst, src, nb):
    a(salu(f"s_mov_b32 s{dst}, s{src}", [f"s{dst}"], [f"s{src}"]))
    a(salu(f"s_and_b32 s{dst+1}, s{src+1}, 0xffff", [f"s{dst+1}", "scc"], [f"s{src+1}"]))
    a(salu(f"s_mov_b32 s{dst+2}, {nb}", [f"s{dst+2}"], []))
    a(salu(f"s_mov_b32 s{dst+3}, 0x20000", [f"s{dst+3}"], []))


STRIPS = [("H", r) for r in range(7)] + [("V", 4), ("V", 5), ("V", 6), ("Q", 0), ("I", 0)]
I_TOK = [(4, 6), (5, 6), (6, 4), (6, 5)]


def token(t, n):
    g, i = n >> 2, n & 3
    kind, p = STRIPS[4 * t + i]
    if kind == "H":
        return p, g
    if kind == "V":
        return g, p
    if kind == "Q":
        return 4 + (g >> 1), 4 + (g & 1)
    return I_TOK[g]


assert sorted(token(t, n) for t in range(3) for n in range(16)) + [(6, 6)] == [(r, c) for r in range(7) for c in range(7)]


def gen_prep(o):
    p = []
    a = p.append
    a(raw("s_cmp_ge_u32 s2, 144", "salu", ["scc"], ["s2"]))
    a(raw("s_cbranch_scc1 L_prep_done"))
    if o.diag:
        a(raw("s_memrealtime s[34:35]"))
    a(raw("s_load_dwordx4 s[4:7], s[0:1], 8"))
    a(raw("s_load_dwordx2 s[8:9], s[0:1], 40"))
    a(salu("s_cmp_ge_u32 s2, 72", ["scc"], ["s2"]))
    a(salu("s_cselect_b32 s20, 1, 0", ["s20"], ["scc"]))
    a(salu("s_mul_i32 s21, s20, 72", ["s21"], ["s20"]))
    a(salu("s_sub_u32 s21, s2, s21", ["s21", "scc"], ["s2", "s21"]))
    a(salu("s_mul_i32 s22, s21, 43", ["s22"], ["s21"]))
    a(salu("s_lshr_b32 s22, s22, 8", ["s22", "scc"], ["s22"]))
    for r in range(72):
        assert (r * 43) >> 8 == r // 6
    a(salu("s_mul_i32 s23, s22, 6", ["s23"], ["s22"]))
    a(salu("s_sub_u32 s23, s21, s23", ["s23", "scc"], ["s21", "s23"]))
    a(v3("v_and_b32", "v1", "15", "v0"))
    a(v3("v_lshrrev_b32", "v2", "4", "v0"))
    a(v3("v_lshrrev_b32", "v3", "2", "v1"))
    a(v3("v_and_b32", "v4", "3", "v1"))
    a(v3("v_lshl_add_u32", "v3", "v3", "3", "v4"))
    a(salu("s_movk_i32 s24, 1152", ["s24"], []))
    a(v3("v_mul_lo_u32", "v5", "v3", "s24"))
    a(v3("v_lshl_add_u32", "v5", "v2", "4", "v5"))
    a(salu("s_mul_i32 s25, s23, 36864", ["s25"], ["s23"]))
    a(salu("s_mul_i32 s26, s20, 768", ["s26"], ["s20"]))
    a(salu("s_add_u32 s25, s25, s26", ["s25", "scc"], ["s25", "s26"]))
    a(salu("s_add_u32 s33, s25, 4608", ["s33", "scc"], ["s25"]))
    a(salu("s_lshr_b32 s26, s22, 1", ["s26", "scc"], ["s22"]))
    a(salu("s_mul_i32 s26, s26, 36864", ["s26"], ["s26"]))
    a(salu("s_and_b32 s27, s22, 1", ["s27", "scc"], ["s22"]))
    a(salu("s_mul_i32 s27, s27, 4608", ["s27"], ["s27"]))
    a(salu("s_add_u32 s26, s26, s27", ["s26", "scc"], ["s26", "s27"]))
    a(salu("s_add_u32 s26, s26, 384", ["s26", "scc"], ["s26"]))
    a(raw("s_waitcnt lgkmcnt(0)", "wait"))
    srd(a, 12, 4, 192 * 576 * 2)
    srd(a, 16, 6, 192 * 192 * 2)
    srd(a, 28, 8, 147456 if not o.diag else 3 << 20)
    for h in range(2):
        for k in range(6):
            d = 16 + 24 * h + 4 * k
            a(Inst(f"buffer_load_dwordx4 {T('v', d, 4)}, v5, s[12:15], s{(25, 33)[h]} offen offset:{64 * k}", "vload",
                   defs=R('v', d, 4), uses=["v5", "s25", "s33"]))
    a(salu("s_cmp_eq_u32 s20, 1", ["scc"], ["s20"]))
    a(raw("s_cbranch_scc1 L_prep_n"))
    for k in range(6):
        a(Inst(f"buffer_load_dwordx4 {T('v', 64 + 4 * k, 4)}, v5, s[12:15], s26 offen offset:{64 * k}", "vload",
               defs=R('v', 64 + 4 * k, 4), uses=["v5", "s26"]))
    a(salu(f"s_mov_b32 s27, 0x{f32bits(ALPHA):08x}", ["s27"], []))
    a(raw("s_waitcnt vmcnt(0)", "wait"))
    a(raw("s_branch L_prep_mm"))
    a(raw("L_prep_n:", "label"))
    a(salu("s_cmp_lt_u32 s22, 8", ["scc"], ["s22"]))
    a(salu("s_cselect_b32 s26, 3, 2", ["s26"], ["scc"]))
    a(salu("s_cselect_b32 s27, 0, 120", ["s27"], ["scc"]))
    a(salu("s_add_u32 s27, s27, s22", ["s27", "scc"], ["s27", "s22"]))
    a(v3("v_lshlrev_b32", "v6", "s26", "v1"))
    a(v3("v_add_u32", "v6", "s27", "v6"))
    a(v3("v_lshlrev_b32", "v6", "1", "v6"))
    a(v3("v_mul_u32_u24", "v7", "0xc00", "v2"))
    a(v3("v_add_u32", "v6", "v6", "v7"))
    for k in range(6):
        a(salu(f"s_mov_b32 s27, {k * 12288}", ["s27"], []))
        for j in range(8):
            r = 96 + 8 * k + j
            a(Inst(f"buffer_load_ushort v{r}, v6, s[16:19], s27 offen offset:{384 * j}", "vload",
                   defs=[f"v{r}"], uses=["v6", "s27"]))
    a(salu("s_mov_b32 s27, 1.0", ["s27"], []))
    a(raw("s_waitcnt vmcnt(0)", "wait"))
    for k in range(6):
        for jj in range(4):
            lo, hi = 96 + 8 * k + 2 * jj, 96 + 8 * k + 2 * jj + 1
            a(v3("v_lshl_or_b32", f"v{64 + 4 * k + jj}", f"v{hi}", "16", f"v{lo}"))
    a(raw("L_prep_mm:", "label"))
    a(raw("s_nop 1", "nop"))
    for k in range(6):
        for h in range(2):
            a(mfma("v", 88 + 4 * h, "v", 16 + 24 * h + 4 * k, "v", 64 + 4 * k, k == 0))
    a(salu("s_lshl_b32 s24, s2, 10", ["s24", "scc"], ["s2"]))
    a(v3("v_lshlrev_b32", "v8", "4", "v0"))
    for r in range(8):
        a(v3("v_mul_f32", f"v{88 + r}", "s27", f"v{88 + r}"))
    for r in range(4):
        a(cvtpk(16 + r, 88 + 2 * r, 89 + 2 * r))
    a(Inst("buffer_store_dwordx4 v[16:19], v8, s[28:31], s24 offen", "vstore", uses=R('v', 16, 4) + ["v8"], wide=True))
    if o.diag:
        a(raw("s_waitcnt vmcnt(0)", "wait"))
        a(raw("s_memrealtime s[36:37]"))
        a(raw("s_waitcnt lgkmcnt(0)", "wait"))
        a(v3("v_mov_b32", "v16", "s34"))
        a(v3("v_mov_b32", "v17", "s36"))
        a(v3("v_mov_b32", "v8", "0"))
        a(salu("s_lshl_b32 s24, s2, 3", ["s24", "scc"], ["s2"]))
        a(salu("s_add_u32 s24, s24, 0x200000", ["s24", "scc"], ["s24"]))
        a(Inst("buffer_store_dwordx2 v[16:17], v8, s[28:31], s24 offen", "vstore", uses=["v16", "v17", "v8"]))
    a(raw("L_prep_done:", "label"))
    a(raw("s_endpgm"))
    return insert_nops(p)


XS = [0, 72]
AX49, AT49, AW = 144, 168, 192
NRING = 12
SB = 0
ACC = 64
TBF = 88
OPA = 100
VBF = 124
V_LDS = [220, 221, 222]
V_G = [223, 224, 225, 226, 227, 228]
V_WR = 229
V_RD = [230, 231]
V_ST = {"H": (232, 233), "V": (234, 235), "Q": (236, 237), "I": (238, 239)}
V_SP = (240, 241)
V_N16, V_N8 = 242, 243
V_NINF = 244
V_TMP = [[245, 246, 247, 248, 249], [250, 251, 252, 253, 254]]
V_TIME = 255
S_WCUR, S_LB, S_CB, S_K, S_ROW = 16, 17, 18, 19, 20
S_IT = 28
S_M0, S_M1, S_GM, S_SH = 48, 50, 52, 54
S_SPA, S_SPB = 56, 60


def xr(xs, t, s):
    return XS[xs] + 24 * t + 4 * s


def xop(xs, t, s):
    return AX49 + 4 * s if t == 3 else xr(xs, t, s)


def wfrag_read(idx, **kw):
    off = (idx % 144) * 1024
    base, imm = divmod(off, 65536)
    d = AW + 4 * (idx % NRING)
    return Inst(f"ds_read_b128 {T('a', d, 4)}, v{V_LDS[base]} offset:{imm}", "dsr", defs=R('a', d, 4),
                uses=[f"v{V_LDS[base]}"], **kw)


def xload(xs, t, hf, j, sbase, flags="", **kw):
    d = xr(xs, t, 2 * j + hf)
    g = 2 * t + hf
    return Inst(f"buffer_load_dwordx4 {T('a', d, 4)}, v{V_G[g]}, s[4:7], s{sbase} offen offset:{128 * j}" + flags,
                "vload", defs=R('a', d, 4), uses=[f"v{V_G[g]}", f"s{sbase}", "s6"], **kw)


def xloads(xs, sbase, flags, rel=None, step=0):
    out = []
    k = 0
    for t in range(3):
        for hf in range(2):
            for j in range(3):
                kw = {} if rel is None else dict(release=rel + step * k, deadline=rel + step * k + 48)
                out.append(xload(xs, t, hf, j, sbase, flags, **kw))
                k += 1
    return out


def xtrans(xs, rel=None, step=0):
    out = []
    k = 0
    for t in range(3):
        for j in range(3):
            b = k & 1
            for hf in range(2):
                d = xr(xs, t, 2 * j + hf)
                kw = {} if rel is None else dict(release=rel + step * k)
                out.append(Inst(f"ds_write_b128 v{V_WR}, {T('a', d, 4)} offset:{2048 * b + 1024 * hf}", "dsw",
                                defs=[f"~st{b}{hf}"], uses=R('a', d, 4) + [f"v{V_WR}"], tag="x", **kw))
            for u in range(2):
                d = xr(xs, t, 2 * j + u)
                kw = {} if rel is None else dict(deadline=rel + step * k + 200)
                out.append(Inst(f"ds_read_b128 {T('a', d, 4)}, v{V_RD[u]} offset:{2048 * b}", "dsr", defs=R('a', d, 4),
                                uses=[f"v{V_RD[u]}", f"~st{b}0", f"~st{b}1"], tag="x", **kw))
            k += 1
    return out


def vb(ct):
    return VBF + 8 * ct


def opk(q, i, part):
    base = {0: OPA, 1: ACC, 2: OPA, 3: TBF}[q]
    rows = 2 if q == 3 else 4
    return base + 4 * i if part == 0 else base + 4 * rows + 2 * i


def o_mf(q, pr):
    out = []
    for ks in range(2):
        for e in range(2):
            out.append(mfma("v", SB + 16 * q + 8 + 4 * e, "v", SB + 16 * q + 4 * ks, "v", vb(2 * pr + e) + 4 * ks, ks == 0))
    return out


def o_pack(q, pr):
    out = []
    for i in range(2 if q == 3 else 4):
        d = opk(q, i, 0) + pr if pr < 4 else opk(q, i, 1) + pr - 4
        out.append(cvtpk(d, SB + 16 * q + 8 + i, SB + 16 * q + 12 + i))
    return out


def o_store(q, part, flags=""):
    out = []
    n = (4, 2)[part]
    for i in range(2 if q == 3 else 4):
        d = opk(q, i, part)
        if q == 3:
            vo, row, imm, sr = V_SP[part], 6, 6 * 384, (S_SPA, S_SPB)[i]
        else:
            kind, pp = STRIPS[4 * q + i]
            vo, sr = V_ST[kind][part], 8
            row, imm = {"H": (pp, 0), "V": (0, pp * 384), "Q": (4, 4 * 384), "I": (4, 0)}[kind]
        out.append(Inst(f"buffer_store_dwordx{n} {T('v', d, n)}, v{vo}, s[{sr}:{sr+3}], s{S_ROW + row} offen offset:{imm + 256 * part}{flags}",
                        "vstore", uses=R('v', d, n) + [f"v{vo}", f"s{S_ROW + row}", f"s{sr+2}"], wide=(n == 4)))
    return out


def xlane(op, m0, m1):
    p = []
    for sw in ("v_permlane32_swap_b32", "v_permlane16_swap_b32"):
        p.append(v3("v_mov_b32", f"v{m1}", f"v{m0}"))
        p.append(valu(f"{sw} v{m0}, v{m1}", [f"v{m0}", f"v{m1}"], [f"v{m0}", f"v{m1}"], kind="perm"))
        p.append(v3(op, f"v{m0}", f"v{m0}", f"v{m1}"))
    return p


def softmax(q, tset):
    b = SB + 16 * q
    m0, m1, s0, s1, rr = V_TMP[tset]
    p = []
    p.append(cnd(f"v{b + 12}", f"v{V_NINF}", f"v{b + 12}", S_M0))
    p.append(cnd(f"v{b + 12}", f"v{b + 12}", f"v{b + 13}", S_M1))
    regs = [b + r for r in range(13)]
    m3 = lambda d, x, y, z: v3("v_max3_f32", f"v{d}", f"v{x}", f"v{y}", f"v{z}")
    p.append(m3(m0, regs[0], regs[1], regs[2]))
    p.append(m3(m1, regs[3], regs[4], regs[5]))
    p.append(m3(m0, m0, regs[6], regs[7]))
    p.append(m3(m1, m1, regs[8], regs[9]))
    p.append(m3(m0, m0, regs[10], regs[11]))
    p.append(m3(m0, m0, m1, regs[12]))
    p.extend(xlane("v_max_f32", m0, m1))
    for r in regs:
        p.append(v3("v_sub_f32", f"v{r}", f"v{r}", f"v{m0}"))
        p.append(valu(f"v_exp_f32 v{r}, v{r}", [f"v{r}"], [f"v{r}"], kind="trans"))
    p.append(v3("v_add_f32", f"v{s0}", f"v{regs[0]}", f"v{regs[1]}"))
    p.append(v3("v_add_f32", f"v{s1}", f"v{regs[2]}", f"v{regs[3]}"))
    for k in range(4, 13):
        s = (s0, s1)[k & 1]
        p.append(v3("v_add_f32", f"v{s}", f"v{s}", f"v{regs[k]}"))
    p.append(v3("v_add_f32", f"v{s0}", f"v{s0}", f"v{s1}"))
    p.extend(xlane("v_add_f32", s0, s1))
    p.append(valu(f"v_rcp_f32 v{rr}, v{s0}", [f"v{rr}"], [f"v{s0}"], kind="trans"))
    for k in range(0, 12, 2):
        p.append(v3("v_mul_f32", f"v{regs[k]}", f"v{regs[k]}", f"v{rr}"))
        p.append(v3("v_mul_f32", f"v{regs[k + 1]}", f"v{regs[k + 1]}", f"v{rr}"))
        p.append(cvtpk(b + k // 2, regs[k], regs[k + 1]))
    p.append(v3("v_mul_f32", f"v{regs[12]}", f"v{regs[12]}", f"v{rr}"))
    p.append(cvtpk(b + 6, regs[12], None))
    p.append(v3("v_lshlrev_b32", f"v{b + 6}", f"s{S_SH}", f"v{b + 6}"))
    p.append(v3("v_mov_b32", f"v{b + 7}", "0"))
    return p


def win_base(dst, w, tmp):
    return [
        salu(f"s_mul_hi_u32 s{tmp}, s{w}, s29", [f"s{tmp}"], [f"s{w}", "s29"]),
        salu(f"s_mul_i32 s{dst}, s{tmp}, 73", [f"s{dst}"], [f"s{tmp}"]),
        salu(f"s_sub_u32 s{dst}, s{w}, s{dst}", [f"s{dst}", "scc"], [f"s{w}", f"s{dst}"]),
        salu(f"s_mul_i32 s{dst}, s{dst}, 2688", [f"s{dst}"], [f"s{dst}"]),
        salu(f"s_mul_i32 s{tmp}, s{tmp}, {WINROW}", [f"s{tmp}"], [f"s{tmp}"]),
        salu(f"s_add_u32 s{dst}, s{dst}, s{tmp}", [f"s{dst}", "scc"], [f"s{dst}", f"s{tmp}"]),
    ]


def row_bases():
    out = [salu(f"s_mov_b32 s{S_ROW}, s{S_CB}", [f"s{S_ROW}"], [f"s{S_CB}"])]
    for r in range(1, 7):
        out.append(salu(f"s_add_u32 s{S_ROW + r}, s{S_CB}, {r * ROWB}", [f"s{S_ROW + r}", "scc"], [f"s{S_CB}"]))
    return out


def slot_masks():
    k = S_K
    return [
        salu(f"s_and_b32 s30, s{k}, 3", ["s30", "scc"], [f"s{k}"]),
        salu("s_lshl_b32 s30, s30, 4", ["s30", "scc"], ["s30"]),
        salu(f"s_lshl_b64 s[{S_GM}:{S_GM+1}], s[40:41], s30", [f"s{S_GM}", f"s{S_GM+1}", "scc"], ["s40", "s41", "s30"]),
        salu(f"s_cmp_lt_u32 s{k}, 4", ["scc"], [f"s{k}"]),
        salu(f"s_cselect_b64 s[{S_M0}:{S_M0+1}], s[{S_GM}:{S_GM+1}], 0", [f"s{S_M0}", f"s{S_M0+1}"], ["scc", f"s{S_GM}", f"s{S_GM+1}"]),
        salu(f"s_cselect_b64 s[{S_M1}:{S_M1+1}], 0, s[{S_GM}:{S_GM+1}]", [f"s{S_M1}", f"s{S_M1+1}"], ["scc", f"s{S_GM}", f"s{S_GM+1}"]),
        salu(f"s_cselect_b32 s{S_SH}, 0, 16", [f"s{S_SH}"], ["scc"]),
        salu(f"s_cselect_b32 s{S_SPA+2}, s31, 0", [f"s{S_SPA+2}"], ["scc", "s31"]),
        salu(f"s_cselect_b32 s{S_SPB+2}, 0, s31", [f"s{S_SPB+2}"], ["scc", "s31"]),
        salu(f"s_add_u32 s{k}, s{k}, 1", [f"s{k}", "scc"], [f"s{k}"]),
        cnd(f"v{V_SP[0]}", f"v{V_NINF}", f"v{V_N16}", S_GM),
        cnd(f"v{V_SP[1]}", f"v{V_NINF}", f"v{V_N8}", S_GM),
    ]


def leftover(o):
    p = []
    p.extend(o_pack(1, 5))
    p.extend(o_pack(2, 5))
    p.extend(o_store(1, 1, o.st_flags))
    p.extend(o_store(2, 1, o.st_flags))
    return p


def gen_body(o, xs):
    p = []
    ext = p.extend
    NM = 624
    ext(slot_masks())
    p.append(salu(f"s_add_u32 s{S_WCUR}, s{S_WCUR}, 1024", [f"s{S_WCUR}", "scc"], [f"s{S_WCUR}"], deadline=0))
    ext(win_base(S_LB, S_WCUR, 27))
    p.append(salu(f"s_cmp_lt_u32 s{S_WCUR}, {NWIN}", ["scc"], [f"s{S_WCUR}"]))
    p.append(salu(f"s_cselect_b32 s6, {'0' if o.noload else 's31'}, 0", ["s6"], ["scc", "s31"]))
    ext(xloads(xs ^ 1, S_LB, o.ld_flags, o.ld_rel, o.ld_step))
    ext(leftover(o))
    ext(row_bases())
    p.append(salu(f"s_mov_b32 s10, {'0' if o.nostore else 's31'}", ["s10"], ["s31"]))
    p.append(salu(f"s_mov_b32 s{S_CB}, s{S_LB}", [f"s{S_CB}"], [f"s{S_LB}"]))

    def chain(mat, ct):
        out = []
        for s in range(6):
            idx = 72 * mat + 6 * ct + s
            w = AW + 4 * (idx % NRING)
            for t in range(3):
                acc = ACC + 12 * (ct & 1) + 4 * t
                if mat == 0:
                    out.append(mfma("v", acc, "a", w, "a", xr(xs, t, s), s == 0))
                else:
                    out.append(mfma("v", acc, "a", xr(xs, t, s), "a", w, s == 0))
            kw = {}
            if idx + NRING >= 144:
                kw = dict(deadline=NM * 16 + 48 * (idx + NRING - 144) - 220)
            out.append(wfrag_read(idx + NRING, **kw))
        return out

    def cvt_t(ct):
        out = []
        for t in range(3):
            acc = ACC + 12 * (ct & 1) + 4 * t
            for h in range(2):
                out.append(cvtpk(TBF + 4 * t + 2 * (ct & 1) + h, acc + 2 * h, acc + 2 * h + 1))
        return out

    def cvt_v(ct):
        out = []
        for t in range(3):
            acc = ACC + 12 * (ct & 1) + 4 * t
            for h in range(2):
                out.append(cvtpk(vb(ct) + 2 * t + h, acc + 2 * h, acc + 2 * h + 1))
        return out

    def s_mf(sp):
        return [mfma("v", SB + 16 * q + 4 * kt, "a", xop(xs, kt, sp), "v", TBF + 4 * q, sp == 0)
                for q in range(3) for kt in range(4)]

    def s3():
        return [mfma("v", SB + 48 + 4 * kt, "a", xop(xs, kt, s), "a", AT49 + 4 * s, s == 0)
                for s in range(6) for kt in range(4)]

    def o_grp(qs, pr):
        out = []
        for q in qs:
            out.extend(o_mf(q, pr))
        for q in qs:
            if not (pr == 5 and q in (1, 2)):
                out.extend(o_pack(q, pr))
                if pr == 3:
                    out.extend(o_store(q, 0, o.st_flags))
                if pr == 5:
                    out.extend(o_store(q, 1, o.st_flags))
        return out

    ext(chain(0, 0))
    ext(s3())
    ext(softmax(3, 1))
    ext(cvt_t(0))
    for ct in range(1, 12):
        ext(chain(0, ct))
        if ct >= 2 and ct % 2 == 0:
            ext(s_mf(ct // 2 - 1))
        ext(cvt_t(ct))
    ext(xtrans(xs ^ 1, o.xw_rel, o.xw_step))
    ext(chain(1, 0))
    ext(s_mf(5))
    for q in range(3):
        ext(softmax(q, q & 1))
    ext(cvt_v(0))
    after = {5: 0, 6: 1, 7: 2, 8: 3, 10: 4}
    for ct in range(1, 12):
        ext(chain(1, ct))
        if ct in after:
            ext(o_grp((3, 0), after[ct]))
        ext(cvt_v(ct))
    ext(o_grp((1, 2), 0))
    ext(o_grp((3, 0), 5))
    for pr in range(1, 6):
        ext(o_grp((1, 2), pr))
    assert sum(i.kind == "mfma" for i in p) == NM
    if o.rmload:
        p = [i for i in p if i.kind != "vload"]
    if o.rmstore:
        p = [i for i in p if i.kind != "vstore"]
    return p


def gen_p49():
    p = []
    for mat in range(2):
        for ct in range(12):
            acc = SB + 4 * (ct & 3)
            for s in range(6):
                idx = 72 * mat + 6 * ct + s
                w = AW + 4 * (idx % NRING)
                if mat == 0:
                    p.append(mfma("v", acc, "a", w, "a", AX49 + 4 * s, s == 0))
                else:
                    p.append(mfma("v", acc, "a", AX49 + 4 * s, "a", w, s == 0))
                p.append(wfrag_read(idx + NRING))
            if mat == 0:
                for h in range(2):
                    tmp = SB + 16 + 2 * (ct & 3) + h
                    p.append(cvtpk(tmp, acc + 2 * h, acc + 2 * h + 1))
                    d = AT49 + 4 * (ct >> 1) + 2 * (ct & 1) + h
                    p.append(valu(f"v_accvgpr_write_b32 a{d}, v{tmp}", [f"a{d}"], [f"v{tmp}"]))
            else:
                p.append(cvtpk(vb(ct) + 6, acc, acc + 1))
    return p


def gen_prologue(o):
    p = []
    a = p.append
    a(raw("s_cmp_ge_u32 s2, 256", "salu", ["scc"], ["s2"]))
    a(raw("s_cbranch_scc1 L_main_done"))
    a(raw("s_load_dwordx2 s[32:33], s[0:1], 0"))
    a(raw("s_load_dwordx2 s[34:35], s[0:1], 24"))
    a(raw("s_load_dwordx2 s[36:37], s[0:1], 40"))
    if o.diag:
        a(raw("s_memtime s[44:45]"))
        a(raw("s_memrealtime s[46:47]"))
    a(v3("v_and_b32", "v1", "63", "v0"))
    a(v3("v_lshrrev_b32", "v2", "6", "v0"))
    a(raw("s_nop 0", "nop"))
    a(valu("v_readfirstlane_b32 s38, v2", ["s38"], ["v2"]))
    a(v3("v_and_b32", "v3", "15", "v1"))
    a(v3("v_lshrrev_b32", "v4", "4", "v1"))
    a(v3("v_lshlrev_b32", f"v{V_LDS[0]}", "4", "v1"))
    a(v3("v_add_u32", f"v{V_LDS[1]}", "0x10000", f"v{V_LDS[0]}"))
    a(v3("v_add_u32", f"v{V_LDS[2]}", "0x20000", f"v{V_LDS[0]}"))
    a(salu("s_lshl_b32 s16, s2, 2", ["s16", "scc"], ["s2"]))
    a(salu("s_add_u32 s16, s16, s38", ["s16", "scc"], ["s16", "s38"]))
    a(salu(f"s_mov_b32 s29, {MAGIC73}", ["s29"], []))
    a(salu(f"s_mov_b32 s31, {XBYTES}", ["s31"], []))
    p.extend(win_base(S_CB, S_WCUR, 30))
    a(salu(f"s_mov_b32 s39, {ROWB}", ["s39"], []))
    a(salu("s_movk_i32 s42, 384", ["s42"], []))
    a(v3("v_mov_b32", f"v{V_NINF}", "0xff800000"))
    a(v3("v_bfe_u32", "v5", "v1", "3", "2"))
    a(v3("v_lshrrev_b32", "v6", "5", "v1"))
    a(v3("v_and_b32", "v12", "7", "v1"))
    a(v3("v_xor_b32", "v12", "v12", "v4"))
    a(v3("v_xor_b32", "v13", "4", "v12"))
    a(v3("v_lshlrev_b32", "v12", "4", "v12"))
    a(v3("v_lshlrev_b32", "v13", "4", "v13"))
    for i in range(1, 4):
        a(valu(f"v_cmp_eq_u32 s[{64 + 2 * i}:{65 + 2 * i}], {i}, v5", [f"s{64 + 2 * i}", f"s{65 + 2 * i}"], ["v5"]))
    a(valu("v_cmp_eq_u32 s[64:65], 1, v6", ["s64", "s65"], ["v6"]))
    for t in range(3):
        for hf in range(2):
            dst = f"v{V_G[2 * t + hf]}"
            for i in range(4):
                offs = []
                for bb in range(2):
                    r, c = token(t, 4 * (2 * hf + bb) + i)
                    offs.append(r * ROWB + c * 384)
                a(v3("v_mov_b32", "v7", str(offs[0])))
                a(v3("v_mov_b32", "v8", str(offs[1])))
                if i == 0:
                    a(cnd("v9", "v7", "v8", 64))
                else:
                    a(cnd("v7", "v7", "v8", 64))
                    a(cnd("v9", "v9", "v7", 64 + 2 * i))
            a(v3("v_add_u32", dst, "v9", ("v12", "v13")[hf]))
    a(v3("v_lshrrev_b32", "v5", "2", "v3"))
    a(v3("v_and_b32", "v6", "3", "v3"))
    a(v3("v_lshl_add_u32", "v5", "v6", "2", "v5"))
    a(v3("v_lshlrev_b32", "v5", "10", "v5"))
    a(v3("v_add_u32", "v5", "s16", "v5"))
    a(v3("v_mul_hi_u32", "v6", "v5", "s29"))
    a(v3("v_mul_u32_u24", "v7", "73", "v6"))
    a(v3("v_sub_u32", "v7", "v5", "v7"))
    a(v3("v_mul_u32_u24", "v7", "0xa80", "v7"))
    a(salu(f"s_mov_b32 s43, {WINROW}", ["s43"], []))
    a(v3("v_mul_lo_u32", "v6", "v6", "s43"))
    a(v3("v_add_u32", "v6", "v6", "v7"))
    a(v3("v_lshl_add_u32", "v6", "v4", "4", "v6"))
    a(v3("v_add_u32", "v6", str(6 * ROWB + 6 * 384), "v6"))
    a(valu(f"v_cmp_gt_u32 vcc, {NWIN}, v5", ["vcc"], ["v5"]))
    a(valu(f"v_cndmask_b32 v14, v{V_NINF}, v6, vcc", ["v14"], [f"v{V_NINF}", "v6", "vcc"]))
    a(raw("s_waitcnt lgkmcnt(0)", "wait"))
    srd(a, 4, 32, "s31")
    p.extend(xloads(0, S_CB, o.ld_flags))
    a(salu("s_mov_b32 s43, 0", ["s43"], []))
    for s in range(6):
        a(Inst(f"buffer_load_dwordx4 {T('a', AX49 + 4 * s, 4)}, v14, s[4:7], s43 offen offset:{64 * s}", "vload",
               defs=R('a', AX49 + 4 * s, 4), uses=["v14", "s43"]))
    srd(a, 12, 36, "147456" if not o.diag else str(WS_TIME_OFF + 1024 * 256))
    a(salu("s_lshr_b32 s42, s2, 3", ["s42", "scc"], ["s2"]))
    a(salu("s_mul_i32 s43, s38, 6", ["s43"], ["s38"]))
    a(salu("s_add_u32 s42, s42, s43", ["s42", "scc"], ["s42", "s43"]))
    for _ in range(2):
        a(salu("s_sub_u32 s43, s42, 24", ["s43", "scc"], ["s42"]))
        a(salu("s_cselect_b32 s42, s42, s43", ["s42"], ["scc", "s42", "s43"]))
    a(salu("s_mul_i32 s42, s42, 3072", ["s42"], ["s42"]))
    for mat in range(2):
        for g in range(6):
            if mat or g:
                a(salu("s_add_u32 s42, s42, 3072", ["s42", "scc"], ["s42"]))
                a(salu("s_cmp_eq_u32 s42, 73728", ["scc"], ["s42"]))
                a(salu("s_cselect_b32 s42, 0, s42", ["s42"], ["scc", "s42"]))
            a(salu(f"s_add_u32 s43, s42, {mat * 73728}", ["s43", "scc"], ["s42"]))
            a(salu("s_mov_b32 m0, s43", ["m0"], ["s43"]))
            for k in range(3):
                a(Inst(f"buffer_load_dwordx4 v{V_LDS[0]}, s[12:15], s43 offen offset:{1024 * k} lds", "ldsdma",
                       uses=[f"v{V_LDS[0]}", "s43", "m0"]))
    srd(a, 8, 34, "0")
    srd(a, S_SPA, 34, "0")
    srd(a, S_SPB, 34, "0")
    a(salu("s_lshl_b32 s41, s38, 12", ["s41", "scc"], ["s38"]))
    a(salu(f"s_add_u32 s41, s41, {STAGE}", ["s41", "scc"], ["s41"]))
    a(v3("v_add_u32", f"v{V_WR}", "s41", f"v{V_LDS[0]}"))
    a(v3("v_lshrrev_b32", "v5", "1", "v3"))
    a(v3("v_xor_b32", "v5", "v5", "v4"))
    a(v3("v_lshlrev_b32", "v5", "4", "v5"))
    a(v3("v_lshl_add_u32", "v5", "v3", "7", "v5"))
    a(v3("v_add_u32", f"v{V_RD[0]}", "s41", "v5"))
    a(v3("v_xor_b32", f"v{V_RD[1]}", "64", f"v{V_RD[0]}"))
    a(v3("v_lshlrev_b32", f"v{V_N16}", "4", "v3"))
    a(v3("v_lshlrev_b32", f"v{V_N8}", "3", "v3"))
    a(v3("v_mul_u32_u24", "v5", "0x180", "v4"))
    a(v3("v_mul_lo_u32", "v6", "v4", "s39"))
    a(v3("v_lshrrev_b32", "v7", "1", "v4"))
    a(v3("v_mul_lo_u32", "v7", "v7", "s39"))
    a(v3("v_and_b32", "v8", "1", "v4"))
    a(v3("v_mul_u32_u24", "v8", "0x180", "v8"))
    a(v3("v_add_u32", "v7", "v7", "v8"))
    for g in range(4):
        r, c = I_TOK[g]
        off = (r - 4) * ROWB + c * 384
        if g == 0:
            a(v3("v_mov_b32", "v8", str(off)))
        else:
            a(valu(f"v_cmp_eq_u32 vcc, {g}, v4", ["vcc"], ["v4"]))
            a(v3("v_mov_b32", "v9", str(off)))
            a(valu("v_cndmask_b32 v8, v8, v9, vcc", ["v8"], ["v8", "v9", "vcc"]))
    for kind, src in (("H", "v5"), ("V", "v6"), ("Q", "v7"), ("I", "v8")):
        a(v3("v_add_u32", f"v{V_ST[kind][0]}", src, f"v{V_N16}"))
        a(v3("v_add_u32", f"v{V_ST[kind][1]}", src, f"v{V_N8}"))
    for ct in range(12):
        a(v3("v_mov_b32", f"v{vb(ct) + 7}", "0"))
    for r in range(7):
        a(salu(f"s_mov_b32 s{S_ROW + r}, 0", [f"s{S_ROW + r}"], []))
    a(salu(f"s_mov_b32 s{S_K}, 0", [f"s{S_K}"], []))
    a(salu("s_mov_b32 s40, 0xffff", ["s40"], []))
    a(salu("s_mov_b32 s41, 0", ["s41"], []))
    a(raw("s_waitcnt vmcnt(42)", "wait"))
    p.extend(xtrans(0))
    a(raw("s_waitcnt vmcnt(0)", "wait"))
    a(raw("s_barrier"))
    for s in range(NRING):
        a(wfrag_read(s))
    if o.diag:
        a(salu(f"s_mov_b32 s{S_IT}, 1", [f"s{S_IT}"], []))
        a(v3("v_mov_b32", f"v{V_TIME}", "s44"))
        a(valu(f"v_writelane_b32 v{V_TIME}, s46, 62", [f"v{V_TIME}"], ["s46"]))
    a(raw("s_waitcnt lgkmcnt(0)", "wait"))
    q, _ = schedule(gen_p49(), gap_budget=o.gap, verbose=True)
    q = insert_waits(q)
    p.extend(q)
    a(raw("s_waitcnt lgkmcnt(0)", "wait"))
    return p


def stamp():
    return [raw("s_memtime s[44:45]"), salu(f"s_mov_b32 m0, s{S_IT}", ["m0"], [f"s{S_IT}"]), raw("s_waitcnt lgkmcnt(0)", "wait"),
            valu(f"v_writelane_b32 v{V_TIME}, s44, m0", [f"v{V_TIME}"], ["s44", "m0"]),
            salu(f"s_add_u32 s{S_IT}, s{S_IT}, 1", [f"s{S_IT}", "scc"], [f"s{S_IT}"])]


def gen_main(o):
    pro = insert_nops(gen_prologue(o))
    bodies = []
    for xs in range(2):
        body, cyc = schedule(gen_body(o, xs), gap_budget=o.gap, verbose=True)
        tail = [salu(f"s_cmp_lt_u32 s{S_WCUR}, {NWIN}", ["scc"], [f"s{S_WCUR}"]),
                raw("s_cbranch_scc0 L_epi" if xs == 0 else "s_cbranch_scc1 L_loop")]
        head = stamp() if o.diag else []
        bodies.append(head + body + tail)
    el = (o.early, cyc) if o.early else 0
    ev = (o.early_vm, cyc) if o.early_vm else 0
    w = [insert_waits(bodies[0], early_lgkm=el, early_vm=ev), None]
    for it in range(3):
        w[1] = insert_waits(bodies[1], pre=w[0], early_lgkm=el, early_vm=ev)
        prev = [i.text for i in w[0]]
        w[0] = insert_waits(bodies[0], pre=w[1], early_lgkm=el, early_vm=ev)
    assert prev == [i.text for i in w[0]]
    n = [insert_nops(w[0], pre=[pro]), None]
    for it in range(3):
        n[1] = insert_nops(w[1], pre=[n[0]])
        prev = [i.text for i in n[0]]
        n[0] = insert_nops(w[0], pre=[pro, n[1]])
    assert prev == [i.text for i in n[0]]
    epi = leftover(o)
    e0 = insert_waits(epi, pre=w[0])
    e1 = insert_waits(epi, pre=w[1])
    assert [i.text for i in e0] == [i.text for i in e1]
    epi = e0
    if o.diag:
        epi += stamp()
        epi += [raw("s_waitcnt vmcnt(0)", "wait")] + stamp()
        epi += [raw("s_memrealtime s[46:47]"), raw("s_waitcnt lgkmcnt(0)", "wait"),
                valu(f"v_writelane_b32 v{V_TIME}, s46, 63", [f"v{V_TIME}"], ["s46"])]
        epi += [v3("v_lshrrev_b32", "v0", "2", f"v{V_LDS[0]}"),
                salu("s_lshl_b32 s42, s2, 2", ["s42", "scc"], ["s2"]),
                salu("s_add_u32 s42, s42, s38", ["s42", "scc"], ["s42", "s38"]),
                salu("s_lshl_b32 s42, s42, 8", ["s42", "scc"], ["s42"]),
                salu(f"s_add_u32 s42, s42, {WS_TIME_OFF}", ["s42", "scc"], ["s42"]),
                Inst(f"buffer_store_dword v{V_TIME}, v0, s[12:15], s42 offen", "vstore", uses=[f"v{V_TIME}", "v0", "s42"])]
    epi = insert_nops(epi, pre=[n[0], n[1]])
    stats = {}
    for i in n[0]:
        stats[i.kind] = stats.get(i.kind, 0) + 1
    print("; body stats", stats, file=sys.stderr)
    return pro, n, epi


def emit(insts):
    out = []
    for i in insts:
        out.append(i.text if i.kind == "label" else "    " + i.text)
    return "\n".join(out)


HEADER = """; Swin window attention: folded projections (M = a*Wq*Wk^T, N = Wv*Wo), one wave per window.
; @launch kernel=swin_prep_kernel grid=(144,1,1) block=(64,1,1) lds=0
; @launch kernel={name}_kernel grid=(256,1,1) block=(256,1,1) lds=163840
.amdgcn_target "amdgcn-amd-amdhsa--gfx950"
.text
"""

KD = """.amdhsa_kernel {k}
  .amdhsa_next_free_vgpr {nv}
  .amdhsa_next_free_sgpr {ns}
  .amdhsa_accum_offset {ao}
  .amdhsa_group_segment_fixed_size 0
  .amdhsa_kernarg_size 48
  .amdhsa_user_sgpr_count 2
  .amdhsa_user_sgpr_kernarg_segment_ptr 1
  .amdhsa_system_sgpr_workgroup_id_x 1
.end_amdhsa_kernel
"""


def main():
    ap = argparse.ArgumentParser()
    ap.add_argument("-o", default="cdna_kernels/" + NAME + ".s")
    ap.add_argument("--diag", action="store_true")
    ap.add_argument("--gap", type=int, default=8)
    ap.add_argument("--early", type=int, default=230)
    ap.add_argument("--early_vm", type=int, default=1500)
    ap.add_argument("--ld_rel", type=int, default=32)
    ap.add_argument("--ld_step", type=int, default=128)
    ap.add_argument("--xw_rel", type=int, default=3600)
    ap.add_argument("--xw_step", type=int, default=128)
    ap.add_argument("--ld_flags", default="nt")
    ap.add_argument("--st_flags", default="nt")
    for f in ("noload", "nostore", "rmload", "rmstore"):
        ap.add_argument("--" + f, action="store_true")
    o = ap.parse_args()
    if o.ld_flags:
        o.ld_flags = " " + o.ld_flags
    if o.st_flags:
        o.st_flags = " " + o.st_flags
    old = sys.stdout
    sys.stdout = sys.stderr
    prep = gen_prep(o)
    pro, bodies, epi = gen_main(o)
    sys.stdout = old
    s = HEADER.format(name=NAME)
    s += ".globl swin_prep_kernel\n.p2align 8\n.type swin_prep_kernel,@function\nswin_prep_kernel:\n"
    s += emit(prep) + "\n"
    k = NAME + "_kernel"
    s += f".globl {k}\n.p2align 8\n.type {k},@function\n{k}:\n"
    s += emit(pro) + "\n.p2align 6\nL_loop:\n" + emit(bodies[0]) + "\n" + emit(bodies[1]) + "\nL_epi:\n" + emit(epi) + "\nL_main_done:\n    s_endpgm\n"
    s += '.section .rodata,"a"\n.p2align 6\n'
    s += KD.format(k="swin_prep_kernel", nv=144, ns=40, ao=144)
    s += ".p2align 6\n"
    s += KD.format(k=k, nv=496, ns=80, ao=256)
    open(o.o, "w").write(s)


if __name__ == "__main__":
    main()
```

```python
import sys, math, struct, argparse
from asmlib import *

NAME = "standalone__swin_window_attn__vision"
NWIN = 5329
XBYTES = 100270464
ROWB = 196224
WINROW = 7 * ROWB
MAGIC73 = (1 << 32) // 73 + 1
for w in range(0, 16384):
    assert (w * MAGIC73) >> 32 == w // 73
ALPHA = (192 ** -0.5) * math.log2(math.e)
WS_TIME_OFF = 1 << 20
STAGE = 147456


def f32bits(x):
    return struct.unpack("<I", struct.pack("<f", x))[0]


def mfma(bd, d, ba, a, bb, b, first):
    c = "0" if first else T(bd, d, 4)
    D = R(bd, d, 4)
    AB = R(ba, a, 4) + R(bb, b, 4)
    return Inst(f"v_mfma_f32_16x16x32_bf16 {T(bd, d, 4)}, {T(ba, a, 4)}, {T(bb, b, 4)}, {c}", "mfma",
                defs=D, uses=AB + ([] if first else D), srcC=([] if first else D), srcAB=AB, passes=4)


def valu(text, defs, uses, kind="valu", **kw):
    return Inst(text, kind, defs=defs, uses=uses, **kw)


def cvtpk(d, a, b, **kw):
    bt = f"v{b}" if b is not None else "0"
    return valu(f"v_cvt_pk_bf16_f32 v{d}, v{a}, {bt}", [f"v{d}"], [f"v{a}"] + ([f"v{b}"] if b is not None else []), **kw)


def salu(text, defs, uses, **kw):
    return Inst(text, "salu", defs=defs, uses=uses, **kw)


def raw(text, kind="other", defs=(), uses=()):
    return Inst(text, kind, defs=defs, uses=uses)


def v3(op, d, *srcs, **kw):
    uses = [s for s in srcs if isinstance(s, str) and (is_vreg(s) or is_sreg(s))]
    return valu(f"{op} {d}, " + ", ".join(str(s) for s in srcs), [d], uses, **kw)


def cnd(d, a, b, m):
    return valu(f"v_cndmask_b32 {d}, {a}, {b}, s[{m}:{m+1}]", [d], [a, b, f"s{m}", f"s{m+1}"])


def srd(a, dst, src, nb):
    a(salu(f"s_mov_b32 s{dst}, s{src}", [f"s{dst}"], [f"s{src}"]))
    a(salu(f"s_and_b32 s{dst+1}, s{src+1}, 0xffff", [f"s{dst+1}", "scc"], [f"s{src+1}"]))
    a(salu(f"s_mov_b32 s{dst+2}, {nb}", [f"s{dst+2}"], []))
    a(salu(f"s_mov_b32 s{dst+3}, 0x20000", [f"s{dst+3}"], []))


STRIPS = [("H", r) for r in range(7)] + [("V", 4), ("V", 5), ("V", 6), ("Q", 0), ("I", 0)]
I_TOK = [(4, 6), (5, 6), (6, 4), (6, 5)]


def token(t, n):
    g, i = n >> 2, n & 3
    kind, p = STRIPS[4 * t + i]
    if kind == "H":
        return p, g
    if kind == "V":
        return g, p
    if kind == "Q":
        return 4 + (g >> 1), 4 + (g & 1)
    return I_TOK[g]


assert sorted(token(t, n) for t in range(3) for n in range(16)) + [(6, 6)] == [(r, c) for r in range(7) for c in range(7)]


def gen_prep(o):
    p = []
    a = p.append
    a(raw("s_cmp_ge_u32 s2, 144", "salu", ["scc"], ["s2"]))
    a(raw("s_cbranch_scc1 L_prep_done"))
    if o.diag:
        a(raw("s_memrealtime s[34:35]"))
    a(raw("s_load_dwordx4 s[4:7], s[0:1], 8"))
    a(raw("s_load_dwordx2 s[8:9], s[0:1], 40"))
    a(salu("s_cmp_ge_u32 s2, 72", ["scc"], ["s2"]))
    a(salu("s_cselect_b32 s20, 1, 0", ["s20"], ["scc"]))
    a(salu("s_mul_i32 s21, s20, 72", ["s21"], ["s20"]))
    a(salu("s_sub_u32 s21, s2, s21", ["s21", "scc"], ["s2", "s21"]))
    a(salu("s_mul_i32 s22, s21, 43", ["s22"], ["s21"]))
    a(salu("s_lshr_b32 s22, s22, 8", ["s22", "scc"], ["s22"]))
    for r in range(72):
        assert (r * 43) >> 8 == r // 6
    a(salu("s_mul_i32 s23, s22, 6", ["s23"], ["s22"]))
    a(salu("s_sub_u32 s23, s21, s23", ["s23", "scc"], ["s21", "s23"]))
    a(v3("v_and_b32", "v1", "15", "v0"))
    a(v3("v_lshrrev_b32", "v2", "4", "v0"))
    a(v3("v_lshrrev_b32", "v3", "2", "v1"))
    a(v3("v_and_b32", "v4", "3", "v1"))
    a(v3("v_lshl_add_u32", "v3", "v3", "3", "v4"))
    a(salu("s_movk_i32 s24, 1152", ["s24"], []))
    a(v3("v_mul_lo_u32", "v5", "v3", "s24"))
    a(v3("v_lshl_add_u32", "v5", "v2", "4", "v5"))
    a(salu("s_mul_i32 s25, s23, 36864", ["s25"], ["s23"]))
    a(salu("s_mul_i32 s26, s20, 768", ["s26"], ["s20"]))
    a(salu("s_add_u32 s25, s25, s26", ["s25", "scc"], ["s25", "s26"]))
    a(salu("s_add_u32 s33, s25, 4608", ["s33", "scc"], ["s25"]))
    a(salu("s_lshr_b32 s26, s22, 1", ["s26", "scc"], ["s22"]))
    a(salu("s_mul_i32 s26, s26, 36864", ["s26"], ["s26"]))
    a(salu("s_and_b32 s27, s22, 1", ["s27", "scc"], ["s22"]))
    a(salu("s_mul_i32 s27, s27, 4608", ["s27"], ["s27"]))
    a(salu("s_add_u32 s26, s26, s27", ["s26", "scc"], ["s26", "s27"]))
    a(salu("s_add_u32 s26, s26, 384", ["s26", "scc"], ["s26"]))
    a(raw("s_waitcnt lgkmcnt(0)", "wait"))
    srd(a, 12, 4, 192 * 576 * 2)
    srd(a, 16, 6, 192 * 192 * 2)
    srd(a, 28, 8, 147456 if not o.diag else 3 << 20)
    for h in range(2):
        for k in range(6):
            d = 16 + 24 * h + 4 * k
            a(Inst(f"buffer_load_dwordx4 {T('v', d, 4)}, v5, s[12:15], s{(25, 33)[h]} offen offset:{64 * k}", "vload",
                   defs=R('v', d, 4), uses=["v5", "s25", "s33"]))
    a(salu("s_cmp_eq_u32 s20, 1", ["scc"], ["s20"]))
    a(raw("s_cbranch_scc1 L_prep_n"))
    for k in range(6):
        a(Inst(f"buffer_load_dwordx4 {T('v', 64 + 4 * k, 4)}, v5, s[12:15], s26 offen offset:{64 * k}", "vload",
               defs=R('v', 64 + 4 * k, 4), uses=["v5", "s26"]))
    a(salu(f"s_mov_b32 s27, 0x{f32bits(ALPHA):08x}", ["s27"], []))
    a(raw("s_waitcnt vmcnt(0)", "wait"))
    a(raw("s_branch L_prep_mm"))
    a(raw("L_prep_n:", "label"))
    a(salu("s_cmp_lt_u32 s22, 8", ["scc"], ["s22"]))
    a(salu("s_cselect_b32 s26, 3, 2", ["s26"], ["scc"]))
    a(salu("s_cselect_b32 s27, 0, 120", ["s27"], ["scc"]))
    a(salu("s_add_u32 s27, s27, s22", ["s27", "scc"], ["s27", "s22"]))
    a(v3("v_lshlrev_b32", "v6", "s26", "v1"))
    a(v3("v_add_u32", "v6", "s27", "v6"))
    a(v3("v_lshlrev_b32", "v6", "1", "v6"))
    a(v3("v_mul_u32_u24", "v7", "0xc00", "v2"))
    a(v3("v_add_u32", "v6", "v6", "v7"))
    for k in range(6):
        a(salu(f"s_mov_b32 s27, {k * 12288}", ["s27"], []))
        for j in range(8):
            r = 96 + 8 * k + j
            a(Inst(f"buffer_load_ushort v{r}, v6, s[16:19], s27 offen offset:{384 * j}", "vload",
                   defs=[f"v{r}"], uses=["v6", "s27"]))
    a(salu("s_mov_b32 s27, 1.0", ["s27"], []))
    a(raw("s_waitcnt vmcnt(0)", "wait"))
    for k in range(6):
        for jj in range(4):
            lo, hi = 96 + 8 * k + 2 * jj, 96 + 8 * k + 2 * jj + 1
            a(v3("v_lshl_or_b32", f"v{64 + 4 * k + jj}", f"v{hi}", "16", f"v{lo}"))
    a(raw("L_prep_mm:", "label"))
    a(raw("s_nop 1", "nop"))
    for k in range(6):
        for h in range(2):
            a(mfma("v", 88 + 4 * h, "v", 16 + 24 * h + 4 * k, "v", 64 + 4 * k, k == 0))
    a(salu("s_lshl_b32 s24, s2, 10", ["s24", "scc"], ["s2"]))
    a(v3("v_lshlrev_b32", "v8", "4", "v0"))
    for r in range(8):
        a(v3("v_mul_f32", f"v{88 + r}", "s27", f"v{88 + r}"))
    for r in range(4):
        a(cvtpk(16 + r, 88 + 2 * r, 89 + 2 * r))
    a(Inst("buffer_store_dwordx4 v[16:19], v8, s[28:31], s24 offen", "vstore", uses=R('v', 16, 4) + ["v8"], wide=True))
    if o.diag:
        a(raw("s_waitcnt vmcnt(0)", "wait"))
        a(raw("s_memrealtime s[36:37]"))
        a(raw("s_waitcnt lgkmcnt(0)", "wait"))
        a(v3("v_mov_b32", "v16", "s34"))
        a(v3("v_mov_b32", "v17", "s36"))
        a(v3("v_mov_b32", "v8", "0"))
        a(salu("s_lshl_b32 s24, s2, 3", ["s24", "scc"], ["s2"]))
        a(salu("s_add_u32 s24, s24, 0x200000", ["s24", "scc"], ["s24"]))
        a(Inst("buffer_store_dwordx2 v[16:17], v8, s[28:31], s24 offen", "vstore", uses=["v16", "v17", "v8"]))
    a(raw("L_prep_done:", "label"))
    a(raw("s_endpgm"))
    return insert_nops(p)


XS = [0, 72]
AX49, AT49, AW = 144, 168, 192
NRING = 12
SB = 0
ACC = 64
TBF = 88
OPA = 100
VBF = 124
V_LDS = [220, 221, 222]
V_G = [223, 224, 225, 226, 227, 228]
V_WR = 229
V_RD = [230, 231]
V_ST = {"H": (232, 233), "V": (234, 235), "Q": (236, 237), "I": (238, 239)}
V_SP = (240, 241)
V_N16, V_N8 = 242, 243
V_NINF = 244
V_TMP = [[245, 246, 247, 248, 249], [250, 251, 252, 253, 254]]
V_TIME = 255
S_WCUR, S_LB, S_CB, S_K, S_ROW = 16, 17, 18, 19, 20
S_IT = 28
S_M0, S_M1, S_GM, S_SH = 48, 50, 52, 54
S_SPA, S_SPB = 56, 60


def xr(xs, t, s):
    return XS[xs] + 24 * t + 4 * s


def xop(xs, t, s):
    return AX49 + 4 * s if t == 3 else xr(xs, t, s)


def wfrag_read(idx, **kw):
    off = (idx % 144) * 1024
    base, imm = divmod(off, 65536)
    d = AW + 4 * (idx % NRING)
    return Inst(f"ds_read_b128 {T('a', d, 4)}, v{V_LDS[base]} offset:{imm}", "dsr", defs=R('a', d, 4),
                uses=[f"v{V_LDS[base]}"], **kw)


def xload(xs, t, hf, j, sbase, flags="", **kw):
    d = xr(xs, t, 2 * j + hf)
    g = 2 * t + hf
    return Inst(f"buffer_load_dwordx4 {T('a', d, 4)}, v{V_G[g]}, s[4:7], s{sbase} offen offset:{128 * j}" + flags,
                "vload", defs=R('a', d, 4), uses=[f"v{V_G[g]}", f"s{sbase}", "s6"], **kw)


def xloads(xs, sbase, flags, rel=None, step=0):
    out = []
    k = 0
    for t in range(3):
        for hf in range(2):
            for j in range(3):
                kw = {} if rel is None else dict(release=rel + step * k, deadline=rel + step * k + 48)
                out.append(xload(xs, t, hf, j, sbase, flags, **kw))
                k += 1
    return out


def xtrans(xs, rel=None, step=0):
    out = []
    k = 0
    for t in range(3):
        for j in range(3):
            b = k & 1
            for hf in range(2):
                d = xr(xs, t, 2 * j + hf)
                kw = {} if rel is None else dict(release=rel + step * k)
                out.append(Inst(f"ds_write_b128 v{V_WR}, {T('a', d, 4)} offset:{2048 * b + 1024 * hf}", "dsw",
                                defs=[f"~st{b}{hf}"], uses=R('a', d, 4) + [f"v{V_WR}"], tag="x", **kw))
            for u in range(2):
                d = xr(xs, t, 2 * j + u)
                kw = {} if rel is None else dict(deadline=rel + step * k + 200)
                out.append(Inst(f"ds_read_b128 {T('a', d, 4)}, v{V_RD[u]} offset:{2048 * b}", "dsr", defs=R('a', d, 4),
                                uses=[f"v{V_RD[u]}", f"~st{b}0", f"~st{b}1"], tag="x", **kw))
            k += 1
    return out


def vb(ct):
    return VBF + 8 * ct


def opk(q, i, part):
    base = {0: OPA, 1: ACC, 2: OPA, 3: TBF}[q]
    rows = 2 if q == 3 else 4
    return base + 4 * i if part == 0 else base + 4 * rows + 2 * i


def o_mf(q, pr):
    out = []
    for ks in range(2):
        for e in range(2):
            out.append(mfma("v", SB + 16 * q + 8 + 4 * e, "v", SB + 16 * q + 4 * ks, "v", vb(2 * pr + e) + 4 * ks, ks == 0))
    return out


def o_pack(q, pr):
    out = []
    for i in range(2 if q == 3 else 4):
        d = opk(q, i, 0) + pr if pr < 4 else opk(q, i, 1) + pr - 4
        out.append(cvtpk(d, SB + 16 * q + 8 + i, SB + 16 * q + 12 + i))
    return out


def o_store(q, part, flags=""):
    out = []
    n = (4, 2)[part]
    for i in range(2 if q == 3 else 4):
        d = opk(q, i, part)
        if q == 3:
            vo, row, imm, sr = V_SP[part], 6, 6 * 384, (S_SPA, S_SPB)[i]
        else:
            kind, pp = STRIPS[4 * q + i]
            vo, sr = V_ST[kind][part], 8
            row, imm = {"H": (pp, 0), "V": (0, pp * 384), "Q": (4, 4 * 384), "I": (4, 0)}[kind]
        out.append(Inst(f"buffer_store_dwordx{n} {T('v', d, n)}, v{vo}, s[{sr}:{sr+3}], s{S_ROW + row} offen offset:{imm + 256 * part}{flags}",
                        "vstore", uses=R('v', d, n) + [f"v{vo}", f"s{S_ROW + row}", f"s{sr+2}"], wide=(n == 4)))
    return out


def xlane(op, m0, m1):
    p = []
    for sw in ("v_permlane32_swap_b32", "v_permlane16_swap_b32"):
        p.append(v3("v_mov_b32", f"v{m1}", f"v{m0}"))
        p.append(valu(f"{sw} v{m0}, v{m1}", [f"v{m0}", f"v{m1}"], [f"v{m0}", f"v{m1}"], kind="perm"))
        p.append(v3(op, f"v{m0}", f"v{m0}", f"v{m1}"))
    return p


def softmax(q, tset):
    b = SB + 16 * q
    m0, m1, s0, s1, rr = V_TMP[tset]
    p = []
    p.append(cnd(f"v{b + 12}", f"v{V_NINF}", f"v{b + 12}", S_M0))
    p.append(cnd(f"v{b + 12}", f"v{b + 12}", f"v{b + 13}", S_M1))
    regs = [b + r for r in range(13)]
    m3 = lambda d, x, y, z: v3("v_max3_f32", f"v{d}", f"v{x}", f"v{y}", f"v{z}")
    p.append(m3(m0, regs[0], regs[1], regs[2]))
    p.append(m3(m1, regs[3], regs[4], regs[5]))
    p.append(m3(m0, m0, regs[6], regs[7]))
    p.append(m3(m1, m1, regs[8], regs[9]))
    p.append(m3(m0, m0, regs[10], regs[11]))
    p.append(m3(m0, m0, m1, regs[12]))
    p.extend(xlane("v_max_f32", m0, m1))
    for r in regs:
        p.append(v3("v_sub_f32", f"v{r}", f"v{r}", f"v{m0}"))
        p.append(valu(f"v_exp_f32 v{r}, v{r}", [f"v{r}"], [f"v{r}"], kind="trans"))
    p.append(v3("v_add_f32", f"v{s0}", f"v{regs[0]}", f"v{regs[1]}"))
    p.append(v3("v_add_f32", f"v{s1}", f"v{regs[2]}", f"v{regs[3]}"))
    for k in range(4, 13):
        s = (s0, s1)[k & 1]
        p.append(v3("v_add_f32", f"v{s}", f"v{s}", f"v{regs[k]}"))
    p.append(v3("v_add_f32", f"v{s0}", f"v{s0}", f"v{s1}"))
    p.extend(xlane("v_add_f32", s0, s1))
    p.append(valu(f"v_rcp_f32 v{rr}, v{s0}", [f"v{rr}"], [f"v{s0}"], kind="trans"))
    for k in range(0, 12, 2):
        p.append(v3("v_mul_f32", f"v{regs[k]}", f"v{regs[k]}", f"v{rr}"))
        p.append(v3("v_mul_f32", f"v{regs[k + 1]}", f"v{regs[k + 1]}", f"v{rr}"))
        p.append(cvtpk(b + k // 2, regs[k], regs[k + 1]))
    p.append(v3("v_mul_f32", f"v{regs[12]}", f"v{regs[12]}", f"v{rr}"))
    p.append(cvtpk(b + 6, regs[12], None))
    p.append(v3("v_lshlrev_b32", f"v{b + 6}", f"s{S_SH}", f"v{b + 6}"))
    p.append(v3("v_mov_b32", f"v{b + 7}", "0"))
    return p


def win_base(dst, w, tmp):
    return [
        salu(f"s_mul_hi_u32 s{tmp}, s{w}, s29", [f"s{tmp}"], [f"s{w}", "s29"]),
        salu(f"s_mul_i32 s{dst}, s{tmp}, 73", [f"s{dst}"], [f"s{tmp}"]),
        salu(f"s_sub_u32 s{dst}, s{w}, s{dst}", [f"s{dst}", "scc"], [f"s{w}", f"s{dst}"]),
        salu(f"s_mul_i32 s{dst}, s{dst}, 2688", [f"s{dst}"], [f"s{dst}"]),
        salu(f"s_mul_i32 s{tmp}, s{tmp}, {WINROW}", [f"s{tmp}"], [f"s{tmp}"]),
        salu(f"s_add_u32 s{dst}, s{dst}, s{tmp}", [f"s{dst}", "scc"], [f"s{dst}", f"s{tmp}"]),
    ]


def row_bases():
    out = [salu(f"s_mov_b32 s{S_ROW}, s{S_CB}", [f"s{S_ROW}"], [f"s{S_CB}"])]
    for r in range(1, 7):
        out.append(salu(f"s_add_u32 s{S_ROW + r}, s{S_CB}, {r * ROWB}", [f"s{S_ROW + r}", "scc"], [f"s{S_CB}"]))
    return out


def slot_masks():
    k = S_K
    return [
        salu(f"s_and_b32 s30, s{k}, 3", ["s30", "scc"], [f"s{k}"]),
        salu("s_lshl_b32 s30, s30, 4", ["s30", "scc"], ["s30"]),
        salu(f"s_lshl_b64 s[{S_GM}:{S_GM+1}], s[40:41], s30", [f"s{S_GM}", f"s{S_GM+1}", "scc"], ["s40", "s41", "s30"]),
        salu(f"s_cmp_lt_u32 s{k}, 4", ["scc"], [f"s{k}"]),
        salu(f"s_cselect_b64 s[{S_M0}:{S_M0+1}], s[{S_GM}:{S_GM+1}], 0", [f"s{S_M0}", f"s{S_M0+1}"], ["scc", f"s{S_GM}", f"s{S_GM+1}"]),
        salu(f"s_cselect_b64 s[{S_M1}:{S_M1+1}], 0, s[{S_GM}:{S_GM+1}]", [f"s{S_M1}", f"s{S_M1+1}"], ["scc", f"s{S_GM}", f"s{S_GM+1}"]),
        salu(f"s_cselect_b32 s{S_SH}, 0, 16", [f"s{S_SH}"], ["scc"]),
        salu(f"s_cselect_b32 s{S_SPA+2}, s31, 0", [f"s{S_SPA+2}"], ["scc", "s31"]),
        salu(f"s_cselect_b32 s{S_SPB+2}, 0, s31", [f"s{S_SPB+2}"], ["scc", "s31"]),
        salu(f"s_add_u32 s{k}, s{k}, 1", [f"s{k}", "scc"], [f"s{k}"]),
        cnd(f"v{V_SP[0]}", f"v{V_NINF}", f"v{V_N16}", S_GM),
        cnd(f"v{V_SP[1]}", f"v{V_NINF}", f"v{V_N8}", S_GM),
    ]


def leftover(o):
    p = []
    p.extend(o_pack(1, 5))
    p.extend(o_pack(2, 5))
    p.extend(o_store(1, 1, o.st_flags))
    p.extend(o_store(2, 1, o.st_flags))
    return p


def gen_body(o, xs):
    p = []
    ext = p.extend
    NM = 624
    ext(slot_masks())
    p.append(salu(f"s_add_u32 s{S_WCUR}, s{S_WCUR}, 1024", [f"s{S_WCUR}", "scc"], [f"s{S_WCUR}"], deadline=0))
    ext(win_base(S_LB, S_WCUR, 27))
    p.append(salu(f"s_cmp_lt_u32 s{S_WCUR}, {NWIN}", ["scc"], [f"s{S_WCUR}"]))
    p.append(salu(f"s_cselect_b32 s6, {'0' if o.noload else 's31'}, 0", ["s6"], ["scc", "s31"]))
    ext(xloads(xs ^ 1, S_LB, o.ld_flags, o.ld_rel, o.ld_step))
    ext(leftover(o))
    ext(row_bases())
    p.append(salu(f"s_mov_b32 s10, {'0' if o.nostore else 's31'}", ["s10"], ["s31"]))
    p.append(salu(f"s_mov_b32 s{S_CB}, s{S_LB}", [f"s{S_CB}"], [f"s{S_LB}"]))

    def chain(mat, ct):
        out = []
        for s in range(6):
            idx = 72 * mat + 6 * ct + s
            w = AW + 4 * (idx % NRING)
            for t in range(3):
                acc = ACC + 12 * (ct & 1) + 4 * t
                if mat == 0:
                    out.append(mfma("v", acc, "a", w, "a", xr(xs, t, s), s == 0))
                else:
                    out.append(mfma("v", acc, "a", xr(xs, t, s), "a", w, s == 0))
            kw = {}
            if idx + NRING >= 144:
                kw = dict(deadline=NM * 16 + 48 * (idx + NRING - 144) - 220)
            out.append(wfrag_read(idx + NRING, **kw))
        return out

    def cvt_t(ct):
        out = []
        for t in range(3):
            acc = ACC + 12 * (ct & 1) + 4 * t
            for h in range(2):
                out.append(cvtpk(TBF + 4 * t + 2 * (ct & 1) + h, acc + 2 * h, acc + 2 * h + 1))
        return out

    def cvt_v(ct):
        out = []
        for t in range(3):
            acc = ACC + 12 * (ct & 1) + 4 * t
            for h in range(2):
                out.append(cvtpk(vb(ct) + 2 * t + h, acc + 2 * h, acc + 2 * h + 1))
        return out

    def s_mf(sp):
        return [mfma("v", SB + 16 * q + 4 * kt, "a", xop(xs, kt, sp), "v", TBF + 4 * q, sp == 0)
                for q in range(3) for kt in range(4)]

    def s3():
        return [mfma("v", SB + 48 + 4 * kt, "a", xop(xs, kt, s), "a", AT49 + 4 * s, s == 0)
                for s in range(6) for kt in range(4)]

    def o_grp(qs, pr):
        out = []
        for q in qs:
            out.extend(o_mf(q, pr))
        for q in qs:
            if not (pr == 5 and q in (1, 2)):
                out.extend(o_pack(q, pr))
                if pr == 3:
                    out.extend(o_store(q, 0, o.st_flags))
                if pr == 5:
                    out.extend(o_store(q, 1, o.st_flags))
        return out

    ext(chain(0, 0))
    ext(s3())
    ext(softmax(3, 1))
    ext(cvt_t(0))
    for ct in range(1, 12):
        ext(chain(0, ct))
        if ct >= 2 and ct % 2 == 0:
            ext(s_mf(ct // 2 - 1))
        ext(cvt_t(ct))
    ext(xtrans(xs ^ 1, o.xw_rel, o.xw_step))
    ext(chain(1, 0))
    ext(s_mf(5))
    for q in range(3):
        ext(softmax(q, q & 1))
    ext(cvt_v(0))
    after = {5: 0, 6: 1, 7: 2, 8: 3, 10: 4}
    for ct in range(1, 12):
        ext(chain(1, ct))
        if ct in after:
            ext(o_grp((3, 0), after[ct]))
        ext(cvt_v(ct))
    ext(o_grp((1, 2), 0))
    ext(o_grp((3, 0), 5))
    for pr in range(1, 6):
        ext(o_grp((1, 2), pr))
    assert sum(i.kind == "mfma" for i in p) == NM
    if o.rmload:
        p = [i for i in p if i.kind != "vload"]
    if o.rmstore:
        p = [i for i in p if i.kind != "vstore"]
    return p


def gen_p49():
    p = []
    for mat in range(2):
        for ct in range(12):
            acc = SB + 4 * (ct & 3)
            for s in range(6):
                idx = 72 * mat + 6 * ct + s
                w = AW + 4 * (idx % NRING)
                if mat == 0:
                    p.append(mfma("v", acc, "a", w, "a", AX49 + 4 * s, s == 0))
                else:
                    p.append(mfma("v", acc, "a", AX49 + 4 * s, "a", w, s == 0))
                p.append(wfrag_read(idx + NRING))
            if mat == 0:
                for h in range(2):
                    tmp = SB + 16 + 2 * (ct & 3) + h
                    p.append(cvtpk(tmp, acc + 2 * h, acc + 2 * h + 1))
                    d = AT49 + 4 * (ct >> 1) + 2 * (ct & 1) + h
                    p.append(valu(f"v_accvgpr_write_b32 a{d}, v{tmp}", [f"a{d}"], [f"v{tmp}"]))
            else:
                p.append(cvtpk(vb(ct) + 6, acc, acc + 1))
    return p


def gen_prologue(o):
    p = []
    a = p.append
    a(raw("s_cmp_ge_u32 s2, 256", "salu", ["scc"], ["s2"]))
    a(raw("s_cbranch_scc1 L_main_done"))
    a(raw("s_load_dwordx2 s[32:33], s[0:1], 0"))
    a(raw("s_load_dwordx2 s[34:35], s[0:1], 24"))
    a(raw("s_load_dwordx2 s[36:37], s[0:1], 40"))
    if o.diag:
        a(raw("s_memtime s[44:45]"))
        a(raw("s_memrealtime s[46:47]"))
    a(v3("v_and_b32", "v1", "63", "v0"))
    a(v3("v_lshrrev_b32", "v2", "6", "v0"))
    a(raw("s_nop 0", "nop"))
    a(valu("v_readfirstlane_b32 s38, v2", ["s38"], ["v2"]))
    a(v3("v_and_b32", "v3", "15", "v1"))
    a(v3("v_lshrrev_b32", "v4", "4", "v1"))
    a(v3("v_lshlrev_b32", f"v{V_LDS[0]}", "4", "v1"))
    a(v3("v_add_u32", f"v{V_LDS[1]}", "0x10000", f"v{V_LDS[0]}"))
    a(v3("v_add_u32", f"v{V_LDS[2]}", "0x20000", f"v{V_LDS[0]}"))
    a(salu("s_lshl_b32 s16, s2, 2", ["s16", "scc"], ["s2"]))
    a(salu("s_add_u32 s16, s16, s38", ["s16", "scc"], ["s16", "s38"]))
    a(salu(f"s_mov_b32 s29, {MAGIC73}", ["s29"], []))
    a(salu(f"s_mov_b32 s31, {XBYTES}", ["s31"], []))
    p.extend(win_base(S_CB, S_WCUR, 30))
    a(salu(f"s_mov_b32 s39, {ROWB}", ["s39"], []))
    a(salu("s_movk_i32 s42, 384", ["s42"], []))
    a(v3("v_mov_b32", f"v{V_NINF}", "0xff800000"))
    a(v3("v_bfe_u32", "v5", "v1", "3", "2"))
    a(v3("v_lshrrev_b32", "v6", "5", "v1"))
    a(v3("v_and_b32", "v12", "7", "v1"))
    a(v3("v_xor_b32", "v12", "v12", "v4"))
    a(v3("v_xor_b32", "v13", "4", "v12"))
    a(v3("v_lshlrev_b32", "v12", "4", "v12"))
    a(v3("v_lshlrev_b32", "v13", "4", "v13"))
    for i in range(1, 4):
        a(valu(f"v_cmp_eq_u32 s[{64 + 2 * i}:{65 + 2 * i}], {i}, v5", [f"s{64 + 2 * i}", f"s{65 + 2 * i}"], ["v5"]))
    a(valu("v_cmp_eq_u32 s[64:65], 1, v6", ["s64", "s65"], ["v6"]))
    for t in range(3):
        for hf in range(2):
            dst = f"v{V_G[2 * t + hf]}"
            for i in range(4):
                offs = []
                for bb in range(2):
                    r, c = token(t, 4 * (2 * hf + bb) + i)
                    offs.append(r * ROWB + c * 384)
                a(v3("v_mov_b32", "v7", str(offs[0])))
                a(v3("v_mov_b32", "v8", str(offs[1])))
                if i == 0:
                    a(cnd("v9", "v7", "v8", 64))
                else:
                    a(cnd("v7", "v7", "v8", 64))
                    a(cnd("v9", "v9", "v7", 64 + 2 * i))
            a(v3("v_add_u32", dst, "v9", ("v12", "v13")[hf]))
    a(v3("v_lshrrev_b32", "v5", "2", "v3"))
    a(v3("v_and_b32", "v6", "3", "v3"))
    a(v3("v_lshl_add_u32", "v5", "v6", "2", "v5"))
    a(v3("v_lshlrev_b32", "v5", "10", "v5"))
    a(v3("v_add_u32", "v5", "s16", "v5"))
    a(v3("v_mul_hi_u32", "v6", "v5", "s29"))
    a(v3("v_mul_u32_u24", "v7", "73", "v6"))
    a(v3("v_sub_u32", "v7", "v5", "v7"))
    a(v3("v_mul_u32_u24", "v7", "0xa80", "v7"))
    a(salu(f"s_mov_b32 s43, {WINROW}", ["s43"], []))
    a(v3("v_mul_lo_u32", "v6", "v6", "s43"))
    a(v3("v_add_u32", "v6", "v6", "v7"))
    a(v3("v_lshl_add_u32", "v6", "v4", "4", "v6"))
    a(v3("v_add_u32", "v6", str(6 * ROWB + 6 * 384), "v6"))
    a(valu(f"v_cmp_gt_u32 vcc, {NWIN}, v5", ["vcc"], ["v5"]))
    a(valu(f"v_cndmask_b32 v14, v{V_NINF}, v6, vcc", ["v14"], [f"v{V_NINF}", "v6", "vcc"]))
    a(raw("s_waitcnt lgkmcnt(0)", "wait"))
    srd(a, 4, 32, "s31")
    p.extend(xloads(0, S_CB, o.ld_flags))
    a(salu("s_mov_b32 s43, 0", ["s43"], []))
    for s in range(6):
        a(Inst(f"buffer_load_dwordx4 {T('a', AX49 + 4 * s, 4)}, v14, s[4:7], s43 offen offset:{64 * s}", "vload",
               defs=R('a', AX49 + 4 * s, 4), uses=["v14", "s43"]))
    srd(a, 12, 36, "147456" if not o.diag else str(WS_TIME_OFF + 1024 * 256))
    a(salu("s_lshr_b32 s42, s2, 3", ["s42", "scc"], ["s2"]))
    a(salu("s_mul_i32 s43, s38, 6", ["s43"], ["s38"]))
    a(salu("s_add_u32 s42, s42, s43", ["s42", "scc"], ["s42", "s43"]))
    for _ in range(2):
        a(salu("s_sub_u32 s43, s42, 24", ["s43", "scc"], ["s42"]))
        a(salu("s_cselect_b32 s42, s42, s43", ["s42"], ["scc", "s42", "s43"]))
    a(salu("s_mul_i32 s42, s42, 3072", ["s42"], ["s42"]))
    for mat in range(2):
        for g in range(6):
            if mat or g:
                a(salu("s_add_u32 s42, s42, 3072", ["s42", "scc"], ["s42"]))
                a(salu("s_cmp_eq_u32 s42, 73728", ["scc"], ["s42"]))
                a(salu("s_cselect_b32 s42, 0, s42", ["s42"], ["scc", "s42"]))
            a(salu(f"s_add_u32 s43, s42, {mat * 73728}", ["s43", "scc"], ["s42"]))
            a(salu("s_mov_b32 m0, s43", ["m0"], ["s43"]))
            for k in range(3):
                a(Inst(f"buffer_load_dwordx4 v{V_LDS[0]}, s[12:15], s43 offen offset:{1024 * k} lds", "ldsdma",
                       uses=[f"v{V_LDS[0]}", "s43", "m0"]))
    srd(a, 8, 34, "0")
    srd(a, S_SPA, 34, "0")
    srd(a, S_SPB, 34, "0")
    a(salu("s_lshl_b32 s41, s38, 12", ["s41", "scc"], ["s38"]))
    a(salu(f"s_add_u32 s41, s41, {STAGE}", ["s41", "scc"], ["s41"]))
    a(v3("v_add_u32", f"v{V_WR}", "s41", f"v{V_LDS[0]}"))
    a(v3("v_lshrrev_b32", "v5", "1", "v3"))
    a(v3("v_xor_b32", "v5", "v5", "v4"))
    a(v3("v_lshlrev_b32", "v5", "4", "v5"))
    a(v3("v_lshl_add_u32", "v5", "v3", "7", "v5"))
    a(v3("v_add_u32", f"v{V_RD[0]}", "s41", "v5"))
    a(v3("v_xor_b32", f"v{V_RD[1]}", "64", f"v{V_RD[0]}"))
    a(v3("v_lshlrev_b32", f"v{V_N16}", "4", "v3"))
    a(v3("v_lshlrev_b32", f"v{V_N8}", "3", "v3"))
    a(v3("v_mul_u32_u24", "v5", "0x180", "v4"))
    a(v3("v_mul_lo_u32", "v6", "v4", "s39"))
    a(v3("v_lshrrev_b32", "v7", "1", "v4"))
    a(v3("v_mul_lo_u32", "v7", "v7", "s39"))
    a(v3("v_and_b32", "v8", "1", "v4"))
    a(v3("v_mul_u32_u24", "v8", "0x180", "v8"))
    a(v3("v_add_u32", "v7", "v7", "v8"))
    for g in range(4):
        r, c = I_TOK[g]
        off = (r - 4) * ROWB + c * 384
        if g == 0:
            a(v3("v_mov_b32", "v8", str(off)))
        else:
            a(valu(f"v_cmp_eq_u32 vcc, {g}, v4", ["vcc"], ["v4"]))
            a(v3("v_mov_b32", "v9", str(off)))
            a(valu("v_cndmask_b32 v8, v8, v9, vcc", ["v8"], ["v8", "v9", "vcc"]))
    for kind, src in (("H", "v5"), ("V", "v6"), ("Q", "v7"), ("I", "v8")):
        a(v3("v_add_u32", f"v{V_ST[kind][0]}", src, f"v{V_N16}"))
        a(v3("v_add_u32", f"v{V_ST[kind][1]}", src, f"v{V_N8}"))
    for ct in range(12):
        a(v3("v_mov_b32", f"v{vb(ct) + 7}", "0"))
    for r in range(7):
        a(salu(f"s_mov_b32 s{S_ROW + r}, 0", [f"s{S_ROW + r}"], []))
    a(salu(f"s_mov_b32 s{S_K}, 0", [f"s{S_K}"], []))
    a(salu("s_mov_b32 s40, 0xffff", ["s40"], []))
    a(salu("s_mov_b32 s41, 0", ["s41"], []))
    a(raw("s_waitcnt vmcnt(42)", "wait"))
    p.extend(xtrans(0))
    a(raw("s_waitcnt vmcnt(0)", "wait"))
    a(raw("s_barrier"))
    for s in range(NRING):
        a(wfrag_read(s))
    if o.diag:
        a(salu(f"s_mov_b32 s{S_IT}, 1", [f"s{S_IT}"], []))
        a(salu("s_mov_b32 s72, 10", ["s72"], []))
        a(v3("v_mov_b32", f"v{V_TIME}", "s44"))
        a(valu(f"v_writelane_b32 v{V_TIME}, s46, 62", [f"v{V_TIME}"], ["s46"]))
    a(raw("s_waitcnt lgkmcnt(0)", "wait"))
    q, _ = schedule(gen_p49(), gap_budget=o.gap, verbose=True)
    q = insert_waits(q)
    p.extend(q)
    a(raw("s_waitcnt lgkmcnt(0)", "wait"))
    return p


def stamp():
    return [raw("s_memtime s[44:45]"), salu(f"s_mov_b32 m0, s{S_IT}", ["m0"], [f"s{S_IT}"]), raw("s_waitcnt lgkmcnt(0)", "wait"),
            valu(f"v_writelane_b32 v{V_TIME}, s44, m0", [f"v{V_TIME}"], ["s44", "m0"]),
            salu(f"s_add_u32 s{S_IT}, s{S_IT}, 1", [f"s{S_IT}", "scc"], [f"s{S_IT}"])]


def stamp2():
    return [raw("s_memtime s[44:45]"), salu("s_mov_b32 m0, s72", ["m0"], ["s72"]), raw("s_waitcnt lgkmcnt(0)", "wait"),
            valu(f"v_writelane_b32 v{V_TIME}, s44, m0", [f"v{V_TIME}"], ["s44", "m0"]),
            salu("s_add_u32 s72, s72, 1", ["s72", "~scc"], ["s72"])]


def add_stamps(body, pts):
    out = []
    k = 0
    for i in body:
        if i.kind == "mfma":
            if k in pts:
                st = stamp2()
                st[-1] = raw("s_addk_i32 s72, 1", "salu", ["s72"], ["s72"])
                out.extend(st)
            k += 1
        out.append(i)
    return out


def gen_main(o):
    pro = insert_nops(gen_prologue(o))
    bodies = []
    for xs in range(2):
        body, cyc = schedule(gen_body(o, xs), gap_budget=o.gap, verbose=True)
        tail = [salu(f"s_cmp_lt_u32 s{S_WCUR}, {NWIN}", ["scc"], [f"s{S_WCUR}"]),
                raw("s_cbranch_scc0 L_epi" if xs == 0 else "s_cbranch_scc1 L_loop")]
        head = stamp() if o.diag else []
        if o.pts:
            body = add_stamps(body, [int(x) for x in o.pts.split(",")])
        bodies.append(head + body + tail)
    el = (o.early, cyc) if o.early else 0
    ev = (o.early_vm, cyc) if o.early_vm else 0
    w = [insert_waits(bodies[0], early_lgkm=el, early_vm=ev), None]
    for it in range(3):
        w[1] = insert_waits(bodies[1], pre=w[0], early_lgkm=el, early_vm=ev)
        prev = [i.text for i in w[0]]
        w[0] = insert_waits(bodies[0], pre=w[1], early_lgkm=el, early_vm=ev)
    assert prev == [i.text for i in w[0]]
    n = [insert_nops(w[0], pre=[pro]), None]
    for it in range(3):
        n[1] = insert_nops(w[1], pre=[n[0]])
        prev = [i.text for i in n[0]]
        n[0] = insert_nops(w[0], pre=[pro, n[1]])
    assert prev == [i.text for i in n[0]]
    epi = leftover(o)
    e0 = insert_waits(epi, pre=w[0])
    e1 = insert_waits(epi, pre=w[1])
    assert [i.text for i in e0] == [i.text for i in e1]
    epi = e0
    if o.diag:
        epi += stamp()
        epi += [raw("s_waitcnt vmcnt(0)", "wait")] + stamp()
        epi += [raw("s_memrealtime s[46:47]"), raw("s_waitcnt lgkmcnt(0)", "wait"),
                valu(f"v_writelane_b32 v{V_TIME}, s46, 63", [f"v{V_TIME}"], ["s46"])]
        epi += [v3("v_lshrrev_b32", "v0", "2", f"v{V_LDS[0]}"),
                salu("s_lshl_b32 s42, s2, 2", ["s42", "scc"], ["s2"]),
                salu("s_add_u32 s42, s42, s38", ["s42", "scc"], ["s42", "s38"]),
                salu("s_lshl_b32 s42, s42, 8", ["s42", "scc"], ["s42"]),
                salu(f"s_add_u32 s42, s42, {WS_TIME_OFF}", ["s42", "scc"], ["s42"]),
                Inst(f"buffer_store_dword v{V_TIME}, v0, s[12:15], s42 offen", "vstore", uses=[f"v{V_TIME}", "v0", "s42"])]
    epi = insert_nops(epi, pre=[n[0], n[1]])
    stats = {}
    for i in n[0]:
        stats[i.kind] = stats.get(i.kind, 0) + 1
    print("; body stats", stats, file=sys.stderr)
    return pro, n, epi


def emit(insts):
    out = []
    for i in insts:
        out.append(i.text if i.kind == "label" else "    " + i.text)
    return "\n".join(out)


HEADER = """; Swin window attention: folded projections (M = a*Wq*Wk^T, N = Wv*Wo), one wave per window.
; @launch kernel=swin_prep_kernel grid=(144,1,1) block=(64,1,1) lds=0
; @launch kernel={name}_kernel grid=(256,1,1) block=(256,1,1) lds=163840
.amdgcn_target "amdgcn-amd-amdhsa--gfx950"
.text
"""

KD = """.amdhsa_kernel {k}
  .amdhsa_next_free_vgpr {nv}
  .amdhsa_next_free_sgpr {ns}
  .amdhsa_accum_offset {ao}
  .amdhsa_group_segment_fixed_size 0
  .amdhsa_kernarg_size 48
  .amdhsa_user_sgpr_count 2
  .amdhsa_user_sgpr_kernarg_segment_ptr 1
  .amdhsa_system_sgpr_workgroup_id_x 1
.end_amdhsa_kernel
"""


def main():
    ap = argparse.ArgumentParser()
    ap.add_argument("-o", default="cdna_kernels/" + NAME + ".s")
    ap.add_argument("--diag", action="store_true")
    ap.add_argument("--pts", default="")
    ap.add_argument("--gap", type=int, default=8)
    ap.add_argument("--early", type=int, default=230)
    ap.add_argument("--early_vm", type=int, default=1500)
    ap.add_argument("--ld_rel", type=int, default=32)
    ap.add_argument("--ld_step", type=int, default=128)
    ap.add_argument("--xw_rel", type=int, default=3600)
    ap.add_argument("--xw_step", type=int, default=128)
    ap.add_argument("--ld_flags", default="nt")
    ap.add_argument("--st_flags", default="nt")
    for f in ("noload", "nostore", "rmload", "rmstore"):
        ap.add_argument("--" + f, action="store_true")
    o = ap.parse_args()
    if o.ld_flags:
        o.ld_flags = " " + o.ld_flags
    if o.st_flags:
        o.st_flags = " " + o.st_flags
    old = sys.stdout
    sys.stdout = sys.stderr
    prep = gen_prep(o)
    pro, bodies, epi = gen_main(o)
    sys.stdout = old
    s = HEADER.format(name=NAME)
    s += ".globl swin_prep_kernel\n.p2align 8\n.type swin_prep_kernel,@function\nswin_prep_kernel:\n"
    s += emit(prep) + "\n"
    k = NAME + "_kernel"
    s += f".globl {k}\n.p2align 8\n.type {k},@function\n{k}:\n"
    s += emit(pro) + "\n.p2align 6\nL_loop:\n" + emit(bodies[0]) + "\n" + emit(bodies[1]) + "\nL_epi:\n" + emit(epi) + "\nL_main_done:\n    s_endpgm\n"
    s += '.section .rodata,"a"\n.p2align 6\n'
    s += KD.format(k="swin_prep_kernel", nv=144, ns=40, ao=144)
    s += ".p2align 6\n"
    s += KD.format(k=k, nv=496, ns=80, ao=256)
    open(o.o, "w").write(s)


if __name__ == "__main__":
    main()
```

```python
import re


def R(bank, lo, n=1):
    return [f"{bank}{lo + i}" for i in range(n)]


def T(bank, lo, n=1):
    return f"{bank}{lo}" if n == 1 else f"{bank}[{lo}:{lo + n - 1}]"


class Inst:
    __slots__ = ("text", "kind", "defs", "uses", "srcC", "srcAB", "passes", "release", "deadline",
                 "idx", "tag", "cost", "time", "pin", "wide", "prio", "real", "busy")

    def __init__(self, text, kind, defs=(), uses=(), srcC=(), srcAB=(), passes=0,
                 release=None, deadline=None, tag="", wide=False):
        self.text = text
        self.kind = kind
        self.defs = list(defs)
        self.uses = list(uses)
        self.srcC = list(srcC)
        self.srcAB = list(srcAB)
        self.passes = passes
        self.release = release
        self.deadline = deadline
        self.tag = tag
        self.wide = wide
        self.cost = {"mfma": 8, "trans": 8, "dsw": 8}.get(kind, 4)
        self.time = None
        self.prio = 0
        self.real = self.cost
        self.busy = 0

    def __repr__(self):
        return f"<{self.text}>"


VALU_KINDS = ("valu", "trans", "perm")
VMEM_KINDS = ("vload", "vstore", "ldsdma")


def is_vreg(r):
    return r[0] in "va" and r[1:].isdigit()


def is_sreg(r):
    return (r[0] == "s" and r[1:].isdigit()) or r in ("vcc",)


def hazard_slots(p, c):
    need = 0
    pd, cu, cd = set(p.defs), set(c.uses), set(c.defs)
    if p.kind in VALU_KINDS:
        vd = {r for r in pd if is_vreg(r)}
        sd = {r for r in pd if is_sreg(r)}
        if c.kind == "mfma" and vd & cu:
            need = max(need, 2)
        if c.kind == "perm" and vd & cu:
            need = max(need, 2)
        if p.kind == "trans" and c.kind in ("valu", "perm", "mfma") and vd & cu:
            need = max(need, 1)
        if p.kind == "trans" and c.kind in VMEM_KINDS + ("dsw", "dsr") and vd & cu:
            need = max(need, 1)
        if c.text.startswith(("v_readfirstlane", "v_readlane")) and vd & cu:
            need = max(need, 1)
        if "dpp" in c.text or "row_" in c.text:
            if vd & cu:
                need = max(need, 2)
        if sd & cu:
            if c.kind in VALU_KINDS:
                need = max(need, 2)
            if c.kind in VMEM_KINDS:
                need = max(need, 5)
            if c.kind == "salu":
                need = max(need, 1)
        if "exec" in pd and c.kind == "mfma":
            need = max(need, 4)
    if p.kind == "mfma":
        ps = p.passes
        t_ab = {2: 5, 4: 8, 8: 12, 16: 20}[ps]
        t_ov = {2: 4, 4: 6, 8: 10, 16: 18}[ps]
        t_war = {2: 1, 4: 3, 8: 7, 16: 15}[ps]
        if c.kind == "mfma":
            if pd & set(c.srcAB):
                need = max(need, t_ab)
            if pd & set(c.srcC):
                if c.srcC == p.defs and c.passes == p.passes:
                    need = max(need, 2 if ps == 2 else 0)
                else:
                    need = max(need, t_ov)
            if pd & cd and c.defs != p.defs:
                need = max(need, t_ov)
        else:
            if pd & (cu | cd):
                need = max(need, t_ab)
            if c.kind in VALU_KINDS and set(p.srcC) & cd:
                need = max(need, t_war)
    if p.kind == "vstore" and p.wide:
        data = {r for r in p.uses if is_vreg(r)}
        if data & cd:
            need = max(need, 2)
    if p.kind == "salu" and "m0" in pd and c.kind == "ldsdma":
        need = max(need, 1)
    return need


def nop_states(i):
    if i.kind == "nop":
        return int(i.text.split()[1]) + 1
    if i.kind in ("label", "comment"):
        return 0
    return 1


def insert_nops(stream, pre=None, window=24):
    alts = pre if pre else [[]]
    out = []
    for c in stream:
        if c.kind in ("label", "comment"):
            out.append(c)
            continue
        worst = 0
        for alt in alts:
            hist = (alt + out)[-60:]
            dist = 0
            for p in reversed(hist):
                if dist >= window:
                    break
                n = hazard_slots(p, c)
                if n > dist:
                    worst = max(worst, n - dist)
                dist += nop_states(p)
        while worst > 0:
            k = min(worst, 16)
            out.append(Inst(f"s_nop {k - 1}", "nop"))
            worst -= k
        out.append(c)
    return out


def insert_waits(stream, pre=None, early_lgkm=0, early_vm=0):
    vq = []
    lq = []

    def apply_wait(i):
        m = re.search(r"vmcnt\((\d+)\)", i.text)
        if m:
            n = int(m.group(1))
            del vq[:max(0, len(vq) - n)]
        m = re.search(r"lgkmcnt\((\d+)\)", i.text)
        if m:
            n = int(m.group(1))
            del lq[:max(0, len(lq) - n)]

    def issue(i):
        if i.kind in VMEM_KINDS:
            vq.append((set(i.defs), i))
        elif i.kind in ("dsr", "dsw"):
            lq.append((set(i.defs), i))
        elif i.kind == "smem":
            raise RuntimeError("smem inside auto-wait region")

    for i in (pre or []):
        if i.kind == "wait":
            apply_wait(i)
        else:
            issue(i)
    out = []
    for c in stream:
        if c.kind == "wait":
            apply_wait(c)
            out.append(c)
            continue
        touch = {r for r in set(c.uses) | set(c.defs) if r[0] != "~"}
        nv = nl = None
        for k, (d, p) in enumerate(vq):
            if d & touch:
                nv = len(vq) - 1 - k
        for k, (d, p) in enumerate(lq):
            if d & touch:
                nl = len(lq) - 1 - k
        if nl is not None and early_lgkm and c.time is not None:
            for k, (d, p) in enumerate(lq):
                if p.time is not None:
                    age = c.time - p.time
                    if age < 0:
                        age += early_lgkm[1]
                    if age >= early_lgkm[0]:
                        nl = min(nl, len(lq) - 1 - k)
        if nv is not None and early_vm and c.time is not None:
            for k, (d, p) in enumerate(vq):
                if p.time is not None and p.kind == "vload" and p.tag != "pf":
                    age = c.time - p.time
                    if age < 0:
                        age += early_vm[1]
                    if age >= early_vm[0]:
                        nv = min(nv, len(vq) - 1 - k)
        parts = []
        if nv is not None:
            parts.append(f"vmcnt({min(nv, 63)})")
        if nl is not None:
            parts.append(f"lgkmcnt({min(nl, 15)})")
        if parts:
            w = Inst("s_waitcnt " + " ".join(parts), "wait")
            w.time = c.time
            apply_wait(w)
            out.append(w)
        issue(c)
        out.append(c)
    return out


LAT = {"dsr": 190, "vload": 600, "mfma_valu": 72, "valu": 4, "trans": 8}


def build_deps(prog):
    n = len(prog)
    preds = [dict() for _ in range(n)]
    lastw = {}
    readers = {}

    def add(i, j, cyc):
        if i == j:
            return
        sl = hazard_slots(prog[i], prog[j])
        old = preds[j].get(i)
        if old:
            preds[j][i] = (max(old[0], sl), max(old[1], cyc))
        else:
            preds[j][i] = (sl, cyc)

    prev_mfma = None
    for j, c in enumerate(prog):
        for r in c.uses:
            if r in lastw:
                i = lastw[r]
                p = prog[i]
                if r[0] == "~":
                    cyc = 0
                elif p.kind == "dsr":
                    cyc = LAT["dsr"]
                elif p.kind == "vload":
                    cyc = LAT["vload"]
                elif p.kind == "mfma":
                    if c.kind == "mfma" and r in c.srcC and c.srcC == p.defs:
                        cyc = 0
                    else:
                        cyc = p.passes * 4 + 40
                else:
                    cyc = p.cost
                add(i, j, cyc)
        for r in c.defs:
            if r in lastw:
                i = lastw[r]
                p = prog[i]
                cyc = 0
                if p.kind == "mfma" and c.kind != "mfma":
                    cyc = p.passes * 4 + 40
                add(i, j, cyc)
            for i in readers.get(r, ()):
                add(i, j, 0)
        for r in c.uses:
            readers.setdefault(r, []).append(j)
        for r in c.defs:
            lastw[r] = j
            readers[r] = []
        if c.kind == "mfma":
            if prev_mfma is not None:
                add(prev_mfma, j, 0)
            prev_mfma = j
    return preds


def schedule(prog, gap_budget=24, verbose=False, keep_order_kinds=("dsr",)):
    n = len(prog)
    preds = build_deps(prog)
    last = {}
    for j, c in enumerate(prog):
        cls = "vm" if c.kind in VMEM_KINDS else c.kind
        if c.kind in keep_order_kinds and c.tag != "x":
            if cls in last:
                preds[j].setdefault(last[cls], (0, 0))
            last[cls] = j
    succs = [[] for _ in range(n)]
    for j in range(n):
        for i, (sl, cyc) in preds[j].items():
            succs[i].append((j, sl, cyc))
    t = 0
    ideal = {}
    for j, c in enumerate(prog):
        if c.kind == "mfma":
            ideal[j] = t
            t += c.passes * 4
    total = t
    dl = [None] * n
    for j in range(n - 1, -1, -1):
        c = prog[j]
        d = ideal.get(j)
        if d is None:
            d = c.deadline if c.deadline is not None else total + 10000
            for (k, sl, cyc) in succs[j]:
                d = min(d, dl[k] - max(cyc, sl * 4, c.cost))
        dl[j] = d
    issued_t = [None] * n
    issued_slot = [None] * n
    npred = [len(preds[j]) for j in range(n)]
    ready = {j for j in range(n) if npred[j] == 0}
    order = []
    now = 0
    pipe_free = 0
    slot = 0
    mf = [j for j, c in enumerate(prog) if c.kind == "mfma"]
    mi = 0
    gap_used = 0
    stall = 0

    def earliest(j):
        tt = prog[j].release if prog[j].release is not None else 0
        if port_of(prog[j]):
            tt = max(tt, port[port_of(prog[j])])
        ss = 0
        for i, (sl, cyc) in preds[j].items():
            tt = max(tt, issued_t[i] + cyc)
            ss = max(ss, issued_slot[i] + 1 + sl)
        return tt, ss

    port = {"ds": 0, "vm": 0}

    def port_of(c):
        return "ds" if c.kind in ("dsr", "dsw") else "vm" if c.kind in VMEM_KINDS else None

    def emit(j):
        nonlocal now, slot, pipe_free, gap_used
        c = prog[j]
        if port_of(c):
            port[port_of(c)] = now + c.busy
        issued_t[j] = now
        issued_slot[j] = slot
        c.time = now
        order.append(c)
        ready.discard(j)
        for (k, sl, cyc) in succs[j]:
            npred[k] -= 1
            if npred[k] == 0:
                ready.add(k)
        slot += 1
        if c.kind == "mfma":
            pipe_free = now + c.passes * 4
            gap_used = 0
        else:
            gap_used += c.cost
        now += c.real

    while len(order) < n:
        m = mf[mi] if mi < len(mf) else None
        m_ok = False
        if m is not None and m in ready:
            tt, ss = earliest(m)
            m_ok = tt <= max(now, pipe_free) and ss <= slot
        if m_ok and now >= pipe_free:
            emit(m)
            mi += 1
            continue
        best = None
        for j in ready:
            c = prog[j]
            if c.kind == "mfma":
                continue
            tt, ss = earliest(j)
            if tt > now or ss > slot:
                continue
            if m_ok and (now + c.cost > pipe_free or gap_used + c.cost > gap_budget):
                continue
            key = (dl[j], j)
            if best is None or key < best[0]:
                best = (key, j)
        if best is not None:
            emit(best[1])
            continue
        if m_ok:
            now = pipe_free
            emit(m)
            mi += 1
            continue
        cand = []
        for j in ready:
            tt, ss = earliest(j)
            cand.append((tt, ss, j))
        tmin = min(max(tt, now) for tt, ss, j in cand)
        if tmin > now:
            if now >= pipe_free:
                stall += max(0, tmin - max(now, pipe_free))
            now = tmin
        else:
            nop = Inst("s_nop 0", "nop")
            nop.time = now
            order.append(nop)
            n += 1
            issued_t.append(now)
            issued_slot.append(slot)
            slot += 1
            now += 4
            gap_used += 4
    end = max(now, pipe_free)
    if verbose:
        print(f"; schedule: {len(order)} insts, ideal {total} cyc, model {end} cyc")
        prev = 0
        for k, j in enumerate(mf):
            d = issued_t[j] - ideal[j]
            if d != prev:
                print(f";   mfma {k} late by {d} (+{d - prev}): {prog[j].text}")
                prev = d
    return order, end
```

```python
import sys, math, struct, argparse
from asmlib import *

NAME = "standalone__swin_window_attn__vision"
NWIN = 5329
XBYTES = 100270464
ROWB = 196224
WINROW = 7 * ROWB
MAGIC73 = (1 << 32) // 73 + 1
for w in range(0, 16384):
    assert (w * MAGIC73) >> 32 == w // 73
ALPHA = (192 ** -0.5) * math.log2(math.e)
WS_TIME_OFF = 1 << 20
STAGE = 147456


def f32bits(x):
    return struct.unpack("<I", struct.pack("<f", x))[0]


def mfma(bd, d, ba, a, bb, b, first):
    c = "0" if first else T(bd, d, 4)
    D = R(bd, d, 4)
    AB = R(ba, a, 4) + R(bb, b, 4)
    return Inst(f"v_mfma_f32_16x16x32_bf16 {T(bd, d, 4)}, {T(ba, a, 4)}, {T(bb, b, 4)}, {c}", "mfma",
                defs=D, uses=AB + ([] if first else D), srcC=([] if first else D), srcAB=AB, passes=4)


def valu(text, defs, uses, kind="valu", **kw):
    return Inst(text, kind, defs=defs, uses=uses, **kw)


def cvtpk(d, a, b, **kw):
    bt = f"v{b}" if b is not None else "0"
    return valu(f"v_cvt_pk_bf16_f32 v{d}, v{a}, {bt}", [f"v{d}"], [f"v{a}"] + ([f"v{b}"] if b is not None else []), **kw)


def salu(text, defs, uses, **kw):
    return Inst(text, "salu", defs=defs, uses=uses, **kw)


def raw(text, kind="other", defs=(), uses=()):
    return Inst(text, kind, defs=defs, uses=uses)


def v3(op, d, *srcs, **kw):
    uses = [s for s in srcs if isinstance(s, str) and (is_vreg(s) or is_sreg(s))]
    return valu(f"{op} {d}, " + ", ".join(str(s) for s in srcs), [d], uses, **kw)


def cnd(d, a, b, m):
    return valu(f"v_cndmask_b32 {d}, {a}, {b}, s[{m}:{m+1}]", [d], [a, b, f"s{m}", f"s{m+1}"])


def srd(a, dst, src, nb):
    a(salu(f"s_mov_b32 s{dst}, s{src}", [f"s{dst}"], [f"s{src}"]))
    a(salu(f"s_and_b32 s{dst+1}, s{src+1}, 0xffff", [f"s{dst+1}", "scc"], [f"s{src+1}"]))
    a(salu(f"s_mov_b32 s{dst+2}, {nb}", [f"s{dst+2}"], []))
    a(salu(f"s_mov_b32 s{dst+3}, 0x20000", [f"s{dst+3}"], []))


STRIPS = [("H", r) for r in range(7)] + [("V", 4), ("V", 5), ("V", 6), ("Q", 0), ("I", 0)]
I_TOK = [(4, 6), (5, 6), (6, 4), (6, 5)]


def token(t, n):
    g, i = n >> 2, n & 3
    kind, p = STRIPS[4 * t + i]
    if kind == "H":
        return p, g
    if kind == "V":
        return g, p
    if kind == "Q":
        return 4 + (g >> 1), 4 + (g & 1)
    return I_TOK[g]


assert sorted(token(t, n) for t in range(3) for n in range(16)) + [(6, 6)] == [(r, c) for r in range(7) for c in range(7)]


def gen_prep(o):
    p = []
    a = p.append
    a(raw("s_cmp_ge_u32 s2, 144", "salu", ["scc"], ["s2"]))
    a(raw("s_cbranch_scc1 L_prep_done"))
    if o.diag:
        a(raw("s_memrealtime s[34:35]"))
    a(raw("s_load_dwordx4 s[4:7], s[0:1], 8"))
    a(raw("s_load_dwordx2 s[8:9], s[0:1], 40"))
    a(salu("s_cmp_ge_u32 s2, 72", ["scc"], ["s2"]))
    a(salu("s_cselect_b32 s20, 1, 0", ["s20"], ["scc"]))
    a(salu("s_mul_i32 s21, s20, 72", ["s21"], ["s20"]))
    a(salu("s_sub_u32 s21, s2, s21", ["s21", "scc"], ["s2", "s21"]))
    a(salu("s_mul_i32 s22, s21, 43", ["s22"], ["s21"]))
    a(salu("s_lshr_b32 s22, s22, 8", ["s22", "scc"], ["s22"]))
    for r in range(72):
        assert (r * 43) >> 8 == r // 6
    a(salu("s_mul_i32 s23, s22, 6", ["s23"], ["s22"]))
    a(salu("s_sub_u32 s23, s21, s23", ["s23", "scc"], ["s21", "s23"]))
    a(v3("v_and_b32", "v1", "15", "v0"))
    a(v3("v_lshrrev_b32", "v2", "4", "v0"))
    a(v3("v_lshrrev_b32", "v3", "2", "v1"))
    a(v3("v_and_b32", "v4", "3", "v1"))
    a(v3("v_lshl_add_u32", "v3", "v3", "3", "v4"))
    a(salu("s_movk_i32 s24, 1152", ["s24"], []))
    a(v3("v_mul_lo_u32", "v5", "v3", "s24"))
    a(v3("v_lshl_add_u32", "v5", "v2", "4", "v5"))
    a(salu("s_mul_i32 s25, s23, 36864", ["s25"], ["s23"]))
    a(salu("s_mul_i32 s26, s20, 768", ["s26"], ["s20"]))
    a(salu("s_add_u32 s25, s25, s26", ["s25", "scc"], ["s25", "s26"]))
    a(salu("s_add_u32 s33, s25, 4608", ["s33", "scc"], ["s25"]))
    a(salu("s_lshr_b32 s26, s22, 1", ["s26", "scc"], ["s22"]))
    a(salu("s_mul_i32 s26, s26, 36864", ["s26"], ["s26"]))
    a(salu("s_and_b32 s27, s22, 1", ["s27", "scc"], ["s22"]))
    a(salu("s_mul_i32 s27, s27, 4608", ["s27"], ["s27"]))
    a(salu("s_add_u32 s26, s26, s27", ["s26", "scc"], ["s26", "s27"]))
    a(salu("s_add_u32 s26, s26, 384", ["s26", "scc"], ["s26"]))
    a(raw("s_waitcnt lgkmcnt(0)", "wait"))
    srd(a, 12, 4, 192 * 576 * 2)
    srd(a, 16, 6, 192 * 192 * 2)
    srd(a, 28, 8, 147456 if not o.diag else 3 << 20)
    for h in range(2):
        for k in range(6):
            d = 16 + 24 * h + 4 * k
            a(Inst(f"buffer_load_dwordx4 {T('v', d, 4)}, v5, s[12:15], s{(25, 33)[h]} offen offset:{64 * k}", "vload",
                   defs=R('v', d, 4), uses=["v5", "s25", "s33"]))
    a(salu("s_cmp_eq_u32 s20, 1", ["scc"], ["s20"]))
    a(raw("s_cbranch_scc1 L_prep_n"))
    for k in range(6):
        a(Inst(f"buffer_load_dwordx4 {T('v', 64 + 4 * k, 4)}, v5, s[12:15], s26 offen offset:{64 * k}", "vload",
               defs=R('v', 64 + 4 * k, 4), uses=["v5", "s26"]))
    a(salu(f"s_mov_b32 s27, 0x{f32bits(ALPHA):08x}", ["s27"], []))
    a(raw("s_waitcnt vmcnt(0)", "wait"))
    a(raw("s_branch L_prep_mm"))
    a(raw("L_prep_n:", "label"))
    a(salu("s_cmp_lt_u32 s22, 8", ["scc"], ["s22"]))
    a(salu("s_cselect_b32 s26, 3, 2", ["s26"], ["scc"]))
    a(salu("s_cselect_b32 s27, 0, 120", ["s27"], ["scc"]))
    a(salu("s_add_u32 s27, s27, s22", ["s27", "scc"], ["s27", "s22"]))
    a(v3("v_lshlrev_b32", "v6", "s26", "v1"))
    a(v3("v_add_u32", "v6", "s27", "v6"))
    a(v3("v_lshlrev_b32", "v6", "1", "v6"))
    a(v3("v_mul_u32_u24", "v7", "0xc00", "v2"))
    a(v3("v_add_u32", "v6", "v6", "v7"))
    for k in range(6):
        a(salu(f"s_mov_b32 s27, {k * 12288}", ["s27"], []))
        for j in range(8):
            r = 96 + 8 * k + j
            a(Inst(f"buffer_load_ushort v{r}, v6, s[16:19], s27 offen offset:{384 * j}", "vload",
                   defs=[f"v{r}"], uses=["v6", "s27"]))
    a(salu("s_mov_b32 s27, 1.0", ["s27"], []))
    a(raw("s_waitcnt vmcnt(0)", "wait"))
    for k in range(6):
        for jj in range(4):
            lo, hi = 96 + 8 * k + 2 * jj, 96 + 8 * k + 2 * jj + 1
            a(v3("v_lshl_or_b32", f"v{64 + 4 * k + jj}", f"v{hi}", "16", f"v{lo}"))
    a(raw("L_prep_mm:", "label"))
    a(raw("s_nop 1", "nop"))
    for k in range(6):
        for h in range(2):
            a(mfma("v", 88 + 4 * h, "v", 16 + 24 * h + 4 * k, "v", 64 + 4 * k, k == 0))
    a(salu("s_lshl_b32 s24, s2, 10", ["s24", "scc"], ["s2"]))
    a(v3("v_lshlrev_b32", "v8", "4", "v0"))
    for r in range(8):
        a(v3("v_mul_f32", f"v{88 + r}", "s27", f"v{88 + r}"))
    for r in range(4):
        a(cvtpk(16 + r, 88 + 2 * r, 89 + 2 * r))
    a(Inst("buffer_store_dwordx4 v[16:19], v8, s[28:31], s24 offen", "vstore", uses=R('v', 16, 4) + ["v8"], wide=True))
    if o.diag:
        a(raw("s_waitcnt vmcnt(0)", "wait"))
        a(raw("s_memrealtime s[36:37]"))
        a(raw("s_waitcnt lgkmcnt(0)", "wait"))
        a(v3("v_mov_b32", "v16", "s34"))
        a(v3("v_mov_b32", "v17", "s36"))
        a(v3("v_mov_b32", "v8", "0"))
        a(salu("s_lshl_b32 s24, s2, 3", ["s24", "scc"], ["s2"]))
        a(salu("s_add_u32 s24, s24, 0x200000", ["s24", "scc"], ["s24"]))
        a(Inst("buffer_store_dwordx2 v[16:17], v8, s[28:31], s24 offen", "vstore", uses=["v16", "v17", "v8"]))
    a(raw("L_prep_done:", "label"))
    a(raw("s_endpgm"))
    return insert_nops(p)


XS = [0, 72]
AX49, AT49, AW = 144, 168, 192
NRING = 12
SB = 0
ACC = 64
TBF = 88
OPA = 100
VBF = 124
V_LDS = [220, 221, 222]
V_G = [223, 224, 225, 226, 227, 228]
V_WR = 229
V_RD = [230, 231]
V_ST = {"H": (232, 233), "V": (234, 235), "Q": (236, 237), "I": (238, 239)}
V_SP = (240, 241)
V_PF = 242
A_DUM = 240
DSW_BUSY, ST_BUSY = 40, 40
V_NINF = 244
V_TMP = [[245, 246, 247, 248, 249], [250, 251, 252, 253, 254]]
V_TIME = 255
S_WCUR, S_LB, S_CB, S_K, S_ROW = 16, 17, 18, 19, 20
S_IT = 28
S_M0, S_M1, S_GM, S_SH, S_SPO, S_PB, S_GO = 48, 50, 52, 54, 55, 73, 74
S_PF = 76
S_SPA, S_SPB = 56, 60


def xr(xs, t, s):
    return XS[xs] + 24 * t + 4 * s


def xop(xs, t, s):
    return AX49 + 4 * s if t == 3 else xr(xs, t, s)


def wfrag_read(idx, **kw):
    off = (idx % 144) * 1024
    base, imm = divmod(off, 65536)
    d = AW + 4 * (idx % NRING)
    return Inst(f"ds_read_b128 {T('a', d, 4)}, v{V_LDS[base]} offset:{imm}", "dsr", defs=R('a', d, 4),
                uses=[f"v{V_LDS[base]}"], **kw)


def xload(xs, t, hf, j, sbase, flags="", **kw):
    d = xr(xs, t, 2 * j + hf)
    g = 2 * t + hf
    return Inst(f"buffer_load_dwordx4 {T('a', d, 4)}, v{V_G[g]}, s[4:7], s{sbase} offen offset:{128 * j}" + flags,
                "vload", defs=R('a', d, 4), uses=[f"v{V_G[g]}", f"s{sbase}", "s6"], **kw)


def xloads(xs, sbase, flags, rel=None, step=0):
    out = []
    k = 0
    for t in range(3):
        for j in range(3):
            for hf in range(2):
                kw = {} if rel is None else dict(release=rel + step * k, deadline=rel + step * k + 48)
                out.append(xload(xs, t, hf, j, sbase, flags, **kw))
                k += 1
    return out


def xtrans(xs, rel=None, step=0):
    out = []
    k = 0
    for t in range(3):
        for j in range(3):
            b = k & 1
            for hf in range(2):
                d = xr(xs, t, 2 * j + hf)
                kw = {} if rel is None else dict(release=rel + step * k)
                out.append(Inst(f"ds_write_b128 v{V_WR}, {T('a', d, 4)} offset:{2048 * b + 1024 * hf}", "dsw",
                                defs=[f"~st{b}{hf}"], uses=R('a', d, 4) + [f"v{V_WR}"], tag="x", **kw))
                out[-1].real, out[-1].busy = 20, DSW_BUSY
            for u in range(2):
                d = xr(xs, t, 2 * j + u)
                kw = {} if rel is None else dict(deadline=rel + step * k + 200)
                out.append(Inst(f"ds_read_b128 {T('a', d, 4)}, v{V_RD[u]} offset:{2048 * b}", "dsr", defs=R('a', d, 4),
                                uses=[f"v{V_RD[u]}", f"~st{b}0", f"~st{b}1"], tag="x", **kw))
            k += 1
    return out


def vb(ct):
    return VBF + 8 * ct


def opk(q, i, part):
    base = {0: OPA, 1: ACC, 2: OPA, 3: TBF}[q]
    rows = 2 if q == 3 else 4
    return base + 4 * i if part == 0 else base + 4 * rows + 2 * i


def o_mf(q, pr):
    out = []
    for ks in range(2):
        for e in range(2):
            out.append(mfma("v", SB + 16 * q + 8 + 4 * e, "v", SB + 16 * q + 4 * ks, "v", vb(2 * pr + e) + 4 * ks, ks == 0))
    return out


def o_pack(q, pr):
    out = []
    for i in range(2 if q == 3 else 4):
        d = opk(q, i, 0) + pr if pr < 4 else opk(q, i, 1) + pr - 4
        out.append(cvtpk(d, SB + 16 * q + 8 + i, SB + 16 * q + 12 + i))
    return out


def o_store(q, part, flags=""):
    out = []
    n = (4, 2)[part]
    for i in range(2 if q == 3 else 4):
        d = opk(q, i, part)
        if q == 3:
            vo, row, imm, sr = V_SP[part], None, 0, (S_SPA, S_SPB)[i]
        else:
            kind, pp = STRIPS[4 * q + i]
            vo, sr = V_ST[kind][part], 8
            row, imm = {"H": (pp, 0), "V": (0, pp * 384), "Q": (4, 4 * 384), "I": (4, 0)}[kind]
        so = f"s{S_SPO}" if row is None else f"s{S_ROW + row}"
        out.append(Inst(f"buffer_store_dwordx{n} {T('v', d, n)}, v{vo}, s[{sr}:{sr+3}], {so} offen offset:{imm + 256 * part}{flags}",
                        "vstore", uses=R('v', d, n) + [f"v{vo}", so, f"s{sr+2}"], wide=(n == 4)))
        out[-1].cost, out[-1].real, out[-1].busy = 8, 4 + 4 * n, ST_BUSY
    return out


def xlane(op, m0, m1):
    p = []
    for sw in ("v_permlane32_swap_b32", "v_permlane16_swap_b32"):
        p.append(v3("v_mov_b32", f"v{m1}", f"v{m0}"))
        p.append(valu(f"{sw} v{m0}, v{m1}", [f"v{m0}", f"v{m1}"], [f"v{m0}", f"v{m1}"], kind="perm"))
        p.append(v3(op, f"v{m0}", f"v{m0}", f"v{m1}"))
    return p


def softmax(q, tset):
    b = SB + 16 * q
    m0, m1, s0, s1, rr = V_TMP[tset]
    p = []
    p.append(cnd(f"v{b + 12}", f"v{V_NINF}", f"v{b + 12}", S_M0))
    p.append(cnd(f"v{b + 12}", f"v{b + 12}", f"v{b + 13}", S_M1))
    regs = [b + r for r in range(13)]
    m3 = lambda d, x, y, z: v3("v_max3_f32", f"v{d}", f"v{x}", f"v{y}", f"v{z}")
    p.append(m3(m0, regs[0], regs[1], regs[2]))
    p.append(m3(m1, regs[3], regs[4], regs[5]))
    p.append(m3(m0, m0, regs[6], regs[7]))
    p.append(m3(m1, m1, regs[8], regs[9]))
    p.append(m3(m0, m0, regs[10], regs[11]))
    p.append(m3(m0, m0, m1, regs[12]))
    p.extend(xlane("v_max_f32", m0, m1))
    for r in regs:
        p.append(v3("v_sub_f32", f"v{r}", f"v{r}", f"v{m0}"))
        p.append(valu(f"v_exp_f32 v{r}, v{r}", [f"v{r}"], [f"v{r}"], kind="trans"))
    p.append(v3("v_add_f32", f"v{s0}", f"v{regs[0]}", f"v{regs[1]}"))
    p.append(v3("v_add_f32", f"v{s1}", f"v{regs[2]}", f"v{regs[3]}"))
    for k in range(4, 13):
        s = (s0, s1)[k & 1]
        p.append(v3("v_add_f32", f"v{s}", f"v{s}", f"v{regs[k]}"))
    p.append(v3("v_add_f32", f"v{s0}", f"v{s0}", f"v{s1}"))
    p.extend(xlane("v_add_f32", s0, s1))
    p.append(valu(f"v_rcp_f32 v{rr}, v{s0}", [f"v{rr}"], [f"v{s0}"], kind="trans"))
    for k in range(0, 12, 2):
        p.append(v3("v_mul_f32", f"v{regs[k]}", f"v{regs[k]}", f"v{rr}"))
        p.append(v3("v_mul_f32", f"v{regs[k + 1]}", f"v{regs[k + 1]}", f"v{rr}"))
        p.append(cvtpk(b + k // 2, regs[k], regs[k + 1]))
    p.append(v3("v_mul_f32", f"v{regs[12]}", f"v{regs[12]}", f"v{rr}"))
    p.append(cvtpk(b + 6, regs[12], None))
    p.append(v3("v_lshlrev_b32", f"v{b + 6}", f"s{S_SH}", f"v{b + 6}"))
    p.append(v3("v_mov_b32", f"v{b + 7}", "0"))
    return p


def win_base(dst, w, tmp):
    return [
        salu(f"s_mul_hi_u32 s{tmp}, s{w}, s29", [f"s{tmp}"], [f"s{w}", "s29"]),
        salu(f"s_mul_i32 s{dst}, s{tmp}, 73", [f"s{dst}"], [f"s{tmp}"]),
        salu(f"s_sub_u32 s{dst}, s{w}, s{dst}", [f"s{dst}", "scc"], [f"s{w}", f"s{dst}"]),
        salu(f"s_mul_i32 s{dst}, s{dst}, 2688", [f"s{dst}"], [f"s{dst}"]),
        salu(f"s_mul_i32 s{tmp}, s{tmp}, {WINROW}", [f"s{tmp}"], [f"s{tmp}"]),
        salu(f"s_add_u32 s{dst}, s{dst}, s{tmp}", [f"s{dst}", "scc"], [f"s{dst}", f"s{tmp}"]),
    ]


def row_bases():
    out = [salu(f"s_mov_b32 s{S_ROW}, s{S_CB}", [f"s{S_ROW}"], [f"s{S_CB}"])]
    for r in range(1, 7):
        out.append(salu(f"s_add_u32 s{S_ROW + r}, s{S_CB}, {r * ROWB}", [f"s{S_ROW + r}", "scc"], [f"s{S_CB}"]))
    out.append(salu(f"s_sub_u32 s{S_SPO}, s{S_ROW + 6}, s{S_GO}", [f"s{S_SPO}", "scc"], [f"s{S_ROW + 6}", f"s{S_GO}"]))
    out.append(salu(f"s_add_u32 s{S_SPO}, s{S_SPO}, {6 * 384}", [f"s{S_SPO}", "scc"], [f"s{S_SPO}"]))
    return out


def touches(o, rel=None, step=0):
    out = [salu(f"s_add_u32 s75, s{S_WCUR}, 1024", ["s75", "scc"], [f"s{S_WCUR}"])]
    out += win_base(S_PB, 75, 27)
    out.append(salu(f"s_cmp_lt_u32 s75, {NWIN}", ["scc"], ["s75"]))
    out.append(salu(f"s_cselect_b32 s{S_PF + 2}, s31, 0", [f"s{S_PF + 2}"], ["scc", "s31"]))
    for j in range(3):
        kw = {} if rel is None else dict(release=rel + step * j, deadline=rel + step * j + 48)
        out.append(Inst(f"buffer_load_dword a{A_DUM + j}, v{V_PF}, s[{S_PF}:{S_PF + 3}], s{S_PB} offen offset:{128 * j}{o.pf_flags}",
                        "vload", defs=[f"a{A_DUM + j}"], uses=[f"v{V_PF}", f"s{S_PB}", f"s{S_PF + 2}"], tag="pf", **kw))
    return out


def slot_masks():
    k = S_K
    return [
        salu(f"s_and_b32 s30, s{k}, 3", ["s30", "scc"], [f"s{k}"]),
        salu(f"s_mul_i32 s{S_GO}, s30, 384", [f"s{S_GO}"], ["s30"]),
        salu("s_lshl_b32 s30, s30, 4", ["s30", "scc"], ["s30"]),
        salu(f"s_lshl_b64 s[{S_GM}:{S_GM+1}], s[40:41], s30", [f"s{S_GM}", f"s{S_GM+1}", "scc"], ["s40", "s41", "s30"]),
        salu(f"s_cmp_lt_u32 s{k}, 4", ["scc"], [f"s{k}"]),
        salu(f"s_cselect_b64 s[{S_M0}:{S_M0+1}], s[{S_GM}:{S_GM+1}], 0", [f"s{S_M0}", f"s{S_M0+1}"], ["scc", f"s{S_GM}", f"s{S_GM+1}"]),
        salu(f"s_cselect_b64 s[{S_M1}:{S_M1+1}], 0, s[{S_GM}:{S_GM+1}]", [f"s{S_M1}", f"s{S_M1+1}"], ["scc", f"s{S_GM}", f"s{S_GM+1}"]),
        salu(f"s_cselect_b32 s{S_SH}, 0, 16", [f"s{S_SH}"], ["scc"]),
        salu(f"s_cselect_b32 s{S_SPA+2}, s31, 0", [f"s{S_SPA+2}"], ["scc", "s31"]),
        salu(f"s_cselect_b32 s{S_SPB+2}, 0, s31", [f"s{S_SPB+2}"], ["scc", "s31"]),
        salu(f"s_add_u32 s{k}, s{k}, 1", [f"s{k}", "scc"], [f"s{k}"]),
        cnd(f"v{V_SP[0]}", f"v{V_NINF}", f"v{V_ST['H'][0]}", S_GM),
        cnd(f"v{V_SP[1]}", f"v{V_NINF}", f"v{V_ST['H'][1]}", S_GM),
    ]


def leftover(o):
    p = []
    p.extend(o_pack(1, 5))
    p.extend(o_pack(2, 5))
    p.extend(o_store(1, 1, o.st_flags))
    p.extend(o_store(2, 1, o.st_flags))
    return p


def gen_body(o, xs):
    p = []
    ext = p.extend
    NM = 624
    ext(slot_masks())
    p.append(salu(f"s_add_u32 s{S_WCUR}, s{S_WCUR}, 1024", [f"s{S_WCUR}", "scc"], [f"s{S_WCUR}"], deadline=0))
    ext(win_base(S_LB, S_WCUR, 27))
    p.append(salu(f"s_cmp_lt_u32 s{S_WCUR}, {NWIN}", ["scc"], [f"s{S_WCUR}"]))
    p.append(salu(f"s_cselect_b32 s6, {'0' if o.noload else 's31'}, 0", ["s6"], ["scc", "s31"]))
    ext(xloads(xs ^ 1, S_LB, o.ld_flags, o.ld_rel, o.ld_step))
    if o.pf:
        ext(touches(o, o.pf_rel, o.pf_step))
    ext(leftover(o))
    ext(row_bases())
    p.append(salu(f"s_mov_b32 s10, {'0' if o.nostore else 's31'}", ["s10"], ["s31"]))
    p.append(salu(f"s_mov_b32 s{S_CB}, s{S_LB}", [f"s{S_CB}"], [f"s{S_LB}"]))

    def chain(mat, ct):
        out = []
        for s in range(6):
            idx = 72 * mat + 6 * ct + s
            w = AW + 4 * (idx % NRING)
            for t in range(3):
                acc = ACC + 12 * (ct & 1) + 4 * t
                if mat == 0:
                    out.append(mfma("v", acc, "a", w, "a", xr(xs, t, s), s == 0))
                else:
                    out.append(mfma("v", acc, "a", xr(xs, t, s), "a", w, s == 0))
            kw = {}
            if idx + NRING >= 144:
                kw = dict(deadline=NM * 16 + 48 * (idx + NRING - 144) - 220)
            out.append(wfrag_read(idx + NRING, **kw))
        return out

    def cvt_t(ct):
        out = []
        for t in range(3):
            acc = ACC + 12 * (ct & 1) + 4 * t
            for h in range(2):
                out.append(cvtpk(TBF + 4 * t + 2 * (ct & 1) + h, acc + 2 * h, acc + 2 * h + 1))
        return out

    def cvt_v(ct):
        out = []
        for t in range(3):
            acc = ACC + 12 * (ct & 1) + 4 * t
            for h in range(2):
                out.append(cvtpk(vb(ct) + 2 * t + h, acc + 2 * h, acc + 2 * h + 1))
        return out

    def s_mf(sp):
        return [mfma("v", SB + 16 * q + 4 * kt, "a", xop(xs, kt, sp), "v", TBF + 4 * q, sp == 0)
                for q in range(3) for kt in range(4)]

    def s3():
        return [mfma("v", SB + 48 + 4 * kt, "a", xop(xs, kt, s), "a", AT49 + 4 * s, s == 0)
                for s in range(6) for kt in range(4)]

    def o_grp(qs, pr):
        out = []
        for q in qs:
            out.extend(o_mf(q, pr))
        for q in qs:
            if not (pr == 5 and q in (1, 2)):
                out.extend(o_pack(q, pr))
                if pr == 3:
                    out.extend(o_store(q, 0, o.st_flags))
                if pr == 5:
                    out.extend(o_store(q, 1, o.st_flags))
        return out

    ext(chain(0, 0))
    ext(s3())
    ext(softmax(3, 1))
    ext(cvt_t(0))
    for ct in range(1, 12):
        ext(chain(0, ct))
        if ct >= 2 and ct % 2 == 0:
            ext(s_mf(ct // 2 - 1))
        ext(cvt_t(ct))
    ext(xtrans(xs ^ 1, o.xw_rel, o.xw_step))
    ext(chain(1, 0))
    ext(s_mf(5))
    for q in range(3):
        ext(softmax(q, q & 1))
    ext(cvt_v(0))
    after = {5: 0, 6: 1, 7: 2, 8: 3, 10: 4}
    for ct in range(1, 12):
        ext(chain(1, ct))
        if ct in after:
            ext(o_grp((3, 0), after[ct]))
        ext(cvt_v(ct))
    ext(o_grp((1, 2), 0))
    ext(o_grp((3, 0), 5))
    for pr in range(1, 6):
        ext(o_grp((1, 2), pr))
    assert sum(i.kind == "mfma" for i in p) == NM
    if o.rmload:
        p = [i for i in p if i.kind != "vload"]
    if o.rmstore:
        p = [i for i in p if i.kind != "vstore"]
    return p


def gen_p49(m):
    p = []
    for mat in [m]:
        for ct in range(12):
            acc = SB + 4 * (ct & 3)
            for s in range(6):
                idx = 72 * mat + 6 * ct + s
                w = AW + 4 * (idx % NRING)
                if mat == 0:
                    p.append(mfma("v", acc, "a", w, "a", AX49 + 4 * s, s == 0))
                else:
                    p.append(mfma("v", acc, "a", AX49 + 4 * s, "a", w, s == 0))
                if mat == 1 or idx + NRING < 72:
                    p.append(wfrag_read(idx + NRING))
            if mat == 0:
                for h in range(2):
                    tmp = SB + 16 + 2 * (ct & 3) + h
                    p.append(cvtpk(tmp, acc + 2 * h, acc + 2 * h + 1))
                    d = AT49 + 4 * (ct >> 1) + 2 * (ct & 1) + h
                    p.append(valu(f"v_accvgpr_write_b32 a{d}, v{tmp}", [f"a{d}"], [f"v{tmp}"]))
            else:
                p.append(cvtpk(vb(ct) + 6, acc, acc + 1))
    return p


def gen_prologue(o):
    p = []
    a = p.append
    a(raw("s_cmp_ge_u32 s2, 256", "salu", ["scc"], ["s2"]))
    a(raw("s_cbranch_scc1 L_main_done"))
    a(raw("s_load_dwordx2 s[32:33], s[0:1], 0"))
    a(raw("s_load_dwordx2 s[36:37], s[0:1], 40"))
    a(raw("s_load_dwordx2 s[34:35], s[0:1], 24"))
    if o.diag:
        a(raw("s_memtime s[44:45]"))
        a(raw("s_memrealtime s[46:47]"))
    a(v3("v_and_b32", "v1", "63", "v0"))
    a(v3("v_lshrrev_b32", "v2", "6", "v0"))
    a(v3("v_and_b32", "v3", "15", "v1"))
    a(valu("v_readfirstlane_b32 s38, v2", ["s38"], ["v2"]))
    a(v3("v_lshrrev_b32", "v4", "4", "v1"))
    a(v3("v_lshlrev_b32", f"v{V_LDS[0]}", "4", "v1"))
    a(salu("s_lshl_b32 s16, s2, 2", ["s16", "scc"], ["s2"]))
    a(salu(f"s_mov_b32 s29, {MAGIC73}", ["s29"], []))
    a(salu(f"s_mov_b32 s31, {XBYTES}", ["s31"], []))
    a(salu("s_add_u32 s16, s16, s38", ["s16", "scc"], ["s16", "s38"]))
    a(v3("v_mov_b32", f"v{V_NINF}", "0xff800000"))
    a(v3("v_lshrrev_b32", "v5", "2", "v3"))
    a(v3("v_and_b32", "v6", "3", "v3"))
    a(v3("v_lshl_add_u32", "v5", "v6", "2", "v5"))
    a(v3("v_lshlrev_b32", "v5", "10", "v5"))
    a(v3("v_add_u32", "v5", "s16", "v5"))
    a(v3("v_mul_hi_u32", "v6", "v5", "s29"))
    a(v3("v_mul_u32_u24", "v7", "73", "v6"))
    a(v3("v_sub_u32", "v7", "v5", "v7"))
    a(v3("v_mul_u32_u24", "v7", "0xa80", "v7"))
    a(salu(f"s_mov_b32 s43, {WINROW}", ["s43"], []))
    a(v3("v_mul_lo_u32", "v6", "v6", "s43"))
    a(v3("v_add_u32", "v6", "v6", "v7"))
    a(v3("v_lshl_add_u32", "v6", "v4", "4", "v6"))
    a(v3("v_add_u32", "v6", str(6 * ROWB + 6 * 384), "v6"))
    a(valu(f"v_cmp_gt_u32 vcc, {NWIN}, v5", ["vcc"], ["v5"]))
    a(valu(f"v_cndmask_b32 v14, v{V_NINF}, v6, vcc", ["v14"], [f"v{V_NINF}", "v6", "vcc"]))
    a(salu("s_lshr_b32 s42, s2, 3", ["s42", "scc"], ["s2"]))
    a(salu("s_mul_i32 s43, s38, 6", ["s43"], ["s38"]))
    a(salu("s_add_u32 s42, s42, s43", ["s42", "scc"], ["s42", "s43"]))
    for _ in range(2):
        a(salu("s_sub_u32 s43, s42, 24", ["s43", "scc"], ["s42"]))
        a(salu("s_cselect_b32 s42, s42, s43", ["s42"], ["scc", "s42", "s43"]))
    a(salu("s_mul_i32 s42, s42, 3072", ["s42"], ["s42"]))
    p.extend(win_base(S_CB, S_WCUR, 30))
    a(raw("s_waitcnt lgkmcnt(0)", "wait"))
    if o.diag:
        a(v3("v_mov_b32", f"v{V_TIME}", "s44"))
        a(valu(f"v_writelane_b32 v{V_TIME}, s46, 62", [f"v{V_TIME}"], ["s46"]))
    if o.pstamp:
        p.extend(stamp3(55))
    srd(a, 4, 32, "s31")
    srd(a, 12, 36, "147456" if not o.diag else str(WS_TIME_OFF + 1024 * 256))
    for s in range(6):
        a(Inst(f"buffer_load_dwordx4 {T('a', AX49 + 4 * s, 4)}, v14, s[4:7], 0 offen offset:{64 * s}", "vload",
               defs=R('a', AX49 + 4 * s, 4), uses=["v14"]))
    for mat in range(2):
        for g in range(6):
            if mat or g:
                a(salu("s_add_u32 s42, s42, 3072", ["s42", "scc"], ["s42"]))
                a(salu("s_cmp_eq_u32 s42, 73728", ["scc"], ["s42"]))
                a(salu("s_cselect_b32 s42, 0, s42", ["s42"], ["scc", "s42"]))
            a(salu(f"s_add_u32 s43, s42, {mat * 73728}", ["s43", "scc"], ["s42"]))
            a(salu("s_mov_b32 m0, s43", ["m0"], ["s43"]))
            for k in range(3):
                a(Inst(f"buffer_load_dwordx4 v{V_LDS[0]}, s[12:15], s43 offen offset:{1024 * k} lds", "ldsdma",
                       uses=[f"v{V_LDS[0]}", "s43", "m0"]))
    if o.pstamp:
        p.extend(stamp3(56))
    a(salu(f"s_mov_b32 s39, {ROWB}", ["s39"], []))
    a(v3("v_bfe_u32", "v5", "v1", "3", "2"))
    a(v3("v_lshrrev_b32", "v6", "5", "v1"))
    a(v3("v_and_b32", "v12", "7", "v1"))
    a(v3("v_xor_b32", "v12", "v12", "v4"))
    a(v3("v_lshlrev_b32", "v12", "4", "v12"))
    a(v3("v_xor_b32", "v13", "64", "v12"))
    a(v3("v_mul_lo_u32", "v7", "v5", "s39"))
    a(v3("v_mul_u32_u24", "v8", "0x180", "v6"))
    a(v3("v_add_u32", "v9", "v7", "v8"))
    a(v3("v_add_u32", f"v{V_G[0]}", "v9", "v12"))
    a(v3("v_add_u32", "v9", "0x300", "v9"))
    a(v3("v_add_u32", f"v{V_G[1]}", "v9", "v13"))
    for hf in range(2):
        for j in range(3):
            a(xload(0, 0, hf, j, S_CB, o.ld_flags))
    for i in range(1, 4):
        a(valu(f"v_cmp_eq_u32 s[{64 + 2 * i}:{65 + 2 * i}], {i}, v5", [f"s{64 + 2 * i}", f"s{65 + 2 * i}"], ["v5"]))
    a(valu("v_cmp_eq_u32 s[64:65], 1, v6", ["s64", "s65"], ["v6"]))
    for t in range(1, 3):
        for hf in range(2):
            dst = f"v{V_G[2 * t + hf]}"
            for i in range(4):
                offs = []
                for bb in range(2):
                    r, c = token(t, 4 * (2 * hf + bb) + i)
                    offs.append(r * ROWB + c * 384)
                a(v3("v_mov_b32", "v7", str(offs[0])))
                a(v3("v_mov_b32", "v8", str(offs[1])))
                if i == 0:
                    a(cnd("v9", "v7", "v8", 64))
                else:
                    a(cnd("v7", "v7", "v8", 64))
                    a(cnd("v9", "v9", "v7", 64 + 2 * i))
            a(v3("v_add_u32", dst, "v9", ("v12", "v13")[hf]))
            for j in range(3):
                a(xload(0, t, hf, j, S_CB, o.ld_flags))
    if o.pf:
        a(v3("v_mul_u32_u24", "v7", "37", "v1"))
        a(v3("v_lshrrev_b32", "v7", "8", "v7"))
        a(v3("v_mul_u32_u24", "v8", "7", "v7"))
        a(v3("v_sub_u32", "v8", "v1", "v8"))
        a(v3("v_mul_lo_u32", "v7", "v7", "s39"))
        a(v3("v_mul_u32_u24", "v8", "0x180", "v8"))
        a(v3("v_add_u32", "v7", "v7", "v8"))
        a(valu("v_cmp_gt_u32 vcc, 48, v1", ["vcc"], ["v1"]))
        a(valu(f"v_cndmask_b32 v{V_PF}, v{V_NINF}, v7, vcc", [f"v{V_PF}"], [f"v{V_NINF}", "v7", "vcc"]))
        srd(a, S_PF, 32, "0")
        p.extend(touches(o))
    if o.pstamp:
        p.extend(stamp3(57))
    a(v3("v_add_u32", f"v{V_LDS[1]}", "0x10000", f"v{V_LDS[0]}"))
    a(v3("v_add_u32", f"v{V_LDS[2]}", "0x20000", f"v{V_LDS[0]}"))
    srd(a, 8, 34, "0")
    srd(a, S_SPA, 34, "0")
    srd(a, S_SPB, 34, "0")
    a(salu("s_lshl_b32 s41, s38, 12", ["s41", "scc"], ["s38"]))
    a(salu(f"s_add_u32 s41, s41, {STAGE}", ["s41", "scc"], ["s41"]))
    a(v3("v_add_u32", f"v{V_WR}", "s41", f"v{V_LDS[0]}"))
    a(v3("v_lshrrev_b32", "v5", "1", "v3"))
    a(v3("v_xor_b32", "v5", "v5", "v4"))
    a(v3("v_lshlrev_b32", "v5", "4", "v5"))
    a(v3("v_lshl_add_u32", "v5", "v3", "7", "v5"))
    a(v3("v_add_u32", f"v{V_RD[0]}", "s41", "v5"))
    a(v3("v_xor_b32", f"v{V_RD[1]}", "64", f"v{V_RD[0]}"))
    V_N16, V_N8 = 15, 16
    a(v3("v_lshlrev_b32", f"v{V_N16}", "4", "v3"))
    a(v3("v_lshlrev_b32", f"v{V_N8}", "3", "v3"))
    a(v3("v_mul_u32_u24", "v5", "0x180", "v4"))
    a(v3("v_mul_lo_u32", "v6", "v4", "s39"))
    a(v3("v_lshrrev_b32", "v7", "1", "v4"))
    a(v3("v_mul_lo_u32", "v7", "v7", "s39"))
    a(v3("v_and_b32", "v8", "1", "v4"))
    a(v3("v_mul_u32_u24", "v8", "0x180", "v8"))
    a(v3("v_add_u32", "v7", "v7", "v8"))
    for g in range(4):
        r, c = I_TOK[g]
        off = (r - 4) * ROWB + c * 384
        if g == 0:
            a(v3("v_mov_b32", "v8", str(off)))
        else:
            a(valu(f"v_cmp_eq_u32 vcc, {g}, v4", ["vcc"], ["v4"]))
            a(v3("v_mov_b32", "v9", str(off)))
            a(valu("v_cndmask_b32 v8, v8, v9, vcc", ["v8"], ["v8", "v9", "vcc"]))
    for kind, src in (("H", "v5"), ("V", "v6"), ("Q", "v7"), ("I", "v8")):
        a(v3("v_add_u32", f"v{V_ST[kind][0]}", src, f"v{V_N16}"))
        a(v3("v_add_u32", f"v{V_ST[kind][1]}", src, f"v{V_N8}"))
    for ct in range(12):
        a(v3("v_mov_b32", f"v{vb(ct) + 7}", "0"))
    for r in range(7):
        a(salu(f"s_mov_b32 s{S_ROW + r}, 0", [f"s{S_ROW + r}"], []))
    a(salu(f"s_mov_b32 s{S_K}, 0", [f"s{S_K}"], []))
    a(salu("s_mov_b32 s40, 0xffff", ["s40"], []))
    a(salu("s_mov_b32 s41, 0", ["s41"], []))
    if o.diag:
        a(salu(f"s_mov_b32 s{S_IT}, 1", [f"s{S_IT}"], []))
        a(salu("s_mov_b32 s72, 10", ["s72"], []))
    for mat in range(2):
        a(raw(f"s_waitcnt vmcnt({36 - 18 * mat + (3 if o.pf else 0)})", "wait"))
        a(raw("s_barrier"))
        if o.pstamp:
            p.extend(stamp3(58 + mat))
        for s in range(NRING):
            a(wfrag_read(72 * mat + s))
        q, _ = schedule(gen_p49(mat), gap_budget=o.gap)
        q = insert_waits(q, pre=p[-NRING:])
        p.extend(q)
    if o.pstamp:
        p.extend(stamp3(60))
    a(raw(f"s_waitcnt vmcnt({3 if o.pf else 0})", "wait"))
    if o.pstamp:
        p.extend(stamp3(61))
    p.extend(xtrans(0))
    a(raw("s_waitcnt lgkmcnt(0)", "wait"))
    return p


def stamp3(lane):
    return [raw("s_memtime s[44:45]"), raw("s_waitcnt lgkmcnt(0)", "wait"),
            valu(f"v_writelane_b32 v{V_TIME}, s44, {lane}", [f"v{V_TIME}"], ["s44"])]


def stamp():
    return [raw("s_memtime s[44:45]"), salu(f"s_mov_b32 m0, s{S_IT}", ["m0"], [f"s{S_IT}"]), raw("s_waitcnt lgkmcnt(0)", "wait"),
            valu(f"v_writelane_b32 v{V_TIME}, s44, m0", [f"v{V_TIME}"], ["s44", "m0"]),
            salu(f"s_add_u32 s{S_IT}, s{S_IT}, 1", [f"s{S_IT}", "scc"], [f"s{S_IT}"])]


def stamp2():
    return [raw("s_memtime s[44:45]"), salu("s_mov_b32 m0, s72", ["m0"], ["s72"]), raw("s_waitcnt lgkmcnt(0)", "wait"),
            valu(f"v_writelane_b32 v{V_TIME}, s44, m0", [f"v{V_TIME}"], ["s44", "m0"]),
            salu("s_add_u32 s72, s72, 1", ["s72", "~scc"], ["s72"])]


def add_stamps(body, pts):
    out = []
    k = 0
    for i in body:
        if i.kind == "mfma":
            if k in pts:
                st = stamp2()
                st[-1] = raw("s_addk_i32 s72, 1", "salu", ["s72"], ["s72"])
                out.extend(st)
            k += 1
        out.append(i)
    return out


def gen_main(o):
    pro = insert_nops(gen_prologue(o))
    bodies = []
    for xs in range(2):
        body, cyc = schedule(gen_body(o, xs), gap_budget=o.gap, verbose=True)
        tail = [salu(f"s_cmp_lt_u32 s{S_WCUR}, {NWIN}", ["scc"], [f"s{S_WCUR}"]),
                raw("s_cbranch_scc0 L_epi" if xs == 0 else "s_cbranch_scc1 L_loop")]
        head = stamp() if o.diag else []
        if o.pts:
            body = add_stamps(body, [int(x) for x in o.pts.split(",")])
        bodies.append(head + body + tail)
    el = (o.early, cyc) if o.early else 0
    ev = (o.early_vm, cyc) if o.early_vm else 0
    w = [insert_waits(bodies[0], early_lgkm=el, early_vm=ev), None]
    for it in range(3):
        w[1] = insert_waits(bodies[1], pre=w[0], early_lgkm=el, early_vm=ev)
        prev = [i.text for i in w[0]]
        w[0] = insert_waits(bodies[0], pre=w[1], early_lgkm=el, early_vm=ev)
    assert prev == [i.text for i in w[0]]
    n = [insert_nops(w[0], pre=[pro]), None]
    for it in range(3):
        n[1] = insert_nops(w[1], pre=[n[0]])
        prev = [i.text for i in n[0]]
        n[0] = insert_nops(w[0], pre=[pro, n[1]])
    assert prev == [i.text for i in n[0]]
    epi = leftover(o)
    e0 = insert_waits(epi, pre=w[0])
    e1 = insert_waits(epi, pre=w[1])
    assert [i.text for i in e0] == [i.text for i in e1]
    epi = e0
    if o.diag:
        epi += stamp()
        epi += [raw("s_waitcnt vmcnt(0)", "wait")] + stamp()
        epi += [raw("s_memrealtime s[46:47]"), raw("s_waitcnt lgkmcnt(0)", "wait"),
                valu(f"v_writelane_b32 v{V_TIME}, s46, 63", [f"v{V_TIME}"], ["s46"])]
        epi += [v3("v_lshrrev_b32", "v0", "2", f"v{V_LDS[0]}"),
                salu("s_lshl_b32 s42, s2, 2", ["s42", "scc"], ["s2"]),
                salu("s_add_u32 s42, s42, s38", ["s42", "scc"], ["s42", "s38"]),
                salu("s_lshl_b32 s42, s42, 8", ["s42", "scc"], ["s42"]),
                salu(f"s_add_u32 s42, s42, {WS_TIME_OFF}", ["s42", "scc"], ["s42"]),
                Inst(f"buffer_store_dword v{V_TIME}, v0, s[12:15], s42 offen", "vstore", uses=[f"v{V_TIME}", "v0", "s42"])]
    epi = insert_nops(epi, pre=[n[0], n[1]])
    stats = {}
    for i in n[0]:
        stats[i.kind] = stats.get(i.kind, 0) + 1
    print("; body stats", stats, file=sys.stderr)
    return pro, n, epi


def emit(insts):
    out = []
    for i in insts:
        out.append(i.text if i.kind == "label" else "    " + i.text)
    return "\n".join(out)


HEADER = """; Swin window attention: folded projections (M = a*Wq*Wk^T, N = Wv*Wo), one wave per window.
; @launch kernel=swin_prep_kernel grid=(144,1,1) block=(64,1,1) lds=0
; @launch kernel={name}_kernel grid=(256,1,1) block=(256,1,1) lds=163840
.amdgcn_target "amdgcn-amd-amdhsa--gfx950"
.text
"""

KD = """.amdhsa_kernel {k}
  .amdhsa_next_free_vgpr {nv}
  .amdhsa_next_free_sgpr {ns}
  .amdhsa_accum_offset {ao}
  .amdhsa_group_segment_fixed_size 0
  .amdhsa_kernarg_size 48
  .amdhsa_user_sgpr_count 2
  .amdhsa_user_sgpr_kernarg_segment_ptr 1
  .amdhsa_system_sgpr_workgroup_id_x 1
.end_amdhsa_kernel
"""


def main():
    ap = argparse.ArgumentParser()
    ap.add_argument("-o", default="cdna_kernels/" + NAME + ".s")
    ap.add_argument("--diag", action="store_true")
    ap.add_argument("--pts", default="")
    ap.add_argument("--gap", type=int, default=8)
    ap.add_argument("--early", type=int, default=230)
    ap.add_argument("--early_vm", type=int, default=1500)
    ap.add_argument("--ld_rel", type=int, default=1200)
    ap.add_argument("--ld_step", type=int, default=280)
    ap.add_argument("--xw_rel", type=int, default=5200)
    ap.add_argument("--xw_step", type=int, default=480)
    ap.add_argument("--pf_rel", type=int, default=5000)
    ap.add_argument("--pf_step", type=int, default=600)
    ap.add_argument("--pf_flags", default="")
    ap.add_argument("--dsw_busy", type=int, default=40)
    ap.add_argument("--st_busy", type=int, default=40)
    ap.add_argument("--ld_flags", default="nt")
    ap.add_argument("--st_flags", default="nt")
    for f in ("noload", "nostore", "rmload", "rmstore", "xfirst", "pstamp", "pf"):
        ap.add_argument("--" + f, action="store_true")
    o = ap.parse_args()
    if o.ld_flags:
        o.ld_flags = " " + o.ld_flags
    if o.st_flags:
        o.st_flags = " " + o.st_flags
    if o.pf_flags:
        o.pf_flags = " " + o.pf_flags
    global DSW_BUSY, ST_BUSY
    DSW_BUSY, ST_BUSY = o.dsw_busy, o.st_busy
    old = sys.stdout
    sys.stdout = sys.stderr
    prep = gen_prep(o)
    pro, bodies, epi = gen_main(o)
    sys.stdout = old
    s = HEADER.format(name=NAME)
    s += ".globl swin_prep_kernel\n.p2align 8\n.type swin_prep_kernel,@function\nswin_prep_kernel:\n"
    s += emit(prep) + "\n"
    k = NAME + "_kernel"
    s += f".globl {k}\n.p2align 8\n.type {k},@function\n{k}:\n"
    s += emit(pro) + "\n.p2align 6\nL_loop:\n" + emit(bodies[0]) + "\n" + emit(bodies[1]) + "\nL_epi:\n" + emit(epi) + "\nL_main_done:\n    s_endpgm\n"
    s += '.section .rodata,"a"\n.p2align 6\n'
    s += KD.format(k="swin_prep_kernel", nv=144, ns=40, ao=144)
    s += ".p2align 6\n"
    s += KD.format(k=k, nv=496, ns=88, ao=256)
    open(o.o, "w").write(s)


if __name__ == "__main__":
    main()
```

```python
import re


def R(bank, lo, n=1):
    return [f"{bank}{lo + i}" for i in range(n)]


def T(bank, lo, n=1):
    return f"{bank}{lo}" if n == 1 else f"{bank}[{lo}:{lo + n - 1}]"


class Inst:
    __slots__ = ("text", "kind", "defs", "uses", "srcC", "srcAB", "passes", "release", "deadline",
                 "idx", "tag", "cost", "time", "pin", "wide", "prio", "real", "busy")

    def __init__(self, text, kind, defs=(), uses=(), srcC=(), srcAB=(), passes=0,
                 release=None, deadline=None, tag="", wide=False):
        self.text = text
        self.kind = kind
        self.defs = list(defs)
        self.uses = list(uses)
        self.srcC = list(srcC)
        self.srcAB = list(srcAB)
        self.passes = passes
        self.release = release
        self.deadline = deadline
        self.tag = tag
        self.wide = wide
        self.cost = {"mfma": 8, "trans": 8, "dsw": 8}.get(kind, 4)
        self.time = None
        self.prio = 0
        self.real = self.cost
        self.busy = 0

    def __repr__(self):
        return f"<{self.text}>"


VALU_KINDS = ("valu", "trans", "perm")
VMEM_KINDS = ("vload", "vstore", "ldsdma")


def is_vreg(r):
    return r[0] in "va" and r[1:].isdigit()


def is_sreg(r):
    return (r[0] == "s" and r[1:].isdigit()) or r in ("vcc",)


def hazard_slots(p, c):
    need = 0
    pd, cu, cd = set(p.defs), set(c.uses), set(c.defs)
    if p.kind in VALU_KINDS:
        vd = {r for r in pd if is_vreg(r)}
        sd = {r for r in pd if is_sreg(r)}
        if c.kind == "mfma" and vd & cu:
            need = max(need, 2)
        if c.kind == "perm" and vd & cu:
            need = max(need, 2)
        if p.kind == "trans" and c.kind in ("valu", "perm", "mfma") and vd & cu:
            need = max(need, 1)
        if p.kind == "trans" and c.kind in VMEM_KINDS + ("dsw", "dsr") and vd & cu:
            need = max(need, 1)
        if c.text.startswith(("v_readfirstlane", "v_readlane")) and vd & cu:
            need = max(need, 1)
        if "dpp" in c.text or "row_" in c.text:
            if vd & cu:
                need = max(need, 2)
        if sd & cu:
            if c.kind in VALU_KINDS:
                need = max(need, 2)
            if c.kind in VMEM_KINDS:
                need = max(need, 5)
            if c.kind == "salu":
                need = max(need, 1)
        if "exec" in pd and c.kind == "mfma":
            need = max(need, 4)
    if p.kind == "mfma":
        ps = p.passes
        t_ab = {2: 5, 4: 8, 8: 12, 16: 20}[ps]
        t_ov = {2: 4, 4: 6, 8: 10, 16: 18}[ps]
        t_war = {2: 1, 4: 3, 8: 7, 16: 15}[ps]
        if c.kind == "mfma":
            if pd & set(c.srcAB):
                need = max(need, t_ab)
            if pd & set(c.srcC):
                if c.srcC == p.defs and c.passes == p.passes:
                    need = max(need, 2 if ps == 2 else 0)
                else:
                    need = max(need, t_ov)
            if pd & cd and c.defs != p.defs:
                need = max(need, t_ov)
        else:
            if pd & (cu | cd):
                need = max(need, t_ab)
            if c.kind in VALU_KINDS and set(p.srcC) & cd:
                need = max(need, t_war)
    if p.kind == "vstore" and p.wide:
        data = {r for r in p.uses if is_vreg(r)}
        if data & cd:
            need = max(need, 2)
    if p.kind == "salu" and "m0" in pd and c.kind == "ldsdma":
        need = max(need, 1)
    return need


def nop_states(i):
    if i.kind == "nop":
        return int(i.text.split()[1]) + 1
    if i.kind in ("label", "comment"):
        return 0
    return 1


def insert_nops(stream, pre=None, window=24):
    alts = pre if pre else [[]]
    out = []
    for c in stream:
        if c.kind in ("label", "comment"):
            out.append(c)
            continue
        worst = 0
        for alt in alts:
            hist = (alt + out)[-60:]
            dist = 0
            for p in reversed(hist):
                if dist >= window:
                    break
                n = hazard_slots(p, c)
                if n > dist:
                    worst = max(worst, n - dist)
                dist += nop_states(p)
        while worst > 0:
            k = min(worst, 16)
            out.append(Inst(f"s_nop {k - 1}", "nop"))
            worst -= k
        out.append(c)
    return out


def insert_waits(stream, pre=None, early_lgkm=0, early_vm=0):
    vq = []
    lq = []

    def apply_wait(i):
        m = re.search(r"vmcnt\((\d+)\)", i.text)
        if m:
            n = int(m.group(1))
            del vq[:max(0, len(vq) - n)]
        m = re.search(r"lgkmcnt\((\d+)\)", i.text)
        if m:
            n = int(m.group(1))
            del lq[:max(0, len(lq) - n)]

    def issue(i):
        if i.kind in VMEM_KINDS:
            vq.append((set(i.defs), i))
        elif i.kind in ("dsr", "dsw"):
            lq.append((set(i.defs), i))
        elif i.kind == "smem":
            raise RuntimeError("smem inside auto-wait region")

    for i in (pre or []):
        if i.kind == "wait":
            apply_wait(i)
        else:
            issue(i)
    out = []
    for c in stream:
        if c.kind == "wait":
            apply_wait(c)
            out.append(c)
            continue
        touch = {r for r in set(c.uses) | set(c.defs) if r[0] != "~"}
        nv = nl = None
        for k, (d, p) in enumerate(vq):
            if d & touch:
                nv = len(vq) - 1 - k
        for k, (d, p) in enumerate(lq):
            if d & touch:
                nl = len(lq) - 1 - k
        if nl is not None and early_lgkm and c.time is not None:
            for k, (d, p) in enumerate(lq):
                if p.time is not None:
                    age = c.time - p.time
                    if age < 0:
                        age += early_lgkm[1]
                    if age >= early_lgkm[0]:
                        nl = min(nl, len(lq) - 1 - k)
        if nv is not None and early_vm and c.time is not None and c.kind != "other":
            for k, (d, p) in enumerate(vq):
                if p.time is not None and p.kind == "vload" and p.tag != "pf":
                    age = c.time - p.time
                    if age < 0:
                        age += early_vm[1]
                    if age >= early_vm[0]:
                        nv = min(nv, len(vq) - 1 - k)
        parts = []
        if nv is not None:
            parts.append(f"vmcnt({min(nv, 63)})")
        if nl is not None:
            parts.append(f"lgkmcnt({min(nl, 15)})")
        if parts:
            w = Inst("s_waitcnt " + " ".join(parts), "wait")
            w.time = c.time
            apply_wait(w)
            out.append(w)
        issue(c)
        out.append(c)
    return out


LAT = {"dsr": 190, "vload": 600, "mfma_valu": 72, "valu": 4, "trans": 8}


def build_deps(prog):
    n = len(prog)
    preds = [dict() for _ in range(n)]
    lastw = {}
    readers = {}

    def add(i, j, cyc):
        if i == j:
            return
        sl = hazard_slots(prog[i], prog[j])
        old = preds[j].get(i)
        if old:
            preds[j][i] = (max(old[0], sl), max(old[1], cyc))
        else:
            preds[j][i] = (sl, cyc)

    prev_mfma = None
    for j, c in enumerate(prog):
        for r in c.uses:
            if r in lastw:
                i = lastw[r]
                p = prog[i]
                if r[0] == "~":
                    cyc = 0
                elif p.kind == "dsr":
                    cyc = LAT["dsr"]
                elif p.kind == "vload":
                    cyc = LAT["vload"]
                elif p.kind == "mfma":
                    if c.kind == "mfma" and r in c.srcC and c.srcC == p.defs:
                        cyc = 0
                    else:
                        cyc = p.passes * 4 + 40
                else:
                    cyc = p.cost
                add(i, j, cyc)
        for r in c.defs:
            if r in lastw:
                i = lastw[r]
                p = prog[i]
                cyc = 0
                if p.kind == "mfma" and c.kind != "mfma":
                    cyc = p.passes * 4 + 40
                add(i, j, cyc)
            for i in readers.get(r, ()):
                add(i, j, 0)
        for r in c.uses:
            readers.setdefault(r, []).append(j)
        for r in c.defs:
            lastw[r] = j
            readers[r] = []
        if c.kind == "mfma":
            if prev_mfma is not None:
                add(prev_mfma, j, 0)
            prev_mfma = j
    return preds


def schedule(prog, gap_budget=24, verbose=False, keep_order_kinds=("dsr",)):
    n = len(prog)
    preds = build_deps(prog)
    last = {}
    for j, c in enumerate(prog):
        cls = "vm" if c.kind in VMEM_KINDS else c.kind
        if c.kind in keep_order_kinds and c.tag != "x":
            if cls in last:
                preds[j].setdefault(last[cls], (0, 0))
            last[cls] = j
    succs = [[] for _ in range(n)]
    for j in range(n):
        for i, (sl, cyc) in preds[j].items():
            succs[i].append((j, sl, cyc))
    t = 0
    ideal = {}
    for j, c in enumerate(prog):
        if c.kind == "mfma":
            ideal[j] = t
            t += c.passes * 4
    total = t
    dl = [None] * n
    for j in range(n - 1, -1, -1):
        c = prog[j]
        d = ideal.get(j)
        if d is None:
            d = c.deadline if c.deadline is not None else total + 10000
            for (k, sl, cyc) in succs[j]:
                d = min(d, dl[k] - max(cyc, sl * 4, c.cost))
        dl[j] = d
    issued_t = [None] * n
    issued_slot = [None] * n
    npred = [len(preds[j]) for j in range(n)]
    ready = {j for j in range(n) if npred[j] == 0}
    order = []
    now = 0
    pipe_free = 0
    slot = 0
    mf = [j for j, c in enumerate(prog) if c.kind == "mfma"]
    mi = 0
    gap_used = 0
    stall = 0

    def earliest(j):
        tt = prog[j].release if prog[j].release is not None else 0
        if port_of(prog[j]):
            tt = max(tt, port[port_of(prog[j])])
        ss = 0
        for i, (sl, cyc) in preds[j].items():
            tt = max(tt, issued_t[i] + cyc)
            ss = max(ss, issued_slot[i] + 1 + sl)
        return tt, ss

    port = {"ds": 0, "vm": 0}

    def port_of(c):
        return "ds" if c.kind in ("dsr", "dsw") else "vm" if c.kind in VMEM_KINDS else None

    def emit(j):
        nonlocal now, slot, pipe_free, gap_used
        c = prog[j]
        if port_of(c):
            port[port_of(c)] = now + c.busy
        issued_t[j] = now
        issued_slot[j] = slot
        c.time = now
        order.append(c)
        ready.discard(j)
        for (k, sl, cyc) in succs[j]:
            npred[k] -= 1
            if npred[k] == 0:
                ready.add(k)
        slot += 1
        if c.kind == "mfma":
            pipe_free = now + c.passes * 4
            gap_used = 0
        else:
            gap_used += c.cost
        now += c.real

    while len(order) < n:
        m = mf[mi] if mi < len(mf) else None
        m_ok = False
        if m is not None and m in ready:
            tt, ss = earliest(m)
            m_ok = tt <= max(now, pipe_free) and ss <= slot
        if m_ok and now >= pipe_free:
            emit(m)
            mi += 1
            continue
        best = None
        for j in ready:
            c = prog[j]
            if c.kind == "mfma":
                continue
            tt, ss = earliest(j)
            if tt > now or ss > slot:
                continue
            if m_ok and (now + c.cost > pipe_free or gap_used + c.cost > gap_budget):
                continue
            key = (dl[j], j)
            if best is None or key < best[0]:
                best = (key, j)
        if best is not None:
            emit(best[1])
            continue
        if m_ok:
            now = pipe_free
            emit(m)
            mi += 1
            continue
        cand = []
        for j in ready:
            tt, ss = earliest(j)
            cand.append((tt, ss, j))
        tmin = min(max(tt, now) for tt, ss, j in cand)
        if tmin > now:
            if now >= pipe_free:
                stall += max(0, tmin - max(now, pipe_free))
            now = tmin
        else:
            nop = Inst("s_nop 0", "nop")
            nop.time = now
            order.append(nop)
            n += 1
            issued_t.append(now)
            issued_slot.append(slot)
            slot += 1
            now += 4
            gap_used += 4
    end = max(now, pipe_free)
    if verbose:
        print(f"; schedule: {len(order)} insts, ideal {total} cyc, model {end} cyc")
        prev = 0
        for k, j in enumerate(mf):
            d = issued_t[j] - ideal[j]
            if d != prev:
                print(f";   mfma {k} late by {d} (+{d - prev}): {prog[j].text}")
                prev = d
    return order, end


def cls_of(c):
    if c.kind == "mfma":
        return "mfma"
    if c.kind in VALU_KINDS:
        return "valu"
    if c.kind in VMEM_KINDS:
        return "vmem"
    if c.kind in ("dsr", "dsw"):
        return "lds"
    return "scalar"


def occ_of(c):
    if c.kind in ("trans", "perm"):
        return 8
    if c.kind in VMEM_KINDS:
        return 12
    if c.kind == "dsw":
        return 20 if "b128" in c.text else 12
    return 4


def block_of(c):
    if c.kind == "vstore":
        return 24 if ("dwordx4" in c.text or "dwordx3" in c.text) else 16
    return 0


class Issue:
    def __init__(self):
        self.free = 0
        self.tm = -100
        self.valu_end = -100
        self.block = 0

    def start(self, c):
        k = cls_of(c)
        t = self.free
        if k == "mfma":
            return max(t, self.tm + 16, self.block)
        if k == "valu":
            return max(t, self.tm + 8)
        if k == "lds":
            return max(t, self.tm + 8, self.valu_end + 8)
        if k == "vmem":
            return max(t, self.valu_end + 4)
        return t

    def issue(self, c, t):
        k = cls_of(c)
        self.free = t + occ_of(c)
        if k == "mfma":
            self.tm = t
        elif k == "valu":
            self.valu_end = self.free
        self.block = max(self.block, t + block_of(c))


def model_time(stream):
    s = Issue()
    for c in stream:
        if c.kind in ("label", "comment"):
            continue
        t = s.start(c)
        s.issue(c, t)
        if c.kind == "nop":
            s.free = t + 4 * nop_states(c)
    return max(s.free, s.tm + 16)


def schedule2(prog, verbose=False, keep_order_kinds=("dsr",), urgent=0):
    n = len(prog)
    preds = build_deps(prog)
    last = {}
    for j, c in enumerate(prog):
        if c.kind in keep_order_kinds and c.tag != "x":
            if c.kind in last:
                preds[j].setdefault(last[c.kind], (0, 0))
            last[c.kind] = j
    succs = [[] for _ in range(n)]
    for j in range(n):
        for i, (sl, cyc) in preds[j].items():
            succs[i].append((j, sl, cyc))
    t = 0
    ideal = {}
    for j, c in enumerate(prog):
        if c.kind == "mfma":
            ideal[j] = t
            t += 16
    total = t
    dl = [None] * n
    for j in range(n - 1, -1, -1):
        c = prog[j]
        d = ideal.get(j)
        if d is None:
            d = c.deadline if c.deadline is not None else total + 10000
            for (k, sl, cyc) in succs[j]:
                d = min(d, dl[k] - max(cyc, sl * 4, occ_of(c)))
        dl[j] = d
    issued_t = [None] * n
    issued_slot = [None] * n
    npred = [len(preds[j]) for j in range(n)]
    ready = {j for j in range(n) if npred[j] == 0}
    order = []
    S = Issue()
    slot = 0
    mf = [j for j, c in enumerate(prog) if c.kind == "mfma"]
    mi = 0
    port = {"lds": 0, "vmem": 0}
    late = 0
    left = n

    def earliest(j):
        c = prog[j]
        tt = c.release + late if c.release is not None else 0
        k = cls_of(c)
        if k in port:
            tt = max(tt, port[k])
        ss = 0
        for i, (sl, cyc) in preds[j].items():
            tt = max(tt, issued_t[i] + cyc)
            ss = max(ss, issued_slot[i] + 1 + sl)
        return tt, ss

    def emit(j, t):
        nonlocal slot, left
        c = prog[j]
        k = cls_of(c)
        if k in port:
            port[k] = t + c.busy
        issued_t[j] = t
        issued_slot[j] = slot
        c.time = t
        order.append(c)
        ready.discard(j)
        for (kk, sl, cyc) in succs[j]:
            npred[kk] -= 1
            if npred[kk] == 0:
                ready.add(kk)
        slot += 1
        left -= 1
        S.issue(c, t)

    while left:
        m = mf[mi] if mi < len(mf) else None
        tm = None
        if m is not None and m in ready:
            tt, ss = earliest(m)
            tm = max(S.start(prog[m]), tt)
            m_slot_ok = ss <= slot
        fresh = S.free <= S.tm + 4
        semi = S.free <= S.tm + 8
        best = None
        for j in ready:
            c = prog[j]
            if c.kind == "mfma":
                continue
            tt, ss = earliest(j)
            if ss > slot:
                continue
            st = S.start(c)
            if tt > st:
                if tm is not None and tt + occ_of(c) > tm:
                    continue
                if tm is None and False:
                    continue
                st = tt
            k = cls_of(c)
            end = max(st + occ_of(c), st + block_of(c))
            hot = dl[j] + late - st <= urgent
            if tm is not None:
                over = end - tm
                if over > 0:
                    head = (k == "vmem" and fresh) or (c.kind == "dsw" and semi)
                    if not (head or (hot and not m_slot_ok)):
                        continue
                if k == "scalar" and not fresh and not hot:
                    continue
            rank = 0 if (k in ("lds", "vmem") and semi) else 1
            if k == "scalar" and fresh:
                rank = 0.5
            key = (st, rank, dl[j], j) if tm is None else (rank, dl[j], j)
            if best is None or key < best[0]:
                best = (key, j, st)
        if best is not None:
            _, j, st = best
            c = prog[j]
            if fresh and cls_of(c) in ("lds", "valu"):
                sc = [(dl[k], k) for k in ready if cls_of(prog[k]) == "scalar" and earliest(k)[0] <= S.free and earliest(k)[1] <= slot]
                if sc:
                    emit(min(sc)[1], S.free)
                    continue
            emit(j, st)
            continue
        if tm is not None and m_slot_ok:
            emit(m, tm)
            late = tm - ideal[m]
            mi += 1
            continue
        cand = [earliest(j) + (j,) for j in ready]
        if any(ss > slot for tt, ss, j in cand if j == m or tm is None):
            nop = Inst("s_nop 0", "nop")
            nop.time = S.free
            order.append(nop)
            S.issue(nop, S.free)
            slot += 1
            continue
        raise RuntimeError("scheduler stuck")
    end = max(S.free, S.tm + 16)
    if verbose:
        print(f"; schedule: {len(order)} insts, ideal {total} cyc, model {end} cyc")
        prev = 0
        for k, j in enumerate(mf):
            d = issued_t[j] - ideal[j]
            if d != prev:
                print(f";   mfma {k} late by {d} (+{d - prev}): {prog[j].text}")
                prev = d
    return order, end


def hoist_waits(stream, back=3, min_age=150):
    out = list(stream)
    i = 0
    while i < len(out):
        w = out[i]
        if w.kind != "wait" or w.defs or w.uses or w.tag == "fixed" or i == 0 or out[i - 1].kind == "mfma":
            i += 1
            continue
        if i + 1 < len(out) and out[i + 1].text == "s_barrier":
            i += 1
            continue
        cnt = {nm: int(v) for nm, v in re.findall(r"(vmcnt|lgkmcnt)\((\d+)\)", w.text)}
        k = i - 1
        seen = 0
        target = None
        c2 = dict(cnt)
        while k >= 0:
            p = out[k]
            if p.kind == "mfma":
                nxt = out[k + 1]
                if k + 1 == i or cls_of(nxt) in ("lds", "valu", "mfma"):
                    target = (k + 1, dict(c2))
                    break
                seen += 1
                if seen >= back:
                    break
            elif p.kind in ("label", "other", "wait") or p.time is None:
                break
            elif p.kind in VMEM_KINDS and "vmcnt" in c2:
                c2["vmcnt"] -= 1
                if c2["vmcnt"] < 0:
                    break
            elif p.kind in ("dsr", "dsw") and "lgkmcnt" in c2:
                c2["lgkmcnt"] -= 1
                if c2["lgkmcnt"] < 0:
                    break
            k -= 1
        if target and target[0] != i:
            pos, c2 = target
            nw = Inst("s_waitcnt " + " ".join(f"{nm}({c2[nm]})" for nm in ("vmcnt", "lgkmcnt") if nm in c2), "wait")
            nw.time = out[pos - 1].time
            del out[i]
            out.insert(pos, nw)
        i += 1
    return out
```

```python
import sys, math, struct, argparse, re
from asmlib import *

NAME = "standalone__swin_window_attn__vision"
NWIN = 5329
XBYTES = 100270464
ROWB = 196224
WINROW = 7 * ROWB
MAGIC73 = (1 << 32) // 73 + 1
for w in range(0, 16384):
    assert (w * MAGIC73) >> 32 == w // 73
ALPHA = (192 ** -0.5) * math.log2(math.e)
WS_TIME_OFF = 1 << 20
STAGE = 147456


def f32bits(x):
    return struct.unpack("<I", struct.pack("<f", x))[0]


def mfma(bd, d, ba, a, bb, b, first):
    c = "0" if first else T(bd, d, 4)
    D = R(bd, d, 4)
    AB = R(ba, a, 4) + R(bb, b, 4)
    return Inst(f"v_mfma_f32_16x16x32_bf16 {T(bd, d, 4)}, {T(ba, a, 4)}, {T(bb, b, 4)}, {c}", "mfma",
                defs=D, uses=AB + ([] if first else D), srcC=([] if first else D), srcAB=AB, passes=4)


def valu(text, defs, uses, kind="valu", **kw):
    return Inst(text, kind, defs=defs, uses=uses, **kw)


def cvtpk(d, a, b, **kw):
    bt = f"v{b}" if b is not None else "0"
    return valu(f"v_cvt_pk_bf16_f32 v{d}, v{a}, {bt}", [f"v{d}"], [f"v{a}"] + ([f"v{b}"] if b is not None else []), **kw)


def salu(text, defs, uses, **kw):
    return Inst(text, "salu", defs=defs, uses=uses, **kw)


def raw(text, kind="other", defs=(), uses=()):
    return Inst(text, kind, defs=defs, uses=uses)


def v3(op, d, *srcs, **kw):
    uses = [s for s in srcs if isinstance(s, str) and (is_vreg(s) or is_sreg(s))]
    return valu(f"{op} {d}, " + ", ".join(str(s) for s in srcs), [d], uses, **kw)


def cnd(d, a, b, m):
    return valu(f"v_cndmask_b32 {d}, {a}, {b}, s[{m}:{m+1}]", [d], [a, b, f"s{m}", f"s{m+1}"])


def srd(a, dst, src, nb):
    a(salu(f"s_mov_b32 s{dst}, s{src}", [f"s{dst}"], [f"s{src}"]))
    a(salu(f"s_and_b32 s{dst+1}, s{src+1}, 0xffff", [f"s{dst+1}", "scc"], [f"s{src+1}"]))
    a(salu(f"s_mov_b32 s{dst+2}, {nb}", [f"s{dst+2}"], []))
    a(salu(f"s_mov_b32 s{dst+3}, 0x20000", [f"s{dst+3}"], []))


STRIPS = [("H", r) for r in range(7)] + [("V", 4), ("V", 5), ("V", 6), ("Q", 0), ("I", 0)]
I_TOK = [(4, 6), (5, 6), (6, 4), (6, 5)]


def token(t, n):
    g, i = n >> 2, n & 3
    kind, p = STRIPS[4 * t + i]
    if kind == "H":
        return p, g
    if kind == "V":
        return g, p
    if kind == "Q":
        return 4 + (g >> 1), 4 + (g & 1)
    return I_TOK[g]


assert sorted(token(t, n) for t in range(3) for n in range(16)) + [(6, 6)] == [(r, c) for r in range(7) for c in range(7)]


def gen_prep(o):
    p = []
    a = p.append
    a(raw("s_cmp_ge_u32 s2, 144", "salu", ["scc"], ["s2"]))
    a(raw("s_cbranch_scc1 L_prep_touch"))
    if o.diag:
        a(raw("s_memrealtime s[34:35]"))
    a(raw("s_load_dwordx4 s[4:7], s[0:1], 8"))
    a(raw("s_load_dwordx2 s[8:9], s[0:1], 40"))
    a(salu("s_cmp_ge_u32 s2, 72", ["scc"], ["s2"]))
    a(salu("s_cselect_b32 s20, 1, 0", ["s20"], ["scc"]))
    a(salu("s_mul_i32 s21, s20, 72", ["s21"], ["s20"]))
    a(salu("s_sub_u32 s21, s2, s21", ["s21", "scc"], ["s2", "s21"]))
    a(salu("s_mul_i32 s22, s21, 43", ["s22"], ["s21"]))
    a(salu("s_lshr_b32 s22, s22, 8", ["s22", "scc"], ["s22"]))
    for r in range(72):
        assert (r * 43) >> 8 == r // 6
    a(salu("s_mul_i32 s23, s22, 6", ["s23"], ["s22"]))
    a(salu("s_sub_u32 s23, s21, s23", ["s23", "scc"], ["s21", "s23"]))
    a(v3("v_and_b32", "v1", "15", "v0"))
    a(v3("v_lshrrev_b32", "v2", "4", "v0"))
    a(v3("v_lshrrev_b32", "v3", "2", "v1"))
    a(v3("v_and_b32", "v4", "3", "v1"))
    a(v3("v_lshl_add_u32", "v3", "v3", "3", "v4"))
    a(salu("s_movk_i32 s24, 1152", ["s24"], []))
    a(v3("v_mul_lo_u32", "v5", "v3", "s24"))
    a(v3("v_lshl_add_u32", "v5", "v2", "4", "v5"))
    a(salu("s_mul_i32 s25, s23, 36864", ["s25"], ["s23"]))
    a(salu("s_mul_i32 s26, s20, 768", ["s26"], ["s20"]))
    a(salu("s_add_u32 s25, s25, s26", ["s25", "scc"], ["s25", "s26"]))
    a(salu("s_add_u32 s33, s25, 4608", ["s33", "scc"], ["s25"]))
    a(salu("s_lshr_b32 s26, s22, 1", ["s26", "scc"], ["s22"]))
    a(salu("s_mul_i32 s26, s26, 36864", ["s26"], ["s26"]))
    a(salu("s_and_b32 s27, s22, 1", ["s27", "scc"], ["s22"]))
    a(salu("s_mul_i32 s27, s27, 4608", ["s27"], ["s27"]))
    a(salu("s_add_u32 s26, s26, s27", ["s26", "scc"], ["s26", "s27"]))
    a(salu("s_add_u32 s26, s26, 384", ["s26", "scc"], ["s26"]))
    a(raw("s_waitcnt lgkmcnt(0)", "wait"))
    srd(a, 12, 4, 192 * 576 * 2)
    srd(a, 16, 6, 192 * 192 * 2)
    srd(a, 28, 8, 147456 if not o.diag else 3 << 20)
    for h in range(2):
        for k in range(6):
            d = 16 + 24 * h + 4 * k
            a(Inst(f"buffer_load_dwordx4 {T('v', d, 4)}, v5, s[12:15], s{(25, 33)[h]} offen offset:{64 * k}", "vload",
                   defs=R('v', d, 4), uses=["v5", "s25", "s33"]))
    a(salu("s_cmp_eq_u32 s20, 1", ["scc"], ["s20"]))
    a(raw("s_cbranch_scc1 L_prep_n"))
    for k in range(6):
        a(Inst(f"buffer_load_dwordx4 {T('v', 64 + 4 * k, 4)}, v5, s[12:15], s26 offen offset:{64 * k}", "vload",
               defs=R('v', 64 + 4 * k, 4), uses=["v5", "s26"]))
    a(salu(f"s_mov_b32 s27, 0x{f32bits(ALPHA):08x}", ["s27"], []))
    a(raw("s_waitcnt vmcnt(0)", "wait"))
    a(raw("s_branch L_prep_mm"))
    a(raw("L_prep_n:", "label"))
    a(salu("s_cmp_lt_u32 s22, 8", ["scc"], ["s22"]))
    a(salu("s_cselect_b32 s26, 3, 2", ["s26"], ["scc"]))
    a(salu("s_cselect_b32 s27, 0, 120", ["s27"], ["scc"]))
    a(salu("s_add_u32 s27, s27, s22", ["s27", "scc"], ["s27", "s22"]))
    a(v3("v_lshlrev_b32", "v6", "s26", "v1"))
    a(v3("v_add_u32", "v6", "s27", "v6"))
    a(v3("v_lshlrev_b32", "v6", "1", "v6"))
    a(v3("v_mul_u32_u24", "v7", "0xc00", "v2"))
    a(v3("v_add_u32", "v6", "v6", "v7"))
    for k in range(6):
        a(salu(f"s_mov_b32 s27, {k * 12288}", ["s27"], []))
        for j in range(8):
            r = 96 + 8 * k + j
            a(Inst(f"buffer_load_ushort v{r}, v6, s[16:19], s27 offen offset:{384 * j}", "vload",
                   defs=[f"v{r}"], uses=["v6", "s27"]))
    a(salu("s_mov_b32 s27, 1.0", ["s27"], []))
    a(raw("s_waitcnt vmcnt(0)", "wait"))
    for k in range(6):
        for jj in range(4):
            lo, hi = 96 + 8 * k + 2 * jj, 96 + 8 * k + 2 * jj + 1
            a(v3("v_lshl_or_b32", f"v{64 + 4 * k + jj}", f"v{hi}", "16", f"v{lo}"))
    a(raw("L_prep_mm:", "label"))
    a(raw("s_nop 1", "nop"))
    for k in range(6):
        for h in range(2):
            a(mfma("v", 88 + 4 * h, "v", 16 + 24 * h + 4 * k, "v", 64 + 4 * k, k == 0))
    a(salu("s_lshl_b32 s24, s2, 10", ["s24", "scc"], ["s2"]))
    a(v3("v_lshlrev_b32", "v8", "4", "v0"))
    for r in range(8):
        a(v3("v_mul_f32", f"v{88 + r}", "s27", f"v{88 + r}"))
    for r in range(4):
        a(cvtpk(16 + r, 88 + 2 * r, 89 + 2 * r))
    a(Inst("buffer_store_dwordx4 v[16:19], v8, s[28:31], s24 offen", "vstore", uses=R('v', 16, 4) + ["v8"], wide=True))
    if o.diag:
        a(raw("s_waitcnt vmcnt(0)", "wait"))
        a(raw("s_memrealtime s[36:37]"))
        a(raw("s_waitcnt lgkmcnt(0)", "wait"))
        a(v3("v_mov_b32", "v16", "s34"))
        a(v3("v_mov_b32", "v17", "s36"))
        a(v3("v_mov_b32", "v8", "0"))
        a(salu("s_lshl_b32 s24, s2, 3", ["s24", "scc"], ["s2"]))
        a(salu("s_add_u32 s24, s24, 0x200000", ["s24", "scc"], ["s24"]))
        a(Inst("buffer_store_dwordx2 v[16:17], v8, s[28:31], s24 offen", "vstore", uses=["v16", "v17", "v8"]))
    a(raw("s_endpgm"))
    a(raw("L_prep_touch:", "label"))
    a(raw("@TOUCH@", "label"))
    a(raw("s_endpgm"))
    return insert_nops(p)


XS = [0, 72]
AX49, AT49, AW = 144, 168, 192
NRING = 12
SB = 0
ACC = 64
TBF = 88
OPA = 100
VBF = 124
V_LDS = [220, 221, 222]
V_G = [223, 224, 225, 226, 227, 228]
V_WR = 229
V_RD = [230, 231]
V_ST = {"H": (232, 233), "V": (234, 235), "Q": (236, 237), "I": (238, 239)}
V_SP = (240, 241)
V_T49 = (242, 243)
AP = {1: 240, 2: 248}
V_Q3 = 250
S_TW = 73
NBASE = 73728
DSW_BUSY, ST_BUSY = 40, 40
V_NINF = 244
V_TMP = [[245, 246, 247, 248, 249], [250, 251, 252, 253, 254]]
V_TIME = 255
S_WCUR, S_LB, S_CB, S_K, S_ROW = 16, 17, 18, 19, 20
S_IT = 28
S_M0, S_M1, S_GM, S_SH, S_SPO, S_GO = 48, 50, 52, 54, 55, 74
S_SPA, S_SPB = 56, 60


def xr(xs, t, s):
    return XS[xs] + 24 * t + 4 * s


def xop(xs, t, s):
    return AX49 + 4 * s if t == 3 else xr(xs, t, s)


def lds_at(idx):
    base, imm = divmod((idx % 144) * 1024, 65536)
    return V_LDS[base], imm


def wfrag_read(idx, slot=None, extra=(), **kw):
    va, imm = lds_at(idx)
    d = AW + 4 * (idx % NRING if slot is None else slot)
    return Inst(f"ds_read_b128 {T('a', d, 4)}, v{va} offset:{imm}", "dsr", defs=R('a', d, 4),
                uses=[f"v{va}"] + list(extra), **kw)


class Ring:
    def __init__(self, seq, have=None):
        self.seq = seq
        self.slot = [have[i] for i in seq[:NRING]] if have else list(range(NRING))
        self.pos = 0

    def fill(self):
        return [wfrag_read(i, self.slot[p]) for p, i in enumerate(self.seq[:NRING])]

    def take(self):
        p = self.pos
        self.pos += 1
        sl = self.slot[p]
        self.slot.append(sl)
        nxt = [wfrag_read(self.seq[p + NRING], sl)] if p + NRING < len(self.seq) else []
        return AW + 4 * sl, nxt


def xload(xs, t, hf, j, sbase, flags="", **kw):
    d = xr(xs, t, 2 * j + hf)
    g = 2 * t + hf
    return Inst(f"buffer_load_dwordx4 {T('a', d, 4)}, v{V_G[g]}, s[4:7], s{sbase} offen offset:{128 * j}" + flags,
                "vload", defs=R('a', d, 4), uses=[f"v{V_G[g]}", f"s{sbase}", "s6"], **kw)


def xloads(xs, sbase, flags, rel=None, step=0):
    out = []
    k = 0
    for t in range(3):
        for j in range(3):
            for hf in range(2):
                kw = {} if rel is None else dict(release=rel + step * k, deadline=rel + step * k + 48)
                out.append(xload(xs, t, hf, j, sbase, flags, **kw))
                k += 1
    return out


def xtrans(xs, rel=None, step=0):
    out = []
    k = 0
    for t in range(3):
        for j in range(3):
            b = k & 1
            for hf in range(2):
                d = xr(xs, t, 2 * j + hf)
                kw = {} if rel is None else dict(release=rel + step * k)
                out.append(Inst(f"ds_write_b128 v{V_WR}, {T('a', d, 4)} offset:{2048 * b + 1024 * hf}", "dsw",
                                defs=[f"~st{b}{hf}"], uses=R('a', d, 4) + [f"v{V_WR}"], tag="x", **kw))
                out[-1].real, out[-1].busy = 20, DSW_BUSY
            for u in range(2):
                d = xr(xs, t, 2 * j + u)
                kw = {} if rel is None else dict(deadline=rel + step * k + 200)
                out.append(Inst(f"ds_read_b128 {T('a', d, 4)}, v{V_RD[u]} offset:{2048 * b}", "dsr", defs=R('a', d, 4),
                                uses=[f"v{V_RD[u]}", f"~st{b}0", f"~st{b}1"], tag="x", **kw))
            k += 1
    return out


def vb(ct):
    return VBF + 8 * ct


def opk(q, i, part):
    if q == 3:
        return TBF + 4 * i if part == 0 else V_Q3 + 2 * i
    return OPA + 4 * i if part == 0 else OPA + 16 + 2 * i


def o_mf(q, pr, acc=None, held=False):
    acc = SB + 16 * q + 8 if acc is None else acc
    bank, pb = ("a", AP[q]) if held else ("v", SB + 16 * q)
    out = []
    for ks in range(2):
        for e in range(2):
            out.append(mfma("v", acc + 4 * e, bank, pb + 4 * ks, "v", vb(2 * pr + e) + 4 * ks, ks == 0))
    return out


def o_pack(q, pr, acc=None):
    acc = SB + 16 * q + 8 if acc is None else acc
    out = []
    for i in range(2 if q == 3 else 4):
        d = opk(q, i, 0) + pr if pr < 4 else opk(q, i, 1) + pr - 4
        out.append(cvtpk(d, acc + i, acc + 4 + i))
    return out


def o_store(q, part, flags="", rel=None, step=0):
    out = []
    n = (4, 2)[part]
    for i in range(2 if q == 3 else 4):
        d = opk(q, i, part)
        if q == 3:
            vo, row, imm, sr = V_SP[part], None, 0, (S_SPA, S_SPB)[i]
        else:
            kind, pp = STRIPS[4 * q + i]
            vo, sr = V_ST[kind][part], 8
            row, imm = {"H": (pp, 0), "V": (0, pp * 384), "Q": (4, 4 * 384), "I": (4, 0)}[kind]
        so = f"s{S_SPO}" if row is None else f"s{S_ROW + row}"
        out.append(Inst(f"buffer_store_dwordx{n} {T('v', d, n)}, v{vo}, s[{sr}:{sr+3}], {so} offen offset:{imm + 256 * part}{flags}",
                        "vstore", uses=R('v', d, n) + [f"v{vo}", so, f"s{sr+2}"], wide=(n == 4)))
        out[-1].cost, out[-1].real, out[-1].busy = 8, 4 + 4 * n, ST_BUSY
        if rel is not None:
            out[-1].release = rel + step * i
    return out


def xlane(op, m0, m1):
    p = []
    for sw in ("v_permlane32_swap_b32", "v_permlane16_swap_b32"):
        p.append(v3("v_mov_b32", f"v{m1}", f"v{m0}"))
        p.append(valu(f"{sw} v{m0}, v{m1}", [f"v{m0}", f"v{m1}"], [f"v{m0}", f"v{m1}"], kind="perm"))
        p.append(v3(op, f"v{m0}", f"v{m0}", f"v{m1}"))
    return p


def softmax(q, tset, part=3, hold=False):
    b = SB + 16 * q
    m0, m1, s0, s1, rr = V_TMP[tset]
    p = []
    p.append(cnd(f"v{b + 12}", f"v{V_NINF}", f"v{b + 12}", S_M0))
    p.append(cnd(f"v{b + 12}", f"v{b + 12}", f"v{b + 13}", S_M1))
    regs = [b + r for r in range(13)]
    m3 = lambda d, x, y, z: v3("v_max3_f32", f"v{d}", f"v{x}", f"v{y}", f"v{z}")
    p.append(m3(m0, regs[0], regs[1], regs[2]))
    p.append(m3(m1, regs[3], regs[4], regs[5]))
    p.append(m3(m0, m0, regs[6], regs[7]))
    p.append(m3(m1, m1, regs[8], regs[9]))
    p.append(m3(m0, m0, regs[10], regs[11]))
    p.append(m3(m0, m0, m1, regs[12]))
    p.extend(xlane("v_max_f32", m0, m1))
    for r in regs:
        p.append(v3("v_sub_f32", f"v{r}", f"v{r}", f"v{m0}"))
        p.append(valu(f"v_exp_f32 v{r}, v{r}", [f"v{r}"], [f"v{r}"], kind="trans"))
    p.append(v3("v_add_f32", f"v{s0}", f"v{regs[0]}", f"v{regs[1]}"))
    p.append(v3("v_add_f32", f"v{s1}", f"v{regs[2]}", f"v{regs[3]}"))
    for k in range(4, 13):
        s = (s0, s1)[k & 1]
        p.append(v3("v_add_f32", f"v{s}", f"v{s}", f"v{regs[k]}"))
    p.append(v3("v_add_f32", f"v{s0}", f"v{s0}", f"v{s1}"))
    p.extend(xlane("v_add_f32", s0, s1))
    p.append(valu(f"v_rcp_f32 v{rr}, v{s0}", [f"v{rr}"], [f"v{s0}"], kind="trans"))
    if part == 1:
        return p
    if part == 2:
        p = []
    for k in range(0, 12, 2):
        p.append(v3("v_mul_f32", f"v{regs[k]}", f"v{regs[k]}", f"v{rr}"))
        p.append(v3("v_mul_f32", f"v{regs[k + 1]}", f"v{regs[k + 1]}", f"v{rr}"))
        p.append(cvtpk(b + k // 2, regs[k], regs[k + 1]))
    p.append(v3("v_mul_f32", f"v{regs[12]}", f"v{regs[12]}", f"v{rr}"))
    p.append(cvtpk(b + 6, regs[12], None))
    p.append(v3("v_lshlrev_b32", f"v{b + 6}", f"s{S_SH}", f"v{b + 6}"))
    if not hold:
        p.append(v3("v_mov_b32", f"v{b + 7}", "0"))
    return p


def p_hold(q):
    return [valu(f"v_accvgpr_write_b32 a{AP[q] + r}, v{SB + 16 * q + r}", [f"a{AP[q] + r}"], [f"v{SB + 16 * q + r}"])
            for r in range(7)]


def win_base(dst, w, tmp):
    return [
        salu(f"s_mul_hi_u32 s{tmp}, s{w}, s29", [f"s{tmp}"], [f"s{w}", "s29"]),
        salu(f"s_mul_i32 s{dst}, s{tmp}, 73", [f"s{dst}"], [f"s{tmp}"]),
        salu(f"s_sub_u32 s{dst}, s{w}, s{dst}", [f"s{dst}", "scc"], [f"s{w}", f"s{dst}"]),
        salu(f"s_mul_i32 s{dst}, s{dst}, 2688", [f"s{dst}"], [f"s{dst}"]),
        salu(f"s_mul_i32 s{tmp}, s{tmp}, {WINROW}", [f"s{tmp}"], [f"s{tmp}"]),
        salu(f"s_add_u32 s{dst}, s{dst}, s{tmp}", [f"s{dst}", "scc"], [f"s{dst}", f"s{tmp}"]),
    ]


def row_bases():
    out = [salu(f"s_mov_b32 s{S_ROW}, s{S_CB}", [f"s{S_ROW}"], [f"s{S_CB}"])]
    for r in range(1, 7):
        out.append(salu(f"s_add_u32 s{S_ROW + r}, s{S_CB}, {r * ROWB}", [f"s{S_ROW + r}", "scc"], [f"s{S_CB}"]))
    out.append(salu(f"s_sub_u32 s{S_SPO}, s{S_ROW + 6}, s{S_GO}", [f"s{S_SPO}", "scc"], [f"s{S_ROW + 6}", f"s{S_GO}"]))
    out.append(salu(f"s_add_u32 s{S_SPO}, s{S_SPO}, {6 * 384}", [f"s{S_SPO}", "scc"], [f"s{S_SPO}"]))
    return out


def slot_masks():
    k = S_K
    return [
        salu(f"s_and_b32 s30, s{k}, 3", ["s30", "scc"], [f"s{k}"]),
        salu(f"s_mul_i32 s{S_GO}, s30, 384", [f"s{S_GO}"], ["s30"]),
        salu("s_lshl_b32 s30, s30, 4", ["s30", "scc"], ["s30"]),
        salu(f"s_lshl_b64 s[{S_GM}:{S_GM+1}], s[40:41], s30", [f"s{S_GM}", f"s{S_GM+1}", "scc"], ["s40", "s41", "s30"]),
        salu(f"s_cmp_lt_u32 s{k}, 4", ["scc"], [f"s{k}"]),
        salu(f"s_cselect_b64 s[{S_M0}:{S_M0+1}], s[{S_GM}:{S_GM+1}], 0", [f"s{S_M0}", f"s{S_M0+1}"], ["scc", f"s{S_GM}", f"s{S_GM+1}"]),
        salu(f"s_cselect_b64 s[{S_M1}:{S_M1+1}], 0, s[{S_GM}:{S_GM+1}]", [f"s{S_M1}", f"s{S_M1+1}"], ["scc", f"s{S_GM}", f"s{S_GM+1}"]),
        salu(f"s_cselect_b32 s{S_SH}, 0, 16", [f"s{S_SH}"], ["scc"]),
        salu(f"s_cselect_b32 s{S_SPA+2}, s31, 0", [f"s{S_SPA+2}"], ["scc", "s31"]),
        salu(f"s_cselect_b32 s{S_SPB+2}, 0, s31", [f"s{S_SPB+2}"], ["scc", "s31"]),
        salu(f"s_add_u32 s{k}, s{k}, 1", [f"s{k}", "scc"], [f"s{k}"]),
        cnd(f"v{V_SP[0]}", f"v{V_NINF}", f"v{V_ST['H'][0]}", S_GM),
        cnd(f"v{V_SP[1]}", f"v{V_NINF}", f"v{V_ST['H'][1]}", S_GM),
    ]


def carry_head(o):
    p = cvt_v(11)
    for q in (1, 2):
        if q in o.defer:
            p += softmax(q, q & 1, 2, True)
        p += p_hold(q)
    return p


def carry_30(o):
    p = o_mf(3, 5) + o_mf(0, 5) + o_pack(3, 5) + o_pack(0, 5)
    return p + o_store(3, 1, o.st_flags) + o_store(0, 1, o.st_flags)


def carry_grp(o, g, acc):
    q, pr = 1 + g // 6, g % 6
    p = o_mf(q, pr, acc, True) + o_pack(q, pr, acc)
    if pr in (3, 5):
        p += o_store(q, pr >> 2, o.st_flags)
    return p


def cvt_v(ct):
    out = []
    for t in range(3):
        acc = ACC + 12 * (ct & 1) + 4 * t
        for h in range(2):
            out.append(cvtpk(vb(ct) + 2 * t + h, acc + 2 * h, acc + 2 * h + 1))
    return out


def s3(xs):
    return [mfma("v", SB + 48 + 4 * kt, "a", xop(xs, kt, s), "a", AT49 + 4 * s, s == 0)
            for s in range(6) for kt in range(4)]


def n_dma(rel, step):
    out = []
    for g in range(6):
        if g:
            out.append(salu("s_add_u32 s42, s42, 3072", ["s42", "scc"], ["s42"]))
            out.append(salu("s_cmp_eq_u32 s42, 18432", ["scc"], ["s42"]))
            out.append(salu("s_cselect_b32 s42, 0, s42", ["s42"], ["scc", "s42"]))
        out.append(salu("s_add_u32 s43, s42, s75", ["s43", "scc"], ["s42", "s75"]))
        out.append(salu("s_mov_b32 m0, s43", ["m0"], ["s43"]))
        for k in range(3):
            t = rel + step * (3 * g + k)
            out.append(Inst(f"buffer_load_dwordx4 v{V_LDS[0]}, s[12:15], s43 offen offset:{1024 * k} lds", "ldsdma",
                            defs=[f"ldsN{3 * g + k}"], uses=[f"v{V_LDS[0]}", "s43", "m0"], release=t, deadline=t + 48))
    return out


def gen_body(o, xs, first=False):
    p = []
    ext = p.extend
    NM = 624 + (72 - 56 if first else 0)
    p.append(salu(f"s_add_u32 s{S_WCUR}, s{S_WCUR}, 1024", [f"s{S_WCUR}", "scc"], [f"s{S_WCUR}"], deadline=0))
    if xs == 0 and not first:
        p.append(salu(f"s_cmp_eq_u32 s{S_K}, 4", ["scc"], [f"s{S_K}"]))
        p.append(salu(f"s_cselect_b32 s{S_WCUR}, s{S_TW}, s{S_WCUR}", [f"s{S_WCUR}"], ["scc", f"s{S_TW}", f"s{S_WCUR}"]))
    ext(win_base(S_LB, S_WCUR, 27))
    p.append(salu(f"s_cmp_lt_u32 s{S_WCUR}, {NWIN}", ["scc"], [f"s{S_WCUR}"]))
    p.append(salu(f"s_cselect_b32 s6, {'0' if o.noload else 's31'}, 0", ["s6"], ["scc", "s31"]))
    if first:
        ext(n_dma(o.nd_rel, o.nd_step))
        ext(xloads(xs ^ 1, S_LB, o.ld_flags, o.ld_rel0, o.ld_step0))
    else:
        ext(xloads(xs ^ 1, S_LB, o.ld_flags, o.ld_rel, o.ld_step))
        ext(carry_head(o))

    def m49(ct, s):
        w = AW + 4 * ((72 + 6 * ct + s) % NRING)
        return mfma("a", AP[1 + (ct & 1)], "a", AX49 + 4 * s, "a", w, s == 0)

    def chain(mat, ct):
        out = []
        if first and mat == 1 and ct == 11:
            out += [m49(ct, s) for s in range(6)]
        for s in range(6):
            idx = 72 * mat + 6 * ct + s
            w = AW + 4 * (idx % NRING)
            for t in range(3):
                acc = ACC + 12 * (ct & 1) + 4 * t
                if mat == 0:
                    out.append(mfma("v", acc, "a", w, "a", xr(xs, t, s), s == 0))
                else:
                    out.append(mfma("v", acc, "a", xr(xs, t, s), "a", w, s == 0))
            if first and mat == 1 and ct < 11:
                out.append(m49(ct, s))
            kw = {}
            if idx + NRING >= 144:
                kw = dict(deadline=NM * 16 + 48 * (idx + NRING - 144) - 220)
            elif first and idx + NRING >= 72:
                if idx + NRING == 72:
                    out.append(Inst("s_barrier", "other", defs=["~nrdy"], uses=[f"ldsN{k}" for k in range(18)], release=o.nb_rel))
                kw = dict(extra=["~nrdy"])
            out.append(wfrag_read(idx + NRING, **kw))
        return out

    def cvt_t(ct):
        out = []
        for t in range(3):
            acc = ACC + 12 * (ct & 1) + 4 * t
            for h in range(2):
                out.append(cvtpk(TBF + 4 * t + 2 * (ct & 1) + h, acc + 2 * h, acc + 2 * h + 1))
        return out

    def cvt_vx(ct):
        out = cvt_v(ct) if ct < 11 else []
        if first:
            for h in range(2):
                src = AP[1 + (ct & 1)] + h
                out.append(valu(f"v_accvgpr_read_b32 v{V_T49[h]}, a{src}", [f"v{V_T49[h]}"], [f"a{src}"], deadline=NM * 16 - 40))
            out.append(cvtpk(vb(ct) + 6, V_T49[0], V_T49[1], deadline=NM * 16 - 40))
        return out

    def s_mf(sp):
        return [mfma("v", SB + 16 * q + 4 * kt, "a", xop(xs, kt, sp), "v", TBF + 4 * q, sp == 0)
                for q in range(3) for kt in range(4)]

    def o_grp(pr):
        out = o_mf(3, pr) + o_mf(0, pr) + o_pack(3, pr) + o_pack(0, pr)
        if pr == 3:
            out += o_store(3, 0, o.st_flags) + o_store(0, 0, o.st_flags)
        return out

    grp = iter(range(12))

    def carried():
        g = next(grp)
        return [] if first else carry_grp(o, g, SB + 56)

    ext(chain(0, 0))
    if not first:
        ext(carry_30(o))
    ext(slot_masks())
    ext(cvt_t(0))
    ext(chain(0, 1))
    ext(s3(xs))
    ext(softmax(3, 1))
    ext(cvt_t(1))
    for ct in range(2, 12):
        ext(chain(0, ct))
        if ct >= 4 and ct % 2 == 0:
            ext(carried())
        if ct % 2 == 0:
            ext(s_mf(ct // 2 - 1))
        ext(cvt_t(ct))
        if ct >= 4:
            ext(carried())
    ext(row_bases())
    p.append(salu(f"s_mov_b32 s{S_CB}, s{S_LB}", [f"s{S_CB}"], [f"s{S_LB}"]))
    if first:
        ext(xtrans(xs ^ 1, o.xw_rel0, o.xw_step0))
    else:
        ext(xtrans(xs ^ 1, o.xw_rel, o.xw_step))
    ext(chain(1, 0))
    ext(s_mf(5))
    for q in range(3):
        ext(softmax(q, q & 1, 1 if q in o.defer else 3, q > 0))
    ext(cvt_vx(0))
    after = dict(zip([int(x) for x in o.after.split(",")], range(5)))
    for ct in range(1, 12):
        ext(chain(1, ct))
        if ct in after:
            ext(o_grp(after[ct]))
        ext(cvt_vx(ct))
    assert sum(i.kind == "mfma" for i in p) == NM
    for i in p:
        if i.kind != "mfma" and i.deadline is None and i.kind != "dsr":
            i.deadline = NM * 16 - 24
    if o.rmload:
        p = [i for i in p if i.kind != "vload"]
    if o.rmstore:
        p = [i for i in p if i.kind != "vstore"]
    return p


def gen_epi(o):
    p = carry_head(o)
    for g in range(3):
        p += carry_grp(o, g, SB + 16 + 8 * (g % 4))
    p += carry_30(o)
    for g in range(3, 12):
        p += carry_grp(o, g, SB + 16 + 8 * (g % 4))
    return p


def gen_tail(o, q):
    xs = 1
    p = []
    ext = p.extend
    own = [2 * q, 2 * q + 1] if q < 3 else list(range(6, 12))
    ext(carry_head(o))
    p.append(Inst("s_barrier", "other", defs=["~bA"], deadline=0))
    seq = []
    if q < 3:
        seq += [6 * (2 * c + e) + s for c in range(6) for s in range(6) for e in range(2)]
    seq += [72 + 6 * ct + s for ct in own for s in range(6)]

    def vchain(ct, mid=None):
        for s in range(6):
            w, nxt = ring.take()
            for t in range(3):
                p.append(mfma("v", ACC + 12 * (ct & 1) + 4 * t, "a", xr(xs, t, s), "a", w, s == 0))
            ext(nxt)
            if mid and s == o.tail_s:
                ext(mid)

    if q < 3:
        ring = Ring(seq, have={i: i for i in range(NRING)})
        grp = iter(range(12))
        for c in range(6):
            for s in range(6):
                for e in range(2):
                    w, nxt = ring.take()
                    p.append(mfma("v", ACC + 8 * (c % 3) + 4 * e, "a", w, "a", xr(xs, q, s), s == 0))
                    ext(nxt)
                if c and s in ((1, 3, 5) if c in (1, 2) else (2, 5)):
                    g = next(grp)
                    ext(carry_grp(o, g, SB + 48 + 8 * (g & 1)))
            if c == 0:
                ext(carry_30(o))
                ext(slot_masks())
            if c:
                ext(mfma("v", SB + 16 * q + 4 * kt, "a", xop(xs, kt, c - 1), "v", TBF + 4 * ((c - 1) & 1), c == 1) for kt in range(4))
            for e in range(2):
                for h in range(2):
                    acc = ACC + 8 * (c % 3) + 4 * e
                    p.append(cvtpk(TBF + 4 * (c & 1) + 2 * e + h, acc + 2 * h, acc + 2 * h + 1))
        ext(row_bases())
    else:
        ring = Ring(seq)
        ext(ring.fill())
        for g in range(3):
            ext(carry_grp(o, g, SB + 16 + 8 * (g % 4)))
        ext(carry_30(o))
        ext(slot_masks())
        for g in range(3, 6):
            ext(carry_grp(o, g, SB + 16 + 8 * (g % 4)))
        ext(s3(xs))
        ext(softmax(3, 1))
        for g in range(6, 12):
            ext(carry_grp(o, g, SB + 16 + 8 * (g % 4)))
        ext(row_bases())
    wr = []
    for k, ct in enumerate(own):
        mid = None
        if q < 3 and k == 0:
            mid = [mfma("v", SB + 16 * q + 4 * kt, "a", xop(xs, kt, 5), "v", TBF + 4, False) for kt in range(4)]
            mid += softmax(q, q & 1)
        vchain(ct, mid)
        ext(cvt_v(ct))
        for h, n in ((0, 4), (1, 2)):
            va, imm = lds_at(72 + 6 * ct + h)
            w = Inst(f"ds_write_b{32 * n} v{va}, {T('v', vb(ct) + 4 * h, n)} offset:{imm}", "dsw", defs=[f"~x{ct}{h}"],
                     uses=R('v', vb(ct) + 4 * h, n) + [f"v{va}", "~bA"])
            w.real, w.busy = 4 + 4 * n, DSW_BUSY
            p.append(w)
            wr.append(f"~x{ct}{h}")
    p.append(Inst("s_waitcnt lgkmcnt(0)", "wait", defs=["~wB"], uses=wr))
    p.append(Inst("s_barrier", "other", defs=["~bB"], uses=["~wB"]))
    order = sorted(range(6), key=lambda pr: (2 * pr not in own, pr))
    for pr in order:
        for ct in (2 * pr, 2 * pr + 1):
            if ct in own:
                continue
            for h, n in ((0, 4), (1, 2)):
                va, imm = lds_at(72 + 6 * ct + h)
                p.append(Inst(f"ds_read_b{32 * n} {T('v', vb(ct) + 4 * h, n)}, v{va} offset:{imm}", "dsr",
                              defs=R('v', vb(ct) + 4 * h, n), uses=[f"v{va}", "~bB"]))
    accs = [SB + 16 * a + b for a in range(4) if a != q for b in (0, 8)]
    for k, pr in enumerate(order):
        ext(o_mf(q, pr, accs[k]))
        ext(o_pack(q, pr, accs[k]))
        for part, grp2 in ((0, (0, 1, 2, 3)), (1, (4, 5))):
            if pr in grp2 and all(g in order[:k + 1] for g in grp2):
                ext(o_store(q, part, o.st_flags))
    return p


def gen_p49():
    ring = Ring([6 * (2 * c + e) + s for c in range(6) for s in range(6) for e in range(2)])
    pre = ring.fill()
    p = []
    for c in range(6):
        for s in range(6):
            for e in range(2):
                w, nxt = ring.take()
                p.append(mfma("v", SB + 8 * (c & 1) + 4 * e, "a", w, "a", AX49 + 4 * s, s == 0))
                p.extend(nxt)
        for e in range(2):
            acc = SB + 8 * (c & 1) + 4 * e
            for h in range(2):
                tmp = SB + 16 + 4 * (c & 1) + 2 * e + h
                p.append(cvtpk(tmp, acc + 2 * h, acc + 2 * h + 1))
                d = AT49 + 4 * c + 2 * e + h
                p.append(valu(f"v_accvgpr_write_b32 a{d}, v{tmp}", [f"a{d}"], [f"v{tmp}"]))
    return pre, p


def gen_prologue(o):
    p = []
    a = p.append
    a(raw("s_cmp_lt_u32 s2, 256", "salu", ["scc"], ["s2"]))
    a(raw("s_cbranch_scc1 L_go"))
    a(raw("L_pad_entry:", "label"))
    a(raw("s_endpgm"))
    a(raw("L_go:", "label"))
    a(raw("s_load_dwordx2 s[32:33], s[0:1], 0"))
    a(raw("s_load_dwordx2 s[36:37], s[0:1], 40"))
    a(raw("s_load_dwordx2 s[34:35], s[0:1], 24"))
    if o.diag:
        a(raw("s_memtime s[44:45]"))
        a(raw("s_memrealtime s[46:47]"))
    a(v3("v_and_b32", "v1", "63", "v0"))
    a(v3("v_lshrrev_b32", "v2", "6", "v0"))
    a(v3("v_and_b32", "v3", "15", "v1"))
    a(valu("v_readfirstlane_b32 s38, v2", ["s38"], ["v2"]))
    a(v3("v_lshrrev_b32", "v4", "4", "v1"))
    a(v3("v_lshlrev_b32", f"v{V_LDS[0]}", "4", "v1"))
    a(salu("s_lshl_b32 s16, s2, 2", ["s16", "scc"], ["s2"]))
    a(salu(f"s_mov_b32 s29, {MAGIC73}", ["s29"], []))
    a(salu(f"s_mov_b32 s31, {XBYTES}", ["s31"], []))
    a(salu("s_add_u32 s16, s16, s38", ["s16", "scc"], ["s16", "s38"]))
    a(salu(f"s_add_u32 s{S_TW}, s2, 5120", [f"s{S_TW}", "scc"], ["s2"]))
    a(v3("v_mov_b32", f"v{V_NINF}", "0xff800000"))
    a(v3("v_lshrrev_b32", "v5", "2", "v3"))
    a(v3("v_and_b32", "v6", "3", "v3"))
    a(v3("v_lshl_add_u32", "v8", "v6", "2", "v5"))
    a(v3("v_lshlrev_b32", "v5", "10", "v8"))
    a(v3("v_add_u32", "v5", "s16", "v5"))
    a(v3("v_mov_b32", "v9", f"s{S_TW}"))
    a(valu("v_cmp_eq_u32 vcc, 5, v8", ["vcc"], ["v8"]))
    a(valu("v_cndmask_b32 v5, v5, v9, vcc", ["v5"], ["v5", "v9", "vcc"]))
    a(v3("v_mul_hi_u32", "v6", "v5", "s29"))
    a(v3("v_mul_u32_u24", "v7", "73", "v6"))
    a(v3("v_sub_u32", "v7", "v5", "v7"))
    a(v3("v_mul_u32_u24", "v7", "0xa80", "v7"))
    a(salu(f"s_mov_b32 s43, {WINROW}", ["s43"], []))
    a(v3("v_mul_lo_u32", "v6", "v6", "s43"))
    a(v3("v_add_u32", "v6", "v6", "v7"))
    a(v3("v_lshl_add_u32", "v6", "v4", "4", "v6"))
    a(v3("v_add_u32", "v6", str(6 * ROWB + 6 * 384), "v6"))
    a(valu(f"v_cmp_gt_u32 vcc, {NWIN}, v5", ["vcc"], ["v5"]))
    a(valu(f"v_cndmask_b32 v14, v{V_NINF}, v6, vcc", ["v14"], [f"v{V_NINF}", "v6", "vcc"]))
    a(salu("s_lshr_b32 s40, s2, 3", ["s40", "scc"], ["s2"]))
    a(salu("s_mul_i32 s43, s38, 6", ["s43"], ["s38"]))
    a(salu("s_add_u32 s42, s40, s43", ["s42", "scc"], ["s40", "s43"]))
    for _ in range(2):
        a(salu("s_sub_u32 s43, s42, 24", ["s43", "scc"], ["s42"]))
        a(salu("s_cselect_b32 s42, s42, s43", ["s42"], ["scc", "s42", "s43"]))
    a(salu("s_mul_i32 s42, s42, 3072", ["s42"], ["s42"]))
    a(salu("s_mul_i32 s75, s38, 18432", ["s75"], ["s38"]))
    a(salu(f"s_add_u32 s75, s75, {NBASE}", ["s75", "scc"], ["s75"]))
    p.extend(win_base(S_CB, S_WCUR, 30))
    a(salu(f"s_mov_b32 s39, {ROWB}", ["s39"], []))
    a(v3("v_bfe_u32", "v5", "v1", "3", "2"))
    a(v3("v_lshrrev_b32", "v6", "5", "v1"))
    a(v3("v_and_b32", "v12", "7", "v1"))
    a(v3("v_xor_b32", "v12", "v12", "v4"))
    a(v3("v_lshlrev_b32", "v12", "4", "v12"))
    a(v3("v_xor_b32", "v13", "64", "v12"))
    a(v3("v_mul_lo_u32", "v7", "v5", "s39"))
    a(v3("v_mul_u32_u24", "v8", "0x180", "v6"))
    a(v3("v_add_u32", "v9", "v7", "v8"))
    a(v3("v_add_u32", f"v{V_G[0]}", "v9", "v12"))
    a(v3("v_add_u32", "v9", "0x300", "v9"))
    a(v3("v_add_u32", f"v{V_G[1]}", "v9", "v13"))
    for i in range(1, 4):
        a(valu(f"v_cmp_eq_u32 s[{64 + 2 * i}:{65 + 2 * i}], {i}, v5", [f"s{64 + 2 * i}", f"s{65 + 2 * i}"], ["v5"]))
    a(valu("v_cmp_eq_u32 s[64:65], 1, v6", ["s64", "s65"], ["v6"]))

    def g_offsets(t):
        for hf in range(2):
            dst = f"v{V_G[2 * t + hf]}"
            for i in range(4):
                offs = []
                for bb in range(2):
                    r, c = token(t, 4 * (2 * hf + bb) + i)
                    offs.append(r * ROWB + c * 384)
                a(v3("v_mov_b32", "v7", str(offs[0])))
                a(v3("v_mov_b32", "v8", str(offs[1])))
                if i == 0:
                    a(cnd("v9", "v7", "v8", 64))
                else:
                    a(cnd("v7", "v7", "v8", 64))
                    a(cnd("v9", "v9", "v7", 64 + 2 * i))
            a(v3("v_add_u32", dst, "v9", ("v12", "v13")[hf]))

    def x_dma(t):
        for j in range(3):
            for hf in range(2):
                g = 2 * t + hf
                a(salu(f"s_add_u32 m0, s75, {(3 * t + j) * 2048 + 1024 * hf - 128 * j}", ["m0", "scc"], ["s75"]))
                a(Inst(f"buffer_load_dwordx4 v{V_G[g]}, s[4:7], s{S_CB} offen offset:{128 * j}{o.ld_flags} lds", "ldsdma",
                       uses=[f"v{V_G[g]}", f"s{S_CB}", "m0"]))

    def m_dma():
        for g in range(6):
            if g:
                a(salu("s_add_u32 s42, s42, 3072", ["s42", "scc"], ["s42"]))
                a(salu("s_cmp_eq_u32 s42, 73728", ["scc"], ["s42"]))
                a(salu("s_cselect_b32 s42, 0, s42", ["s42"], ["scc", "s42"]))
            a(salu("s_mov_b32 m0, s42", ["m0"], ["s42"]))
            for k in range(3):
                a(Inst(f"buffer_load_dwordx4 v{V_LDS[0]}, s[12:15], s42 offen offset:{1024 * k} lds", "ldsdma",
                       uses=[f"v{V_LDS[0]}", "s42", "m0"]))

    g_offsets(1)
    a(raw("s_waitcnt lgkmcnt(0)", "wait"))
    if o.diag:
        a(v3("v_mov_b32", f"v{V_TIME}", "s44"))
        a(valu(f"v_writelane_b32 v{V_TIME}, s46, 62", [f"v{V_TIME}"], ["s46"]))
    if o.pstamp:
        p.extend(stamp3(55))
    srd(a, 4, 32, "s31")
    srd(a, 12, 36, "147456" if not o.diag else str(WS_TIME_OFF + 1024 * 256))
    for s in range(6):
        a(Inst(f"buffer_load_dwordx4 {T('a', AX49 + 4 * s, 4)}, v14, s[4:7], 0 offen offset:{64 * s}", "vload",
               defs=R('a', AX49 + 4 * s, 4), uses=["v14"]))
    behind_m = 0
    for k, ch in enumerate(o.order):
        if ch == "m":
            m_dma()
            behind_m = 6 * (len(o.order) - 1 - k)
            if o.pstamp:
                p.extend(stamp3(56))
        else:
            if ch == "2":
                g_offsets(2)
            x_dma(int(ch))
    if o.pstamp:
        p.extend(stamp3(57))
    a(v3("v_add_u32", f"v{V_LDS[1]}", "0x10000", f"v{V_LDS[0]}"))
    a(v3("v_add_u32", f"v{V_LDS[2]}", "0x20000", f"v{V_LDS[0]}"))
    srd(a, 8, 34, "0" if o.nostore else "s31")
    srd(a, S_SPA, 34, "0")
    srd(a, S_SPB, 34, "0")
    a(salu("s_mul_i32 s42, s40, 43", ["s42"], ["s40"]))
    a(salu("s_lshr_b32 s42, s42, 8", ["s42", "scc"], ["s42"]))
    a(salu("s_mul_i32 s42, s42, 6", ["s42"], ["s42"]))
    a(salu("s_sub_u32 s42, s40, s42", ["s42", "scc"], ["s40", "s42"]))
    a(salu("s_mul_i32 s42, s42, 3072", ["s42"], ["s42"]))
    a(salu("s_lshl_b32 s41, s38, 12", ["s41", "scc"], ["s38"]))
    a(salu(f"s_add_u32 s41, s41, {STAGE}", ["s41", "scc"], ["s41"]))
    a(v3("v_add_u32", f"v{V_WR}", "s41", f"v{V_LDS[0]}"))
    a(v3("v_lshrrev_b32", "v5", "1", "v3"))
    a(v3("v_xor_b32", "v5", "v5", "v4"))
    a(v3("v_lshlrev_b32", "v5", "4", "v5"))
    a(v3("v_lshl_add_u32", "v5", "v3", "7", "v5"))
    a(v3("v_add_u32", f"v{V_RD[0]}", "s41", "v5"))
    a(v3("v_xor_b32", f"v{V_RD[1]}", "64", f"v{V_RD[0]}"))
    V_R0 = V_TMP[0][:2]
    a(v3("v_add_u32", f"v{V_R0[0]}", "s75", "v5"))
    a(v3("v_xor_b32", f"v{V_R0[1]}", "64", f"v{V_R0[0]}"))
    V_N16, V_N8 = 15, 16
    a(v3("v_lshlrev_b32", f"v{V_N16}", "4", "v3"))
    a(v3("v_lshlrev_b32", f"v{V_N8}", "3", "v3"))
    a(v3("v_mul_u32_u24", "v5", "0x180", "v4"))
    a(v3("v_mul_lo_u32", "v6", "v4", "s39"))
    a(v3("v_lshrrev_b32", "v7", "1", "v4"))
    a(v3("v_mul_lo_u32", "v7", "v7", "s39"))
    a(v3("v_and_b32", "v8", "1", "v4"))
    a(v3("v_mul_u32_u24", "v8", "0x180", "v8"))
    a(v3("v_add_u32", "v7", "v7", "v8"))
    for g in range(4):
        r, c = I_TOK[g]
        off = (r - 4) * ROWB + c * 384
        if g == 0:
            a(v3("v_mov_b32", "v8", str(off)))
        else:
            a(valu(f"v_cmp_eq_u32 vcc, {g}, v4", ["vcc"], ["v4"]))
            a(v3("v_mov_b32", "v9", str(off)))
            a(valu("v_cndmask_b32 v8, v8, v9, vcc", ["v8"], ["v8", "v9", "vcc"]))
    for kind, src in (("H", "v5"), ("V", "v6"), ("Q", "v7"), ("I", "v8")):
        a(v3("v_add_u32", f"v{V_ST[kind][0]}", src, f"v{V_N16}"))
        a(v3("v_add_u32", f"v{V_ST[kind][1]}", src, f"v{V_N8}"))
    for ct in range(12):
        a(v3("v_mov_b32", f"v{vb(ct) + 7}", "0"))
    for q in (1, 2):
        a(valu(f"v_accvgpr_write_b32 a{AP[q] + 7}, 0", [f"a{AP[q] + 7}"], []))
    a(salu(f"s_mov_b32 s{S_K}, 0", [f"s{S_K}"], []))
    a(salu("s_mov_b32 s40, 0xffff", ["s40"], []))
    a(salu("s_mov_b32 s41, 0", ["s41"], []))
    if o.diag:
        a(salu(f"s_mov_b32 s{S_IT}, 1", [f"s{S_IT}"], []))
        a(salu("s_mov_b32 s72, 10", ["s72"], []))
    a(raw(f"s_waitcnt vmcnt({behind_m})", "wait"))
    a(raw("s_barrier"))
    if o.pstamp:
        p.extend(stamp3(58))
    pre, q = gen_p49()
    p.extend(pre)
    q, _ = schedule2(q)
    q = insert_waits(q, pre=pre)
    p.extend(q)
    if o.pstamp:
        p.extend(stamp3(59))
    for s in range(NRING):
        a(wfrag_read(s))
    for t in range(3):
        a(raw(f"s_waitcnt vmcnt({6 * (2 - t) if o.order.endswith('012') else 0})", "wait"))
        if o.pstamp and t == 2:
            p.extend(stamp3(60))
        for j in range(3):
            for u in range(2):
                d = xr(0, t, 2 * j + u)
                a(Inst(f"ds_read_b128 {T('a', d, 4)}, v{V_R0[u]} offset:{2048 * (3 * t + j)}", "dsr", defs=R('a', d, 4),
                       uses=[f"v{V_R0[u]}"]))
    a(raw("s_waitcnt lgkmcnt(0)", "wait"))
    if o.pstamp:
        p.extend(stamp3(61))
    return p


def stamp3(lane):
    return [raw("s_memtime s[44:45]"), raw("s_waitcnt lgkmcnt(0)", "wait"),
            valu(f"v_writelane_b32 v{V_TIME}, s44, {lane}", [f"v{V_TIME}"], ["s44"])]


def stamp():
    return [raw("s_memtime s[44:45]"), salu(f"s_mov_b32 m0, s{S_IT}", ["m0"], [f"s{S_IT}"]), raw("s_waitcnt lgkmcnt(0)", "wait"),
            valu(f"v_writelane_b32 v{V_TIME}, s44, m0", [f"v{V_TIME}"], ["s44", "m0"]),
            salu(f"s_add_u32 s{S_IT}, s{S_IT}, 1", [f"s{S_IT}", "scc"], [f"s{S_IT}"])]


def stamp2():
    return [raw("s_memtime s[44:45]"), salu("s_mov_b32 m0, s72", ["m0"], ["s72"]), raw("s_waitcnt lgkmcnt(0)", "wait"),
            valu(f"v_writelane_b32 v{V_TIME}, s44, m0", [f"v{V_TIME}"], ["s44", "m0"]),
            salu("s_add_u32 s72, s72, 1", ["s72", "~scc"], ["s72"])]


def add_stamps(body, pts):
    out = []
    k = 0
    for i in body:
        if i.kind == "mfma":
            if k in pts:
                st = stamp2()
                st[-1] = raw("s_addk_i32 s72, 1", "salu", ["s72"], ["s72"])
                out.extend(st)
            k += 1
        out.append(i)
    return out


def texts(l):
    return [i.text for i in l]


def gen_main(o):
    pro = insert_nops(gen_prologue(o))
    pts = [int(x) for x in o.pts.split(",")] if o.pts else None

    def build(prog):
        body, cyc = schedule2(prog, verbose=o.verbose, urgent=o.urgent)
        if not o.verbose:
            print("; model cycles", cyc)
        return body, cyc

    def waits(body, cyc, pre):
        return insert_waits(body, pre=pre, early_lgkm=(o.early, cyc) if o.early else 0,
                            early_vm=(o.early_vm, cyc) if o.early_vm else 0)

    head = lambda: stamp() if o.diag else []
    bp, cp = build(gen_body(o, 0, True))
    if pts:
        bp = add_stamps(bp, pts)
    bp = head() + bp
    bodies = []
    for xs in range(2):
        body, cyc = build(gen_body(o, xs))
        if pts:
            body = add_stamps(body, pts)
        tail = [salu(f"s_cmp_lt_u32 s{S_K}, 5", ["scc"], [f"s{S_K}"]), raw("s_cbranch_scc1 L_loop")] if xs == 0 else []
        bodies.append(head() + body + tail)
    wp = waits(bp, cp, pro)
    for i in wp:
        if i.time is not None:
            i.time -= cp - cyc
    w = [None, waits(bodies[1], cyc, wp)]
    first1 = texts(w[1])
    for it in range(3):
        w[0] = waits(bodies[0], cyc, w[1])
        w[1] = waits(bodies[1], cyc, w[0])
    if first1 != texts(w[1]):
        print("; waits differ between the entries of body 1: merging")
        w[1] = merge_waits(waits(bodies[1], cyc, wp), w[1])
        chk = waits(bodies[0], cyc, w[1])
        w[0] = merge_waits(chk, w[0])
    wp, w = hoist_waits(wp), [hoist_waits(x) for x in w]
    npk = insert_nops(wp, pre=[pro])
    n = [None, insert_nops(w[1], pre=[npk])]
    for it in range(3):
        n[0] = insert_nops(w[0], pre=[n[1]])
        n[1] = insert_nops(w[1], pre=[npk, n[0]])
    disp = head() + [salu("s_cmp_ge_u32 s2, 209", ["scc"], ["s2"]), raw("s_cbranch_scc1 L_epi")]
    for q in range(3):
        disp += [salu(f"s_cmp_eq_u32 s38, {q}", ["scc"], ["s38"]), raw(f"s_cbranch_scc1 L_tail{q}")]
    end = [raw("s_branch L_fin")] if o.diag else [raw("s_endpgm")]
    for i in w[0]:
        i.time = None
    tails = []
    for q in (3, 0, 1, 2):
        t, c = build(gen_tail(o, q))
        t = insert_waits(t, pre=w[0], early_lgkm=(o.early, 1 << 30))
        t = insert_nops(t, pre=[n[0]])
        if q != 3:
            tails += [raw(".p2align 6", "label"), raw(f"L_pad_t{q}:", "label"), raw("s_endpgm")]
        tails += [raw(f"L_tail{q}:", "label")] + t + end
    epi = insert_nops(insert_waits(build(gen_epi(o))[0], pre=w[0]), pre=[n[0]])
    print('; replay', model_time(npk), model_time(n[1]), model_time(n[0]))
    fin = []
    if o.diag:
        fin += [raw("L_fin:", "label")] + stamp()
        fin += [raw("s_waitcnt vmcnt(0)", "wait")] + stamp()
        fin += [raw("s_memrealtime s[46:47]"), raw("s_waitcnt lgkmcnt(0)", "wait"),
                valu(f"v_writelane_b32 v{V_TIME}, s46, 63", [f"v{V_TIME}"], ["s46"])]
        fin += [v3("v_lshrrev_b32", "v0", "2", f"v{V_LDS[0]}"),
                salu("s_lshl_b32 s42, s2, 2", ["s42", "scc"], ["s2"]),
                salu("s_add_u32 s42, s42, s38", ["s42", "scc"], ["s42", "s38"]),
                salu("s_lshl_b32 s42, s42, 8", ["s42", "scc"], ["s42"]),
                salu(f"s_add_u32 s42, s42, {WS_TIME_OFF}", ["s42", "scc"], ["s42"]),
                Inst(f"buffer_store_dword v{V_TIME}, v0, s[12:15], s42 offen", "vstore", uses=[f"v{V_TIME}", "v0", "s42"])]
        fin = insert_nops(fin)
    stats = {}
    for i in n[0]:
        stats[i.kind] = stats.get(i.kind, 0) + 1
    print("; body stats", stats, file=sys.stderr)
    return (emit(pro) + "\n" + emit(npk) + "\n.p2align 6\nL_loop:\n" + emit(n[1]) + "\n" + emit(n[0]) + "\n" + emit(disp) + "\n"
            + emit(tails) + "\n.p2align 6\nL_pad_epi:\n    s_endpgm\nL_epi:\n" + emit(epi) + "\n" + emit(fin) + "\nL_main_done:\n    s_endpgm\n")


def merge_waits(x, y):
    def split(l):
        out, cur = [], {}
        for i in l:
            if i.kind == "wait" and not i.defs and not i.uses:
                for nm, v in re.findall(r"(vmcnt|lgkmcnt)\((\d+)\)", i.text):
                    cur[nm] = min(cur.get(nm, 99), int(v))
            else:
                out.append((cur, i))
                cur = {}
        return out
    a, b = split(x), split(y)
    assert [i.text for _, i in a] == [i.text for _, i in b]
    out = []
    for (wa, i), (wb, _) in zip(a, b):
        m = {k: min(wa.get(k, 99), wb.get(k, 99)) for k in set(wa) | set(wb)}
        if m:
            w = Inst("s_waitcnt " + " ".join(f"{k}({m[k]})" for k in ("vmcnt", "lgkmcnt") if k in m), "wait")
            w.time = i.time
            out.append(w)
        out.append(i)
    return out


def emit(insts):
    out = []
    for i in insts:
        out.append(i.text if i.kind == "label" else "    " + i.text)
    return "\n".join(out)


HEADER = """; Swin window attention: folded projections (M = a*Wq*Wk^T, N = Wv*Wo), one wave per window.
; @launch kernel=swin_prep_kernel grid=(@PGRID@,1,1) block=(64,1,1) lds=0
; @launch kernel={name}_kernel grid=(256,1,1) block=(256,1,1) lds=163840
.amdgcn_target "amdgcn-amd-amdhsa--gfx950"
.text
"""

KD = """.amdhsa_kernel {k}
  .amdhsa_next_free_vgpr {nv}
  .amdhsa_next_free_sgpr {ns}
  .amdhsa_accum_offset {ao}
  .amdhsa_group_segment_fixed_size 0
  .amdhsa_kernarg_size 48
  .amdhsa_user_sgpr_count 2
  .amdhsa_user_sgpr_kernarg_segment_ptr 1
  .amdhsa_system_sgpr_workgroup_id_x 1
.end_amdhsa_kernel
"""


def finish(s, pads, rep):
    t = ["    s_sub_u32 s3, s2, 144", "    s_lshr_b32 s3, s3, 3"]
    for i, p in enumerate(pads * rep):
        t += [f"    s_cmp_eq_u32 s3, {i}", f"    s_cbranch_scc1 {p}"]
    return s.replace("@TOUCH@", "\n".join(t)).replace("@PGRID@", str(144 + 8 * len(pads) * rep))


def layout(s):
    import subprocess
    open("_lay.s", "w").write(s)
    subprocess.run(["clang", "-x", "assembler", "-target", "amdgcn-amd-amdhsa", "-mcpu=gfx950", "-c",
                    "_lay.s", "-o", "_lay.o"], check=True)
    d = subprocess.run(["llvm-objdump", "-d", "_lay.o"], capture_output=True, text=True).stdout
    return [(int(m.group(2), 16), m.group(1)) for m in re.finditer(r"^\t(\S+).*// ([0-9A-F]{12}):", d, flags=re.M)]


def add_pads(s, k, o):
    pads = ["L_pad_entry", "L_pad_t0", "L_pad_t1", "L_pad_t2", "L_pad_epi"]
    if o.nopad:
        return finish(s, [], 1)
    page = 1
    while True:
        lines = s.split("\n")
        ins = layout(finish(s, pads, o.touch_rep))
        start = lines.index(k + ":")
        base = max(a for a, op in ins if op == "s_cmp_lt_u32" and a % 4096 == 0)
        lst = [x for x in ins if x[0] >= base]
        src = [i for i in range(start, len(lines)) if lines[i].startswith("    ") and not lines[i].startswith("  .")]
        pos = []
        j = 0
        for i in src:
            op = lines[i].split()[0]
            while lst[j][1].replace("_e32", "").replace("_e64", "") != op:
                assert lst[j][1] == "s_nop", (lst[j], op)
                j += 1
            pos.append((i, lst[j][0], op))
            j += 1
        lo = base + 4096 * page
        if lo > pos[-1][1]:
            break
        cand = [(n, x) for n, x in enumerate(pos) if lo - 4 <= x[1] <= lo + 52]
        if any(x[2] == "s_endpgm" and x[1] >= lo for n, x in cand):
            n, x = [c for c in cand if c[1][2] == "s_endpgm" and c[1][1] >= lo][0]
            lines.insert(x[0], f"L_pad{page}:")
        else:
            good = [c for c in cand if pos[c[0] - 1][2].startswith("v_mfma") and c[1][2].startswith(("v_", "ds_"))
                    and pos[c[0] - 1][0] == c[1][0] - 1]
            n, x = (good or [c for c in cand if pos[c[0] - 1][0] == c[1][0] - 1])[0]
            lines[x[0]:x[0]] = [f"    s_branch L_skip{page}", f"L_pad{page}:", "    s_endpgm", f"L_skip{page}:"]
        pads.append(f"L_pad{page}")
        s = "\n".join(lines)
        page += 1
    print("; pads", len(pads), file=sys.stderr)
    return finish(s, pads, o.touch_rep)


def main():
    ap = argparse.ArgumentParser()
    ap.add_argument("-o", default="cdna_kernels/" + NAME + ".s")
    ap.add_argument("--diag", action="store_true")
    ap.add_argument("--pts", default="")
    ap.add_argument("--gap", type=int, default=8)
    ap.add_argument("--early", type=int, default=230)
    ap.add_argument("--early_vm", type=int, default=1500)
    ap.add_argument("--ld_rel", type=int, default=600)
    ap.add_argument("--ld_step", type=int, default=250)
    ap.add_argument("--xw_rel", type=int, default=4800)
    ap.add_argument("--xw_step", type=int, default=520)
    ap.add_argument("--ld_rel0", type=int, default=1200)
    ap.add_argument("--ld_step0", type=int, default=280)
    ap.add_argument("--xw_rel0", type=int, default=5600)
    ap.add_argument("--xw_step0", type=int, default=560)
    ap.add_argument("--nd_rel", type=int, default=0)
    ap.add_argument("--nd_step", type=int, default=48)
    ap.add_argument("--nb_rel", type=int, default=3800)
    ap.add_argument("--tail_s", type=int, default=1)
    ap.add_argument("--order", default="m012")
    ap.add_argument("--defer", default="12")
    ap.add_argument("--after", default="5,6,7,8,10")
    ap.add_argument("--urgent", type=int, default=0)
    ap.add_argument("--touch_rep", type=int, default=1)
    ap.add_argument("--dsw_busy", type=int, default=40)
    ap.add_argument("--st_busy", type=int, default=150)
    ap.add_argument("--ld_flags", default="")
    ap.add_argument("--st_flags", default="")
    for f in ("noload", "nostore", "rmload", "rmstore", "pstamp", "verbose", "nopad"):
        ap.add_argument("--" + f, action="store_true")
    o = ap.parse_args()
    o.defer = [int(c) for c in o.defer]
    if o.ld_flags:
        o.ld_flags = " " + o.ld_flags
    if o.st_flags:
        o.st_flags = " " + o.st_flags
    global DSW_BUSY, ST_BUSY
    DSW_BUSY, ST_BUSY = o.dsw_busy, o.st_busy
    old = sys.stdout
    sys.stdout = sys.stderr
    prep = gen_prep(o)
    main_text = gen_main(o)
    sys.stdout = old
    s = HEADER.format(name=NAME)
    s += ".globl swin_prep_kernel\n.p2align 8\n.type swin_prep_kernel,@function\nswin_prep_kernel:\n"
    s += emit(prep) + "\n"
    k = NAME + "_kernel"
    s += f".globl {k}\n.p2align 12\n.type {k},@function\n{k}:\n"
    s += main_text
    s += '.section .rodata,"a"\n.p2align 6\n'
    s += KD.format(k="swin_prep_kernel", nv=144, ns=40, ao=144)
    s += ".p2align 6\n"
    s += KD.format(k=k, nv=512, ns=88, ao=256)
    s = add_pads(s, k, o)
    open(o.o, "w").write(s)


if __name__ == "__main__":
    main()
```

```python
import sys, math, struct, argparse, re
from asmlib import *

NAME = "standalone__swin_window_attn__vision"
NWIN = 5329
XBYTES = 100270464
ROWB = 196224
WINROW = 7 * ROWB
MAGIC73 = (1 << 32) // 73 + 1
for w in range(0, 16384):
    assert (w * MAGIC73) >> 32 == w // 73
ALPHA = (192 ** -0.5) * math.log2(math.e)
WS_TIME_OFF = 1 << 20
STAGE = 147456


def f32bits(x):
    return struct.unpack("<I", struct.pack("<f", x))[0]


def mfma(bd, d, ba, a, bb, b, first):
    c = "0" if first else T(bd, d, 4)
    D = R(bd, d, 4)
    AB = R(ba, a, 4) + R(bb, b, 4)
    return Inst(f"v_mfma_f32_16x16x32_bf16 {T(bd, d, 4)}, {T(ba, a, 4)}, {T(bb, b, 4)}, {c}", "mfma",
                defs=D, uses=AB + ([] if first else D), srcC=([] if first else D), srcAB=AB, passes=4)


def valu(text, defs, uses, kind="valu", **kw):
    return Inst(text, kind, defs=defs, uses=uses, **kw)


def cvtpk(d, a, b, **kw):
    bt = f"v{b}" if b is not None else "0"
    return valu(f"v_cvt_pk_bf16_f32 v{d}, v{a}, {bt}", [f"v{d}"], [f"v{a}"] + ([f"v{b}"] if b is not None else []), **kw)


def salu(text, defs, uses, **kw):
    return Inst(text, "salu", defs=defs, uses=uses, **kw)


def raw(text, kind="other", defs=(), uses=()):
    return Inst(text, kind, defs=defs, uses=uses)


def v3(op, d, *srcs, **kw):
    uses = [s for s in srcs if isinstance(s, str) and (is_vreg(s) or is_sreg(s))]
    return valu(f"{op} {d}, " + ", ".join(str(s) for s in srcs), [d], uses, **kw)


def cnd(d, a, b, m):
    return valu(f"v_cndmask_b32 {d}, {a}, {b}, s[{m}:{m+1}]", [d], [a, b, f"s{m}", f"s{m+1}"])


def srd(a, dst, src, nb):
    a(salu(f"s_mov_b32 s{dst}, s{src}", [f"s{dst}"], [f"s{src}"]))
    a(salu(f"s_and_b32 s{dst+1}, s{src+1}, 0xffff", [f"s{dst+1}", "scc"], [f"s{src+1}"]))
    a(salu(f"s_mov_b32 s{dst+2}, {nb}", [f"s{dst+2}"], []))
    a(salu(f"s_mov_b32 s{dst+3}, 0x20000", [f"s{dst+3}"], []))


STRIPS = [("H", r) for r in range(7)] + [("V", 4), ("V", 5), ("V", 6), ("Q", 0), ("I", 0)]
I_TOK = [(4, 6), (5, 6), (6, 4), (6, 5)]


def token(t, n):
    g, i = n >> 2, n & 3
    kind, p = STRIPS[4 * t + i]
    if kind == "H":
        return p, g
    if kind == "V":
        return g, p
    if kind == "Q":
        return 4 + (g >> 1), 4 + (g & 1)
    return I_TOK[g]


assert sorted(token(t, n) for t in range(3) for n in range(16)) + [(6, 6)] == [(r, c) for r in range(7) for c in range(7)]


def gen_prep(o):
    p = []
    a = p.append
    a(raw("s_cmp_ge_u32 s2, 144", "salu", ["scc"], ["s2"]))
    a(raw("s_cbranch_scc1 L_prep_touch"))
    if o.diag:
        a(raw("s_memrealtime s[34:35]"))
    a(raw("s_load_dwordx4 s[4:7], s[0:1], 8"))
    a(raw("s_load_dwordx2 s[8:9], s[0:1], 40"))
    a(salu("s_cmp_ge_u32 s2, 72", ["scc"], ["s2"]))
    a(salu("s_cselect_b32 s20, 1, 0", ["s20"], ["scc"]))
    a(salu("s_mul_i32 s21, s20, 72", ["s21"], ["s20"]))
    a(salu("s_sub_u32 s21, s2, s21", ["s21", "scc"], ["s2", "s21"]))
    a(salu("s_mul_i32 s22, s21, 43", ["s22"], ["s21"]))
    a(salu("s_lshr_b32 s22, s22, 8", ["s22", "scc"], ["s22"]))
    for r in range(72):
        assert (r * 43) >> 8 == r // 6
    a(salu("s_mul_i32 s23, s22, 6", ["s23"], ["s22"]))
    a(salu("s_sub_u32 s23, s21, s23", ["s23", "scc"], ["s21", "s23"]))
    a(v3("v_and_b32", "v1", "15", "v0"))
    a(v3("v_lshrrev_b32", "v2", "4", "v0"))
    a(v3("v_lshrrev_b32", "v3", "2", "v1"))
    a(v3("v_and_b32", "v4", "3", "v1"))
    a(v3("v_lshl_add_u32", "v3", "v3", "3", "v4"))
    a(salu("s_movk_i32 s24, 1152", ["s24"], []))
    a(v3("v_mul_lo_u32", "v5", "v3", "s24"))
    a(v3("v_lshl_add_u32", "v5", "v2", "4", "v5"))
    a(salu("s_mul_i32 s25, s23, 36864", ["s25"], ["s23"]))
    a(salu("s_mul_i32 s26, s20, 768", ["s26"], ["s20"]))
    a(salu("s_add_u32 s25, s25, s26", ["s25", "scc"], ["s25", "s26"]))
    a(salu("s_add_u32 s33, s25, 4608", ["s33", "scc"], ["s25"]))
    a(salu("s_lshr_b32 s26, s22, 1", ["s26", "scc"], ["s22"]))
    a(salu("s_mul_i32 s26, s26, 36864", ["s26"], ["s26"]))
    a(salu("s_and_b32 s27, s22, 1", ["s27", "scc"], ["s22"]))
    a(salu("s_mul_i32 s27, s27, 4608", ["s27"], ["s27"]))
    a(salu("s_add_u32 s26, s26, s27", ["s26", "scc"], ["s26", "s27"]))
    a(salu("s_add_u32 s26, s26, 384", ["s26", "scc"], ["s26"]))
    a(raw("s_waitcnt lgkmcnt(0)", "wait"))
    srd(a, 12, 4, 192 * 576 * 2)
    srd(a, 16, 6, 192 * 192 * 2)
    srd(a, 28, 8, 147456 if not o.diag else 3 << 20)
    for h in range(2):
        for k in range(6):
            d = 16 + 24 * h + 4 * k
            a(Inst(f"buffer_load_dwordx4 {T('v', d, 4)}, v5, s[12:15], s{(25, 33)[h]} offen offset:{64 * k}", "vload",
                   defs=R('v', d, 4), uses=["v5", "s25", "s33"]))
    a(salu("s_cmp_eq_u32 s20, 1", ["scc"], ["s20"]))
    a(raw("s_cbranch_scc1 L_prep_n"))
    for k in range(6):
        a(Inst(f"buffer_load_dwordx4 {T('v', 64 + 4 * k, 4)}, v5, s[12:15], s26 offen offset:{64 * k}", "vload",
               defs=R('v', 64 + 4 * k, 4), uses=["v5", "s26"]))
    a(salu(f"s_mov_b32 s27, 0x{f32bits(ALPHA):08x}", ["s27"], []))
    a(raw("s_waitcnt vmcnt(0)", "wait"))
    a(raw("s_branch L_prep_mm"))
    a(raw("L_prep_n:", "label"))
    a(salu("s_cmp_lt_u32 s22, 8", ["scc"], ["s22"]))
    a(salu("s_cselect_b32 s26, 3, 2", ["s26"], ["scc"]))
    a(salu("s_cselect_b32 s27, 0, 120", ["s27"], ["scc"]))
    a(salu("s_add_u32 s27, s27, s22", ["s27", "scc"], ["s27", "s22"]))
    a(v3("v_lshlrev_b32", "v6", "s26", "v1"))
    a(v3("v_add_u32", "v6", "s27", "v6"))
    a(v3("v_lshlrev_b32", "v6", "1", "v6"))
    a(v3("v_mul_u32_u24", "v7", "0xc00", "v2"))
    a(v3("v_add_u32", "v6", "v6", "v7"))
    for k in range(6):
        a(salu(f"s_mov_b32 s27, {k * 12288}", ["s27"], []))
        for j in range(8):
            r = 96 + 8 * k + j
            a(Inst(f"buffer_load_ushort v{r}, v6, s[16:19], s27 offen offset:{384 * j}", "vload",
                   defs=[f"v{r}"], uses=["v6", "s27"]))
    a(salu("s_mov_b32 s27, 1.0", ["s27"], []))
    a(raw("s_waitcnt vmcnt(0)", "wait"))
    for k in range(6):
        for jj in range(4):
            lo, hi = 96 + 8 * k + 2 * jj, 96 + 8 * k + 2 * jj + 1
            a(v3("v_lshl_or_b32", f"v{64 + 4 * k + jj}", f"v{hi}", "16", f"v{lo}"))
    a(raw("L_prep_mm:", "label"))
    a(raw("s_nop 1", "nop"))
    for k in range(6):
        for h in range(2):
            a(mfma("v", 88 + 4 * h, "v", 16 + 24 * h + 4 * k, "v", 64 + 4 * k, k == 0))
    a(salu("s_lshl_b32 s24, s2, 10", ["s24", "scc"], ["s2"]))
    a(v3("v_lshlrev_b32", "v8", "4", "v0"))
    for r in range(8):
        a(v3("v_mul_f32", f"v{88 + r}", "s27", f"v{88 + r}"))
    for r in range(4):
        a(cvtpk(16 + r, 88 + 2 * r, 89 + 2 * r))
    a(Inst("buffer_store_dwordx4 v[16:19], v8, s[28:31], s24 offen", "vstore", uses=R('v', 16, 4) + ["v8"], wide=True))
    if o.diag:
        a(raw("s_waitcnt vmcnt(0)", "wait"))
        a(raw("s_memrealtime s[36:37]"))
        a(raw("s_waitcnt lgkmcnt(0)", "wait"))
        a(v3("v_mov_b32", "v16", "s34"))
        a(v3("v_mov_b32", "v17", "s36"))
        a(v3("v_mov_b32", "v8", "0"))
        a(salu("s_lshl_b32 s24, s2, 3", ["s24", "scc"], ["s2"]))
        a(salu("s_add_u32 s24, s24, 0x200000", ["s24", "scc"], ["s24"]))
        a(Inst("buffer_store_dwordx2 v[16:17], v8, s[28:31], s24 offen", "vstore", uses=["v16", "v17", "v8"]))
    a(raw("s_endpgm"))
    a(raw("L_prep_touch:", "label"))
    a(raw("@TOUCH@", "label"))
    a(raw("s_endpgm"))
    return insert_nops(p)


XS = [0, 72]
AX49, AT49, AW = 144, 168, 192
NRING = 12
SB = 0
ACC = 64
TBF = 88
OPA = 100
VBF = 124
V_LDS = [220, 221, 222]
V_G = [223, 224, 225, 226, 227, 228]
V_WR = 229
V_RD = [230, 231]
V_ST = {"H": (232, 233), "V": (234, 235), "Q": (236, 237), "I": (238, 239)}
V_SP = (240, 241)
V_T49 = (96, 97)
V_CT = (242, 243)
AP = {1: 240, 2: 248}
V_Q3 = 250
S_TW = 73
NBASE = 73728
DSW_BUSY, ST_BUSY, LD_GRP = 40, 40, 1
DROP, PFLAGS = [], [None, None]
V_NINF = 244
V_TMP = [[245, 246, 247, 248, 249], [250, 251, 252, 253, 254]]
V_TIME = 255
S_WCUR, S_LB, S_CB, S_K, S_ROW = 16, 17, 18, 19, 20
S_IT = 28
S_M0, S_M1, S_GM, S_SH, S_SPO, S_GO = 48, 50, 52, 54, 55, 74
S_SPA, S_SPB = 56, 60


def xr(xs, t, s):
    return XS[xs] + 24 * t + 4 * s


def xop(xs, t, s):
    return AX49 + 4 * s if t == 3 else xr(xs, t, s)


def lds_at(idx):
    base, imm = divmod((idx % 144) * 1024, 65536)
    return V_LDS[base], imm


def wfrag_read(idx, slot=None, extra=(), **kw):
    va, imm = lds_at(idx)
    d = AW + 4 * (idx % NRING if slot is None else slot)
    return Inst(f"ds_read_b128 {T('a', d, 4)}, v{va} offset:{imm}", "dsr", defs=R('a', d, 4),
                uses=[f"v{va}"] + list(extra), **kw)


class Ring:
    def __init__(self, seq, have=None):
        self.seq = seq
        self.slot = [have[i] for i in seq[:NRING]] if have else list(range(NRING))
        self.pos = 0

    def fill(self):
        return [wfrag_read(i, self.slot[p]) for p, i in enumerate(self.seq[:NRING])]

    def take(self):
        p = self.pos
        self.pos += 1
        sl = self.slot[p]
        self.slot.append(sl)
        nxt = [wfrag_read(self.seq[p + NRING], sl)] if p + NRING < len(self.seq) else []
        return AW + 4 * sl, nxt


def xload(xs, t, hf, j, sbase, flags="", **kw):
    d = xr(xs, t, 2 * j + hf)
    g = 2 * t + hf
    return Inst(f"buffer_load_dwordx4 {T('a', d, 4)}, v{V_G[g]}, s[4:7], s{sbase} offen offset:{128 * j}" + flags,
                "vload", defs=R('a', d, 4), uses=[f"v{V_G[g]}", f"s{sbase}", "s6"], **kw)


def xloads(xs, sbase, flags, rel=None, step=0):
    out = []
    k = 0
    for t in range(3):
        for j, hf in ([(j, hf) for j in range(3) for hf in range(2)] if LD_GRP % 3 else [(j, hf) for hf in range(2) for j in range(3)]):
            at = rel + step * (k - k % LD_GRP) + 16 * (k % LD_GRP)
            out.append(xload(xs, t, hf, j, sbase, flags, release=at, deadline=at + 48))
            k += 1
    return out


def xtrans(xs, rel=None, step=0):
    out = []
    k = 0
    for t in range(3):
        for j in range(3):
            b = k & 1
            for hf in range(2):
                d = xr(xs, t, 2 * j + hf)
                kw = {} if rel is None else dict(release=rel + step * k)
                out.append(Inst(f"ds_write_b128 v{V_WR}, {T('a', d, 4)} offset:{2048 * b + 1024 * hf}", "dsw",
                                defs=[f"~st{b}{hf}"], uses=R('a', d, 4) + [f"v{V_WR}"], tag="x", **kw))
                out[-1].real, out[-1].busy = 20, DSW_BUSY
            for u in range(2):
                d = xr(xs, t, 2 * j + u)
                kw = {} if rel is None else dict(deadline=rel + step * k + 200)
                out.append(Inst(f"ds_read_b128 {T('a', d, 4)}, v{V_RD[u]} offset:{2048 * b}", "dsr", defs=R('a', d, 4),
                                uses=[f"v{V_RD[u]}", f"~st{b}0", f"~st{b}1"], tag="x", **kw))
            k += 1
    return out


def vb(ct):
    return VBF + 8 * ct


def opk(q, i, part):
    if q == 3:
        return TBF + 4 * i if part == 0 else V_Q3 + 2 * i
    return OPA + 4 * i if part == 0 else OPA + 16 + 2 * i


def o_mf(q, pr, acc=None, held=False):
    acc = SB + 16 * q + 8 if acc is None else acc
    bank, pb = ("a", AP[q]) if held else ("v", SB + 16 * q)
    out = []
    for ks in range(2):
        for e in range(2):
            out.append(mfma("v", acc + 4 * e, bank, pb + 4 * ks, "v", vb(2 * pr + e) + 4 * ks, ks == 0))
    return out


def o_pack(q, pr, acc=None):
    acc = SB + 16 * q + 8 if acc is None else acc
    out = []
    for i in range(2 if q == 3 else 4):
        d = opk(q, i, 0) + pr if pr < 4 else opk(q, i, 1) + pr - 4
        out.append(cvtpk(d, acc + i, acc + 4 + i))
    return out


def o_store(q, part, flags="", rel=None, step=0):
    out = []
    n = (4, 2)[part]
    for i in range(2 if q == 3 else 4):
        d = opk(q, i, part)
        if q == 3:
            vo, row, imm, sr = V_SP[part], None, 0, (S_SPA, S_SPB)[i]
        else:
            kind, pp = STRIPS[4 * q + i]
            vo, sr = V_ST[kind][part], 8
            row, imm = {"H": (pp, 0), "V": (0, pp * 384), "Q": (4, 4 * 384), "I": (4, 0)}[kind]
        so = f"s{S_SPO}" if row is None else f"s{S_ROW + row}"
        if part in DROP and q != 3:
            sr = 80
        if PFLAGS[part] is not None:
            flags = PFLAGS[part]
        out.append(Inst(f"buffer_store_dwordx{n} {T('v', d, n)}, v{vo}, s[{sr}:{sr+3}], {so} offen offset:{imm + 256 * part}{flags}",
                        "vstore", uses=R('v', d, n) + [f"v{vo}", so, f"s{sr+2}"], wide=(n == 4)))
        out[-1].cost, out[-1].real, out[-1].busy = 8, 4 + 4 * n, ST_BUSY
        if rel is not None:
            out[-1].release = rel + step * i
    return out


def xlane(op, m0, m1):
    p = []
    for sw in ("v_permlane32_swap_b32", "v_permlane16_swap_b32"):
        p.append(v3("v_mov_b32", f"v{m1}", f"v{m0}"))
        p.append(valu(f"{sw} v{m0}, v{m1}", [f"v{m0}", f"v{m1}"], [f"v{m0}", f"v{m1}"], kind="perm"))
        p.append(v3(op, f"v{m0}", f"v{m0}", f"v{m1}"))
    return p


def softmax(q, tset, part=3, hold=False):
    b = SB + 16 * q
    m0, m1, s0, s1, rr = V_TMP[tset]
    p = []
    p.append(cnd(f"v{b + 12}", f"v{V_NINF}", f"v{b + 12}", S_M0))
    p.append(cnd(f"v{b + 12}", f"v{b + 12}", f"v{b + 13}", S_M1))
    regs = [b + r for r in range(13)]
    m3 = lambda d, x, y, z: v3("v_max3_f32", f"v{d}", f"v{x}", f"v{y}", f"v{z}")
    p.append(m3(m0, regs[0], regs[1], regs[2]))
    p.append(m3(m1, regs[3], regs[4], regs[5]))
    p.append(m3(m0, m0, regs[6], regs[7]))
    p.append(m3(m1, m1, regs[8], regs[9]))
    p.append(m3(m0, m0, regs[10], regs[11]))
    p.append(m3(m0, m0, m1, regs[12]))
    p.extend(xlane("v_max_f32", m0, m1))
    for r in regs:
        p.append(v3("v_sub_f32", f"v{r}", f"v{r}", f"v{m0}"))
        p.append(valu(f"v_exp_f32 v{r}, v{r}", [f"v{r}"], [f"v{r}"], kind="trans"))
    p.append(v3("v_add_f32", f"v{s0}", f"v{regs[0]}", f"v{regs[1]}"))
    p.append(v3("v_add_f32", f"v{s1}", f"v{regs[2]}", f"v{regs[3]}"))
    for k in range(4, 13):
        s = (s0, s1)[k & 1]
        p.append(v3("v_add_f32", f"v{s}", f"v{s}", f"v{regs[k]}"))
    p.append(v3("v_add_f32", f"v{s0}", f"v{s0}", f"v{s1}"))
    p.extend(xlane("v_add_f32", s0, s1))
    p.append(valu(f"v_rcp_f32 v{rr}, v{s0}", [f"v{rr}"], [f"v{s0}"], kind="trans"))
    if part == 1:
        return p
    if part == 2:
        p = []
    for k in range(0, 12, 2):
        p.append(v3("v_mul_f32", f"v{regs[k]}", f"v{regs[k]}", f"v{rr}"))
        p.append(v3("v_mul_f32", f"v{regs[k + 1]}", f"v{regs[k + 1]}", f"v{rr}"))
        p.append(cvtpk(b + k // 2, regs[k], regs[k + 1]))
    p.append(v3("v_mul_f32", f"v{regs[12]}", f"v{regs[12]}", f"v{rr}"))
    p.append(cvtpk(b + 6, regs[12], None))
    p.append(v3("v_lshlrev_b32", f"v{b + 6}", f"s{S_SH}", f"v{b + 6}"))
    if not hold:
        p.append(v3("v_mov_b32", f"v{b + 7}", "0"))
    return p


def p_hold(q):
    return [valu(f"v_accvgpr_write_b32 a{AP[q] + r}, v{SB + 16 * q + r}", [f"a{AP[q] + r}"], [f"v{SB + 16 * q + r}"])
            for r in range(7)]


def win_base(dst, w, tmp):
    return [
        salu(f"s_mul_hi_u32 s{tmp}, s{w}, s29", [f"s{tmp}"], [f"s{w}", "s29"]),
        salu(f"s_mul_i32 s{dst}, s{tmp}, 73", [f"s{dst}"], [f"s{tmp}"]),
        salu(f"s_sub_u32 s{dst}, s{w}, s{dst}", [f"s{dst}", "scc"], [f"s{w}", f"s{dst}"]),
        salu(f"s_mul_i32 s{dst}, s{dst}, 2688", [f"s{dst}"], [f"s{dst}"]),
        salu(f"s_mul_i32 s{tmp}, s{tmp}, {WINROW}", [f"s{tmp}"], [f"s{tmp}"]),
        salu(f"s_add_u32 s{dst}, s{dst}, s{tmp}", [f"s{dst}", "scc"], [f"s{dst}", f"s{tmp}"]),
    ]


def row_bases():
    out = [salu(f"s_mov_b32 s{S_ROW}, s{S_CB}", [f"s{S_ROW}"], [f"s{S_CB}"])]
    for r in range(1, 7):
        out.append(salu(f"s_add_u32 s{S_ROW + r}, s{S_CB}, {r * ROWB}", [f"s{S_ROW + r}", "scc"], [f"s{S_CB}"]))
    out.append(salu(f"s_sub_u32 s{S_SPO}, s{S_ROW + 6}, s{S_GO}", [f"s{S_SPO}", "scc"], [f"s{S_ROW + 6}", f"s{S_GO}"]))
    out.append(salu(f"s_add_u32 s{S_SPO}, s{S_SPO}, {6 * 384}", [f"s{S_SPO}", "scc"], [f"s{S_SPO}"]))
    return out


def slot_masks():
    k = S_K
    return [
        salu(f"s_and_b32 s30, s{k}, 3", ["s30", "scc"], [f"s{k}"]),
        salu(f"s_mul_i32 s{S_GO}, s30, 384", [f"s{S_GO}"], ["s30"]),
        salu("s_lshl_b32 s30, s30, 4", ["s30", "scc"], ["s30"]),
        salu(f"s_lshl_b64 s[{S_GM}:{S_GM+1}], s[40:41], s30", [f"s{S_GM}", f"s{S_GM+1}", "scc"], ["s40", "s41", "s30"]),
        salu(f"s_cmp_lt_u32 s{k}, 4", ["scc"], [f"s{k}"]),
        salu(f"s_cselect_b64 s[{S_M0}:{S_M0+1}], s[{S_GM}:{S_GM+1}], 0", [f"s{S_M0}", f"s{S_M0+1}"], ["scc", f"s{S_GM}", f"s{S_GM+1}"]),
        salu(f"s_cselect_b64 s[{S_M1}:{S_M1+1}], 0, s[{S_GM}:{S_GM+1}]", [f"s{S_M1}", f"s{S_M1+1}"], ["scc", f"s{S_GM}", f"s{S_GM+1}"]),
        salu(f"s_cselect_b32 s{S_SH}, 0, 16", [f"s{S_SH}"], ["scc"]),
        salu(f"s_cselect_b32 s{S_SPA+2}, s31, 0", [f"s{S_SPA+2}"], ["scc", "s31"]),
        salu(f"s_cselect_b32 s{S_SPB+2}, 0, s31", [f"s{S_SPB+2}"], ["scc", "s31"]),
        salu(f"s_add_u32 s{k}, s{k}, 1", [f"s{k}", "scc"], [f"s{k}"]),
        cnd(f"v{V_SP[0]}", f"v{V_NINF}", f"v{V_ST['H'][0]}", S_GM),
        cnd(f"v{V_SP[1]}", f"v{V_NINF}", f"v{V_ST['H'][1]}", S_GM),
    ]


def carry_head(o):
    p = cvt_v(11)
    for q in (1, 2):
        if q in o.defer:
            p += softmax(q, q & 1, 2, True)
        p += p_hold(q)
    return p


def carry_30(o):
    p = o_mf(3, 5) + o_mf(0, 5) + o_pack(3, 5) + o_pack(0, 5)
    return p + o_store(3, 1, o.st_flags) + o_store(0, 1, o.st_flags)


def carry_grp(o, g, acc, pace=False):
    q, pr = 1 + g // 6, g % 6
    p = o_mf(q, pr, acc, True) + o_pack(q, pr, acc)
    if pr in (3, 5):
        rel, step = None, 0
        if pace and q == 2:
            rel, step = [int(x) for x in (o.q2p0, o.q2p1)[pr >> 2].split(",")]
        p += o_store(q, pr >> 2, o.st_flags, rel, step)
    return p


def cvt_v(ct):
    out = []
    for t in range(3):
        acc = ACC + 12 * (ct & 1) + 4 * t
        for h in range(2):
            out.append(cvtpk(vb(ct) + 2 * t + h, acc + 2 * h, acc + 2 * h + 1))
    return out


def s3(xs):
    return [mfma("v", SB + 48 + 4 * kt, "a", xop(xs, kt, s), "a", AT49 + 4 * s, s == 0)
            for s in range(6) for kt in range(4)]


def n_dma(rel, step):
    out = []
    for g in range(6):
        if g:
            out.append(salu("s_add_u32 s42, s42, 3072", ["s42", "scc"], ["s42"]))
            out.append(salu("s_cmp_eq_u32 s42, 18432", ["scc"], ["s42"]))
            out.append(salu("s_cselect_b32 s42, 0, s42", ["s42"], ["scc", "s42"]))
        out.append(salu("s_add_u32 s43, s42, s75", ["s43", "scc"], ["s42", "s75"]))
        out.append(salu("s_mov_b32 m0, s43", ["m0"], ["s43"]))
        for k in range(3):
            t = rel + step * (3 * g + k)
            out.append(Inst(f"buffer_load_dwordx4 v{V_LDS[0]}, s[12:15], s43 offen offset:{1024 * k} lds", "ldsdma",
                            defs=[f"ldsN{3 * g + k}"], uses=[f"v{V_LDS[0]}", "s43", "m0"], release=t, deadline=t + 48))
    return out


CT = [("L_loop", 0), ("L_loop", 1), ("L_b0", 0), ("L_b0", 1), ("L_tails", 0), ("L_tails", 1), ("L_tails", 2)]


def code_touch(label, n, rel, step=200):
    out = []
    for k in range(n):
        t = rel + step * k
        b = 84 + 2 * CT.index((label, k))
        out.append(Inst(f"global_load_dword v{V_CT[1]}, v{V_CT[0]}, s[{b}:{b+1}]", "vload", defs=[f"~ct"], uses=[f"v{V_CT[0]}"],
                        release=t, deadline=t + 48, tag="pf"))
    return out


def gen_body(o, xs, first=False):
    p = []
    ext = p.extend
    if o.ct:
        r = [int(x) for x in o.ct.split(",")]
        if first:
            ext(code_touch("L_loop", 2, r[0]))
        elif xs == 1:
            ext(code_touch("L_b0", 2, r[1]))
        else:
            ext(code_touch("L_tails", 3, r[2]))
    NM = 624 + (72 - 56 if first else 0)
    p.append(salu(f"s_add_u32 s{S_WCUR}, s{S_WCUR}, 1024", [f"s{S_WCUR}", "scc"], [f"s{S_WCUR}"], deadline=0))
    if xs == 0 and not first:
        p.append(salu(f"s_cmp_eq_u32 s{S_K}, 4", ["scc"], [f"s{S_K}"]))
        p.append(salu(f"s_cselect_b32 s{S_WCUR}, s{S_TW}, s{S_WCUR}", [f"s{S_WCUR}"], ["scc", f"s{S_TW}", f"s{S_WCUR}"]))
    ext(win_base(S_LB, S_WCUR, 27))
    p.append(salu(f"s_cmp_lt_u32 s{S_WCUR}, {NWIN}", ["scc"], [f"s{S_WCUR}"]))
    p.append(salu(f"s_cselect_b32 s6, {'0' if o.noload else 's31'}, 0", ["s6"], ["scc", "s31"]))
    if first:
        ext(n_dma(o.nd_rel, o.nd_step))
        ext(xloads(xs ^ 1, S_LB, o.ld_flags, o.ld_rel0, o.ld_step0))
    else:
        ext(xloads(xs ^ 1, S_LB, o.ld_flags, o.ld_rel, o.ld_step))
        ext(carry_head(o))

    def m49(ct, s):
        w = AW + 4 * ((72 + 6 * ct + s) % NRING)
        return mfma("a", AP[1 + (ct & 1)], "a", AX49 + 4 * s, "a", w, s == 0)

    def chain(mat, ct):
        out = []
        if first and mat == 1 and ct == 11:
            out += [m49(ct, s) for s in range(6)]
        for s in range(6):
            idx = 72 * mat + 6 * ct + s
            w = AW + 4 * (idx % NRING)
            for t in range(3):
                acc = ACC + 12 * (ct & 1) + 4 * t
                if mat == 0:
                    out.append(mfma("v", acc, "a", w, "a", xr(xs, t, s), s == 0))
                else:
                    out.append(mfma("v", acc, "a", xr(xs, t, s), "a", w, s == 0))
            if first and mat == 1 and ct < 11:
                out.append(m49(ct, s))
            kw = {}
            if idx + NRING >= 144:
                kw = dict(deadline=NM * 16 + 48 * (idx + NRING - 144) - 220)
            elif first and idx + NRING >= 72:
                if idx + NRING == 72:
                    out.append(Inst("s_barrier", "other", defs=["~nrdy"], uses=[f"ldsN{k}" for k in range(18)], release=o.nb_rel))
                kw = dict(extra=["~nrdy"])
            out.append(wfrag_read(idx + NRING, **kw))
        return out

    def cvt_t(ct):
        out = []
        for t in range(3):
            acc = ACC + 12 * (ct & 1) + 4 * t
            for h in range(2):
                out.append(cvtpk(TBF + 4 * t + 2 * (ct & 1) + h, acc + 2 * h, acc + 2 * h + 1))
        return out

    def cvt_vx(ct):
        out = cvt_v(ct) if ct < 11 else []
        if first:
            for h in range(2):
                src = AP[1 + (ct & 1)] + h
                out.append(valu(f"v_accvgpr_read_b32 v{V_T49[h]}, a{src}", [f"v{V_T49[h]}"], [f"a{src}"], deadline=NM * 16 - 40))
            out.append(cvtpk(vb(ct) + 6, V_T49[0], V_T49[1], deadline=NM * 16 - 40))
        return out

    def s_mf(sp):
        return [mfma("v", SB + 16 * q + 4 * kt, "a", xop(xs, kt, sp), "v", TBF + 4 * q, sp == 0)
                for q in range(3) for kt in range(4)]

    def o_grp(pr):
        out = o_mf(3, pr) + o_mf(0, pr) + o_pack(3, pr) + o_pack(0, pr)
        if pr == 3:
            out += o_store(3, 0, o.st_flags) + o_store(0, 0, o.st_flags)
        return out

    grp = iter(range(12))

    def carried():
        g = next(grp)
        return [] if first else carry_grp(o, g, SB + 56, True)

    ext(chain(0, 0))
    if not first:
        ext(carry_30(o))
    ext(slot_masks())
    ext(cvt_t(0))
    ext(chain(0, 1))
    ext(s3(xs))
    ext(softmax(3, 1))
    ext(cvt_t(1))
    for ct in range(2, 12):
        ext(chain(0, ct))
        if ct >= 4 and ct % 2 == 0:
            ext(carried())
        if ct % 2 == 0:
            ext(s_mf(ct // 2 - 1))
        ext(cvt_t(ct))
        if ct >= 4:
            ext(carried())
    ext(row_bases())
    p.append(salu(f"s_mov_b32 s{S_CB}, s{S_LB}", [f"s{S_CB}"], [f"s{S_LB}"]))
    if first:
        ext(xtrans(xs ^ 1, o.xw_rel0, o.xw_step0))
    else:
        ext(xtrans(xs ^ 1, o.xw_rel, o.xw_step))
    ext(chain(1, 0))
    ext(s_mf(5))
    for q in range(3):
        ext(softmax(q, q & 1, 1 if q in o.defer else 3, q > 0))
    ext(cvt_vx(0))
    after = dict(zip([int(x) for x in o.after.split(",")], range(5)))
    for ct in range(1, 12):
        ext(chain(1, ct))
        if ct in after:
            ext(o_grp(after[ct]))
        ext(cvt_vx(ct))
    assert sum(i.kind == "mfma" for i in p) == NM
    for i in p:
        if i.kind != "mfma" and i.deadline is None and i.kind != "dsr":
            i.deadline = NM * 16 - 24
    if o.rmload:
        p = [i for i in p if i.kind != "vload"]
    if o.rmstore:
        p = [i for i in p if i.kind != "vstore"]
    return p


def gen_epi(o):
    p = carry_head(o)
    for g in range(3):
        p += carry_grp(o, g, SB + 16 + 8 * (g % 4))
    p += carry_30(o)
    for g in range(3, 12):
        p += carry_grp(o, g, SB + 16 + 8 * (g % 4))
    return p


def gen_tail(o, q):
    xs = 1
    p = []
    ext = p.extend
    own = [2 * q, 2 * q + 1] if q < 3 else list(range(6, 12))
    ext(carry_head(o))
    p.append(Inst("s_barrier", "other", defs=["~bA"], deadline=0))
    seq = []
    if q < 3:
        seq += [6 * (2 * c + e) + s for c in range(6) for s in range(6) for e in range(2)]
    seq += [72 + 6 * ct + s for ct in own for s in range(6)]

    def vchain(ct, mid=None):
        for s in range(6):
            w, nxt = ring.take()
            for t in range(3):
                p.append(mfma("v", ACC + 12 * (ct & 1) + 4 * t, "a", xr(xs, t, s), "a", w, s == 0))
            ext(nxt)
            if mid and s == o.tail_s:
                ext(mid)

    if q < 3:
        ring = Ring(seq, have={i: i for i in range(NRING)})
        grp = iter(range(12))
        for c in range(6):
            for s in range(6):
                for e in range(2):
                    w, nxt = ring.take()
                    p.append(mfma("v", ACC + 8 * (c % 3) + 4 * e, "a", w, "a", xr(xs, q, s), s == 0))
                    ext(nxt)
                if c and s in ((1, 3, 5) if c in (1, 2) else (2, 5)):
                    g = next(grp)
                    ext(carry_grp(o, g, SB + 48 + 8 * (g & 1)))
            if c == 0:
                ext(carry_30(o))
                ext(slot_masks())
            if c:
                ext(mfma("v", SB + 16 * q + 4 * kt, "a", xop(xs, kt, c - 1), "v", TBF + 4 * ((c - 1) & 1), c == 1) for kt in range(4))
            for e in range(2):
                for h in range(2):
                    acc = ACC + 8 * (c % 3) + 4 * e
                    p.append(cvtpk(TBF + 4 * (c & 1) + 2 * e + h, acc + 2 * h, acc + 2 * h + 1))
        ext(row_bases())
    else:
        ring = Ring(seq)
        ext(ring.fill())
        for g in range(3):
            ext(carry_grp(o, g, SB + 16 + 8 * (g % 4)))
        ext(carry_30(o))
        ext(slot_masks())
        for g in range(3, 6):
            ext(carry_grp(o, g, SB + 16 + 8 * (g % 4)))
        ext(s3(xs))
        ext(softmax(3, 1))
        for g in range(6, 12):
            ext(carry_grp(o, g, SB + 16 + 8 * (g % 4)))
        ext(row_bases())
    wr = []
    for k, ct in enumerate(own):
        mid = None
        if q < 3 and k == 0:
            mid = [mfma("v", SB + 16 * q + 4 * kt, "a", xop(xs, kt, 5), "v", TBF + 4, False) for kt in range(4)]
            mid += softmax(q, q & 1)
        vchain(ct, mid)
        ext(cvt_v(ct))
        for h, n in ((0, 4), (1, 2)):
            va, imm = lds_at(72 + 6 * ct + h)
            w = Inst(f"ds_write_b{32 * n} v{va}, {T('v', vb(ct) + 4 * h, n)} offset:{imm}", "dsw", defs=[f"~x{ct}{h}"],
                     uses=R('v', vb(ct) + 4 * h, n) + [f"v{va}", "~bA"])
            w.real, w.busy = 4 + 4 * n, DSW_BUSY
            p.append(w)
            wr.append(f"~x{ct}{h}")
    p.append(Inst("s_waitcnt lgkmcnt(0)", "wait", defs=["~wB"], uses=wr))
    p.append(Inst("s_barrier", "other", defs=["~bB"], uses=["~wB"]))
    order = sorted(range(6), key=lambda pr: (2 * pr not in own, pr))
    for pr in order:
        for ct in (2 * pr, 2 * pr + 1):
            if ct in own:
                continue
            for h, n in ((0, 4), (1, 2)):
                va, imm = lds_at(72 + 6 * ct + h)
                p.append(Inst(f"ds_read_b{32 * n} {T('v', vb(ct) + 4 * h, n)}, v{va} offset:{imm}", "dsr",
                              defs=R('v', vb(ct) + 4 * h, n), uses=[f"v{va}", "~bB"]))
    accs = [SB + 16 * a + b for a in range(4) if a != q for b in (0, 8)]
    for k, pr in enumerate(order):
        ext(o_mf(q, pr, accs[k]))
        ext(o_pack(q, pr, accs[k]))
        for part, grp2 in ((0, (0, 1, 2, 3)), (1, (4, 5))):
            if pr in grp2 and all(g in order[:k + 1] for g in grp2):
                ext(o_store(q, part, o.st_flags))
    return p


def gen_p49():
    ring = Ring([6 * (2 * c + e) + s for c in range(6) for s in range(6) for e in range(2)])
    pre = ring.fill()
    p = []
    for c in range(6):
        for s in range(6):
            for e in range(2):
                w, nxt = ring.take()
                p.append(mfma("v", SB + 8 * (c & 1) + 4 * e, "a", w, "a", AX49 + 4 * s, s == 0))
                p.extend(nxt)
        for e in range(2):
            acc = SB + 8 * (c & 1) + 4 * e
            for h in range(2):
                tmp = SB + 16 + 4 * (c & 1) + 2 * e + h
                p.append(cvtpk(tmp, acc + 2 * h, acc + 2 * h + 1))
                d = AT49 + 4 * c + 2 * e + h
                p.append(valu(f"v_accvgpr_write_b32 a{d}, v{tmp}", [f"a{d}"], [f"v{tmp}"]))
    return pre, p


def gen_prologue(o):
    p = []
    a = p.append
    a(raw("s_cmp_lt_u32 s2, 256", "salu", ["scc"], ["s2"]))
    a(raw("s_cbranch_scc1 L_go"))
    a(raw("L_pad_entry:", "label"))
    a(raw("s_endpgm"))
    a(raw("L_go:", "label"))
    a(raw("s_load_dwordx2 s[32:33], s[0:1], 0"))
    a(raw("s_load_dwordx2 s[36:37], s[0:1], 40"))
    a(raw("s_load_dwordx2 s[34:35], s[0:1], 24"))
    if o.diag:
        a(raw("s_memtime s[44:45]"))
        a(raw("s_memrealtime s[46:47]"))
    a(v3("v_and_b32", "v1", "63", "v0"))
    a(v3("v_lshrrev_b32", "v2", "6", "v0"))
    a(v3("v_and_b32", "v3", "15", "v1"))
    a(valu("v_readfirstlane_b32 s38, v2", ["s38"], ["v2"]))
    a(v3("v_lshrrev_b32", "v4", "4", "v1"))
    a(v3("v_lshlrev_b32", f"v{V_LDS[0]}", "4", "v1"))
    a(salu("s_lshl_b32 s16, s2, 2", ["s16", "scc"], ["s2"]))
    a(salu(f"s_mov_b32 s29, {MAGIC73}", ["s29"], []))
    a(salu(f"s_mov_b32 s31, {XBYTES}", ["s31"], []))
    a(salu("s_add_u32 s16, s16, s38", ["s16", "scc"], ["s16", "s38"]))
    a(salu(f"s_add_u32 s{S_TW}, s2, 5120", [f"s{S_TW}", "scc"], ["s2"]))
    a(v3("v_mov_b32", f"v{V_NINF}", "0xff800000"))
    a(v3("v_lshrrev_b32", "v5", "2", "v3"))
    a(v3("v_and_b32", "v6", "3", "v3"))
    a(v3("v_lshl_add_u32", "v8", "v6", "2", "v5"))
    a(v3("v_lshlrev_b32", "v5", "10", "v8"))
    a(v3("v_add_u32", "v5", "s16", "v5"))
    a(v3("v_mov_b32", "v9", f"s{S_TW}"))
    a(valu("v_cmp_eq_u32 vcc, 5, v8", ["vcc"], ["v8"]))
    a(valu("v_cndmask_b32 v5, v5, v9, vcc", ["v5"], ["v5", "v9", "vcc"]))
    a(v3("v_mul_hi_u32", "v6", "v5", "s29"))
    a(v3("v_mul_u32_u24", "v7", "73", "v6"))
    a(v3("v_sub_u32", "v7", "v5", "v7"))
    a(v3("v_mul_u32_u24", "v7", "0xa80", "v7"))
    a(salu(f"s_mov_b32 s43, {WINROW}", ["s43"], []))
    a(v3("v_mul_lo_u32", "v6", "v6", "s43"))
    a(v3("v_add_u32", "v6", "v6", "v7"))
    a(v3("v_lshl_add_u32", "v6", "v4", "4", "v6"))
    a(v3("v_add_u32", "v6", str(6 * ROWB + 6 * 384), "v6"))
    a(valu(f"v_cmp_gt_u32 vcc, {NWIN}, v5", ["vcc"], ["v5"]))
    a(valu(f"v_cndmask_b32 v14, v{V_NINF}, v6, vcc", ["v14"], [f"v{V_NINF}", "v6", "vcc"]))
    a(salu("s_lshr_b32 s40, s2, 3", ["s40", "scc"], ["s2"]))
    a(salu("s_mul_i32 s43, s38, 6", ["s43"], ["s38"]))
    a(salu("s_add_u32 s42, s40, s43", ["s42", "scc"], ["s40", "s43"]))
    for _ in range(2):
        a(salu("s_sub_u32 s43, s42, 24", ["s43", "scc"], ["s42"]))
        a(salu("s_cselect_b32 s42, s42, s43", ["s42"], ["scc", "s42", "s43"]))
    a(salu("s_mul_i32 s42, s42, 3072", ["s42"], ["s42"]))
    a(salu("s_mul_i32 s75, s38, 18432", ["s75"], ["s38"]))
    a(salu(f"s_add_u32 s75, s75, {NBASE}", ["s75", "scc"], ["s75"]))
    p.extend(win_base(S_CB, S_WCUR, 30))
    a(salu(f"s_mov_b32 s39, {ROWB}", ["s39"], []))
    a(v3("v_bfe_u32", "v5", "v1", "3", "2"))
    a(v3("v_lshrrev_b32", "v6", "5", "v1"))
    a(v3("v_and_b32", "v12", "7", "v1"))
    a(v3("v_xor_b32", "v12", "v12", "v4"))
    a(v3("v_lshlrev_b32", "v12", "4", "v12"))
    a(v3("v_xor_b32", "v13", "64", "v12"))
    a(v3("v_mul_lo_u32", "v7", "v5", "s39"))
    a(v3("v_mul_u32_u24", "v8", "0x180", "v6"))
    a(v3("v_add_u32", "v9", "v7", "v8"))
    a(v3("v_add_u32", f"v{V_G[0]}", "v9", "v12"))
    a(v3("v_add_u32", "v9", "0x300", "v9"))
    a(v3("v_add_u32", f"v{V_G[1]}", "v9", "v13"))
    for i in range(1, 4):
        a(valu(f"v_cmp_eq_u32 s[{64 + 2 * i}:{65 + 2 * i}], {i}, v5", [f"s{64 + 2 * i}", f"s{65 + 2 * i}"], ["v5"]))
    a(valu("v_cmp_eq_u32 s[64:65], 1, v6", ["s64", "s65"], ["v6"]))

    def g_offsets(t):
        for hf in range(2):
            dst = f"v{V_G[2 * t + hf]}"
            for i in range(4):
                offs = []
                for bb in range(2):
                    r, c = token(t, 4 * (2 * hf + bb) + i)
                    offs.append(r * ROWB + c * 384)
                a(v3("v_mov_b32", "v7", str(offs[0])))
                a(v3("v_mov_b32", "v8", str(offs[1])))
                if i == 0:
                    a(cnd("v9", "v7", "v8", 64))
                else:
                    a(cnd("v7", "v7", "v8", 64))
                    a(cnd("v9", "v9", "v7", 64 + 2 * i))
            a(v3("v_add_u32", dst, "v9", ("v12", "v13")[hf]))

    def x_dma(t):
        for j in range(3):
            for hf in range(2):
                g = 2 * t + hf
                a(salu(f"s_add_u32 m0, s75, {(3 * t + j) * 2048 + 1024 * hf - 128 * j}", ["m0", "scc"], ["s75"]))
                a(Inst(f"buffer_load_dwordx4 v{V_G[g]}, s[4:7], s{S_CB} offen offset:{128 * j}{o.ld_flags} lds", "ldsdma",
                       uses=[f"v{V_G[g]}", f"s{S_CB}", "m0"]))

    def m_dma():
        for g in range(6):
            if g:
                a(salu("s_add_u32 s42, s42, 3072", ["s42", "scc"], ["s42"]))
                a(salu("s_cmp_eq_u32 s42, 73728", ["scc"], ["s42"]))
                a(salu("s_cselect_b32 s42, 0, s42", ["s42"], ["scc", "s42"]))
            a(salu("s_mov_b32 m0, s42", ["m0"], ["s42"]))
            for k in range(3):
                a(Inst(f"buffer_load_dwordx4 v{V_LDS[0]}, s[12:15], s42 offen offset:{1024 * k} lds", "ldsdma",
                       uses=[f"v{V_LDS[0]}", "s42", "m0"]))

    g_offsets(1)
    a(raw("s_waitcnt lgkmcnt(0)", "wait"))
    if o.diag:
        a(v3("v_mov_b32", f"v{V_TIME}", "s44"))
        a(valu(f"v_writelane_b32 v{V_TIME}, s46, 62", [f"v{V_TIME}"], ["s46"]))
    if o.pstamp:
        p.extend(stamp3(55))
    srd(a, 4, 32, "s31")
    srd(a, 12, 36, "147456" if not o.diag else str(WS_TIME_OFF + 1024 * 256))
    for s in range(6):
        a(Inst(f"buffer_load_dwordx4 {T('a', AX49 + 4 * s, 4)}, v14, s[4:7], 0 offen offset:{64 * s}", "vload",
               defs=R('a', AX49 + 4 * s, 4), uses=["v14"]))
    behind_m = 0
    for k, ch in enumerate(o.order):
        if ch == "m":
            m_dma()
            behind_m = 6 * (len(o.order) - 1 - k)
            if o.pstamp:
                p.extend(stamp3(56))
        else:
            if ch == "2":
                g_offsets(2)
            x_dma(int(ch))
    if o.pstamp:
        p.extend(stamp3(57))
    a(v3("v_add_u32", f"v{V_LDS[1]}", "0x10000", f"v{V_LDS[0]}"))
    a(v3("v_add_u32", f"v{V_LDS[2]}", "0x20000", f"v{V_LDS[0]}"))
    srd(a, 8, 34, "0" if o.nostore else "s31")
    srd(a, S_SPA, 34, "0")
    if DROP:
        srd(a, 80, 34, "0")
    srd(a, S_SPB, 34, "0")
    a(salu("s_mul_i32 s42, s40, 43", ["s42"], ["s40"]))
    a(salu("s_lshr_b32 s42, s42, 8", ["s42", "scc"], ["s42"]))
    a(salu("s_mul_i32 s42, s42, 6", ["s42"], ["s42"]))
    a(salu("s_sub_u32 s42, s40, s42", ["s42", "scc"], ["s40", "s42"]))
    a(salu("s_mul_i32 s42, s42, 3072", ["s42"], ["s42"]))
    a(salu("s_lshl_b32 s41, s38, 12", ["s41", "scc"], ["s38"]))
    a(salu(f"s_add_u32 s41, s41, {STAGE}", ["s41", "scc"], ["s41"]))
    a(v3("v_add_u32", f"v{V_WR}", "s41", f"v{V_LDS[0]}"))
    a(v3("v_lshrrev_b32", "v5", "1", "v3"))
    a(v3("v_xor_b32", "v5", "v5", "v4"))
    a(v3("v_lshlrev_b32", "v5", "4", "v5"))
    a(v3("v_lshl_add_u32", "v5", "v3", "7", "v5"))
    a(v3("v_add_u32", f"v{V_RD[0]}", "s41", "v5"))
    a(v3("v_xor_b32", f"v{V_RD[1]}", "64", f"v{V_RD[0]}"))
    V_R0 = V_TMP[0][:2]
    a(v3("v_add_u32", f"v{V_R0[0]}", "s75", "v5"))
    a(v3("v_xor_b32", f"v{V_R0[1]}", "64", f"v{V_R0[0]}"))
    V_N16, V_N8 = 15, 16
    a(v3("v_lshlrev_b32", f"v{V_N16}", "4", "v3"))
    a(v3("v_lshlrev_b32", f"v{V_N8}", "3", "v3"))
    a(v3("v_mul_u32_u24", "v5", "0x180", "v4"))
    a(v3("v_mul_lo_u32", "v6", "v4", "s39"))
    a(v3("v_lshrrev_b32", "v7", "1", "v4"))
    a(v3("v_mul_lo_u32", "v7", "v7", "s39"))
    a(v3("v_and_b32", "v8", "1", "v4"))
    a(v3("v_mul_u32_u24", "v8", "0x180", "v8"))
    a(v3("v_add_u32", "v7", "v7", "v8"))
    for g in range(4):
        r, c = I_TOK[g]
        off = (r - 4) * ROWB + c * 384
        if g == 0:
            a(v3("v_mov_b32", "v8", str(off)))
        else:
            a(valu(f"v_cmp_eq_u32 vcc, {g}, v4", ["vcc"], ["v4"]))
            a(v3("v_mov_b32", "v9", str(off)))
            a(valu("v_cndmask_b32 v8, v8, v9, vcc", ["v8"], ["v8", "v9", "vcc"]))
    for kind, src in (("H", "v5"), ("V", "v6"), ("Q", "v7"), ("I", "v8")):
        a(v3("v_add_u32", f"v{V_ST[kind][0]}", src, f"v{V_N16}"))
        a(v3("v_add_u32", f"v{V_ST[kind][1]}", src, f"v{V_N8}"))
    for ct in range(12):
        a(v3("v_mov_b32", f"v{vb(ct) + 7}", "0"))
    for q in (1, 2):
        a(valu(f"v_accvgpr_write_b32 a{AP[q] + 7}, 0", [f"a{AP[q] + 7}"], []))
    a(salu(f"s_mov_b32 s{S_K}, 0", [f"s{S_K}"], []))
    if o.ct:
        a(raw("s_getpc_b64 s[78:79]", "salu", ["s78", "s79"]))
        a(raw("L_here:", "label"))
        for k, (lb, n) in enumerate(CT):
            ex = f"{lb}-L_here+{8192 * n}" if k < 6 else "L_main_done-L_here-8064"
            a(salu(f"s_add_u32 s{84 + 2 * k}, s78, {ex}", [f"s{84 + 2 * k}", "scc"], ["s78"]))
            a(salu(f"s_addc_u32 s{85 + 2 * k}, s79, 0", [f"s{85 + 2 * k}", "scc"], ["s79", "scc"]))
        a(v3("v_lshlrev_b32", f"v{V_CT[0]}", "3", f"v{V_LDS[0]}"))
    if o.wb:
        kk, lo, hi = [int(x) for x in o.wb.split(",")]
        a(salu(f"s_sub_u32 s76, s2, {lo}", ["s76", "scc"], ["s2"]))
        a(salu(f"s_cmp_lt_u32 s76, {hi - lo}", ["scc"], ["s76"]))
        a(salu(f"s_cselect_b32 s76, {kk}, 99", ["s76"], ["scc"]))
        a(salu("s_cmp_eq_u32 s38, 0", ["scc"], ["s38"]))
        a(salu("s_cselect_b32 s76, s76, 99", ["s76"], ["scc", "s76"]))
    a(salu("s_mov_b32 s40, 0xffff", ["s40"], []))
    a(salu("s_mov_b32 s41, 0", ["s41"], []))
    if o.diag:
        a(salu(f"s_mov_b32 s{S_IT}, 1", [f"s{S_IT}"], []))
        a(salu("s_mov_b32 s72, 10", ["s72"], []))
    a(raw(f"s_waitcnt vmcnt({behind_m})", "wait"))
    a(raw("s_barrier"))
    if o.pstamp:
        p.extend(stamp3(58))
    pre, q = gen_p49()
    p.extend(pre)
    q, _ = schedule2(q)
    q = insert_waits(q, pre=pre)
    p.extend(q)
    if o.pstamp:
        p.extend(stamp3(59))
    for s in range(NRING):
        a(wfrag_read(s))
    for t in range(3):
        a(raw(f"s_waitcnt vmcnt({6 * (2 - t) if o.order.endswith('012') else 0})", "wait"))
        if o.pstamp and t == 2:
            p.extend(stamp3(60))
        for j in range(3):
            for u in range(2):
                d = xr(0, t, 2 * j + u)
                a(Inst(f"ds_read_b128 {T('a', d, 4)}, v{V_R0[u]} offset:{2048 * (3 * t + j)}", "dsr", defs=R('a', d, 4),
                       uses=[f"v{V_R0[u]}"]))
    a(raw("s_waitcnt lgkmcnt(0)", "wait"))
    if o.pstamp:
        p.extend(stamp3(61))
    return p


def stamp3(lane):
    return [raw("s_memtime s[44:45]"), raw("s_waitcnt lgkmcnt(0)", "wait"),
            valu(f"v_writelane_b32 v{V_TIME}, s44, {lane}", [f"v{V_TIME}"], ["s44"])]


def stamp():
    return [raw("s_memtime s[44:45]"), raw("s_memrealtime s[46:47]"), salu(f"s_mov_b32 m0, s{S_IT}", ["m0"], [f"s{S_IT}"]), raw("s_waitcnt lgkmcnt(0)", "wait"),
            valu(f"v_writelane_b32 v{V_TIME}, s44, m0", [f"v{V_TIME}"], ["s44", "m0"]),
            salu(f"s_add_u32 m0, s{S_IT}, 43", ["m0", "scc"], [f"s{S_IT}"]),
            valu(f"v_writelane_b32 v{V_TIME}, s46, m0", [f"v{V_TIME}"], ["s46", "m0"]),
            salu(f"s_add_u32 s{S_IT}, s{S_IT}, 1", [f"s{S_IT}", "scc"], [f"s{S_IT}"])]


def stamp2():
    return [raw("s_memtime s[44:45]"), salu("s_mov_b32 m0, s72", ["m0"], ["s72"]), raw("s_waitcnt lgkmcnt(0)", "wait"),
            valu(f"v_writelane_b32 v{V_TIME}, s44, m0", [f"v{V_TIME}"], ["s44", "m0"]),
            salu("s_add_u32 s72, s72, 1", ["s72", "~scc"], ["s72"])]


def add_stamps(body, pts):
    out = []
    k = 0
    for i in body:
        if i.kind == "mfma":
            if k in pts:
                st = stamp2()
                st[-1] = raw("s_addk_i32 s72, 1", "salu", ["s72"], ["s72"])
                out.extend(st)
            k += 1
        out.append(i)
    return out


def texts(l):
    return [i.text for i in l]


def gen_main(o):
    pro = insert_nops(gen_prologue(o))
    pts = [int(x) for x in o.pts.split(",")] if o.pts else None

    def build(prog):
        body, cyc = schedule2(prog, verbose=o.verbose, urgent=o.urgent)
        if not o.verbose:
            print("; model cycles", cyc)
        return body, cyc

    def waits(body, cyc, pre):
        return insert_waits(body, pre=pre, early_lgkm=(o.early, cyc) if o.early else 0,
                            early_vm=(o.early_vm, cyc) if o.early_vm else 0)

    head = lambda: stamp() if o.diag else []
    bp, cp = build(gen_body(o, 0, True))
    if pts:
        bp = add_stamps(bp, pts)
    bp = head() + bp
    bodies = []
    for xs in range(2):
        body, cyc = build(gen_body(o, xs))
        if pts:
            body = add_stamps(body, pts)
        tail = [salu(f"s_cmp_lt_u32 s{S_K}, 5", ["scc"], [f"s{S_K}"]), raw("s_cbranch_scc1 L_loop")] if xs == 0 else []
        wb = []
        if o.wb and (int(o.wb.split(",")[0]) & 1) == xs:
            wb = [salu(f"s_cmp_eq_u32 s76, s{S_K}", ["scc"], ["s76", f"s{S_K}"]), raw("s_cbranch_scc0 L_nowb"),
                  raw("buffer_wbl2 " + o.wb_flags), raw("L_nowb:", "label")]
        bodies.append(head() + wb + body + tail)
    wp = waits(bp, cp, pro)
    for i in wp:
        if i.time is not None:
            i.time -= cp - cyc
    w = [None, waits(bodies[1], cyc, wp)]
    first1 = texts(w[1])
    for it in range(3):
        w[0] = waits(bodies[0], cyc, w[1])
        w[1] = waits(bodies[1], cyc, w[0])
    if first1 != texts(w[1]):
        print("; waits differ between the entries of body 1: merging")
        w[1] = merge_waits(waits(bodies[1], cyc, wp), w[1])
        chk = waits(bodies[0], cyc, w[1])
        w[0] = merge_waits(chk, w[0])
    wp, w = hoist_waits(wp), [hoist_waits(x) for x in w]
    npk = insert_nops(wp, pre=[pro])
    n = [None, insert_nops(w[1], pre=[npk])]
    for it in range(3):
        n[0] = insert_nops(w[0], pre=[n[1]])
        n[1] = insert_nops(w[1], pre=[npk, n[0]])
    disp = head() + ([raw("s_mov_b32 s10, 0")] if o.tnostore else []) + [salu("s_cmp_ge_u32 s2, 209", ["scc"], ["s2"]), raw("s_cbranch_scc1 L_epi")]
    for q in range(3):
        disp += [salu(f"s_cmp_eq_u32 s38, {q}", ["scc"], ["s38"]), raw(f"s_cbranch_scc1 L_tail{q}")]
    end = [raw("s_branch L_fin")] if o.diag else [raw("s_endpgm")]
    for i in w[0]:
        i.time = None
    tails = []
    for q in (3, 0, 1, 2):
        t, c = build(gen_tail(o, q))
        if o.tpts:
            t = add_stamps(t, [int(x) for x in o.tpts.split(",")])
        t = insert_waits(t, pre=w[0], early_lgkm=(o.early, 1 << 30))
        t = insert_nops(t, pre=[n[0]])
        if q != 3:
            tails += [raw(".p2align 6", "label"), raw(f"L_pad_t{q}:", "label"), raw("s_endpgm")]
        tails += [raw(f"L_tail{q}:", "label")] + t + end
    epi = insert_nops(insert_waits(build(gen_epi(o))[0], pre=w[0]), pre=[n[0]])
    print('; replay', model_time(npk), model_time(n[1]), model_time(n[0]))
    fin = []
    if o.diag:
        fin += [raw("L_fin:", "label")] + stamp()
        fin += [raw("s_waitcnt vmcnt(0)", "wait")] + stamp()
        fin += [raw("s_memrealtime s[46:47]"), raw("s_waitcnt lgkmcnt(0)", "wait"),
                valu(f"v_writelane_b32 v{V_TIME}, s46, 63", [f"v{V_TIME}"], ["s46"])]
        fin += [v3("v_lshrrev_b32", "v0", "2", f"v{V_LDS[0]}"),
                salu("s_lshl_b32 s42, s2, 2", ["s42", "scc"], ["s2"]),
                salu("s_add_u32 s42, s42, s38", ["s42", "scc"], ["s42", "s38"]),
                salu("s_lshl_b32 s42, s42, 8", ["s42", "scc"], ["s42"]),
                salu(f"s_add_u32 s42, s42, {WS_TIME_OFF}", ["s42", "scc"], ["s42"]),
                Inst(f"buffer_store_dword v{V_TIME}, v0, s[12:15], s42 offen", "vstore", uses=[f"v{V_TIME}", "v0", "s42"])]
        fin = insert_nops(fin)
    stats = {}
    for i in n[0]:
        stats[i.kind] = stats.get(i.kind, 0) + 1
    print("; body stats", stats, file=sys.stderr)
    return (emit(pro) + "\n" + emit(npk) + "\n.p2align 6\nL_loop:\n" + emit(n[1]) + "\nL_b0:\n" + emit(n[0]) + "\nL_tails:\n" + emit(disp) + "\n"
            + emit(tails) + "\n.p2align 6\nL_pad_epi:\n    s_endpgm\nL_epi:\n" + emit(epi) + "\n" + emit(fin) + "\nL_main_done:\n    s_endpgm\n")


def merge_waits(x, y):
    def split(l):
        out, cur = [], {}
        for i in l:
            if i.kind == "wait" and not i.defs and not i.uses:
                for nm, v in re.findall(r"(vmcnt|lgkmcnt)\((\d+)\)", i.text):
                    cur[nm] = min(cur.get(nm, 99), int(v))
            else:
                out.append((cur, i))
                cur = {}
        return out
    a, b = split(x), split(y)
    assert [i.text for _, i in a] == [i.text for _, i in b]
    out = []
    for (wa, i), (wb, _) in zip(a, b):
        m = {k: min(wa.get(k, 99), wb.get(k, 99)) for k in set(wa) | set(wb)}
        if m:
            w = Inst("s_waitcnt " + " ".join(f"{k}({m[k]})" for k in ("vmcnt", "lgkmcnt") if k in m), "wait")
            w.time = i.time
            out.append(w)
        out.append(i)
    return out


def emit(insts):
    out = []
    for i in insts:
        out.append(i.text if i.kind == "label" else "    " + i.text)
    return "\n".join(out)


HEADER = """; Swin window attention: folded projections (M = a*Wq*Wk^T, N = Wv*Wo), one wave per window.
; @launch kernel=swin_prep_kernel grid=(@PGRID@,1,1) block=(64,1,1) lds=0
; @launch kernel={name}_kernel grid=(256,1,1) block=(256,1,1) lds=163840
.amdgcn_target "amdgcn-amd-amdhsa--gfx950"
.text
"""

KD = """.amdhsa_kernel {k}
  .amdhsa_next_free_vgpr {nv}
  .amdhsa_next_free_sgpr {ns}
  .amdhsa_accum_offset {ao}
  .amdhsa_group_segment_fixed_size 0
  .amdhsa_kernarg_size 48
  .amdhsa_user_sgpr_count 2
  .amdhsa_user_sgpr_kernarg_segment_ptr 1
  .amdhsa_system_sgpr_workgroup_id_x 1
.end_amdhsa_kernel
"""


def finish(s, pads, rep):
    t = ["    s_sub_u32 s3, s2, 144", "    s_lshr_b32 s3, s3, 3"]
    for i, p in enumerate(pads * rep):
        t += [f"    s_cmp_eq_u32 s3, {i}", f"    s_cbranch_scc1 {p}"]
    return s.replace("@TOUCH@", "\n".join(t)).replace("@PGRID@", str(144 + 8 * len(pads) * rep))


def layout(s):
    import subprocess
    open("_lay.s", "w").write(s)
    subprocess.run(["clang", "-x", "assembler", "-target", "amdgcn-amd-amdhsa", "-mcpu=gfx950", "-c",
                    "_lay.s", "-o", "_lay.o"], check=True)
    d = subprocess.run(["llvm-objdump", "-d", "_lay.o"], capture_output=True, text=True).stdout
    return [(int(m.group(2), 16), m.group(1)) for m in re.finditer(r"^\t(\S+).*// ([0-9A-F]{12}):", d, flags=re.M)]


def add_pads(s, k, o):
    pads = ["L_pad_entry", "L_pad_t0", "L_pad_t1", "L_pad_t2", "L_pad_epi"]
    if o.nopad:
        return finish(s, [], 1)
    page = 1
    while True:
        lines = s.split("\n")
        ins = layout(finish(s, pads, o.touch_rep))
        start = lines.index(k + ":")
        base = max(a for a, op in ins if op == "s_cmp_lt_u32" and a % 4096 == 0)
        lst = [x for x in ins if x[0] >= base]
        src = [i for i in range(start, len(lines)) if lines[i].startswith("    ") and not lines[i].startswith("  .")]
        pos = []
        j = 0
        for i in src:
            op = lines[i].split()[0]
            while lst[j][1].replace("_e32", "").replace("_e64", "") != op:
                assert lst[j][1] == "s_nop", (lst[j], op)
                j += 1
            pos.append((i, lst[j][0], op))
            j += 1
        lo = base + 4096 * page
        if lo > pos[-1][1]:
            break
        cand = [(n, x) for n, x in enumerate(pos) if lo - 4 <= x[1] <= lo + 52]
        if any(x[2] == "s_endpgm" and x[1] >= lo for n, x in cand):
            n, x = [c for c in cand if c[1][2] == "s_endpgm" and c[1][1] >= lo][0]
            lines.insert(x[0], f"L_pad{page}:")
        else:
            good = [c for c in cand if pos[c[0] - 1][2].startswith("v_mfma") and c[1][2].startswith(("v_", "ds_"))
                    and pos[c[0] - 1][0] == c[1][0] - 1]
            n, x = (good or [c for c in cand if pos[c[0] - 1][0] == c[1][0] - 1])[0]
            lines[x[0]:x[0]] = [f"    s_branch L_skip{page}", f"L_pad{page}:", "    s_endpgm", f"L_skip{page}:"]
        pads.append(f"L_pad{page}")
        s = "\n".join(lines)
        page += 1
    print("; pads", len(pads), file=sys.stderr)
    return finish(s, pads, o.touch_rep)


def main():
    ap = argparse.ArgumentParser()
    ap.add_argument("-o", default="cdna_kernels/" + NAME + ".s")
    ap.add_argument("--diag", action="store_true")
    ap.add_argument("--pts", default="")
    ap.add_argument("--wb", default="")
    ap.add_argument("--ct", default="")
    ap.add_argument("--wb_flags", default="sc1")
    ap.add_argument("--tpts", default="")
    ap.add_argument("--gap", type=int, default=8)
    ap.add_argument("--early", type=int, default=230)
    ap.add_argument("--early_vm", type=int, default=1500)
    ap.add_argument("--ld_rel", type=int, default=600)
    ap.add_argument("--ld_step", type=int, default=250)
    ap.add_argument("--xw_rel", type=int, default=4800)
    ap.add_argument("--xw_step", type=int, default=520)
    ap.add_argument("--ld_rel0", type=int, default=1200)
    ap.add_argument("--ld_step0", type=int, default=280)
    ap.add_argument("--xw_rel0", type=int, default=5600)
    ap.add_argument("--xw_step0", type=int, default=560)
    ap.add_argument("--nd_rel", type=int, default=0)
    ap.add_argument("--nd_step", type=int, default=48)
    ap.add_argument("--nb_rel", type=int, default=3800)
    ap.add_argument("--tail_s", type=int, default=1)
    ap.add_argument("--order", default="m012")
    ap.add_argument("--defer", default="12")
    ap.add_argument("--after", default="5,6,7,8,10")
    ap.add_argument("--urgent", type=int, default=0)
    ap.add_argument("--touch_rep", type=int, default=1)
    ap.add_argument("--ld_grp", type=int, default=1)
    ap.add_argument("--q2p0", default="0,0")
    ap.add_argument("--q2p1", default="0,0")
    ap.add_argument("--dsw_busy", type=int, default=40)
    ap.add_argument("--st_busy", type=int, default=150)
    ap.add_argument("--ld_flags", default="")
    ap.add_argument("--st_flags", default="")
    ap.add_argument("--st_flags0")
    ap.add_argument("--st_flags1")
    ap.add_argument("--drop", default="")
    for f in ("noload", "nostore", "rmload", "rmstore", "pstamp", "verbose", "nopad", "tnostore"):
        ap.add_argument("--" + f, action="store_true")
    o = ap.parse_args()
    o.defer = [int(c) for c in o.defer]
    if o.ld_flags:
        o.ld_flags = " " + o.ld_flags
    if o.st_flags:
        o.st_flags = " " + o.st_flags
    global DSW_BUSY, ST_BUSY, LD_GRP
    DROP.extend(int(c) for c in o.drop)
    for k, f in enumerate((o.st_flags0, o.st_flags1)):
        if f is not None:
            PFLAGS[k] = " " + f if f else ""
    DSW_BUSY, ST_BUSY, LD_GRP = o.dsw_busy, o.st_busy, o.ld_grp
    old = sys.stdout
    sys.stdout = sys.stderr
    prep = gen_prep(o)
    main_text = gen_main(o)
    sys.stdout = old
    s = HEADER.format(name=NAME)
    s += ".globl swin_prep_kernel\n.p2align 8\n.type swin_prep_kernel,@function\nswin_prep_kernel:\n"
    s += emit(prep) + "\n"
    k = NAME + "_kernel"
    s += f".globl {k}\n.p2align 12\n.type {k},@function\n{k}:\n"
    s += main_text
    s += '.section .rodata,"a"\n.p2align 6\n'
    s += KD.format(k="swin_prep_kernel", nv=144, ns=40, ao=144)
    s += ".p2align 6\n"
    s += KD.format(k=k, nv=512, ns=98, ao=256)
    s = add_pads(s, k, o)
    open(o.o, "w").write(s)


if __name__ == "__main__":
    main()
```

```python
import sys, math, struct, argparse, re
from asmlib import *

NAME = "standalone__swin_window_attn__vision"
NWIN = 5329
XBYTES = 100270464
ROWB = 196224
WINROW = 7 * ROWB
MAGIC73 = (1 << 32) // 73 + 1
for w in range(0, 16384):
    assert (w * MAGIC73) >> 32 == w // 73
ALPHA = (192 ** -0.5) * math.log2(math.e)
WS_TIME_OFF = 1 << 20
STAGE = 147456


def f32bits(x):
    return struct.unpack("<I", struct.pack("<f", x))[0]


def mfma(bd, d, ba, a, bb, b, first):
    c = "0" if first else T(bd, d, 4)
    D = R(bd, d, 4)
    AB = R(ba, a, 4) + R(bb, b, 4)
    return Inst(f"v_mfma_f32_16x16x32_bf16 {T(bd, d, 4)}, {T(ba, a, 4)}, {T(bb, b, 4)}, {c}", "mfma",
                defs=D, uses=AB + ([] if first else D), srcC=([] if first else D), srcAB=AB, passes=4)


def valu(text, defs, uses, kind="valu", **kw):
    return Inst(text, kind, defs=defs, uses=uses, **kw)


def cvtpk(d, a, b, **kw):
    bt = f"v{b}" if b is not None else "0"
    return valu(f"v_cvt_pk_bf16_f32 v{d}, v{a}, {bt}", [f"v{d}"], [f"v{a}"] + ([f"v{b}"] if b is not None else []), **kw)


def salu(text, defs, uses, **kw):
    return Inst(text, "salu", defs=defs, uses=uses, **kw)


def raw(text, kind="other", defs=(), uses=()):
    return Inst(text, kind, defs=defs, uses=uses)


def v3(op, d, *srcs, **kw):
    uses = [s for s in srcs if isinstance(s, str) and (is_vreg(s) or is_sreg(s))]
    return valu(f"{op} {d}, " + ", ".join(str(s) for s in srcs), [d], uses, **kw)


def cnd(d, a, b, m):
    return valu(f"v_cndmask_b32 {d}, {a}, {b}, s[{m}:{m+1}]", [d], [a, b, f"s{m}", f"s{m+1}"])


def srd(a, dst, src, nb):
    a(salu(f"s_mov_b32 s{dst}, s{src}", [f"s{dst}"], [f"s{src}"]))
    a(salu(f"s_and_b32 s{dst+1}, s{src+1}, 0xffff", [f"s{dst+1}", "scc"], [f"s{src+1}"]))
    a(salu(f"s_mov_b32 s{dst+2}, {nb}", [f"s{dst+2}"], []))
    a(salu(f"s_mov_b32 s{dst+3}, 0x20000", [f"s{dst+3}"], []))


STRIPS = [("H", r) for r in range(7)] + [("V", 4), ("V", 5), ("V", 6), ("Q", 0), ("I", 0)]
I_TOK = [(4, 6), (5, 6), (6, 4), (6, 5)]


def token(t, n):
    g, i = n >> 2, n & 3
    kind, p = STRIPS[4 * t + i]
    if kind == "H":
        return p, g
    if kind == "V":
        return g, p
    if kind == "Q":
        return 4 + (g >> 1), 4 + (g & 1)
    return I_TOK[g]


assert sorted(token(t, n) for t in range(3) for n in range(16)) + [(6, 6)] == [(r, c) for r in range(7) for c in range(7)]


def gen_prep(o):
    p = []
    a = p.append
    a(raw("s_cmp_ge_u32 s2, 144", "salu", ["scc"], ["s2"]))
    a(raw("s_cbranch_scc1 L_prep_touch"))
    if o.diag:
        a(raw("s_memrealtime s[34:35]"))
    a(raw("s_load_dwordx4 s[4:7], s[0:1], 8"))
    a(raw("s_load_dwordx2 s[8:9], s[0:1], 40"))
    a(salu("s_cmp_ge_u32 s2, 72", ["scc"], ["s2"]))
    a(salu("s_cselect_b32 s20, 1, 0", ["s20"], ["scc"]))
    a(salu("s_mul_i32 s21, s20, 72", ["s21"], ["s20"]))
    a(salu("s_sub_u32 s21, s2, s21", ["s21", "scc"], ["s2", "s21"]))
    a(salu("s_mul_i32 s22, s21, 43", ["s22"], ["s21"]))
    a(salu("s_lshr_b32 s22, s22, 8", ["s22", "scc"], ["s22"]))
    for r in range(72):
        assert (r * 43) >> 8 == r // 6
    a(salu("s_mul_i32 s23, s22, 6", ["s23"], ["s22"]))
    a(salu("s_sub_u32 s23, s21, s23", ["s23", "scc"], ["s21", "s23"]))
    a(v3("v_and_b32", "v1", "15", "v0"))
    a(v3("v_lshrrev_b32", "v2", "4", "v0"))
    a(v3("v_lshrrev_b32", "v3", "2", "v1"))
    a(v3("v_and_b32", "v4", "3", "v1"))
    a(v3("v_lshl_add_u32", "v3", "v3", "3", "v4"))
    a(salu("s_movk_i32 s24, 1152", ["s24"], []))
    a(v3("v_mul_lo_u32", "v5", "v3", "s24"))
    a(v3("v_lshl_add_u32", "v5", "v2", "4", "v5"))
    a(salu("s_mul_i32 s25, s23, 36864", ["s25"], ["s23"]))
    a(salu("s_mul_i32 s26, s20, 768", ["s26"], ["s20"]))
    a(salu("s_add_u32 s25, s25, s26", ["s25", "scc"], ["s25", "s26"]))
    a(salu("s_add_u32 s33, s25, 4608", ["s33", "scc"], ["s25"]))
    a(salu("s_lshr_b32 s26, s22, 1", ["s26", "scc"], ["s22"]))
    a(salu("s_mul_i32 s26, s26, 36864", ["s26"], ["s26"]))
    a(salu("s_and_b32 s27, s22, 1", ["s27", "scc"], ["s22"]))
    a(salu("s_mul_i32 s27, s27, 4608", ["s27"], ["s27"]))
    a(salu("s_add_u32 s26, s26, s27", ["s26", "scc"], ["s26", "s27"]))
    a(salu("s_add_u32 s26, s26, 384", ["s26", "scc"], ["s26"]))
    a(raw("s_waitcnt lgkmcnt(0)", "wait"))
    srd(a, 12, 4, 192 * 576 * 2)
    srd(a, 16, 6, 192 * 192 * 2)
    srd(a, 28, 8, 147456 if not o.diag else 3 << 20)
    for h in range(2):
        for k in range(6):
            d = 16 + 24 * h + 4 * k
            a(Inst(f"buffer_load_dwordx4 {T('v', d, 4)}, v5, s[12:15], s{(25, 33)[h]} offen offset:{64 * k}", "vload",
                   defs=R('v', d, 4), uses=["v5", "s25", "s33"]))
    a(salu("s_cmp_eq_u32 s20, 1", ["scc"], ["s20"]))
    a(raw("s_cbranch_scc1 L_prep_n"))
    for k in range(6):
        a(Inst(f"buffer_load_dwordx4 {T('v', 64 + 4 * k, 4)}, v5, s[12:15], s26 offen offset:{64 * k}", "vload",
               defs=R('v', 64 + 4 * k, 4), uses=["v5", "s26"]))
    a(salu(f"s_mov_b32 s27, 0x{f32bits(ALPHA):08x}", ["s27"], []))
    a(raw("s_waitcnt vmcnt(0)", "wait"))
    a(raw("s_branch L_prep_mm"))
    a(raw("L_prep_n:", "label"))
    a(salu("s_cmp_lt_u32 s22, 8", ["scc"], ["s22"]))
    a(salu("s_cselect_b32 s26, 3, 2", ["s26"], ["scc"]))
    a(salu("s_cselect_b32 s27, 0, 120", ["s27"], ["scc"]))
    a(salu("s_add_u32 s27, s27, s22", ["s27", "scc"], ["s27", "s22"]))
    a(v3("v_lshlrev_b32", "v6", "s26", "v1"))
    a(v3("v_add_u32", "v6", "s27", "v6"))
    a(v3("v_lshlrev_b32", "v6", "1", "v6"))
    a(v3("v_mul_u32_u24", "v7", "0xc00", "v2"))
    a(v3("v_add_u32", "v6", "v6", "v7"))
    for k in range(6):
        a(salu(f"s_mov_b32 s27, {k * 12288}", ["s27"], []))
        for j in range(8):
            r = 96 + 8 * k + j
            a(Inst(f"buffer_load_ushort v{r}, v6, s[16:19], s27 offen offset:{384 * j}", "vload",
                   defs=[f"v{r}"], uses=["v6", "s27"]))
    a(salu("s_mov_b32 s27, 1.0", ["s27"], []))
    a(raw("s_waitcnt vmcnt(0)", "wait"))
    for k in range(6):
        for jj in range(4):
            lo, hi = 96 + 8 * k + 2 * jj, 96 + 8 * k + 2 * jj + 1
            a(v3("v_lshl_or_b32", f"v{64 + 4 * k + jj}", f"v{hi}", "16", f"v{lo}"))
    a(raw("L_prep_mm:", "label"))
    a(raw("s_nop 1", "nop"))
    for k in range(6):
        for h in range(2):
            a(mfma("v", 88 + 4 * h, "v", 16 + 24 * h + 4 * k, "v", 64 + 4 * k, k == 0))
    a(salu("s_lshl_b32 s24, s2, 10", ["s24", "scc"], ["s2"]))
    a(v3("v_lshlrev_b32", "v8", "4", "v0"))
    for r in range(8):
        a(v3("v_mul_f32", f"v{88 + r}", "s27", f"v{88 + r}"))
    for r in range(4):
        a(cvtpk(16 + r, 88 + 2 * r, 89 + 2 * r))
    a(Inst("buffer_store_dwordx4 v[16:19], v8, s[28:31], s24 offen", "vstore", uses=R('v', 16, 4) + ["v8"], wide=True))
    if o.diag:
        a(raw("s_waitcnt vmcnt(0)", "wait"))
        a(raw("s_memrealtime s[36:37]"))
        a(raw("s_waitcnt lgkmcnt(0)", "wait"))
        a(v3("v_mov_b32", "v16", "s34"))
        a(v3("v_mov_b32", "v17", "s36"))
        a(v3("v_mov_b32", "v8", "0"))
        a(salu("s_lshl_b32 s24, s2, 3", ["s24", "scc"], ["s2"]))
        a(salu("s_add_u32 s24, s24, 0x200000", ["s24", "scc"], ["s24"]))
        a(Inst("buffer_store_dwordx2 v[16:17], v8, s[28:31], s24 offen", "vstore", uses=["v16", "v17", "v8"]))
    a(raw("s_endpgm"))
    a(raw("L_prep_touch:", "label"))
    if o.tlb:
        a(raw("s_load_dwordx2 s[4:5], s[0:1], 0"))
        a(raw("s_load_dwordx2 s[6:7], s[0:1], 24"))
        a(salu("s_sub_u32 s3, s2, 144", ["s3", "scc"], ["s2"]))
        a(salu("s_lshr_b32 s3, s3, 3", ["s3", "scc"], ["s3"]))
        a(salu(f"s_lshl_b32 s3, s3, {o.tlb + 6}", ["s3", "scc"], ["s3"]))
        a(v3("v_lshlrev_b32", "v1", str(o.tlb), "v0"))
        a(v3("v_add_u32", "v1", "s3", "v1"))
        a(raw("s_waitcnt lgkmcnt(0)", "wait"))
        srd(a, 12, 4, XBYTES)
        srd(a, 16, 6, XBYTES)
        a(Inst("buffer_load_dword v2, v1, s[12:15], 0 offen", "vload", defs=["v2"], uses=["v1"]))
        a(Inst("buffer_load_dword v3, v1, s[16:19], 0 offen", "vload", defs=["v3"], uses=["v1"]))
    a(raw("@TOUCH@", "label"))
    a(raw("s_endpgm"))
    return insert_nops(p)


XS = [0, 72]
AX49, AT49, AW = 144, 168, 192
NRING = 12
SB = 0
ACC = 64
TBF = 88
OPA = 100
VBF = 124
V_LDS = [220, 221, 222]
V_F = [223, 224, 225]
V_ST = {"H": (232, 233), "V": (234, 235), "Q": (236, 237), "I": (238, 239)}
V_SP = (240, 241)
V_CT = (242, 243)
AP = {1: 240, 2: 248}
V_Q3 = 250
S_TW = 73
S_XS = 76
NBASE = 73728
DSW_BUSY, ST_BUSY, LD_GRP = 40, 40, 1
DROP, PFLAGS = [], [None, None]
V_NINF = 244
V_TMP = [[245, 246, 247, 248, 249], [250, 251, 252, 253, 254]]
V_TIME = 255
S_WCUR, S_LB, S_CB, S_K, S_ROW = 16, 17, 18, 19, 20
S_IT = 28
S_M0, S_M1, S_GM, S_SH, S_SPO, S_GO = 48, 50, 52, 54, 55, 74
S_SPA, S_SPB = 56, 60


def xr(xs, t, s):
    return XS[xs] + 24 * t + 4 * s


def xop(xs, t, s):
    return AX49 + 4 * s if t == 3 else xr(xs, t, s)


def lds_at(idx):
    base, imm = divmod((idx % 144) * 1024, 65536)
    return V_LDS[base], imm


def wfrag_read(idx, slot=None, extra=(), **kw):
    va, imm = lds_at(idx)
    d = AW + 4 * (idx % NRING if slot is None else slot)
    return Inst(f"ds_read_b128 {T('a', d, 4)}, v{va} offset:{imm}", "dsr", defs=R('a', d, 4),
                uses=[f"v{va}"] + list(extra), **kw)


class Ring:
    def __init__(self, seq, have=None):
        self.seq = seq
        self.slot = [have[i] for i in seq[:NRING]] if have else list(range(NRING))
        self.pos = 0
        self.gate = lambda idx: []

    def fill(self, extra=()):
        return [wfrag_read(i, self.slot[p], extra) for p, i in enumerate(self.seq[:NRING])]

    def take(self):
        p = self.pos
        self.pos += 1
        sl = self.slot[p]
        self.slot.append(sl)
        nxt = [wfrag_read(self.seq[p + NRING], sl, self.gate(self.seq[p + NRING]))] if p + NRING < len(self.seq) else []
        return AW + 4 * sl, nxt


def xload(xs, t, s, sbase, flags="", sr=4, **kw):
    d = xr(xs, t, s)
    return Inst(f"buffer_load_dwordx4 {T('a', d, 4)}, v{V_F[t]}, s[{sr}:{sr+3}], s{sbase} offen offset:{64 * s}" + flags,
                "vload", defs=R('a', d, 4), uses=[f"v{V_F[t]}", f"s{sbase}", f"s{sr+2}"], **kw)


def xloads(xs, sbase, flags, rel=None, step=0):
    out = []
    k = 0
    for j in range(3):
        for t in range(3):
            for u in range(2):
                kw = {}
                if rel is not None:
                    at = rel + step * (k - k % LD_GRP) + 16 * (k % LD_GRP)
                    kw = dict(release=at, deadline=at + 48)
                out.append(xload(xs, t, 2 * j + u, sbase, flags, **kw))
                k += 1
    return out


def vb(ct):
    return VBF + 8 * ct


def opk(q, i, part):
    if q == 3:
        return TBF + 4 * i if part == 0 else V_Q3 + 2 * i
    return OPA + 4 * i if part == 0 else OPA + 16 + 2 * i


def o_mf(q, pr, acc=None, held=False):
    acc = SB + 16 * q + 8 if acc is None else acc
    bank, pb = ("a", AP[q]) if held else ("v", SB + 16 * q)
    out = []
    for ks in range(2):
        for e in range(2):
            out.append(mfma("v", acc + 4 * e, bank, pb + 4 * ks, "v", vb(2 * pr + e) + 4 * ks, ks == 0))
    return out


def o_pack(q, pr, acc=None):
    acc = SB + 16 * q + 8 if acc is None else acc
    out = []
    for i in range(2 if q == 3 else 4):
        d = opk(q, i, 0) + pr if pr < 4 else opk(q, i, 1) + pr - 4
        out.append(cvtpk(d, acc + i, acc + 4 + i))
    return out


def o_store(q, part, flags="", rel=None, step=0):
    out = []
    n = (4, 2)[part]
    for i in range(2 if q == 3 else 4):
        d = opk(q, i, part)
        if q == 3:
            vo, row, imm, sr = V_SP[part], None, 0, (S_SPA, S_SPB)[i]
        else:
            kind, pp = STRIPS[4 * q + i]
            vo, sr = V_ST[kind][part], 8
            row, imm = {"H": (pp, 0), "V": (0, pp * 384), "Q": (4, 4 * 384), "I": (4, 0)}[kind]
        so = f"s{S_SPO}" if row is None else f"s{S_ROW + row}"
        if part in DROP and q != 3:
            sr = 80
        if PFLAGS[part] is not None:
            flags = PFLAGS[part]
        out.append(Inst(f"buffer_store_dwordx{n} {T('v', d, n)}, v{vo}, s[{sr}:{sr+3}], {so} offen offset:{imm + 256 * part}{flags}",
                        "vstore", uses=R('v', d, n) + [f"v{vo}", so, f"s{sr+2}"], wide=(n == 4)))
        out[-1].cost, out[-1].real, out[-1].busy = 8, 4 + 4 * n, ST_BUSY
        if rel is not None:
            out[-1].release = rel + step * i
    return out


def xlane(op, m0, m1):
    p = []
    for sw in ("v_permlane32_swap_b32", "v_permlane16_swap_b32"):
        p.append(v3("v_mov_b32", f"v{m1}", f"v{m0}"))
        p.append(valu(f"{sw} v{m0}, v{m1}", [f"v{m0}", f"v{m1}"], [f"v{m0}", f"v{m1}"], kind="perm"))
        p.append(v3(op, f"v{m0}", f"v{m0}", f"v{m1}"))
    return p


def softmax(q, tset, part=3, hold=False):
    b = SB + 16 * q
    m0, m1, s0, s1, rr = V_TMP[tset]
    p = []
    p.append(cnd(f"v{b + 12}", f"v{V_NINF}", f"v{b + 12}", S_M0))
    p.append(cnd(f"v{b + 12}", f"v{b + 12}", f"v{b + 13}", S_M1))
    regs = [b + r for r in range(13)]
    m3 = lambda d, x, y, z: v3("v_max3_f32", f"v{d}", f"v{x}", f"v{y}", f"v{z}")
    p.append(m3(m0, regs[0], regs[1], regs[2]))
    p.append(m3(m1, regs[3], regs[4], regs[5]))
    p.append(m3(m0, m0, regs[6], regs[7]))
    p.append(m3(m1, m1, regs[8], regs[9]))
    p.append(m3(m0, m0, regs[10], regs[11]))
    p.append(m3(m0, m0, m1, regs[12]))
    p.extend(xlane("v_max_f32", m0, m1))
    for r in regs:
        p.append(v3("v_sub_f32", f"v{r}", f"v{r}", f"v{m0}"))
        p.append(valu(f"v_exp_f32 v{r}, v{r}", [f"v{r}"], [f"v{r}"], kind="trans"))
    p.append(v3("v_add_f32", f"v{s0}", f"v{regs[0]}", f"v{regs[1]}"))
    p.append(v3("v_add_f32", f"v{s1}", f"v{regs[2]}", f"v{regs[3]}"))
    for k in range(4, 13):
        s = (s0, s1)[k & 1]
        p.append(v3("v_add_f32", f"v{s}", f"v{s}", f"v{regs[k]}"))
    p.append(v3("v_add_f32", f"v{s0}", f"v{s0}", f"v{s1}"))
    p.extend(xlane("v_add_f32", s0, s1))
    p.append(valu(f"v_rcp_f32 v{rr}, v{s0}", [f"v{rr}"], [f"v{s0}"], kind="trans"))
    if part == 1:
        return p
    if part == 2:
        p = []
    for k in range(0, 12, 2):
        p.append(v3("v_mul_f32", f"v{regs[k]}", f"v{regs[k]}", f"v{rr}"))
        p.append(v3("v_mul_f32", f"v{regs[k + 1]}", f"v{regs[k + 1]}", f"v{rr}"))
        p.append(cvtpk(b + k // 2, regs[k], regs[k + 1]))
    p.append(v3("v_mul_f32", f"v{regs[12]}", f"v{regs[12]}", f"v{rr}"))
    p.append(cvtpk(b + 6, regs[12], None))
    p.append(v3("v_lshlrev_b32", f"v{b + 6}", f"s{S_SH}", f"v{b + 6}"))
    if not hold:
        p.append(v3("v_mov_b32", f"v{b + 7}", "0"))
    return p


def p_hold(q):
    return [valu(f"v_accvgpr_write_b32 a{AP[q] + r}, v{SB + 16 * q + r}", [f"a{AP[q] + r}"], [f"v{SB + 16 * q + r}"])
            for r in range(7)]


def win_base(dst, w, tmp):
    return [
        salu(f"s_mul_hi_u32 s{tmp}, s{w}, s29", [f"s{tmp}"], [f"s{w}", "s29"]),
        salu(f"s_mul_i32 s{dst}, s{tmp}, 73", [f"s{dst}"], [f"s{tmp}"]),
        salu(f"s_sub_u32 s{dst}, s{w}, s{dst}", [f"s{dst}", "scc"], [f"s{w}", f"s{dst}"]),
        salu(f"s_mul_i32 s{dst}, s{dst}, 2688", [f"s{dst}"], [f"s{dst}"]),
        salu(f"s_mul_i32 s{tmp}, s{tmp}, {WINROW}", [f"s{tmp}"], [f"s{tmp}"]),
        salu(f"s_add_u32 s{dst}, s{dst}, s{tmp}", [f"s{dst}", "scc"], [f"s{dst}", f"s{tmp}"]),
    ]


def row_bases(o=None):
    out = [] if o is None or o.nostore else [salu("s_mov_b32 s10, s31", ["s10"], ["s31"])]
    out += [salu(f"s_mov_b32 s{S_ROW}, s{S_CB}", [f"s{S_ROW}"], [f"s{S_CB}"])]
    for r in range(1, 7):
        out.append(salu(f"s_add_u32 s{S_ROW + r}, s{S_CB}, {r * ROWB}", [f"s{S_ROW + r}", "scc"], [f"s{S_CB}"]))
    out.append(salu(f"s_sub_u32 s{S_SPO}, s{S_ROW + 6}, s{S_GO}", [f"s{S_SPO}", "scc"], [f"s{S_ROW + 6}", f"s{S_GO}"]))
    out.append(salu(f"s_add_u32 s{S_SPO}, s{S_SPO}, {6 * 384}", [f"s{S_SPO}", "scc"], [f"s{S_SPO}"]))
    return out


def slot_masks():
    k = S_K
    return [
        salu(f"s_and_b32 s30, s{k}, 3", ["s30", "scc"], [f"s{k}"]),
        salu(f"s_mul_i32 s{S_GO}, s30, 384", [f"s{S_GO}"], ["s30"]),
        salu("s_lshl_b32 s30, s30, 4", ["s30", "scc"], ["s30"]),
        salu(f"s_lshl_b64 s[{S_GM}:{S_GM+1}], s[40:41], s30", [f"s{S_GM}", f"s{S_GM+1}", "scc"], ["s40", "s41", "s30"]),
        salu(f"s_cmp_lt_u32 s{k}, 4", ["scc"], [f"s{k}"]),
        salu(f"s_cselect_b64 s[{S_M0}:{S_M0+1}], s[{S_GM}:{S_GM+1}], 0", [f"s{S_M0}", f"s{S_M0+1}"], ["scc", f"s{S_GM}", f"s{S_GM+1}"]),
        salu(f"s_cselect_b64 s[{S_M1}:{S_M1+1}], 0, s[{S_GM}:{S_GM+1}]", [f"s{S_M1}", f"s{S_M1+1}"], ["scc", f"s{S_GM}", f"s{S_GM+1}"]),
        salu(f"s_cselect_b32 s{S_SH}, 0, 16", [f"s{S_SH}"], ["scc"]),
        salu(f"s_cselect_b32 s{S_SPA+2}, s31, 0", [f"s{S_SPA+2}"], ["scc", "s31"]),
        salu(f"s_cselect_b32 s{S_SPB+2}, 0, s31", [f"s{S_SPB+2}"], ["scc", "s31"]),
        salu(f"s_add_u32 s{k}, s{k}, 1", [f"s{k}", "scc"], [f"s{k}"]),
        cnd(f"v{V_SP[0]}", f"v{V_NINF}", f"v{V_ST['H'][0]}", S_GM),
        cnd(f"v{V_SP[1]}", f"v{V_NINF}", f"v{V_ST['H'][1]}", S_GM),
    ]


def carry_head(o):
    p = cvt_v(11)
    for q in (1, 2):
        if q in o.defer:
            p += softmax(q, q & 1, 2, True)
        p += p_hold(q)
    return p


def carry_30(o):
    p = o_mf(3, 5) + o_mf(0, 5) + o_pack(3, 5) + o_pack(0, 5)
    return p + o_store(3, 1, o.st_flags) + o_store(0, 1, o.st_flags)


def carry_grp(o, g, acc, pace=False):
    q, pr = 1 + g // 6, g % 6
    p = o_mf(q, pr, acc, True) + o_pack(q, pr, acc)
    if pr in (3, 5):
        rel, step = None, 0
        if pace and q == 2:
            rel, step = [int(x) for x in (o.q2p0, o.q2p1)[pr >> 2].split(",")]
        p += o_store(q, pr >> 2, o.st_flags, rel, step)
    return p


def cvt_v(ct):
    out = []
    for t in range(3):
        acc = ACC + 12 * (ct & 1) + 4 * t
        for h in range(2):
            out.append(cvtpk(vb(ct) + 2 * t + h, acc + 2 * h, acc + 2 * h + 1))
    return out


def s3(xs):
    return [mfma("v", SB + 48 + 4 * kt, "a", xop(xs, kt, s), "a", AT49 + 4 * s, s == 0)
            for s in range(6) for kt in range(4)]


CT = ["L_b1", "L_b1+8192", "L_main_done-8064"]


def code_touch(k, rel):
    b = 84 + 2 * k
    return [Inst(f"global_load_dword v{V_CT[1]}, v{V_CT[0]}, s[{b}:{b+1}]", "vload", defs=["~ct"], uses=[f"v{V_CT[0]}"],
                 release=rel, deadline=rel + 48, tag="pf")]


def gen_body(o, xs):
    p = []
    ext = p.extend
    NM = 624
    if o.ct and xs == 0:
        for k in range(3):
            ext(code_touch(k, o.ct + 200 * k))
    p.append(salu(f"s_add_u32 s{S_WCUR}, s{S_WCUR}, 1024", [f"s{S_WCUR}", "scc"], [f"s{S_WCUR}"], deadline=0))
    ext(win_base(S_LB, S_WCUR, 27))
    if xs == 0:
        p.append(salu(f"s_cmp_lt_u32 s{S_K}, 4", ["scc"], [f"s{S_K}"]))
        p.append(salu(f"s_cselect_b32 s6, {'0' if o.noload else 's31'}, 0", ["s6"], ["scc", "s31"]))
    ext(xloads(xs ^ 1, S_LB, o.ld_flags, o.ld_rel, o.ld_step))
    ext(carry_head(o))

    def chain(mat, ct):
        out = []
        for s in range(6):
            idx = 72 * mat + 6 * ct + s
            w = AW + 4 * (idx % NRING)
            for t in range(3):
                acc = ACC + 12 * (ct & 1) + 4 * t
                if mat == 0:
                    out.append(mfma("v", acc, "a", w, "a", xr(xs, t, s), s == 0))
                else:
                    out.append(mfma("v", acc, "a", xr(xs, t, s), "a", w, s == 0))
            kw = {}
            if idx + NRING >= 144:
                kw = dict(deadline=NM * 16 + 48 * (idx + NRING - 144) - 220)
            out.append(wfrag_read(idx + NRING, **kw))
        return out

    def cvt_t(ct):
        out = []
        for t in range(3):
            acc = ACC + 12 * (ct & 1) + 4 * t
            for h in range(2):
                out.append(cvtpk(TBF + 4 * t + 2 * (ct & 1) + h, acc + 2 * h, acc + 2 * h + 1))
        return out

    def s_mf(sp):
        return [mfma("v", SB + 16 * q + 4 * kt, "a", xop(xs, kt, sp), "v", TBF + 4 * q, sp == 0)
                for q in range(3) for kt in range(4)]

    def o_grp(pr):
        out = o_mf(3, pr) + o_mf(0, pr) + o_pack(3, pr) + o_pack(0, pr)
        if pr == 3:
            out += o_store(3, 0, o.st_flags) + o_store(0, 0, o.st_flags)
        return out

    grp = iter(range(12))

    def carried():
        return carry_grp(o, next(grp), SB + 56, True)

    ext(chain(0, 0))
    ext(carry_30(o))
    ext(slot_masks())
    ext(cvt_t(0))
    ext(chain(0, 1))
    ext(s3(xs))
    ext(softmax(3, 1))
    ext(cvt_t(1))
    for ct in range(2, 12):
        ext(chain(0, ct))
        if ct >= 4 and ct % 2 == 0:
            ext(carried())
        if ct % 2 == 0:
            ext(s_mf(ct // 2 - 1))
        ext(cvt_t(ct))
        if ct >= 4:
            ext(carried())
    ext(row_bases(o if xs == 0 else None))
    p.append(salu(f"s_mov_b32 s{S_CB}, s{S_LB}", [f"s{S_CB}"], [f"s{S_LB}"]))
    ext(chain(1, 0))
    ext(s_mf(5))
    for q in range(3):
        ext(softmax(q, q & 1, 1 if q in o.defer else 3, q > 0))
    ext(cvt_v(0))
    after = dict(zip([int(x) for x in o.after.split(",")], range(5)))
    for ct in range(1, 12):
        ext(chain(1, ct))
        if ct in after:
            ext(o_grp(after[ct]))
        if ct < 11:
            ext(cvt_v(ct))
    assert sum(i.kind == "mfma" for i in p) == NM
    for i in p:
        if i.kind != "mfma" and i.deadline is None and i.kind != "dsr":
            i.deadline = NM * 16 - 24
    for k in o.rm.split(","):
        if k == "ring":
            p = [i for i in p if i.kind != "dsr"]
        elif k:
            p = [i for i in p if i.kind != k]
    return p


def gen_epi(o):
    p = carry_head(o)
    for g in range(3):
        p += carry_grp(o, g, SB + 16 + 8 * (g % 4))
    p += carry_30(o)
    for g in range(3, 12):
        p += carry_grp(o, g, SB + 16 + 8 * (g % 4))
    return p


XSTAGED = [(0, 0), (0, 1), (1, 0), (1, 1), (2, 0), (2, 1), (1, 2), (2, 2)]
V_R0 = (226, 227)
V_NA = OPA
V_NS = VBF


def gen_shared(o, q):
    xs = 1
    p = []
    ext = p.extend
    own = [2 * q, 2 * q + 1] if q < 3 else [6, 7, 8, 9]
    solo = [ct for ct in range(10) if ct not in own]
    F = [SB + 16 * a for a in range(4) if a != q]
    v_x8 = V_TMP[(q & 1) ^ 1][0]
    st_imm = STAGE - 0x20000
    plan = [("v", ct) for ct in own]
    if q == 3:
        plan += [("s", solo[0], solo[1]), ("s", solo[2], solo[3]), ("x",), ("v", 10), ("o", 3), ("o", 4), ("s", solo[4], solo[5]),
                 ("o", 0), ("o", 1), ("v", 11), ("o", 2), ("o", 5)]
        assert solo == [0, 1, 2, 3, 4, 5]
    else:
        oth = [pr for pr in range(5) if pr != q]
        plan += [("x",), ("s", solo[0], solo[1]), ("s", solo[2], solo[3]), ("v", 10), ("o", q), ("o", oth[0]), ("s", solo[4], solo[5]),
                 ("o", oth[1]), ("s", solo[6], solo[7]), ("o", oth[2]), ("v", 11), ("o", oth[3]), ("o", 5)]
    seq = [6 * (2 * c + e) + s for c in range(6) for s in range(6) for e in range(2)]
    for st in plan:
        if st[0] == "v":
            seq += [72 + 6 * st[1] + s for s in range(6)]
        elif st[0] == "s":
            seq += [72 + 6 * ct + s for s in range(6) for ct in st[1:]]
    assert sorted(seq) == list(range(144))
    seq += list(range(NRING))
    ring = Ring(seq)
    ring.gate = lambda idx: ["~b2"] if idx >= 72 else []
    p.append(Inst("s_barrier", "other", defs=["~b1"], deadline=0))
    xrd = {}
    for f, (t, j) in enumerate(XSTAGED):
        for u in range(2):
            d = xr(xs, t, 2 * j + u)
            xrd[t, 2 * j + u] = Inst(f"ds_read_b128 {T('a', d, 4)}, v{V_R0[u]} offset:{2048 * f}", "dsr", defs=R('a', d, 4),
                                     uses=[f"v{V_R0[u]}", "~b1"])
    fill = ring.fill(["~b1"])
    first = sorted(xrd, key=lambda k: (k[0] != q, k[1], k[0]))
    nq = sum(k[0] == q for k in xrd)
    for k in range(6):
        ext(fill[2 * k:2 * k + 2])
        if k < nq:
            p.append(xrd[first[k]])
    ext(xrd[k] for k in first[nq:])
    for k in range(18):
        at = o.nl_rel + o.nl_step * k
        p.append(Inst(f"buffer_load_dwordx4 {T('v', V_NS + 4 * k, 4)}, v{V_NA + k // 3}, s[12:15], 0 offen offset:{1024 * (k % 3)}", "vload",
                      defs=R('v', V_NS + 4 * k, 4), uses=[f"v{V_NA + k // 3}"], release=at, deadline=at + 48))
    nwr = []
    for k in range(18):
        w = Inst(f"ds_write_b128 v{V_NA + k // 3}, {T('v', V_NS + 4 * k, 4)} offset:{1024 * (k % 3)}", "dsw", defs=[f"~n{k}"],
                 uses=R('v', V_NS + 4 * k, 4) + [f"v{V_NA + k // 3}", "~b1"], release=o.nw_rel + o.nw_step * k)
        w.real, w.busy = 20, DSW_BUSY
        p.append(w)
        nwr.append(f"~n{k}")
    for ct in range(12):
        p.append(v3("v_mov_b32", f"v{vb(ct) + 7}", "0"))
    ext(xloads(0, S_LB, o.ld_flags, o.x0_rel, o.x0_step))
    p.append(v3("v_lshrrev_b32", f"v{v_x8}", "1", f"v{V_LDS[0]}"))
    p.append(v3("v_add_u32", f"v{v_x8}", "0x20000", f"v{v_x8}"))

    def s_step(c):
        if q < 3:
            return [mfma("v", SB + 16 * q + 4 * kt, "a", xop(xs, kt, c), "v", TBF + 4 * (c & 1), c == 0) for kt in range(4)]
        return [mfma("v", SB + 48 + 4 * kt, "a", xop(xs, kt, c), "a", AT49 + 4 * c, c == 0) for kt in range(4)]

    for c in range(6):
        for s in range(6):
            for e in range(2):
                if ring.pos + NRING == 72:
                    p.append(Inst("s_waitcnt lgkmcnt(0)", "wait", defs=["~wN"], uses=nwr))
                    p.append(Inst("s_barrier", "other", defs=["~b2"], uses=["~wN"]))
                w, nxt = ring.take()
                p.append(mfma("v", F[0] + 8 * (c & 1) + 4 * e, "a", w, "a", AX49 + 4 * s, s == 0))
                if q < 3:
                    p.append(mfma("v", ACC + 8 * (c % 3) + 4 * e, "a", w, "a", xr(xs, q, s), s == 0))
                ext(nxt)
            if c and s == (2 if q < 3 else 4):
                ext(s_step(c - 1))
        for e in range(2):
            for h in range(2):
                if q < 3:
                    acc = ACC + 8 * (c % 3) + 4 * e
                    p.append(cvtpk(TBF + 4 * (c & 1) + 2 * e + h, acc + 2 * h, acc + 2 * h + 1))
        for e in range(2):
            for h in range(2):
                acc = F[0] + 8 * (c & 1) + 4 * e
                tmp = F[1] + 4 * (c & 1) + 2 * e + h
                p.append(cvtpk(tmp, acc + 2 * h, acc + 2 * h + 1))
                d = AT49 + 4 * c + 2 * e + h
                p.append(valu(f"v_accvgpr_write_b32 a{d}, v{tmp}", [f"a{d}"], [f"v{tmp}"]))
    a49 = iter([F[0] + 4 * (k % 4) for k in range(12)])
    oacc = iter([F[1], F[2], F[2] + 8, F[1] + 8, F[1], F[2]])
    wr = []
    done = []
    for k, st in enumerate(plan):
        if st[0] == "v":
            ct = st[1]
            a = next(a49)
            for s in range(6):
                w, nxt = ring.take()
                for t in range(3):
                    p.append(mfma("v", ACC + 12 * (ct & 1) + 4 * t, "a", xr(xs, t, s), "a", w, s == 0))
                p.append(mfma("v", a, "a", AX49 + 4 * s, "a", w, s == 0))
                ext(nxt)
                if k == 0 and s == o.tail_s:
                    ext(s_step(5))
                    ext(softmax(q, q & 1))
            ext(cvt_v(ct))
            p.append(cvtpk(vb(ct) + 6, a, a + 1))
            if ct in own:
                for va, off, h, n in ((V_LDS[2], 1024 * ct, 0, 4), (v_x8, 10240 + 512 * ct, 1, 2)):
                    w = Inst(f"ds_write_b{32 * n} v{va}, {T('v', vb(ct) + 4 * h, n)} offset:{st_imm + off}", "dsw", defs=[f"~x{ct}{h}"],
                             uses=R('v', vb(ct) + 4 * h, n) + [f"v{va}", "~b2"])
                    w.real, w.busy = 4 + 4 * n, DSW_BUSY
                    p.append(w)
                    wr.append(f"~x{ct}{h}")
        elif st[0] == "s":
            aa = [next(a49), next(a49)]
            for s in range(6):
                for a in aa:
                    w, nxt = ring.take()
                    p.append(mfma("v", a, "a", AX49 + 4 * s, "a", w, s == 0))
                    ext(nxt)
            for a, ct in zip(aa, st[1:]):
                p.append(cvtpk(vb(ct) + 6, a, a + 1))
        elif st[0] == "x":
            p.append(Inst("s_waitcnt lgkmcnt(0)", "wait", defs=["~wB"], uses=wr))
            p.append(Inst("s_barrier", "other", defs=["~b3"], uses=["~wB"]))
            for pr in [x[1] for x in plan if x[0] == "o"]:
                for ct in (2 * pr, 2 * pr + 1):
                    if ct in solo:
                        for va, off, h, n in ((V_LDS[2], 1024 * ct, 0, 4), (v_x8, 10240 + 512 * ct, 1, 2)):
                            p.append(Inst(f"ds_read_b{32 * n} {T('v', vb(ct) + 4 * h, n)}, v{va} offset:{st_imm + off}", "dsr",
                                          defs=R('v', vb(ct) + 4 * h, n), uses=[f"v{va}", "~b3"]))
        else:
            pr = st[1]
            a = next(oacc)
            ext(o_mf(q, pr, a))
            ext(o_pack(q, pr, a))
            done.append(pr)
            for part, grp2 in ((0, (0, 1, 2, 3)), (1, (4, 5))):
                if pr in grp2 and all(g in done for g in grp2):
                    ext(o_store(q, part, o.st_flags))
    p.append(salu("s_mov_b32 s10, 0", ["s10"], []))
    p.append(salu(f"s_mov_b32 s{S_SPB+2}, 0", [f"s{S_SPB+2}"], []))
    p.append(salu(f"s_mov_b32 s{S_CB}, s{S_LB}", [f"s{S_CB}"], [f"s{S_LB}"]))
    return p


def kind_offsets(a, g, regs):
    h, v, qq, ii, tmp = regs
    a(v3("v_mul_u32_u24", h, "0x180", g))
    a(v3("v_mul_lo_u32", v, g, "s39"))
    a(v3("v_lshrrev_b32", qq, "1", g))
    a(v3("v_mul_lo_u32", qq, qq, "s39"))
    a(v3("v_and_b32", ii, "1", g))
    a(v3("v_mul_u32_u24", ii, "0x180", ii))
    a(v3("v_add_u32", qq, qq, ii))
    for k in range(4):
        r, c = I_TOK[k]
        off = (r - 4) * ROWB + c * 384
        if k == 0:
            a(v3("v_mov_b32", ii, str(off)))
        else:
            a(valu(f"v_cmp_eq_u32 vcc, {k}, {g}", ["vcc"], [g]))
            a(v3("v_mov_b32", tmp, str(off)))
            a(valu(f"v_cndmask_b32 {ii}, {ii}, {tmp}, vcc", [ii], [ii, tmp, "vcc"]))


def gen_prologue(o):
    p = []
    a = p.append
    a(raw("s_cmp_lt_u32 s2, 256", "salu", ["scc"], ["s2"]))
    a(raw("s_cbranch_scc1 L_go"))
    a(raw("L_pad_entry:", "label"))
    a(raw("s_endpgm"))
    a(raw("L_go:", "label"))
    a(raw("s_load_dwordx2 s[32:33], s[0:1], 0"))
    a(raw("s_load_dwordx2 s[36:37], s[0:1], 40"))
    a(raw("s_load_dwordx2 s[34:35], s[0:1], 24"))
    if o.diag:
        a(raw("s_memtime s[44:45]"))
        a(raw("s_memrealtime s[46:47]"))
    a(v3("v_and_b32", "v1", "63", "v0"))
    a(v3("v_lshrrev_b32", "v2", "6", "v0"))
    a(v3("v_and_b32", "v3", "15", "v1"))
    a(valu("v_readfirstlane_b32 s38, v2", ["s38"], ["v2"]))
    a(v3("v_lshrrev_b32", "v4", "4", "v1"))
    a(v3("v_lshlrev_b32", f"v{V_LDS[0]}", "4", "v1"))
    a(salu("s_lshl_b32 s16, s2, 2", ["s16", "scc"], ["s2"]))
    a(salu(f"s_mov_b32 s29, {MAGIC73}", ["s29"], []))
    a(salu(f"s_mov_b32 s31, {XBYTES}", ["s31"], []))
    a(salu("s_add_u32 s16, s16, s38", ["s16", "scc"], ["s16", "s38"]))
    a(salu(f"s_add_u32 s{S_TW}, s2, 5120", [f"s{S_TW}", "scc"], ["s2"]))
    a(v3("v_mov_b32", f"v{V_NINF}", "0xff800000"))
    a(v3("v_lshrrev_b32", "v10", "2", "v3"))
    a(v3("v_and_b32", "v11", "3", "v3"))
    a(v3("v_lshl_add_u32", "v8", "v11", "2", "v10"))
    a(v3("v_lshlrev_b32", "v5", "10", "v8"))
    a(v3("v_add_u32", "v5", "s16", "v5"))
    a(v3("v_mov_b32", "v9", f"s{S_TW}"))
    a(valu("v_cmp_eq_u32 vcc, 5, v8", ["vcc"], ["v8"]))
    a(valu("v_cndmask_b32 v5, v5, v9, vcc", ["v5"], ["v5", "v9", "vcc"]))
    a(v3("v_mul_hi_u32", "v6", "v5", "s29"))
    a(v3("v_mul_u32_u24", "v7", "73", "v6"))
    a(v3("v_sub_u32", "v7", "v5", "v7"))
    a(v3("v_mul_u32_u24", "v7", "0xa80", "v7"))
    a(salu(f"s_mov_b32 s43, {WINROW}", ["s43"], []))
    a(v3("v_mul_lo_u32", "v6", "v6", "s43"))
    a(v3("v_add_u32", "v6", "v6", "v7"))
    a(v3("v_lshl_add_u32", "v6", "v4", "4", "v6"))
    a(v3("v_add_u32", "v6", str(6 * ROWB + 6 * 384), "v6"))
    a(valu(f"v_cmp_gt_u32 vcc, {NWIN}, v5", ["vcc"], ["v5"]))
    a(valu(f"v_cndmask_b32 v14, v{V_NINF}, v6, vcc", ["v14"], [f"v{V_NINF}", "v6", "vcc"]))
    a(salu("s_lshr_b32 s40, s2, 3", ["s40", "scc"], ["s2"]))
    a(salu("s_mul_i32 s43, s38, 6", ["s43"], ["s38"]))
    a(salu("s_add_u32 s42, s40, s43", ["s42", "scc"], ["s40", "s43"]))
    for _ in range(2):
        a(salu("s_sub_u32 s43, s42, 24", ["s43", "scc"], ["s42"]))
        a(salu("s_cselect_b32 s42, s42, s43", ["s42"], ["scc", "s42", "s43"]))
    a(salu("s_mul_i32 s42, s42, 3072", ["s42"], ["s42"]))
    p.extend(win_base(S_LB, S_WCUR, 30))
    p.extend(win_base(S_CB, S_TW, 30))
    a(salu(f"s_mov_b32 s39, {ROWB}", ["s39"], []))
    kind_offsets(a, "v10", ("v5", "v6", "v7", "v8", "v9"))
    KO = {"H": "v5", "V": "v6", "Q": "v7", "I": "v8"}
    for i in range(1, 4):
        a(valu(f"v_cmp_eq_u32 s[{64 + 2 * i}:{65 + 2 * i}], {i}, v11", [f"s{64 + 2 * i}", f"s{65 + 2 * i}"], ["v11"]))
    a(v3("v_lshlrev_b32", "v12", "4", "v4"))
    a(v3("v_mul_lo_u32", "v13", "v11", "s39"))
    a(v3("v_add3_u32", f"v{V_F[0]}", "v13", "v5", "v12"))
    for t in (1, 2):
        f = f"v{V_F[t]}"
        for i in range(4):
            kind, pp = STRIPS[4 * t + i]
            base = {"H": pp * ROWB, "V": pp * 384, "Q": 4 * ROWB + 4 * 384, "I": 4 * ROWB}[kind]
            a(v3("v_add_u32", f if i == 0 else "v9", str(base), KO[kind]))
            if i:
                a(cnd(f, f, "v9", 64 + 2 * i))
        a(v3("v_add_u32", f, f, "v12"))
    for w in range(1, 4):
        a(valu(f"v_cmp_eq_u32 s[{64 + 2 * w}:{65 + 2 * w}], {w}, v2", [f"s{64 + 2 * w}", f"s{65 + 2 * w}"], ["v2"]))
    a(cnd("v15", f"v{V_F[0]}", f"v{V_F[1]}", 66))
    a(cnd("v15", "v15", f"v{V_F[2]}", 68))
    a(v3("v_add_u32", "v16", "0x80", "v15"))
    a(v3("v_add_u32", "v9", "0x100", f"v{V_F[1]}"))
    a(cnd("v15", "v15", "v9", 70))
    a(v3("v_add_u32", "v9", "0x100", f"v{V_F[2]}"))
    a(cnd("v16", "v16", "v9", 70))
    a(v3("v_lshrrev_b32", "v5", "1", "v1"))
    a(v3("v_and_b32", "v5", "28", "v5"))
    for c in range(2):
        for hf in range(2):
            a(Inst(f"ds_bpermute_b32 v{17 + 2 * c + hf}, v5, v{15 + c} offset:{32 * hf}", "dsr", defs=[f"v{17 + 2 * c + hf}"], uses=["v5", f"v{15 + c}"]))
    a(v3("v_and_b32", "v12", "7", "v1"))
    a(v3("v_xor_b32", "v12", "v12", "v4"))
    a(v3("v_lshlrev_b32", "v12", "4", "v12"))
    a(v3("v_xor_b32", "v13", "64", "v12"))
    a(salu("s_lshl_b32 s41, s38, 12", ["s41", "scc"], ["s38"]))
    a(salu(f"s_add_u32 s41, s41, {STAGE}", ["s41", "scc"], ["s41"]))
    a(salu(f"s_cmp_lt_u32 s{S_TW}, {NWIN}", ["scc"], [f"s{S_TW}"]))
    a(salu("s_cselect_b32 s30, s31, 0", ["s30"], ["scc", "s31"]))
    a(raw("s_waitcnt lgkmcnt(0)", "wait"))
    if o.diag:
        a(v3("v_mov_b32", f"v{V_TIME}", "s44"))
        a(valu(f"v_writelane_b32 v{V_TIME}, s46, 62", [f"v{V_TIME}"], ["s46"]))
    if o.pstamp:
        p.extend(stamp3(55))
    def x_small():
        srd(a, S_XS, 32, "s30")
        for i in range(4):
            a(v3("v_add_u32", f"v{17 + i}", f"v{17 + i}", ("v12", "v13")[i & 1]))
        for i in range(4):
            a(salu(f"s_add_u32 m0, s41, {1024 * i}", ["m0", "scc"], ["s41"]))
            a(Inst(f"buffer_load_dwordx4 v{17 + i}, s[{S_XS}:{S_XS+3}], s{S_CB} offen lds", "ldsdma", uses=[f"v{17 + i}", f"s{S_CB}", "m0"]))
        srd(a, 4, 32, "s31")
        for s in (4, 5):
            a(xload(1, 0, s, S_CB, sr=S_XS))
        for s in range(6):
            a(Inst(f"buffer_load_dwordx4 {T('a', AX49 + 4 * s, 4)}, v14, s[4:7], 0 offen offset:{64 * s}", "vload",
                   defs=R('a', AX49 + 4 * s, 4), uses=["v14"]))

    def w_load(bank, reg, addr, off):
        for g in range(6):
            if g:
                a(salu("s_add_u32 s42, s42, 3072", ["s42", "scc"], ["s42"]))
                a(salu(f"s_cmp_eq_u32 s42, {off + NBASE}", ["scc"], ["s42"]))
                a(salu(f"s_cselect_b32 s42, {off}, s42", ["s42"], ["scc", "s42"]))
            for k in range(3):
                d = reg + 4 * (3 * g + k)
                a(Inst(f"buffer_load_dwordx4 {T(bank, d, 4)}, v{V_LDS[0]}, s[12:15], s42 offen offset:{1024 * k}", "vload",
                       defs=R(bank, d, 4), uses=[f"v{V_LDS[0]}", "s42"]))
            a(v3("v_add_u32", f"v{addr + g}", "s42", f"v{V_LDS[0]}"))

    if o.order == "xm":
        x_small()
    if o.pstamp:
        p.extend(stamp3(56))
    srd(a, 12, 36, "147456" if not o.diag else str(WS_TIME_OFF + 1024 * 256))
    w_load("a", 0, 21, 0)
    if o.order == "mx":
        x_small()
    if o.pstamp:
        p.extend(stamp3(57))
    for g in range(6):
        a(v3("v_add_u32", f"v{V_NA + g}", str(NBASE), f"v{21 + g}"))
    if o.pstamp:
        p.extend(stamp3(58))
    a(v3("v_lshrrev_b32", "v5", "1", "v3"))
    a(v3("v_xor_b32", "v5", "v5", "v4"))
    a(v3("v_lshlrev_b32", "v5", "4", "v5"))
    a(v3("v_lshl_add_u32", "v5", "v3", "7", "v5"))
    a(v3("v_add_u32", f"v{V_R0[0]}", str(STAGE), "v5"))
    a(v3("v_xor_b32", f"v{V_R0[1]}", "64", f"v{V_R0[0]}"))
    a(v3("v_add_u32", f"v{V_LDS[1]}", "0x10000", f"v{V_LDS[0]}"))
    a(v3("v_add_u32", f"v{V_LDS[2]}", "0x20000", f"v{V_LDS[0]}"))
    srd(a, 8, 34, "0" if o.nostore else "s30")
    srd(a, S_SPA, 34, "0")
    srd(a, S_SPB, 34, "0" if o.nostore else "s30")
    if DROP:
        srd(a, 80, 34, "0")
    V_N16, V_N8 = 15, 16
    a(v3("v_lshlrev_b32", f"v{V_N16}", "4", "v3"))
    a(v3("v_lshlrev_b32", f"v{V_N8}", "3", "v3"))
    kind_offsets(a, "v4", ("v5", "v6", "v7", "v8", "v9"))
    for kind, src in KO.items():
        a(v3("v_add_u32", f"v{V_ST[kind][0]}", src, f"v{V_N16}"))
        a(v3("v_add_u32", f"v{V_ST[kind][1]}", src, f"v{V_N8}"))
    for q in (1, 2):
        a(valu(f"v_accvgpr_write_b32 a{AP[q] + 7}, 0", [f"a{AP[q] + 7}"], []))
    for r, val in ((S_M0, "0"), (S_M0 + 1, "0"), (S_M1, "0xffff0000"), (S_M1 + 1, "0"), (S_SH, "16"), (S_GO, "384"), (S_K, "0"),
                   (40, "0xffff"), (41, "0")):
        a(salu(f"s_mov_b32 s{r}, {val}", [f"s{r}"], []))
    a(cnd(f"v{V_SP[0]}", f"v{V_NINF}", f"v{V_ST['H'][0]}", S_M1))
    a(cnd(f"v{V_SP[1]}", f"v{V_NINF}", f"v{V_ST['H'][1]}", S_M1))
    p.extend(row_bases())
    if o.ct:
        a(raw("s_getpc_b64 s[82:83]", "salu", ["s82", "s83"]))
        a(raw("L_here:", "label"))
        for k, ex in enumerate(CT):
            a(salu(f"s_add_u32 s{84 + 2 * k}, s82, {ex}-L_here", [f"s{84 + 2 * k}", "scc"], ["s82"]))
            a(salu(f"s_addc_u32 s{85 + 2 * k}, s83, 0", [f"s{85 + 2 * k}", "scc"], ["s83", "scc"]))
        a(v3("v_lshlrev_b32", f"v{V_CT[0]}", "3", f"v{V_LDS[0]}"))
    if o.diag:
        a(salu(f"s_mov_b32 s{S_IT}, 1", [f"s{S_IT}"], []))
        a(salu("s_mov_b32 s72, 10", ["s72"], []))
    if o.pstamp:
        p.extend(stamp3(59))
    for k in range(18):
        a(raw(f"s_waitcnt vmcnt({17 - k + (12 if o.order == 'mx' else 0)})", "wait"))
        if o.pstamp and k == 0:
            p.extend(stamp3(60))
        a(Inst(f"ds_write_b128 v{21 + k // 3}, {T('a', 4 * k, 4)} offset:{1024 * (k % 3)}", "dsw", uses=R('a', 4 * k, 4) + [f"v{21 + k // 3}"]))
    for q in range(3):
        a(salu(f"s_cmp_eq_u32 s38, {q}", ["scc"], ["s38"]))
        a(raw(f"s_cbranch_scc1 L_sh{q}"))
    return p


def stamp3(lane):
    return [raw("s_memtime s[44:45]"), raw("s_waitcnt lgkmcnt(0)", "wait"),
            valu(f"v_writelane_b32 v{V_TIME}, s44, {lane}", [f"v{V_TIME}"], ["s44"])]


def stamp():
    return [raw("s_memtime s[44:45]"), raw("s_memrealtime s[46:47]"), salu(f"s_mov_b32 m0, s{S_IT}", ["m0"], [f"s{S_IT}"]), raw("s_waitcnt lgkmcnt(0)", "wait"),
            valu(f"v_writelane_b32 v{V_TIME}, s44, m0", [f"v{V_TIME}"], ["s44", "m0"]),
            salu(f"s_add_u32 m0, s{S_IT}, 43", ["m0", "scc"], [f"s{S_IT}"]),
            valu(f"v_writelane_b32 v{V_TIME}, s46, m0", [f"v{V_TIME}"], ["s46", "m0"]),
            salu(f"s_add_u32 s{S_IT}, s{S_IT}, 1", [f"s{S_IT}", "scc"], [f"s{S_IT}"])]


def stamp2():
    return [raw("s_memtime s[44:45]"), salu("s_mov_b32 m0, s72", ["m0"], ["s72"]), raw("s_waitcnt lgkmcnt(0)", "wait"),
            valu(f"v_writelane_b32 v{V_TIME}, s44, m0", [f"v{V_TIME}"], ["s44", "m0"]),
            salu("s_add_u32 s72, s72, 1", ["s72", "~scc"], ["s72"])]


def add_stamps(body, pts):
    out = []
    k = 0
    for i in body:
        if i.kind == "mfma":
            if k in pts:
                st = stamp2()
                st[-1] = raw("s_addk_i32 s72, 1", "salu", ["s72"], ["s72"])
                out.extend(st)
            k += 1
        out.append(i)
    return out


def texts(l):
    return [i.text for i in l]


def gen_main(o):
    pro = insert_nops(gen_prologue(o))
    pts = [int(x) for x in o.pts.split(",")] if o.pts else None

    def build(prog):
        body, cyc = schedule2(prog, verbose=o.verbose, urgent=o.urgent)
        if not o.verbose:
            print("; model cycles", cyc)
        return body, cyc

    def waits(body, cyc, pre):
        return insert_waits(body, pre=pre, early_lgkm=(o.early, cyc) if o.early else 0,
                            early_vm=(o.early_vm, cyc) if o.early_vm else 0)

    head = lambda: stamp() if o.diag else []
    shared = []
    for q in range(4):
        t, c = build(gen_shared(o, q))
        if o.tpts:
            t = add_stamps(t, [int(x) for x in o.tpts.split(",")])
        t = [raw("s_waitcnt vmcnt(0) lgkmcnt(0)", "wait")] + (stamp3(61) if o.pstamp else []) + t
        last = max(k for k, i in enumerate(t) if i.kind == "vload")
        nst = sum(i.kind == "vstore" for i in t[last:])
        t += [raw(f"s_waitcnt vmcnt({nst}) lgkmcnt(0)", "wait")]
        t = insert_waits(t, pre=pro, early_lgkm=(o.early, 1 << 30))
        shared.append(insert_nops(t, pre=[pro]))
    bodies = []
    for xs in range(2):
        body, cyc = build(gen_body(o, xs))
        if pts:
            body = add_stamps(body, pts)
        tail = [salu(f"s_cmp_eq_u32 s{S_K}, 5", ["scc"], [f"s{S_K}"]), raw("s_cbranch_scc1 L_epi")] if xs == 0 else [raw("s_branch L_b0")]
        bodies.append(head() + body + tail)
    w = [waits(bodies[0], cyc, []), None]
    for it in range(3):
        w[1] = waits(bodies[1], cyc, w[0])
        w[0] = waits(bodies[0], cyc, w[1])
    w = [hoist_waits(x) for x in w]
    n = [insert_nops(w[0], pre=shared), None]
    for it in range(3):
        n[1] = insert_nops(w[1], pre=[n[0]])
        n[0] = insert_nops(w[0], pre=shared + [n[1]])
    for i in w[0]:
        i.time = None
    epi = insert_nops(insert_waits(head() + build(gen_epi(o))[0], pre=w[0]), pre=[n[0]])
    print('; replay', model_time(n[1]), model_time(n[0]))
    fin = []
    if o.diag:
        fin += stamp()
        fin += [raw("s_waitcnt vmcnt(0)", "wait")] + stamp()
        fin += [raw("s_memrealtime s[46:47]"), raw("s_waitcnt lgkmcnt(0)", "wait"),
                valu(f"v_writelane_b32 v{V_TIME}, s46, 63", [f"v{V_TIME}"], ["s46"])]
        fin += [v3("v_lshrrev_b32", "v0", "2", f"v{V_LDS[0]}"),
                salu("s_lshl_b32 s42, s2, 2", ["s42", "scc"], ["s2"]),
                salu("s_add_u32 s42, s42, s38", ["s42", "scc"], ["s42", "s38"]),
                salu("s_lshl_b32 s42, s42, 8", ["s42", "scc"], ["s42"]),
                salu(f"s_add_u32 s42, s42, {WS_TIME_OFF}", ["s42", "scc"], ["s42"]),
                Inst(f"buffer_store_dword v{V_TIME}, v0, s[12:15], s42 offen", "vstore", uses=[f"v{V_TIME}", "v0", "s42"])]
        fin = insert_nops(fin)
    stats = {}
    for i in n[0]:
        stats[i.kind] = stats.get(i.kind, 0) + 1
    print("; body stats", stats, file=sys.stderr)
    out = emit(pro) + "\n" + emit(shared[3]) + "\n    s_branch L_b0\n"
    for q in range(3):
        out += f".p2align 6\nL_pad_t{q}:\n    s_endpgm\nL_sh{q}:\n" + emit(shared[q]) + "\n"
        if q < 2:
            out += "    s_branch L_b0\n"
    out += "L_b0:\n" + emit(n[0]) + "\nL_b1:\n" + emit(n[1]) + "\n.p2align 6\nL_pad_epi:\n    s_endpgm\nL_epi:\n"
    return out + emit(epi) + "\n" + emit(fin) + "\nL_main_done:\n    s_endpgm\n"


def merge_waits(x, y):
    def split(l):
        out, cur = [], {}
        for i in l:
            if i.kind == "wait" and not i.defs and not i.uses:
                for nm, v in re.findall(r"(vmcnt|lgkmcnt)\((\d+)\)", i.text):
                    cur[nm] = min(cur.get(nm, 99), int(v))
            else:
                out.append((cur, i))
                cur = {}
        return out
    a, b = split(x), split(y)
    assert [i.text for _, i in a] == [i.text for _, i in b]
    out = []
    for (wa, i), (wb, _) in zip(a, b):
        m = {k: min(wa.get(k, 99), wb.get(k, 99)) for k in set(wa) | set(wb)}
        if m:
            w = Inst("s_waitcnt " + " ".join(f"{k}({m[k]})" for k in ("vmcnt", "lgkmcnt") if k in m), "wait")
            w.time = i.time
            out.append(w)
        out.append(i)
    return out


def emit(insts):
    out = []
    for i in insts:
        out.append(i.text if i.kind == "label" else "    " + i.text)
    return "\n".join(out)


HEADER = """; Swin window attention: folded projections (M = a*Wq*Wk^T, N = Wv*Wo), one wave per window.
; @launch kernel=swin_prep_kernel grid=(@PGRID@,1,1) block=(64,1,1) lds=0
; @launch kernel={name}_kernel grid=(256,1,1) block=(256,1,1) lds=163840
.amdgcn_target "amdgcn-amd-amdhsa--gfx950"
.text
"""

KD = """.amdhsa_kernel {k}
  .amdhsa_next_free_vgpr {nv}
  .amdhsa_next_free_sgpr {ns}
  .amdhsa_accum_offset {ao}
  .amdhsa_group_segment_fixed_size 0
  .amdhsa_kernarg_size 48
  .amdhsa_user_sgpr_count 2
  .amdhsa_user_sgpr_kernarg_segment_ptr 1
  .amdhsa_system_sgpr_workgroup_id_x 1
.end_amdhsa_kernel
"""


def finish(s, pads, rep):
    t = ["    s_sub_u32 s3, s2, 144", "    s_lshr_b32 s3, s3, 3"]
    for i, p in enumerate(pads * rep):
        t += [f"    s_cmp_eq_u32 s3, {i}", f"    s_cbranch_scc1 {p}"]
    return s.replace("@TOUCH@", "\n".join(t)).replace("@PGRID@", str(144 + 8 * len(pads) * rep))


def layout(s):
    import subprocess
    open("_lay.s", "w").write(s)
    subprocess.run(["clang", "-x", "assembler", "-target", "amdgcn-amd-amdhsa", "-mcpu=gfx950", "-c",
                    "_lay.s", "-o", "_lay.o"], check=True)
    d = subprocess.run(["llvm-objdump", "-d", "_lay.o"], capture_output=True, text=True).stdout
    return [(int(m.group(2), 16), m.group(1)) for m in re.finditer(r"^\t(\S+).*// ([0-9A-F]{12}):", d, flags=re.M)]


def add_pads(s, k, o):
    pads = ["L_pad_entry", "L_pad_t0", "L_pad_t1", "L_pad_t2", "L_pad_epi"]
    if o.nopad:
        return finish(s, [], 1)
    page = 1
    while True:
        lines = s.split("\n")
        ins = layout(finish(s, pads, o.touch_rep))
        start = lines.index(k + ":")
        base = max(a for a, op in ins if op == "s_cmp_lt_u32" and a % 4096 == 0)
        lst = [x for x in ins if x[0] >= base]
        src = [i for i in range(start, len(lines)) if lines[i].startswith("    ") and not lines[i].startswith("  .")]
        pos = []
        j = 0
        for i in src:
            op = lines[i].split()[0]
            while lst[j][1].replace("_e32", "").replace("_e64", "") != op:
                assert lst[j][1] == "s_nop", (lst[j], op)
                j += 1
            pos.append((i, lst[j][0], op))
            j += 1
        lo = base + 4096 * page
        if lo > pos[-1][1]:
            break
        cand = [(n, x) for n, x in enumerate(pos) if lo - 4 <= x[1] <= lo + 52]
        if any(x[2] == "s_endpgm" and x[1] >= lo for n, x in cand):
            n, x = [c for c in cand if c[1][2] == "s_endpgm" and c[1][1] >= lo][0]
            lines.insert(x[0], f"L_pad{page}:")
        else:
            good = [c for c in cand if pos[c[0] - 1][2].startswith("v_mfma") and c[1][2].startswith(("v_", "ds_"))
                    and pos[c[0] - 1][0] == c[1][0] - 1]
            n, x = (good or [c for c in cand if pos[c[0] - 1][0] == c[1][0] - 1])[0]
            lines[x[0]:x[0]] = [f"    s_branch L_skip{page}", f"L_pad{page}:", "    s_endpgm", f"L_skip{page}:"]
        pads.append(f"L_pad{page}")
        s = "\n".join(lines)
        page += 1
    print("; pads", len(pads), file=sys.stderr)
    return finish(s, pads, o.touch_rep)


def main():
    ap = argparse.ArgumentParser()
    ap.add_argument("-o", default="cdna_kernels/" + NAME + ".s")
    ap.add_argument("--diag", action="store_true")
    ap.add_argument("--pts", default="")
    ap.add_argument("--rm", default="")
    ap.add_argument("--ct", type=int, default=8000)
    ap.add_argument("--tpts", default="")
    ap.add_argument("--early", type=int, default=230)
    ap.add_argument("--early_vm", type=int, default=0)
    ap.add_argument("--ld_rel", type=int, default=300)
    ap.add_argument("--ld_step", type=int, default=400)
    ap.add_argument("--tail_s", type=int, default=1)
    ap.add_argument("--order", default="mx")
    ap.add_argument("--nl_rel", type=int, default=0)
    ap.add_argument("--nl_step", type=int, default=64)
    ap.add_argument("--nw_rel", type=int, default=800)
    ap.add_argument("--nw_step", type=int, default=64)
    ap.add_argument("--x0_rel", type=int, default=1200)
    ap.add_argument("--x0_step", type=int, default=200)
    ap.add_argument("--tlb", type=int, default=0)
    ap.add_argument("--defer", default="12")
    ap.add_argument("--after", default="5,6,7,8,10")
    ap.add_argument("--urgent", type=int, default=0)
    ap.add_argument("--touch_rep", type=int, default=1)
    ap.add_argument("--ld_grp", type=int, default=2)
    ap.add_argument("--q2p0", default="5400,500")
    ap.add_argument("--q2p1", default="7400,350")
    ap.add_argument("--dsw_busy", type=int, default=40)
    ap.add_argument("--st_busy", type=int, default=150)
    ap.add_argument("--ld_flags", default="")
    ap.add_argument("--st_flags", default="")
    ap.add_argument("--st_flags0")
    ap.add_argument("--st_flags1")
    ap.add_argument("--drop", default="")
    for f in ("noload", "nostore", "pstamp", "verbose", "nopad"):
        ap.add_argument("--" + f, action="store_true")
    o = ap.parse_args()
    o.defer = [int(c) for c in o.defer]
    if o.ld_flags:
        o.ld_flags = " " + o.ld_flags
    if o.st_flags:
        o.st_flags = " " + o.st_flags
    global DSW_BUSY, ST_BUSY, LD_GRP
    DROP.extend(int(c) for c in o.drop)
    for k, f in enumerate((o.st_flags0, o.st_flags1)):
        if f is not None:
            PFLAGS[k] = " " + f if f else ""
    DSW_BUSY, ST_BUSY, LD_GRP = o.dsw_busy, o.st_busy, o.ld_grp
    old = sys.stdout
    sys.stdout = sys.stderr
    prep = gen_prep(o)
    main_text = gen_main(o)
    sys.stdout = old
    s = HEADER.format(name=NAME)
    s += ".globl swin_prep_kernel\n.p2align 8\n.type swin_prep_kernel,@function\nswin_prep_kernel:\n"
    s += emit(prep) + "\n"
    k = NAME + "_kernel"
    s += f".globl {k}\n.p2align 12\n.type {k},@function\n{k}:\n"
    s += main_text
    s += '.section .rodata,"a"\n.p2align 6\n'
    s += KD.format(k="swin_prep_kernel", nv=144, ns=40, ao=144)
    s += ".p2align 6\n"
    s += KD.format(k=k, nv=512, ns=90, ao=256)
    s = add_pads(s, k, o)
    open(o.o, "w").write(s)


if __name__ == "__main__":
    main()
```

```python
import sys, math, struct, argparse, re
from asmlib import *

NAME = "standalone__swin_window_attn__vision"
NWIN = 5329
XBYTES = 100270464
ROWB = 196224
WINROW = 7 * ROWB
MAGIC73 = (1 << 32) // 73 + 1
for w in range(0, 16384):
    assert (w * MAGIC73) >> 32 == w // 73
ALPHA = (192 ** -0.5) * math.log2(math.e)
WS_TIME_OFF = 1 << 20
STAGE = 147456


def f32bits(x):
    return struct.unpack("<I", struct.pack("<f", x))[0]


def mfma(bd, d, ba, a, bb, b, first):
    c = "0" if first else T(bd, d, 4)
    D = R(bd, d, 4)
    AB = R(ba, a, 4) + R(bb, b, 4)
    return Inst(f"v_mfma_f32_16x16x32_bf16 {T(bd, d, 4)}, {T(ba, a, 4)}, {T(bb, b, 4)}, {c}", "mfma",
                defs=D, uses=AB + ([] if first else D), srcC=([] if first else D), srcAB=AB, passes=4)


def valu(text, defs, uses, kind="valu", **kw):
    return Inst(text, kind, defs=defs, uses=uses, **kw)


def cvtpk(d, a, b, **kw):
    bt = f"v{b}" if b is not None else "0"
    return valu(f"v_cvt_pk_bf16_f32 v{d}, v{a}, {bt}", [f"v{d}"], [f"v{a}"] + ([f"v{b}"] if b is not None else []), **kw)


def salu(text, defs, uses, **kw):
    return Inst(text, "salu", defs=defs, uses=uses, **kw)


def raw(text, kind="other", defs=(), uses=()):
    return Inst(text, kind, defs=defs, uses=uses)


def v3(op, d, *srcs, **kw):
    uses = [s for s in srcs if isinstance(s, str) and (is_vreg(s) or is_sreg(s))]
    return valu(f"{op} {d}, " + ", ".join(str(s) for s in srcs), [d], uses, **kw)


def cnd(d, a, b, m):
    return valu(f"v_cndmask_b32 {d}, {a}, {b}, s[{m}:{m+1}]", [d], [a, b, f"s{m}", f"s{m+1}"])


def srd(a, dst, src, nb):
    a(salu(f"s_mov_b32 s{dst}, s{src}", [f"s{dst}"], [f"s{src}"]))
    a(salu(f"s_and_b32 s{dst+1}, s{src+1}, 0xffff", [f"s{dst+1}", "scc"], [f"s{src+1}"]))
    a(salu(f"s_mov_b32 s{dst+2}, {nb}", [f"s{dst+2}"], []))
    a(salu(f"s_mov_b32 s{dst+3}, 0x20000", [f"s{dst+3}"], []))


STRIPS = [("H", r) for r in range(7)] + [("V", 4), ("V", 5), ("V", 6), ("Q", 0), ("I", 0)]
I_TOK = [(4, 6), (5, 6), (6, 4), (6, 5)]


def token(t, n):
    g, i = n >> 2, n & 3
    kind, p = STRIPS[4 * t + i]
    if kind == "H":
        return p, g
    if kind == "V":
        return g, p
    if kind == "Q":
        return 4 + (g >> 1), 4 + (g & 1)
    return I_TOK[g]


assert sorted(token(t, n) for t in range(3) for n in range(16)) + [(6, 6)] == [(r, c) for r in range(7) for c in range(7)]


P_A, P_B, P_C, P_O, P_U = 128, 176, 200, 208, 32
S_KA = 92
S_KB = 32
S_DBG = 80
S_PSC, S_PSO = 100, 101


def prod_load(o):
    p = []
    a = p.append
    a(salu("s_cmp_ge_u32 s2, 72", ["scc"], ["s2"]))
    a(salu("s_cselect_b32 s20, 1, 0", ["s20"], ["scc"]))
    a(salu("s_mul_i32 s21, s20, 72", ["s21"], ["s20"]))
    a(salu("s_sub_u32 s21, s2, s21", ["s21", "scc"], ["s2", "s21"]))
    a(salu("s_mul_i32 s22, s21, 43", ["s22"], ["s21"]))
    a(salu("s_lshr_b32 s22, s22, 8", ["s22", "scc"], ["s22"]))
    for r in range(72):
        assert (r * 43) >> 8 == r // 6
    a(salu("s_mul_i32 s23, s22, 6", ["s23"], ["s22"]))
    a(salu("s_sub_u32 s23, s21, s23", ["s23", "scc"], ["s21", "s23"]))
    a(v3("v_lshrrev_b32", "v5", "2", "v3"))
    a(v3("v_and_b32", "v6", "3", "v3"))
    a(v3("v_lshl_add_u32", "v5", "v5", "3", "v6"))
    a(v3("v_mul_u32_u24", "v5", "0x480", "v5"))
    a(v3("v_lshl_add_u32", "v5", "v4", "4", "v5"))
    a(salu("s_mul_i32 s25, s23, 36864", ["s25"], ["s23"]))
    a(salu("s_mul_i32 s26, s20, 768", ["s26"], ["s20"]))
    a(salu("s_add_u32 s25, s25, s26", ["s25", "scc"], ["s25", "s26"]))
    a(salu("s_add_u32 s24, s25, 4608", ["s24", "scc"], ["s25"]))
    a(salu("s_lshr_b32 s26, s22, 1", ["s26", "scc"], ["s22"]))
    a(salu("s_mul_i32 s26, s26, 36864", ["s26"], ["s26"]))
    a(salu("s_and_b32 s27, s22, 1", ["s27", "scc"], ["s22"]))
    a(salu("s_mul_i32 s27, s27, 4608", ["s27"], ["s27"]))
    a(salu("s_add_u32 s26, s26, s27", ["s26", "scc"], ["s26", "s27"]))
    a(salu("s_add_u32 s26, s26, 384", ["s26", "scc"], ["s26"]))
    a(salu(f"s_lshl_b32 s{S_PSO}, s2, 10", [f"s{S_PSO}", "scc"], ["s2"]))
    a(raw("s_waitcnt lgkmcnt(0)", "wait"))
    srd(a, 56, S_KA + 2, 192 * 576 * 2)

    def a_loads():
        for k in range(6):
            for h in range(2):
                d = P_A + 24 * h + 4 * k
                a(Inst(f"buffer_load_dwordx4 {T('v', d, 4)}, v5, s[56:59], s{(25, 24)[h]} offen offset:{64 * k}", "vload",
                       defs=R('v', d, 4), uses=["v5", "s25", "s24"]))
    a(salu("s_cmp_eq_u32 s20, 1", ["scc"], ["s20"]))
    a(raw("s_cbranch_scc1 L_prod_n"))
    for k in range(6):
        a(Inst(f"buffer_load_dwordx4 {T('v', P_B + 4 * k, 4)}, v5, s[56:59], s26 offen offset:{64 * k}", "vload",
               defs=R('v', P_B + 4 * k, 4), uses=["v5", "s26"]))
    a(salu(f"s_mov_b32 s{S_PSC}, 0x{f32bits(ALPHA):08x}", [f"s{S_PSC}"], []))
    a(raw("s_branch L_prod_a"))
    a(raw("L_prod_n:", "label"))
    srd(a, 60, S_KA + 4, 192 * 192 * 2)
    a(salu("s_cmp_lt_u32 s22, 8", ["scc"], ["s22"]))
    a(salu("s_cselect_b32 s26, 3, 2", ["s26"], ["scc"]))
    a(salu("s_cselect_b32 s27, 0, 120", ["s27"], ["scc"]))
    a(salu("s_add_u32 s27, s27, s22", ["s27", "scc"], ["s27", "s22"]))
    a(v3("v_lshlrev_b32", "v6", "s26", "v3"))
    a(v3("v_add_u32", "v6", "s27", "v6"))
    a(v3("v_lshlrev_b32", "v6", "1", "v6"))
    a(v3("v_mul_u32_u24", "v7", "0xc00", "v4"))
    a(v3("v_add_u32", "v6", "v6", "v7"))
    for k in range(6):
        a(salu(f"s_mov_b32 s27, {k * 12288}", ["s27"], []))
        for j in range(8):
            r = P_U + 8 * k + j
            a(Inst(f"buffer_load_ushort v{r}, v6, s[60:63], s27 offen offset:{384 * j}", "vload",
                   defs=[f"v{r}"], uses=["v6", "s27"]))
    a(salu(f"s_mov_b32 s{S_PSC}, 1.0", [f"s{S_PSC}"], []))
    a(raw("L_prod_a:", "label"))
    a_loads()
    warm(o, a)
    return p


def warm(o, a, part=3):
    if part & 1:
        srd(a, 12, S_KB + 2, "151552" if not o.diag else str(WS_TIME_OFF + 1024 * 256))
        srd(a, S_DBG, S_KB, "256")
    if part & 2 and not o.nowarm:
        a(salu("s_mov_b32 s27, 149504", ["s27"], []))
        a(Inst("buffer_load_dword v30, off, s[12:15], s27", "vload", defs=["v30"], uses=["s27"]))
        a(Inst(f"buffer_load_dword v31, off, s[{S_DBG}:{S_DBG+3}], 0 offset:128 nt", "vload", defs=["v31"]))


def prod_store(o, behind):
    p = []
    a = p.append
    a(raw(f"s_waitcnt vmcnt({behind})", "wait"))
    if o.pstamp:
        p.extend(stamp3(57))
    a(salu("s_cmp_lt_u32 s2, 72", ["scc"], ["s2"]))
    a(raw("s_cbranch_scc1 L_prod_mm"))
    for r in range(24):
        a(v3("v_lshl_or_b32", f"v{P_B + r}", f"v{P_U + 2 * r + 1}", "16", f"v{P_U + 2 * r}"))
    a(raw("L_prod_mm:", "label"))
    for k in range(6):
        for h in range(2):
            a(mfma("v", P_C + 4 * h, "v", P_A + 24 * h + 4 * k, "v", P_B + 4 * k, k == 0))
    for r in range(8):
        a(v3("v_mul_f32", f"v{P_C + r}", f"s{S_PSC}", f"v{P_C + r}"))
    for r in range(4):
        a(cvtpk(P_O + r, P_C + 2 * r, P_C + 2 * r + 1))
    a(Inst(f"buffer_store_dwordx4 {T('v', P_O, 4)}, v{V_LDS[0]}, s[12:15], s{S_PSO} offen sc1", "vstore",
           uses=R('v', P_O, 4) + [f"v{V_LDS[0]}"], wide=True))
    return p


def prod_signal(o):
    p = []
    a = p.append
    a(salu("s_cmp_lt_u32 s2, 72", ["scc"], ["s2"]))
    a(salu(f"s_cselect_b32 s27, 0, {CNT_N}", ["s27"], ["scc"]))
    a(salu("s_lshr_b32 s26, s2, 3", ["s26", "scc"], ["s2"]))
    a(salu("s_xor_b32 s26, s26, s2", ["s26", "scc"], ["s2", "s26"]))
    a(salu("s_and_b32 s26, s26, 1", ["s26", "scc"], ["s26"]))
    a(salu("s_lshl_b32 s26, s26, 6", ["s26", "scc"], ["s26"]))
    a(salu("s_add_u32 s27, s27, s26", ["s27", "scc"], ["s26", "s27"]))
    for lo in (0, 72):
        assert sum(((w >> 3) ^ w) & 1 for w in range(lo, lo + 72)) == 36
    a(v3("v_mov_b32", f"v{P_C}", "1"))
    a(salu("s_mov_b64 exec, 1", ["exec"], []))
    a(raw("s_waitcnt vmcnt(0)", "wait"))
    a(Inst(f"buffer_atomic_add v{P_C}, off, s[{S_DBG}:{S_DBG+3}], s27 sc1", "vstore", uses=[f"v{P_C}", "s27"]))
    a(salu("s_mov_b64 exec, -1", ["exec"], []))
    if o.pstamp:
        p.extend(stamp3(58))
    return p


CNT_N = 4
XS = [0, 72]
AX49, AT49, AW = 144, 168, 192
NRING = 12
SB = 0
ACC = 64
TBF = 88
OPA = 100
VBF = 124
V_LDS = [220, 221, 222]
V_F = [223, 224, 225]
V_ST = {"H": (232, 233), "V": (234, 235), "Q": (236, 237), "I": (238, 239)}
V_SP = (240, 241)
V_CT = (242, 243)
AP = {1: 240, 2: 248}
V_Q3 = 250
S_TW = 73
S_XS = 76
NBASE = 73728
DSW_BUSY, ST_BUSY, LD_GRP = 40, 40, 1
DROP, PFLAGS = [], [None, None]
V_NINF = 244
V_TMP = [[245, 246, 247, 248, 249], [250, 251, 252, 253, 254]]
V_TIME = 255
S_WCUR, S_LB, S_CB, S_K, S_ROW = 16, 17, 18, 19, 20
S_IT = 28
S_M0, S_M1, S_GM, S_SH, S_SPO, S_GO = 48, 50, 52, 54, 55, 74
S_SPA, S_SPB = 56, 60


def xr(xs, t, s):
    return XS[xs] + 24 * t + 4 * s


def xop(xs, t, s):
    return AX49 + 4 * s if t == 3 else xr(xs, t, s)


def lds_at(idx):
    base, imm = divmod((idx % 144) * 1024, 65536)
    return V_LDS[base], imm


def wfrag_read(idx, slot=None, extra=(), **kw):
    va, imm = lds_at(idx)
    d = AW + 4 * (idx % NRING if slot is None else slot)
    return Inst(f"ds_read_b128 {T('a', d, 4)}, v{va} offset:{imm}", "dsr", defs=R('a', d, 4),
                uses=[f"v{va}"] + list(extra), **kw)


class Ring:
    def __init__(self, seq, have=None):
        self.seq = seq
        self.slot = [have[i] for i in seq[:NRING]] if have else list(range(NRING))
        self.pos = 0
        self.gate = lambda idx: []

    def fill(self, extra=()):
        return [wfrag_read(i, self.slot[p], extra) for p, i in enumerate(self.seq[:NRING])]

    def take(self):
        p = self.pos
        self.pos += 1
        sl = self.slot[p]
        self.slot.append(sl)
        nxt = [wfrag_read(self.seq[p + NRING], sl, self.gate(self.seq[p + NRING]))] if p + NRING < len(self.seq) else []
        return AW + 4 * sl, nxt


def xload(xs, t, s, sbase, flags="", sr=4, **kw):
    d = xr(xs, t, s)
    return Inst(f"buffer_load_dwordx4 {T('a', d, 4)}, v{V_F[t]}, s[{sr}:{sr+3}], s{sbase} offen offset:{64 * s}" + flags,
                "vload", defs=R('a', d, 4), uses=[f"v{V_F[t]}", f"s{sbase}", f"s{sr+2}"], **kw)


def xloads(xs, sbase, flags, rel=None, step=0):
    out = []
    k = 0
    for j in range(3):
        for t in range(3):
            for u in range(2):
                kw = {}
                if rel is not None:
                    at = rel + step * (k - k % LD_GRP) + 16 * (k % LD_GRP)
                    kw = dict(release=at, deadline=at + 48)
                out.append(xload(xs, t, 2 * j + u, sbase, flags, **kw))
                k += 1
    return out


def vb(ct):
    return VBF + 8 * ct


def opk(q, i, part):
    if q == 3:
        return TBF + 4 * i if part == 0 else V_Q3 + 2 * i
    return OPA + 4 * i if part == 0 else OPA + 16 + 2 * i


def o_mf(q, pr, acc=None, held=False):
    acc = SB + 16 * q + 8 if acc is None else acc
    bank, pb = ("a", AP[q]) if held else ("v", SB + 16 * q)
    out = []
    for ks in range(2):
        for e in range(2):
            out.append(mfma("v", acc + 4 * e, bank, pb + 4 * ks, "v", vb(2 * pr + e) + 4 * ks, ks == 0))
    return out


def o_pack(q, pr, acc=None):
    acc = SB + 16 * q + 8 if acc is None else acc
    out = []
    for i in range(2 if q == 3 else 4):
        d = opk(q, i, 0) + pr if pr < 4 else opk(q, i, 1) + pr - 4
        out.append(cvtpk(d, acc + i, acc + 4 + i))
    return out


def o_store(q, part, flags="", rel=None, step=0):
    out = []
    n = (4, 2)[part]
    for i in range(2 if q == 3 else 4):
        d = opk(q, i, part)
        if q == 3:
            vo, row, imm, sr = V_SP[part], None, 0, (S_SPA, S_SPB)[i]
        else:
            kind, pp = STRIPS[4 * q + i]
            vo, sr = V_ST[kind][part], 8
            row, imm = {"H": (pp, 0), "V": (0, pp * 384), "Q": (4, 4 * 384), "I": (4, 0)}[kind]
        so = f"s{S_SPO}" if row is None else f"s{S_ROW + row}"
        if part in DROP and q != 3:
            sr = 80
        if PFLAGS[part] is not None:
            flags = PFLAGS[part]
        out.append(Inst(f"buffer_store_dwordx{n} {T('v', d, n)}, v{vo}, s[{sr}:{sr+3}], {so} offen offset:{imm + 256 * part}{flags}",
                        "vstore", uses=R('v', d, n) + [f"v{vo}", so, f"s{sr+2}"], wide=(n == 4)))
        out[-1].cost, out[-1].real, out[-1].busy = 8, 4 + 4 * n, ST_BUSY
        if rel is not None:
            out[-1].release = rel + step * i
    return out


def xlane(op, m0, m1):
    p = []
    for sw in ("v_permlane32_swap_b32", "v_permlane16_swap_b32"):
        p.append(v3("v_mov_b32", f"v{m1}", f"v{m0}"))
        p.append(valu(f"{sw} v{m0}, v{m1}", [f"v{m0}", f"v{m1}"], [f"v{m0}", f"v{m1}"], kind="perm"))
        p.append(v3(op, f"v{m0}", f"v{m0}", f"v{m1}"))
    return p


def softmax(q, tset, part=3, hold=False):
    b = SB + 16 * q
    m0, m1, s0, s1, rr = V_TMP[tset]
    p = []
    p.append(cnd(f"v{b + 12}", f"v{V_NINF}", f"v{b + 12}", S_M0))
    p.append(cnd(f"v{b + 12}", f"v{b + 12}", f"v{b + 13}", S_M1))
    regs = [b + r for r in range(13)]
    m3 = lambda d, x, y, z: v3("v_max3_f32", f"v{d}", f"v{x}", f"v{y}", f"v{z}")
    p.append(m3(m0, regs[0], regs[1], regs[2]))
    p.append(m3(m1, regs[3], regs[4], regs[5]))
    p.append(m3(m0, m0, regs[6], regs[7]))
    p.append(m3(m1, m1, regs[8], regs[9]))
    p.append(m3(m0, m0, regs[10], regs[11]))
    p.append(m3(m0, m0, m1, regs[12]))
    p.extend(xlane("v_max_f32", m0, m1))
    for r in regs:
        p.append(v3("v_sub_f32", f"v{r}", f"v{r}", f"v{m0}"))
        p.append(valu(f"v_exp_f32 v{r}, v{r}", [f"v{r}"], [f"v{r}"], kind="trans"))
    p.append(v3("v_add_f32", f"v{s0}", f"v{regs[0]}", f"v{regs[1]}"))
    p.append(v3("v_add_f32", f"v{s1}", f"v{regs[2]}", f"v{regs[3]}"))
    for k in range(4, 13):
        s = (s0, s1)[k & 1]
        p.append(v3("v_add_f32", f"v{s}", f"v{s}", f"v{regs[k]}"))
    p.append(v3("v_add_f32", f"v{s0}", f"v{s0}", f"v{s1}"))
    p.extend(xlane("v_add_f32", s0, s1))
    p.append(valu(f"v_rcp_f32 v{rr}, v{s0}", [f"v{rr}"], [f"v{s0}"], kind="trans"))
    if part == 1:
        return p
    if part == 2:
        p = []
    for k in range(0, 12, 2):
        p.append(v3("v_mul_f32", f"v{regs[k]}", f"v{regs[k]}", f"v{rr}"))
        p.append(v3("v_mul_f32", f"v{regs[k + 1]}", f"v{regs[k + 1]}", f"v{rr}"))
        p.append(cvtpk(b + k // 2, regs[k], regs[k + 1]))
    p.append(v3("v_mul_f32", f"v{regs[12]}", f"v{regs[12]}", f"v{rr}"))
    p.append(cvtpk(b + 6, regs[12], None))
    p.append(v3("v_lshlrev_b32", f"v{b + 6}", f"s{S_SH}", f"v{b + 6}"))
    if not hold:
        p.append(v3("v_mov_b32", f"v{b + 7}", "0"))
    return p


def p_hold(q):
    return [valu(f"v_accvgpr_write_b32 a{AP[q] + r}, v{SB + 16 * q + r}", [f"a{AP[q] + r}"], [f"v{SB + 16 * q + r}"])
            for r in range(7)]


def win_base(dst, w, tmp):
    return [
        salu(f"s_mul_hi_u32 s{tmp}, s{w}, s29", [f"s{tmp}"], [f"s{w}", "s29"]),
        salu(f"s_mul_i32 s{dst}, s{tmp}, 73", [f"s{dst}"], [f"s{tmp}"]),
        salu(f"s_sub_u32 s{dst}, s{w}, s{dst}", [f"s{dst}", "scc"], [f"s{w}", f"s{dst}"]),
        salu(f"s_mul_i32 s{dst}, s{dst}, 2688", [f"s{dst}"], [f"s{dst}"]),
        salu(f"s_mul_i32 s{tmp}, s{tmp}, {WINROW}", [f"s{tmp}"], [f"s{tmp}"]),
        salu(f"s_add_u32 s{dst}, s{dst}, s{tmp}", [f"s{dst}", "scc"], [f"s{dst}", f"s{tmp}"]),
    ]


def row_bases(o=None):
    out = [] if o is None or o.nostore else [salu("s_mov_b32 s10, s31", ["s10"], ["s31"])]
    out += [salu(f"s_mov_b32 s{S_ROW}, s{S_CB}", [f"s{S_ROW}"], [f"s{S_CB}"])]
    for r in range(1, 7):
        out.append(salu(f"s_add_u32 s{S_ROW + r}, s{S_CB}, {r * ROWB}", [f"s{S_ROW + r}", "scc"], [f"s{S_CB}"]))
    out.append(salu(f"s_sub_u32 s{S_SPO}, s{S_ROW + 6}, s{S_GO}", [f"s{S_SPO}", "scc"], [f"s{S_ROW + 6}", f"s{S_GO}"]))
    out.append(salu(f"s_add_u32 s{S_SPO}, s{S_SPO}, {6 * 384}", [f"s{S_SPO}", "scc"], [f"s{S_SPO}"]))
    return out


def slot_masks():
    k = S_K
    return [
        salu(f"s_and_b32 s30, s{k}, 3", ["s30", "scc"], [f"s{k}"]),
        salu(f"s_mul_i32 s{S_GO}, s30, 384", [f"s{S_GO}"], ["s30"]),
        salu("s_lshl_b32 s30, s30, 4", ["s30", "scc"], ["s30"]),
        salu(f"s_lshl_b64 s[{S_GM}:{S_GM+1}], s[40:41], s30", [f"s{S_GM}", f"s{S_GM+1}", "scc"], ["s40", "s41", "s30"]),
        salu(f"s_cmp_lt_u32 s{k}, 4", ["scc"], [f"s{k}"]),
        salu(f"s_cselect_b64 s[{S_M0}:{S_M0+1}], s[{S_GM}:{S_GM+1}], 0", [f"s{S_M0}", f"s{S_M0+1}"], ["scc", f"s{S_GM}", f"s{S_GM+1}"]),
        salu(f"s_cselect_b64 s[{S_M1}:{S_M1+1}], 0, s[{S_GM}:{S_GM+1}]", [f"s{S_M1}", f"s{S_M1+1}"], ["scc", f"s{S_GM}", f"s{S_GM+1}"]),
        salu(f"s_cselect_b32 s{S_SH}, 0, 16", [f"s{S_SH}"], ["scc"]),
        salu(f"s_cselect_b32 s{S_SPA+2}, s31, 0", [f"s{S_SPA+2}"], ["scc", "s31"]),
        salu(f"s_cselect_b32 s{S_SPB+2}, 0, s31", [f"s{S_SPB+2}"], ["scc", "s31"]),
        salu(f"s_add_u32 s{k}, s{k}, 1", [f"s{k}", "scc"], [f"s{k}"]),
        cnd(f"v{V_SP[0]}", f"v{V_NINF}", f"v{V_ST['H'][0]}", S_GM),
        cnd(f"v{V_SP[1]}", f"v{V_NINF}", f"v{V_ST['H'][1]}", S_GM),
    ]


def carry_head(o):
    p = cvt_v(11)
    for q in (1, 2):
        if q in o.defer:
            p += softmax(q, q & 1, 2, True)
        p += p_hold(q)
    return p


def carry_30(o):
    p = o_mf(3, 5) + o_mf(0, 5) + o_pack(3, 5) + o_pack(0, 5)
    return p + o_store(3, 1, o.st_flags) + o_store(0, 1, o.st_flags)


def carry_grp(o, g, acc, pace=False):
    q, pr = 1 + g // 6, g % 6
    p = o_mf(q, pr, acc, True) + o_pack(q, pr, acc)
    if pr in (3, 5):
        rel, step = None, 0
        if pace and q == 2:
            rel, step = [int(x) for x in (o.q2p0, o.q2p1)[pr >> 2].split(",")]
        p += o_store(q, pr >> 2, o.st_flags, rel, step)
    return p


def cvt_v(ct):
    out = []
    for t in range(3):
        acc = ACC + 12 * (ct & 1) + 4 * t
        for h in range(2):
            out.append(cvtpk(vb(ct) + 2 * t + h, acc + 2 * h, acc + 2 * h + 1))
    return out


def s3(xs):
    return [mfma("v", SB + 48 + 4 * kt, "a", xop(xs, kt, s), "a", AT49 + 4 * s, s == 0)
            for s in range(6) for kt in range(4)]


CT = ["L_b1", "L_b1+8192", "L_main_done-8064"]


def code_touch(k, rel):
    b = 84 + 2 * k
    return [Inst(f"global_load_dword v{V_CT[1]}, v{V_CT[0]}, s[{b}:{b+1}]", "vload", defs=["~ct"], uses=[f"v{V_CT[0]}"],
                 release=rel, deadline=rel + 48, tag="pf")]


def gen_body(o, xs):
    p = []
    ext = p.extend
    NM = 624
    if o.ct and xs == 0:
        for k in range(3):
            ext(code_touch(k, o.ct + 200 * k))
    p.append(salu(f"s_add_u32 s{S_WCUR}, s{S_WCUR}, 1024", [f"s{S_WCUR}", "scc"], [f"s{S_WCUR}"], deadline=0))
    ext(win_base(S_LB, S_WCUR, 27))
    if xs == 0:
        p.append(salu(f"s_cmp_lt_u32 s{S_K}, 4", ["scc"], [f"s{S_K}"]))
        p.append(salu(f"s_cselect_b32 s6, {'0' if o.noload else 's31'}, 0", ["s6"], ["scc", "s31"]))
    ext(xloads(xs ^ 1, S_LB, o.ld_flags, o.ld_rel, o.ld_step))
    ext(carry_head(o))

    def chain(mat, ct):
        out = []
        for s in range(6):
            idx = 72 * mat + 6 * ct + s
            w = AW + 4 * (idx % NRING)
            for t in range(3):
                acc = ACC + 12 * (ct & 1) + 4 * t
                if mat == 0:
                    out.append(mfma("v", acc, "a", w, "a", xr(xs, t, s), s == 0))
                else:
                    out.append(mfma("v", acc, "a", xr(xs, t, s), "a", w, s == 0))
            kw = {}
            if idx + NRING >= 144:
                kw = dict(deadline=NM * 16 + 48 * (idx + NRING - 144) - 220)
            out.append(wfrag_read(idx + NRING, **kw))
        return out

    def cvt_t(ct):
        out = []
        for t in range(3):
            acc = ACC + 12 * (ct & 1) + 4 * t
            for h in range(2):
                out.append(cvtpk(TBF + 4 * t + 2 * (ct & 1) + h, acc + 2 * h, acc + 2 * h + 1))
        return out

    def s_mf(sp):
        return [mfma("v", SB + 16 * q + 4 * kt, "a", xop(xs, kt, sp), "v", TBF + 4 * q, sp == 0)
                for q in range(3) for kt in range(4)]

    def o_grp(pr):
        out = o_mf(3, pr) + o_mf(0, pr) + o_pack(3, pr) + o_pack(0, pr)
        if pr == 3:
            out += o_store(3, 0, o.st_flags) + o_store(0, 0, o.st_flags)
        return out

    grp = iter(range(12))

    def carried():
        return carry_grp(o, next(grp), SB + 56, True)

    ext(chain(0, 0))
    ext(carry_30(o))
    ext(slot_masks())
    ext(cvt_t(0))
    ext(chain(0, 1))
    ext(s3(xs))
    ext(softmax(3, 1))
    ext(cvt_t(1))
    for ct in range(2, 12):
        ext(chain(0, ct))
        if ct >= 4 and ct % 2 == 0:
            ext(carried())
        if ct % 2 == 0:
            ext(s_mf(ct // 2 - 1))
        ext(cvt_t(ct))
        if ct >= 4:
            ext(carried())
    ext(row_bases(o if xs == 0 else None))
    p.append(salu(f"s_mov_b32 s{S_CB}, s{S_LB}", [f"s{S_CB}"], [f"s{S_LB}"]))
    ext(chain(1, 0))
    ext(s_mf(5))
    for q in range(3):
        ext(softmax(q, q & 1, 1 if q in o.defer else 3, q > 0))
    ext(cvt_v(0))
    after = dict(zip([int(x) for x in o.after.split(",")], range(5)))
    for ct in range(1, 12):
        ext(chain(1, ct))
        if ct in after:
            ext(o_grp(after[ct]))
        if ct < 11:
            ext(cvt_v(ct))
    assert sum(i.kind == "mfma" for i in p) == NM
    for i in p:
        if i.kind != "mfma" and i.deadline is None and i.kind != "dsr":
            i.deadline = NM * 16 - 24
    for k in o.rm.split(","):
        if k == "ring":
            p = [i for i in p if i.kind != "dsr"]
        elif k:
            p = [i for i in p if i.kind != k]
    return p


def gen_epi(o):
    p = carry_head(o)
    for g in range(3):
        p += carry_grp(o, g, SB + 16 + 8 * (g % 4))
    p += carry_30(o)
    for g in range(3, 12):
        p += carry_grp(o, g, SB + 16 + 8 * (g % 4))
    return p


XSTAGED = [(0, 0), (0, 1), (1, 0), (1, 1), (2, 0), (2, 1), (1, 2), (2, 2)]
V_R0 = (226, 227)
V_NA = OPA
V_NS = VBF


def gen_shared(o, q):
    xs = 1
    p = []
    ext = p.extend
    own = [2 * q, 2 * q + 1] if q < 3 else [6, 7, 8, 9]
    solo = [ct for ct in range(10) if ct not in own]
    F = [SB + 16 * a for a in range(4) if a != q]
    v_x8 = V_TMP[(q & 1) ^ 1][0]
    st_imm = STAGE - 0x20000
    plan = [("v", ct) for ct in own]
    if q == 3:
        plan += [("s", solo[0], solo[1]), ("s", solo[2], solo[3]), ("x",), ("v", 10), ("o", 3), ("o", 4), ("s", solo[4], solo[5]),
                 ("o", 0), ("o", 1), ("v", 11), ("o", 2), ("o", 5)]
        assert solo == [0, 1, 2, 3, 4, 5]
    else:
        oth = [pr for pr in range(5) if pr != q]
        plan += [("x",), ("s", solo[0], solo[1]), ("s", solo[2], solo[3]), ("v", 10), ("o", q), ("o", oth[0]), ("s", solo[4], solo[5]),
                 ("o", oth[1]), ("s", solo[6], solo[7]), ("o", oth[2]), ("v", 11), ("o", oth[3]), ("o", 5)]
    seq = [6 * (2 * c + e) + s for c in range(6) for s in range(6) for e in range(2)]
    for st in plan:
        if st[0] == "v":
            seq += [72 + 6 * st[1] + s for s in range(6)]
        elif st[0] == "s":
            seq += [72 + 6 * ct + s for s in range(6) for ct in st[1:]]
    assert sorted(seq) == list(range(144))
    seq += list(range(NRING))
    ring = Ring(seq)
    ring.gate = lambda idx: ["~b2"] if idx >= 72 else []
    p.append(Inst("s_barrier", "other", defs=["~b1"], deadline=0))
    xrd = {}
    for f, (t, j) in enumerate(XSTAGED):
        for u in range(2):
            d = xr(xs, t, 2 * j + u)
            xrd[t, 2 * j + u] = Inst(f"ds_read_b128 {T('a', d, 4)}, v{V_R0[u]} offset:{2048 * f}", "dsr", defs=R('a', d, 4),
                                     uses=[f"v{V_R0[u]}", "~b1"])
    fill = ring.fill(["~b1"])
    first = sorted(xrd, key=lambda k: (k[0] != q, k[1], k[0]))
    nq = sum(k[0] == q for k in xrd)
    for k in range(6):
        ext(fill[2 * k:2 * k + 2])
        if k < nq:
            p.append(xrd[first[k]])
    ext(xrd[k] for k in first[nq:])
    for k in range(18):
        at = o.nl_rel + o.nl_step * k
        p.append(Inst(f"buffer_load_dwordx4 {T('v', V_NS + 4 * k, 4)}, v{V_NA + k // 3}, s[12:15], 0 offen offset:{1024 * (k % 3)} sc1", "vload",
                      defs=R('v', V_NS + 4 * k, 4), uses=[f"v{V_NA + k // 3}"], release=at, deadline=at + 48))
    nwr = []
    for k in range(18):
        w = Inst(f"ds_write_b128 v{V_NA + k // 3}, {T('v', V_NS + 4 * k, 4)} offset:{1024 * (k % 3)}", "dsw", defs=[f"~n{k}"],
                 uses=R('v', V_NS + 4 * k, 4) + [f"v{V_NA + k // 3}", "~b1"], release=o.nw_rel + o.nw_step * k)
        w.real, w.busy = 20, DSW_BUSY
        p.append(w)
        nwr.append(f"~n{k}")
    for ct in range(12):
        p.append(v3("v_mov_b32", f"v{vb(ct) + 7}", "0"))
    ext(xloads(0, S_LB, o.ld_flags, o.x0_rel - o.x0_step * o.n_early, o.x0_step)[o.n_early:])
    p.append(v3("v_lshrrev_b32", f"v{v_x8}", "1", f"v{V_LDS[0]}"))
    p.append(v3("v_add_u32", f"v{v_x8}", "0x20000", f"v{v_x8}"))

    def s_step(c):
        if q < 3:
            return [mfma("v", SB + 16 * q + 4 * kt, "a", xop(xs, kt, c), "v", TBF + 4 * (c & 1), c == 0) for kt in range(4)]
        return [mfma("v", SB + 48 + 4 * kt, "a", xop(xs, kt, c), "a", AT49 + 4 * c, c == 0) for kt in range(4)]

    for c in range(6):
        for s in range(6):
            for e in range(2):
                if ring.pos + NRING == 72:
                    p.append(Inst("s_waitcnt lgkmcnt(0)", "wait", defs=["~wN"], uses=nwr))
                    p.append(Inst("s_barrier", "other", defs=["~b2"], uses=["~wN"]))
                w, nxt = ring.take()
                p.append(mfma("v", F[0] + 8 * (c & 1) + 4 * e, "a", w, "a", AX49 + 4 * s, s == 0))
                if q < 3:
                    p.append(mfma("v", ACC + 8 * (c % 3) + 4 * e, "a", w, "a", xr(xs, q, s), s == 0))
                ext(nxt)
            if c and s == (2 if q < 3 else 4):
                ext(s_step(c - 1))
        for e in range(2):
            for h in range(2):
                if q < 3:
                    acc = ACC + 8 * (c % 3) + 4 * e
                    p.append(cvtpk(TBF + 4 * (c & 1) + 2 * e + h, acc + 2 * h, acc + 2 * h + 1))
        for e in range(2):
            for h in range(2):
                acc = F[0] + 8 * (c & 1) + 4 * e
                tmp = F[1] + 4 * (c & 1) + 2 * e + h
                p.append(cvtpk(tmp, acc + 2 * h, acc + 2 * h + 1))
                d = AT49 + 4 * c + 2 * e + h
                p.append(valu(f"v_accvgpr_write_b32 a{d}, v{tmp}", [f"a{d}"], [f"v{tmp}"]))
    a49 = iter([F[0] + 4 * (k % 4) for k in range(12)])
    oacc = iter([F[1], F[2], F[2] + 8, F[1] + 8, F[1], F[2]])
    wr = []
    done = []
    for k, st in enumerate(plan):
        if st[0] == "v":
            ct = st[1]
            a = next(a49)
            for s in range(6):
                w, nxt = ring.take()
                for t in range(3):
                    p.append(mfma("v", ACC + 12 * (ct & 1) + 4 * t, "a", xr(xs, t, s), "a", w, s == 0))
                p.append(mfma("v", a, "a", AX49 + 4 * s, "a", w, s == 0))
                ext(nxt)
                if k == 0 and s == o.tail_s:
                    ext(s_step(5))
                    ext(softmax(q, q & 1))
            ext(cvt_v(ct))
            p.append(cvtpk(vb(ct) + 6, a, a + 1))
            if ct in own:
                for va, off, h, n in ((V_LDS[2], 1024 * ct, 0, 4), (v_x8, 10240 + 512 * ct, 1, 2)):
                    w = Inst(f"ds_write_b{32 * n} v{va}, {T('v', vb(ct) + 4 * h, n)} offset:{st_imm + off}", "dsw", defs=[f"~x{ct}{h}"],
                             uses=R('v', vb(ct) + 4 * h, n) + [f"v{va}", "~b2"])
                    w.real, w.busy = 4 + 4 * n, DSW_BUSY
                    p.append(w)
                    wr.append(f"~x{ct}{h}")
        elif st[0] == "s":
            aa = [next(a49), next(a49)]
            for s in range(6):
                for a in aa:
                    w, nxt = ring.take()
                    p.append(mfma("v", a, "a", AX49 + 4 * s, "a", w, s == 0))
                    ext(nxt)
            for a, ct in zip(aa, st[1:]):
                p.append(cvtpk(vb(ct) + 6, a, a + 1))
        elif st[0] == "x":
            p.append(Inst("s_waitcnt lgkmcnt(0)", "wait", defs=["~wB"], uses=wr))
            p.append(Inst("s_barrier", "other", defs=["~b3"], uses=["~wB"]))
            for pr in [x[1] for x in plan if x[0] == "o"]:
                for ct in (2 * pr, 2 * pr + 1):
                    if ct in solo:
                        for va, off, h, n in ((V_LDS[2], 1024 * ct, 0, 4), (v_x8, 10240 + 512 * ct, 1, 2)):
                            p.append(Inst(f"ds_read_b{32 * n} {T('v', vb(ct) + 4 * h, n)}, v{va} offset:{st_imm + off}", "dsr",
                                          defs=R('v', vb(ct) + 4 * h, n), uses=[f"v{va}", "~b3"]))
        else:
            pr = st[1]
            a = next(oacc)
            ext(o_mf(q, pr, a))
            ext(o_pack(q, pr, a))
            done.append(pr)
            for part, grp2 in ((0, (0, 1, 2, 3)), (1, (4, 5))):
                if pr in grp2 and all(g in done for g in grp2):
                    ext(o_store(q, part, o.st_flags))
    p.append(salu("s_mov_b32 s10, 0", ["s10"], []))
    p.append(salu(f"s_mov_b32 s{S_SPB+2}, 0", [f"s{S_SPB+2}"], []))
    p.append(salu(f"s_mov_b32 s{S_CB}, s{S_LB}", [f"s{S_CB}"], [f"s{S_LB}"]))
    return p


def kind_offsets(a, g, regs):
    h, v, qq, ii, tmp = regs
    a(v3("v_mul_u32_u24", h, "0x180", g))
    a(v3("v_mul_lo_u32", v, g, "s39"))
    a(v3("v_lshrrev_b32", qq, "1", g))
    a(v3("v_mul_lo_u32", qq, qq, "s39"))
    a(v3("v_and_b32", ii, "1", g))
    a(v3("v_mul_u32_u24", ii, "0x180", ii))
    a(v3("v_add_u32", qq, qq, ii))
    for k in range(4):
        r, c = I_TOK[k]
        off = (r - 4) * ROWB + c * 384
        if k == 0:
            a(v3("v_mov_b32", ii, str(off)))
        else:
            a(valu(f"v_cmp_eq_u32 vcc, {k}, {g}", ["vcc"], [g]))
            a(v3("v_mov_b32", tmp, str(off)))
            a(valu(f"v_cndmask_b32 {ii}, {ii}, {tmp}, vcc", [ii], [ii, tmp, "vcc"]))


def gen_prologue(o):
    p = []
    a = p.append
    a(raw("s_cmp_lt_u32 s2, 256", "salu", ["scc"], ["s2"]))
    a(raw("s_cbranch_scc1 L_go"))
    a(raw("s_endpgm"))
    a(raw("L_go:", "label"))
    a(raw(f"s_load_dwordx8 s[{S_KA}:{S_KA+7}], s[0:1], 0"))
    a(raw(f"s_load_dwordx4 s[{S_KB}:{S_KB+3}], s[0:1], 32"))
    if o.diag:
        a(raw("s_memtime s[44:45]"))
        a(raw("s_memrealtime s[46:47]"))
    a(v3("v_and_b32", "v1", "63", "v0"))
    a(v3("v_lshrrev_b32", "v2", "6", "v0"))
    a(v3("v_and_b32", "v3", "15", "v1"))
    a(valu("v_readfirstlane_b32 s38, v2", ["s38"], ["v2"]))
    a(v3("v_lshrrev_b32", "v4", "4", "v1"))
    a(v3("v_lshlrev_b32", f"v{V_LDS[0]}", "4", "v1"))
    a(raw("s_getpc_b64 s[90:91]", "salu", ["s90", "s91"]))
    a(raw("L_here:", "label"))
    a(v3("v_lshlrev_b32", f"v{V_CT[0]}", "7", "v1"))
    a(salu(f"s_cmp_lg_u32 s38, {o.pw}", ["scc"], ["s38"]))
    a(raw("s_cbranch_scc1 L_np1"))
    a(salu("s_cmp_lt_u32 s2, 144", ["scc"], ["s2"]))
    a(raw("s_cbranch_scc1 L_p1"))
    a(salu("s_sub_u32 s3, s2, 144", ["s3", "scc"], ["s2"]))
    a(salu("s_lshr_b32 s3, s3, 3", ["s3", "scc"], ["s3"]))
    a(salu("s_lshl_b32 s3, s3, 13", ["s3", "scc"], ["s3"]))
    a(salu("s_min_u32 s3, s3, L_main_done-L_here-8064", ["s3", "scc"], ["s3"]))
    a(salu("s_add_u32 s20, s90, s3", ["s20", "scc"], ["s90", "s3"]))
    a(salu("s_addc_u32 s21, s91, 0", ["s21", "scc"], ["s91", "scc"]))
    if not o.notouch:
        a(Inst(f"global_load_dword v{V_CT[1]}, v{V_CT[0]}, s[20:21]", "vload", defs=[f"v{V_CT[1]}"], uses=[f"v{V_CT[0]}", "s20", "s21"]))
    a(raw("s_branch L_np1"))
    a(raw("L_p1:", "label"))
    p.extend(prod_load(o))
    a(raw("L_np1:", "label"))
    a(salu("s_lshl_b32 s16, s2, 2", ["s16", "scc"], ["s2"]))
    a(salu(f"s_mov_b32 s29, {MAGIC73}", ["s29"], []))
    a(salu(f"s_mov_b32 s31, {XBYTES}", ["s31"], []))
    a(salu("s_add_u32 s16, s16, s38", ["s16", "scc"], ["s16", "s38"]))
    a(salu(f"s_add_u32 s{S_TW}, s2, 5120", [f"s{S_TW}", "scc"], ["s2"]))
    a(v3("v_mov_b32", f"v{V_NINF}", "0xff800000"))
    a(v3("v_lshrrev_b32", "v10", "2", "v3"))
    a(v3("v_and_b32", "v11", "3", "v3"))
    a(v3("v_lshl_add_u32", "v8", "v11", "2", "v10"))
    a(v3("v_lshlrev_b32", "v5", "10", "v8"))
    a(v3("v_add_u32", "v5", "s16", "v5"))
    a(v3("v_mov_b32", "v9", f"s{S_TW}"))
    a(valu("v_cmp_eq_u32 vcc, 5, v8", ["vcc"], ["v8"]))
    a(valu("v_cndmask_b32 v5, v5, v9, vcc", ["v5"], ["v5", "v9", "vcc"]))
    a(v3("v_mul_hi_u32", "v6", "v5", "s29"))
    a(v3("v_mul_u32_u24", "v7", "73", "v6"))
    a(v3("v_sub_u32", "v7", "v5", "v7"))
    a(v3("v_mul_u32_u24", "v7", "0xa80", "v7"))
    a(salu(f"s_mov_b32 s43, {WINROW}", ["s43"], []))
    a(v3("v_mul_lo_u32", "v6", "v6", "s43"))
    a(v3("v_add_u32", "v6", "v6", "v7"))
    a(v3("v_lshl_add_u32", "v6", "v4", "4", "v6"))
    a(v3("v_add_u32", "v6", str(6 * ROWB + 6 * 384), "v6"))
    a(valu(f"v_cmp_gt_u32 vcc, {NWIN}, v5", ["vcc"], ["v5"]))
    a(valu(f"v_cndmask_b32 v14, v{V_NINF}, v6, vcc", ["v14"], [f"v{V_NINF}", "v6", "vcc"]))
    a(salu("s_lshr_b32 s40, s2, 3", ["s40", "scc"], ["s2"]))
    a(salu("s_mul_i32 s43, s38, 6", ["s43"], ["s38"]))
    a(salu("s_add_u32 s42, s40, s43", ["s42", "scc"], ["s40", "s43"]))
    for _ in range(2):
        a(salu("s_sub_u32 s43, s42, 24", ["s43", "scc"], ["s42"]))
        a(salu("s_cselect_b32 s42, s42, s43", ["s42"], ["scc", "s42", "s43"]))
    a(salu("s_mul_i32 s42, s42, 3072", ["s42"], ["s42"]))
    p.extend(win_base(S_LB, S_WCUR, 30))
    p.extend(win_base(S_CB, S_TW, 30))
    a(salu(f"s_mov_b32 s39, {ROWB}", ["s39"], []))
    kind_offsets(a, "v10", ("v5", "v6", "v7", "v8", "v9"))
    KO = {"H": "v5", "V": "v6", "Q": "v7", "I": "v8"}
    for i in range(1, 4):
        a(valu(f"v_cmp_eq_u32 s[{64 + 2 * i}:{65 + 2 * i}], {i}, v11", [f"s{64 + 2 * i}", f"s{65 + 2 * i}"], ["v11"]))
    a(v3("v_lshlrev_b32", "v12", "4", "v4"))
    a(v3("v_mul_lo_u32", "v13", "v11", "s39"))
    a(v3("v_add3_u32", f"v{V_F[0]}", "v13", "v5", "v12"))
    for t in (1, 2):
        f = f"v{V_F[t]}"
        for i in range(4):
            kind, pp = STRIPS[4 * t + i]
            base = {"H": pp * ROWB, "V": pp * 384, "Q": 4 * ROWB + 4 * 384, "I": 4 * ROWB}[kind]
            a(v3("v_add_u32", f if i == 0 else "v9", str(base), KO[kind]))
            if i:
                a(cnd(f, f, "v9", 64 + 2 * i))
        a(v3("v_add_u32", f, f, "v12"))
    for w in range(1, 4):
        a(valu(f"v_cmp_eq_u32 s[{64 + 2 * w}:{65 + 2 * w}], {w}, v2", [f"s{64 + 2 * w}", f"s{65 + 2 * w}"], ["v2"]))
    a(cnd("v15", f"v{V_F[0]}", f"v{V_F[1]}", 66))
    a(cnd("v15", "v15", f"v{V_F[2]}", 68))
    a(v3("v_add_u32", "v16", "0x80", "v15"))
    a(v3("v_add_u32", "v9", "0x100", f"v{V_F[1]}"))
    a(cnd("v15", "v15", "v9", 70))
    a(v3("v_add_u32", "v9", "0x100", f"v{V_F[2]}"))
    a(cnd("v16", "v16", "v9", 70))
    a(v3("v_lshrrev_b32", "v5", "1", "v1"))
    a(v3("v_and_b32", "v5", "28", "v5"))
    for c in range(2):
        for hf in range(2):
            a(Inst(f"ds_bpermute_b32 v{17 + 2 * c + hf}, v5, v{15 + c} offset:{32 * hf}", "dsr", defs=[f"v{17 + 2 * c + hf}"], uses=["v5", f"v{15 + c}"]))
    a(v3("v_and_b32", "v12", "7", "v1"))
    a(v3("v_xor_b32", "v12", "v12", "v4"))
    a(v3("v_lshlrev_b32", "v12", "4", "v12"))
    a(v3("v_xor_b32", "v13", "64", "v12"))
    a(salu("s_lshl_b32 s41, s38, 12", ["s41", "scc"], ["s38"]))
    a(salu(f"s_add_u32 s41, s41, {STAGE}", ["s41", "scc"], ["s41"]))
    a(salu(f"s_cmp_lt_u32 s{S_TW}, {NWIN}", ["scc"], [f"s{S_TW}"]))
    a(salu("s_cselect_b32 s30, s31, 0", ["s30"], ["scc", "s31"]))
    a(raw("s_waitcnt lgkmcnt(0)", "wait"))
    if o.diag:
        a(v3("v_mov_b32", f"v{V_TIME}", "s44"))
        a(valu(f"v_writelane_b32 v{V_TIME}, s46, 62", [f"v{V_TIME}"], ["s46"]))
    if o.pstamp:
        p.extend(stamp3(55))
    def x_small():
        srd(a, S_XS, S_KA, "s30")
        for i in range(4):
            a(v3("v_add_u32", f"v{17 + i}", f"v{17 + i}", ("v12", "v13")[i & 1]))
        for i in range(4):
            a(salu(f"s_add_u32 m0, s41, {1024 * i}", ["m0", "scc"], ["s41"]))
            a(Inst(f"buffer_load_dwordx4 v{17 + i}, s[{S_XS}:{S_XS+3}], s{S_CB} offen lds", "ldsdma", uses=[f"v{17 + i}", f"s{S_CB}", "m0"]))
        srd(a, 4, S_KA, "s31")
        for s in (4, 5):
            a(xload(1, 0, s, S_CB, sr=S_XS))
        for s in range(6):
            a(Inst(f"buffer_load_dwordx4 {T('a', AX49 + 4 * s, 4)}, v14, s[4:7], 0 offen offset:{64 * s}", "vload",
                   defs=R('a', AX49 + 4 * s, 4), uses=["v14"]))

    def w_load(bank, reg, addr, off):
        for g in range(6):
            if g:
                a(salu("s_add_u32 s42, s42, 3072", ["s42", "scc"], ["s42"]))
                a(salu(f"s_cmp_eq_u32 s42, {off + NBASE}", ["scc"], ["s42"]))
                a(salu(f"s_cselect_b32 s42, {off}, s42", ["s42"], ["scc", "s42"]))
            for k in range(3):
                d = reg + 4 * (3 * g + k)
                a(Inst(f"buffer_load_dwordx4 {T(bank, d, 4)}, v{V_LDS[0]}, s[12:15], s42 offen offset:{1024 * k} sc1", "vload",
                       defs=R(bank, d, 4), uses=[f"v{V_LDS[0]}", "s42"]))
            a(v3("v_add_u32", f"v{addr + g}", "s42", f"v{V_LDS[0]}"))

    warm(o, a, 1)
    a(salu(f"s_cmp_lg_u32 s38, {o.pw}", ["scc"], ["s38"]))
    a(salu("s_cselect_b32 s27, 144, s2", ["s27"], ["scc", "s2"]))
    a(salu("s_cmp_lt_u32 s27, 144", ["scc"], ["s27"]))
    a(raw("s_cbranch_scc1 L_nw"))
    warm(o, a, 2)
    a(raw("L_nw:", "label"))
    nw = 0 if o.nowarm else 2

    def producers(lab, code):
        a(salu(f"s_cmp_lg_u32 s38, {o.pw}", ["scc"], ["s38"]))
        a(raw(f"s_cbranch_scc1 {lab}"))
        a(salu("s_cmp_ge_u32 s2, 144", ["scc"], ["s2"]))
        a(raw(f"s_cbranch_scc1 {lab}"))
        p.extend(code)
        a(raw(f"{lab}:", "label"))
    if o.order == "sx":
        producers("L_np2", prod_store(o, nw))
        x_small()
        producers("L_np3", prod_signal(o))
    else:
        x_small()
        producers("L_np2", prod_store(o, 12 + nw) + prod_signal(o))
    if o.pstamp:
        p.extend(stamp3(56))
    p.extend(xloads(0, S_LB, o.ld_flags)[:o.n_early])
    a(v3("v_lshrrev_b32", "v5", "1", "v3"))
    a(v3("v_xor_b32", "v5", "v5", "v4"))
    a(v3("v_lshlrev_b32", "v5", "4", "v5"))
    a(v3("v_lshl_add_u32", "v5", "v3", "7", "v5"))
    a(v3("v_add_u32", f"v{V_R0[0]}", str(STAGE), "v5"))
    a(v3("v_xor_b32", f"v{V_R0[1]}", "64", f"v{V_R0[0]}"))
    a(v3("v_add_u32", f"v{V_LDS[1]}", "0x10000", f"v{V_LDS[0]}"))
    a(v3("v_add_u32", f"v{V_LDS[2]}", "0x20000", f"v{V_LDS[0]}"))
    srd(a, 8, S_KA + 6, "0" if o.nostore else "s30")
    srd(a, S_SPA, S_KA + 6, "0")
    srd(a, S_SPB, S_KA + 6, "0" if o.nostore else "s30")
    V_N16, V_N8 = 15, 16
    a(v3("v_lshlrev_b32", f"v{V_N16}", "4", "v3"))
    a(v3("v_lshlrev_b32", f"v{V_N8}", "3", "v3"))
    kind_offsets(a, "v4", ("v5", "v6", "v7", "v8", "v9"))
    for kind, src in KO.items():
        a(v3("v_add_u32", f"v{V_ST[kind][0]}", src, f"v{V_N16}"))
        a(v3("v_add_u32", f"v{V_ST[kind][1]}", src, f"v{V_N8}"))
    for q in (1, 2):
        a(valu(f"v_accvgpr_write_b32 a{AP[q] + 7}, 0", [f"a{AP[q] + 7}"], []))
    for r, val in ((S_M0, "0"), (S_M0 + 1, "0"), (S_M1, "0xffff0000"), (S_M1 + 1, "0"), (S_SH, "16"), (S_GO, "384"), (S_K, "0"),
                   (40, "0xffff"), (41, "0")):
        a(salu(f"s_mov_b32 s{r}, {val}", [f"s{r}"], []))
    a(cnd(f"v{V_SP[0]}", f"v{V_NINF}", f"v{V_ST['H'][0]}", S_M1))
    a(cnd(f"v{V_SP[1]}", f"v{V_NINF}", f"v{V_ST['H'][1]}", S_M1))
    p.extend(row_bases())
    if o.ct:
        for k, ex in enumerate(CT):
            a(salu(f"s_add_u32 s{84 + 2 * k}, s90, {ex}-L_here", [f"s{84 + 2 * k}", "scc"], ["s90"]))
            a(salu(f"s_addc_u32 s{85 + 2 * k}, s91, 0", [f"s{85 + 2 * k}", "scc"], ["s91", "scc"]))
    if o.diag:
        a(salu(f"s_mov_b32 s{S_IT}, 1", [f"s{S_IT}"], []))
        a(salu("s_mov_b32 s72, 10", ["s72"], []))
    a(raw("s_getreg_b32 s3, hwreg(HW_REG_XCC_ID, 0, 4)", "salu", ["s3"]))
    a(salu("s_lshr_b32 s27, s2, 3", ["s27", "scc"], ["s2"]))
    a(salu(f"s_lshl_b32 s27, 1, s27", ["s27", "scc"], ["s27"]))
    a(salu(f"s_and_b32 s27, s27, {sum(1 << int(g) for g in o.leaders.split(','))}", ["s27", "scc"], ["s27"]))
    a(salu("s_cselect_b32 s36, 0, 255", ["s36"], ["scc"]))
    a(salu("s_mov_b32 s37, 0x4000", ["s37"], []))
    a(v3("v_and_b32", "v27", "1", "v1"))
    a(v3("v_lshlrev_b32", "v27", "6", "v27"))
    a(salu("s_lshl_b32 s3, s3, 3", ["s3", "scc"], ["s3"]))
    a(salu("s_add_u32 s3, s3, 128", ["s3", "scc"], ["s3"]))
    a(v3("v_mov_b32", "v29", "1"))
    D = f"s[{S_DBG}:{S_DBG+3}]"

    def poll(lab, goff, loff):
        a(raw(f"{lab}:", "label"))
        a(salu("s_sub_u32 s37, s37, 1", ["s37", "scc"], ["s37"]))
        a(raw(f"s_cbranch_scc1 {lab}_x"))
        a(salu("s_and_b32 s27, s36, s37", ["s27", "scc"], ["s36", "s37"]))
        a(raw(f"s_cbranch_scc0 {lab}_g"))
        a(Inst(f"buffer_load_dword v28, off, {D}, s3 offset:{loff} {o.lflag}", "vload", defs=["v28"], uses=["s3"]))
        a(raw("s_waitcnt vmcnt(0)", "wait"))
        a(valu("v_cmp_eq_u32 vcc, 0, v28", ["vcc"], ["v28"]))
        a(raw("s_nop 1", "nop"))
        a(raw(f"s_cbranch_vccnz {lab}"))
        a(raw(f"s_branch {lab}_x"))
        a(raw(f"{lab}_g:", "label"))
        a(v3("v_mov_b32", "v28", "0"))
        a(salu("s_mov_b64 exec, 3", ["exec"], []))
        a(Inst(f"buffer_atomic_add v28, v27, {D}, 0 offen offset:{goff} sc0 sc1", "vload", defs=["v28"], uses=["v27", "v28"]))
        a(raw("s_waitcnt vmcnt(0)", "wait"))
        a(valu("v_cmp_ne_u32 vcc, 36, v28", ["vcc"], ["v28"]))
        a(salu("s_mov_b64 exec, -1", ["exec"], []))
        a(raw("s_nop 0", "nop"))
        a(raw(f"s_cbranch_vccnz {lab}"))
        a(Inst(f"buffer_store_dword v29, off, {D}, s3 offset:{loff}", "vstore", uses=["v29", "s3"]))
        a(raw(f"{lab}_x:", "label"))
    a(salu(f"s_cmp_lg_u32 s38, {o.lw}", ["scc"], ["s38"]))
    a(raw("s_cbranch_scc1 L_pm_y"))
    for k in range(0, o.psleep, 127):
        a(raw(f"s_sleep {min(127, o.psleep - k)}"))
    if o.pstamp:
        p.extend(stamp3(57))
    poll("L_pm", 0, 0)
    if o.pstamp:
        p.extend(stamp3(58))
        a(valu(f"v_writelane_b32 v{V_TIME}, s37, 54", [f"v{V_TIME}"], ["s37"]))
    a(raw("L_pm_y:", "label"))
    a(salu("s_add_u32 s27, s36, s38", ["s27", "scc"], ["s36", "s38"]))
    a(salu(f"s_cmp_eq_u32 s27, {o.lw}", ["scc"], ["s27"]))
    a(salu(f"s_cselect_b32 s27, {CNT_N}, 0x1000", ["s27"], ["scc"]))
    a(salu("s_cselect_b32 s36, 0, 255", ["s36"], ["scc"]))
    a(raw("s_barrier"))
    if o.pstamp:
        p.extend(stamp3(59))
    a(v3("v_mov_b32", "v28", "0"))
    a(salu("s_mov_b64 exec, 3", ["exec"], []))
    a(Inst(f"buffer_atomic_add v28, v27, {D}, s27 offen sc0 sc1", "vload", defs=["v28"], uses=["s27", "v27", "v28"]))
    a(salu("s_mov_b64 exec, -1", ["exec"], []))
    MB = ("v", V_NS) if o.n_early else ("a", 0)
    w_load(MB[0], MB[1], 21, 0)
    for g in range(6):
        a(v3("v_add_u32", f"v{V_NA + g}", str(NBASE), f"v{21 + g}"))
    a(salu("s_mov_b64 exec, 3", ["exec"], []))
    a(raw("s_waitcnt vmcnt(18)", "wait"))
    a(valu("v_cmp_ne_u32 vcc, 36, v28", ["vcc"], ["v28"]))
    a(salu("s_mov_b64 exec, -1", ["exec"], []))
    a(raw("s_nop 0", "nop"))
    a(raw("s_cbranch_vccnz L_nn"))
    a(Inst(f"buffer_store_dword v29, off, {D}, s3 offset:4", "vstore", uses=["v29", "s3"]))
    a(raw("L_nn:", "label"))
    for k in range(18):
        a(raw(f"s_waitcnt vmcnt({17 - k + (k > o.nlook)})", "wait"))
        if o.pstamp and k == 0:
            p.extend(stamp3(60))
        a(Inst(f"ds_write_b128 v{21 + k // 3}, {T(MB[0], MB[1] + 4 * k, 4)} offset:{1024 * (k % 3)}", "dsw", uses=R(MB[0], MB[1] + 4 * k, 4) + [f"v{21 + k // 3}"]))
        if k == o.nlook:
            a(Inst(f"buffer_load_dword v28, off, {D}, s3 offset:4 {o.lflag}", "vload", defs=["v28"], uses=["s3"]))
    a(raw("s_waitcnt vmcnt(0)", "wait"))
    a(valu("v_cmp_ne_u32 vcc, 0, v28", ["vcc"], ["v28"]))
    a(raw("s_nop 1", "nop"))
    a(raw("s_cbranch_vccnz L_pn_x"))
    poll("L_pn", CNT_N, 4)
    if o.pstamp:
        a(valu(f"v_writelane_b32 v{V_TIME}, s37, 53", [f"v{V_TIME}"], ["s37"]))
    for q in range(3):
        a(salu(f"s_cmp_eq_u32 s38, {q}", ["scc"], ["s38"]))
        a(raw(f"s_cbranch_scc1 L_sh{q}"))
    return p


def stamp3(lane):
    return [raw("s_memtime s[44:45]"), raw("s_waitcnt lgkmcnt(0)", "wait"),
            valu(f"v_writelane_b32 v{V_TIME}, s44, {lane}", [f"v{V_TIME}"], ["s44"])]


def stamp():
    return [raw("s_memtime s[44:45]"), raw("s_memrealtime s[46:47]"), salu(f"s_mov_b32 m0, s{S_IT}", ["m0"], [f"s{S_IT}"]), raw("s_waitcnt lgkmcnt(0)", "wait"),
            valu(f"v_writelane_b32 v{V_TIME}, s44, m0", [f"v{V_TIME}"], ["s44", "m0"]),
            salu(f"s_add_u32 m0, s{S_IT}, 43", ["m0", "scc"], [f"s{S_IT}"]),
            valu(f"v_writelane_b32 v{V_TIME}, s46, m0", [f"v{V_TIME}"], ["s46", "m0"]),
            salu(f"s_add_u32 s{S_IT}, s{S_IT}, 1", [f"s{S_IT}", "scc"], [f"s{S_IT}"])]


def stamp2():
    return [raw("s_memtime s[44:45]"), salu("s_mov_b32 m0, s72", ["m0"], ["s72"]), raw("s_waitcnt lgkmcnt(0)", "wait"),
            valu(f"v_writelane_b32 v{V_TIME}, s44, m0", [f"v{V_TIME}"], ["s44", "m0"]),
            salu("s_add_u32 s72, s72, 1", ["s72", "~scc"], ["s72"])]


def add_stamps(body, pts):
    out = []
    k = 0
    for i in body:
        if i.kind == "mfma":
            if k in pts:
                st = stamp2()
                st[-1] = raw("s_addk_i32 s72, 1", "salu", ["s72"], ["s72"])
                out.extend(st)
            k += 1
        out.append(i)
    return out


def texts(l):
    return [i.text for i in l]


def gen_main(o):
    pro = insert_nops(gen_prologue(o))
    pts = [int(x) for x in o.pts.split(",")] if o.pts else None

    def build(prog):
        body, cyc = schedule2(prog, verbose=o.verbose, urgent=o.urgent)
        if not o.verbose:
            print("; model cycles", cyc)
        return body, cyc

    def waits(body, cyc, pre):
        return insert_waits(body, pre=pre, early_lgkm=(o.early, cyc) if o.early else 0,
                            early_vm=(o.early_vm, cyc) if o.early_vm else 0)

    head = lambda: stamp() if o.diag else []
    shared = []
    for q in range(4):
        t, c = build(gen_shared(o, q))
        if o.tpts:
            t = add_stamps(t, [int(x) for x in o.tpts.split(",")])
        t = [raw("s_waitcnt vmcnt(0) lgkmcnt(0)", "wait")] + (stamp3(61) if o.pstamp else []) + t
        last = max(k for k, i in enumerate(t) if i.kind == "vload")
        nst = sum(i.kind == "vstore" for i in t[last:])
        t += [raw(f"s_waitcnt vmcnt({nst}) lgkmcnt(0)", "wait")]
        t = insert_waits(t, pre=pro, early_lgkm=(o.early, 1 << 30))
        shared.append(insert_nops(t, pre=[pro]))
    bodies = []
    for xs in range(2):
        body, cyc = build(gen_body(o, xs))
        if pts:
            body = add_stamps(body, pts)
        tail = [salu(f"s_cmp_eq_u32 s{S_K}, 5", ["scc"], [f"s{S_K}"]), raw("s_cbranch_scc1 L_epi")] if xs == 0 else [raw("s_branch L_b0")]
        bodies.append(head() + body + tail)
    w = [waits(bodies[0], cyc, []), None]
    for it in range(3):
        w[1] = waits(bodies[1], cyc, w[0])
        w[0] = waits(bodies[0], cyc, w[1])
    w = [hoist_waits(x) for x in w]
    n = [insert_nops(w[0], pre=shared), None]
    for it in range(3):
        n[1] = insert_nops(w[1], pre=[n[0]])
        n[0] = insert_nops(w[0], pre=shared + [n[1]])
    for i in w[0]:
        i.time = None
    epi = insert_nops(insert_waits(head() + build(gen_epi(o))[0], pre=w[0]), pre=[n[0]])
    print('; replay', model_time(n[1]), model_time(n[0]))
    fin = []
    if o.diag:
        fin += stamp()
        fin += [raw("s_waitcnt vmcnt(0)", "wait")] + stamp()
        fin += [raw("s_memrealtime s[46:47]"), raw("s_waitcnt lgkmcnt(0)", "wait"),
                valu(f"v_writelane_b32 v{V_TIME}, s46, 63", [f"v{V_TIME}"], ["s46"])]
        fin += [v3("v_lshrrev_b32", "v0", "2", f"v{V_LDS[0]}"),
                salu("s_lshl_b32 s42, s2, 2", ["s42", "scc"], ["s2"]),
                salu("s_add_u32 s42, s42, s38", ["s42", "scc"], ["s42", "s38"]),
                salu("s_lshl_b32 s42, s42, 8", ["s42", "scc"], ["s42"]),
                salu(f"s_add_u32 s42, s42, {WS_TIME_OFF}", ["s42", "scc"], ["s42"]),
                Inst(f"buffer_store_dword v{V_TIME}, v0, s[12:15], s42 offen", "vstore", uses=[f"v{V_TIME}", "v0", "s42"])]
        fin = insert_nops(fin)
    stats = {}
    for i in n[0]:
        stats[i.kind] = stats.get(i.kind, 0) + 1
    print("; body stats", stats, file=sys.stderr)
    out = emit(pro) + "\n" + emit(shared[3]) + "\n    s_branch L_b0\n"
    for q in range(3):
        out += f".p2align 6\nL_sh{q}:\n" + emit(shared[q]) + "\n"
        if q < 2:
            out += "    s_branch L_b0\n"
    out += "L_b0:\n" + emit(n[0]) + "\nL_b1:\n" + emit(n[1]) + "\n.p2align 6\nL_epi:\n"
    return out + emit(epi) + "\n" + emit(fin) + "\nL_main_done:\n    s_endpgm\n"


def merge_waits(x, y):
    def split(l):
        out, cur = [], {}
        for i in l:
            if i.kind == "wait" and not i.defs and not i.uses:
                for nm, v in re.findall(r"(vmcnt|lgkmcnt)\((\d+)\)", i.text):
                    cur[nm] = min(cur.get(nm, 99), int(v))
            else:
                out.append((cur, i))
                cur = {}
        return out
    a, b = split(x), split(y)
    assert [i.text for _, i in a] == [i.text for _, i in b]
    out = []
    for (wa, i), (wb, _) in zip(a, b):
        m = {k: min(wa.get(k, 99), wb.get(k, 99)) for k in set(wa) | set(wb)}
        if m:
            w = Inst("s_waitcnt " + " ".join(f"{k}({m[k]})" for k in ("vmcnt", "lgkmcnt") if k in m), "wait")
            w.time = i.time
            out.append(w)
        out.append(i)
    return out


def emit(insts):
    out = []
    for i in insts:
        out.append(i.text if i.kind == "label" else "    " + i.text)
    return "\n".join(out)


HEADER = """; Swin window attention: folded projections (M = a*Wq*Wk^T, N = Wv*Wo), one wave per window.
; @launch grid=(256,1,1) block=(256,1,1) lds=163840
.amdgcn_target "amdgcn-amd-amdhsa--gfx950"
.text
"""

KD = """.amdhsa_kernel {k}
  .amdhsa_next_free_vgpr {nv}
  .amdhsa_next_free_sgpr {ns}
  .amdhsa_accum_offset {ao}
  .amdhsa_group_segment_fixed_size 0
  .amdhsa_kernarg_size 48
  .amdhsa_user_sgpr_count 2
  .amdhsa_user_sgpr_kernarg_segment_ptr 1
  .amdhsa_system_sgpr_workgroup_id_x 1
.end_amdhsa_kernel
"""


def main():
    ap = argparse.ArgumentParser()
    ap.add_argument("-o", default="cdna_kernels/" + NAME + ".s")
    ap.add_argument("--diag", action="store_true")
    ap.add_argument("--pts", default="")
    ap.add_argument("--rm", default="")
    ap.add_argument("--ct", type=int, default=8000)
    ap.add_argument("--tpts", default="")
    ap.add_argument("--early", type=int, default=230)
    ap.add_argument("--early_vm", type=int, default=0)
    ap.add_argument("--ld_rel", type=int, default=300)
    ap.add_argument("--ld_step", type=int, default=400)
    ap.add_argument("--tail_s", type=int, default=1)
    ap.add_argument("--order", default="sx")
    ap.add_argument("--nl_rel", type=int, default=0)
    ap.add_argument("--nl_step", type=int, default=64)
    ap.add_argument("--nw_rel", type=int, default=800)
    ap.add_argument("--nw_step", type=int, default=64)
    ap.add_argument("--x0_rel", type=int, default=1200)
    ap.add_argument("--x0_step", type=int, default=200)
    ap.add_argument("--pw", type=int, default=3)
    ap.add_argument("--lw", type=int, default=0)
    ap.add_argument("--n_early", type=int, default=0)
    ap.add_argument("--psleep", type=int, default=0)
    ap.add_argument("--leaders", default="18")
    ap.add_argument("--nlook", type=int, default=11)
    ap.add_argument("--lflag", default="nt")
    ap.add_argument("--defer", default="12")
    ap.add_argument("--after", default="5,6,7,8,10")
    ap.add_argument("--urgent", type=int, default=0)
    ap.add_argument("--touch_rep", type=int, default=1)
    ap.add_argument("--ld_grp", type=int, default=2)
    ap.add_argument("--q2p0", default="5400,500")
    ap.add_argument("--q2p1", default="7400,350")
    ap.add_argument("--dsw_busy", type=int, default=40)
    ap.add_argument("--st_busy", type=int, default=150)
    ap.add_argument("--ld_flags", default="")
    ap.add_argument("--st_flags", default="")
    ap.add_argument("--st_flags0")
    ap.add_argument("--st_flags1")
    ap.add_argument("--drop", default="")
    for f in ("noload", "nostore", "pstamp", "verbose", "notouch", "nowarm"):
        ap.add_argument("--" + f, action="store_true")
    o = ap.parse_args()
    o.defer = [int(c) for c in o.defer]
    if o.ld_flags:
        o.ld_flags = " " + o.ld_flags
    if o.st_flags:
        o.st_flags = " " + o.st_flags
    global DSW_BUSY, ST_BUSY, LD_GRP
    DROP.extend(int(c) for c in o.drop)
    for k, f in enumerate((o.st_flags0, o.st_flags1)):
        if f is not None:
            PFLAGS[k] = " " + f if f else ""
    DSW_BUSY, ST_BUSY, LD_GRP = o.dsw_busy, o.st_busy, o.ld_grp
    old = sys.stdout
    sys.stdout = sys.stderr
    main_text = gen_main(o)
    sys.stdout = old
    s = HEADER.format(name=NAME)
    k = NAME + "_kernel"
    s += f".globl {k}\n.p2align 12\n.type {k},@function\n{k}:\n"
    s += main_text
    s += '.section .rodata,"a"\n.p2align 6\n'
    s += KD.format(k=k, nv=512, ns=102, ao=256)
    open(o.o, "w").write(s)


if __name__ == "__main__":
    main()
```

```python
import sys, math, struct, argparse, re
from asmlib import *

NAME = "standalone__swin_window_attn__vision"
NWIN = 5329
XBYTES = 100270464
ROWB = 196224
WINROW = 7 * ROWB
MAGIC73 = (1 << 32) // 73 + 1
for w in range(0, 16384):
    assert (w * MAGIC73) >> 32 == w // 73
ALPHA = (192 ** -0.5) * math.log2(math.e)
WS_TIME_OFF = 1 << 20
STAGE = 147456


def f32bits(x):
    return struct.unpack("<I", struct.pack("<f", x))[0]


def mfma(bd, d, ba, a, bb, b, first):
    c = "0" if first else T(bd, d, 4)
    D = R(bd, d, 4)
    AB = R(ba, a, 4) + R(bb, b, 4)
    return Inst(f"v_mfma_f32_16x16x32_bf16 {T(bd, d, 4)}, {T(ba, a, 4)}, {T(bb, b, 4)}, {c}", "mfma",
                defs=D, uses=AB + ([] if first else D), srcC=([] if first else D), srcAB=AB, passes=4)


def valu(text, defs, uses, kind="valu", **kw):
    return Inst(text, kind, defs=defs, uses=uses, **kw)


def cvtpk(d, a, b, **kw):
    bt = f"v{b}" if b is not None else "0"
    return valu(f"v_cvt_pk_bf16_f32 v{d}, v{a}, {bt}", [f"v{d}"], [f"v{a}"] + ([f"v{b}"] if b is not None else []), **kw)


def salu(text, defs, uses, **kw):
    return Inst(text, "salu", defs=defs, uses=uses, **kw)


def raw(text, kind="other", defs=(), uses=()):
    return Inst(text, kind, defs=defs, uses=uses)


def v3(op, d, *srcs, **kw):
    uses = [s for s in srcs if isinstance(s, str) and (is_vreg(s) or is_sreg(s))]
    return valu(f"{op} {d}, " + ", ".join(str(s) for s in srcs), [d], uses, **kw)


def cnd(d, a, b, m):
    return valu(f"v_cndmask_b32 {d}, {a}, {b}, s[{m}:{m+1}]", [d], [a, b, f"s{m}", f"s{m+1}"])


def srd(a, dst, src, nb):
    a(salu(f"s_mov_b32 s{dst}, s{src}", [f"s{dst}"], [f"s{src}"]))
    a(salu(f"s_and_b32 s{dst+1}, s{src+1}, 0xffff", [f"s{dst+1}", "scc"], [f"s{src+1}"]))
    a(salu(f"s_mov_b32 s{dst+2}, {nb}", [f"s{dst+2}"], []))
    a(salu(f"s_mov_b32 s{dst+3}, 0x20000", [f"s{dst+3}"], []))


STRIPS = [("H", r) for r in range(7)] + [("V", 4), ("V", 5), ("V", 6), ("Q", 0), ("I", 0)]
I_TOK = [(4, 6), (5, 6), (6, 4), (6, 5)]


def token(t, n):
    g, i = n >> 2, n & 3
    kind, p = STRIPS[4 * t + i]
    if kind == "H":
        return p, g
    if kind == "V":
        return g, p
    if kind == "Q":
        return 4 + (g >> 1), 4 + (g & 1)
    return I_TOK[g]


assert sorted(token(t, n) for t in range(3) for n in range(16)) + [(6, 6)] == [(r, c) for r in range(7) for c in range(7)]


P_A, P_B, P_C, P_O, P_U = 128, 176, 200, 208, 32
S_KA = 92
S_KB = 32
S_DBG = 80
S_PSC, S_PSO = 100, 101


def prod_load(o):
    p = []
    a = p.append
    a(salu("s_cmp_ge_u32 s2, 72", ["scc"], ["s2"]))
    a(salu("s_cselect_b32 s20, 1, 0", ["s20"], ["scc"]))
    a(salu("s_mul_i32 s21, s20, 72", ["s21"], ["s20"]))
    a(salu("s_sub_u32 s21, s2, s21", ["s21", "scc"], ["s2", "s21"]))
    a(salu("s_mul_i32 s22, s21, 43", ["s22"], ["s21"]))
    a(salu("s_lshr_b32 s22, s22, 8", ["s22", "scc"], ["s22"]))
    for r in range(72):
        assert (r * 43) >> 8 == r // 6
    a(salu("s_mul_i32 s23, s22, 6", ["s23"], ["s22"]))
    a(salu("s_sub_u32 s23, s21, s23", ["s23", "scc"], ["s21", "s23"]))
    a(v3("v_lshrrev_b32", "v5", "2", "v3"))
    a(v3("v_and_b32", "v6", "3", "v3"))
    a(v3("v_lshl_add_u32", "v5", "v5", "3", "v6"))
    a(v3("v_mul_u32_u24", "v5", "0x480", "v5"))
    a(v3("v_lshl_add_u32", "v5", "v4", "4", "v5"))
    a(salu("s_mul_i32 s25, s23, 36864", ["s25"], ["s23"]))
    a(salu("s_mul_i32 s26, s20, 768", ["s26"], ["s20"]))
    a(salu("s_add_u32 s25, s25, s26", ["s25", "scc"], ["s25", "s26"]))
    a(salu("s_add_u32 s24, s25, 4608", ["s24", "scc"], ["s25"]))
    a(salu("s_lshr_b32 s26, s22, 1", ["s26", "scc"], ["s22"]))
    a(salu("s_mul_i32 s26, s26, 36864", ["s26"], ["s26"]))
    a(salu("s_and_b32 s27, s22, 1", ["s27", "scc"], ["s22"]))
    a(salu("s_mul_i32 s27, s27, 4608", ["s27"], ["s27"]))
    a(salu("s_add_u32 s26, s26, s27", ["s26", "scc"], ["s26", "s27"]))
    a(salu("s_add_u32 s26, s26, 384", ["s26", "scc"], ["s26"]))
    a(salu(f"s_lshl_b32 s{S_PSO}, s2, 10", [f"s{S_PSO}", "scc"], ["s2"]))
    a(raw("s_waitcnt lgkmcnt(0)", "wait"))
    srd(a, 56, S_KA + 2, 192 * 576 * 2)

    def a_loads():
        for k in range(6):
            for h in range(2):
                d = P_A + 24 * h + 4 * k
                a(Inst(f"buffer_load_dwordx4 {T('v', d, 4)}, v5, s[56:59], s{(25, 24)[h]} offen offset:{64 * k}", "vload",
                       defs=R('v', d, 4), uses=["v5", "s25", "s24"]))
    a(salu("s_cmp_eq_u32 s20, 1", ["scc"], ["s20"]))
    a(raw("s_cbranch_scc1 L_prod_n"))
    for k in range(6):
        a(Inst(f"buffer_load_dwordx4 {T('v', P_B + 4 * k, 4)}, v5, s[56:59], s26 offen offset:{64 * k}", "vload",
               defs=R('v', P_B + 4 * k, 4), uses=["v5", "s26"]))
    a(salu(f"s_mov_b32 s{S_PSC}, 0x{f32bits(ALPHA):08x}", [f"s{S_PSC}"], []))
    a(raw("s_branch L_prod_a"))
    a(raw("L_prod_n:", "label"))
    srd(a, 60, S_KA + 4, 192 * 192 * 2)
    a(salu("s_cmp_lt_u32 s22, 8", ["scc"], ["s22"]))
    a(salu("s_cselect_b32 s26, 3, 2", ["s26"], ["scc"]))
    a(salu("s_cselect_b32 s27, 0, 120", ["s27"], ["scc"]))
    a(salu("s_add_u32 s27, s27, s22", ["s27", "scc"], ["s27", "s22"]))
    a(v3("v_lshlrev_b32", "v6", "s26", "v3"))
    a(v3("v_add_u32", "v6", "s27", "v6"))
    a(v3("v_lshlrev_b32", "v6", "1", "v6"))
    a(v3("v_mul_u32_u24", "v7", "0xc00", "v4"))
    a(v3("v_add_u32", "v6", "v6", "v7"))
    for k in range(6):
        a(salu(f"s_mov_b32 s27, {k * 12288}", ["s27"], []))
        for j in range(8):
            r = P_U + 8 * k + j
            a(Inst(f"buffer_load_ushort v{r}, v6, s[60:63], s27 offen offset:{384 * j}", "vload",
                   defs=[f"v{r}"], uses=["v6", "s27"]))
    a(salu(f"s_mov_b32 s{S_PSC}, 1.0", [f"s{S_PSC}"], []))
    a(raw("L_prod_a:", "label"))
    a_loads()
    warm(o, a, 3, True)
    return p


def warm(o, a, part=3, own=False):
    if part & 1:
        srd(a, 12, S_KB + 2, "151552" if not o.diag else str(WS_TIME_OFF + 1024 * 256))
        srd(a, S_DBG, S_KB, "256")
    if part & 2 and not o.nowarm:
        a(salu("s_mov_b32 s27, 149504", ["s27"], []))
        if own and o.own == 1:
            a(Inst(f"buffer_load_dwordx4 {T('v', P_O, 4)}, v{V_LDS[0]}, s[12:15], s{S_PSO} offen sc1", "vload", defs=R('v', P_O, 4)))
        elif own and o.own == 2:
            a(Inst(f"buffer_store_dwordx4 {T('v', P_O, 4)}, v{V_LDS[0]}, s[12:15], s{S_PSO} offen sc1", "vstore", uses=R('v', P_O, 4)))
        else:
            a(Inst("buffer_load_dword v30, off, s[12:15], s27", "vload", defs=["v30"], uses=["s27"]))
        a(Inst(f"buffer_load_dword v31, off, s[{S_DBG}:{S_DBG+3}], 0 offset:128 nt", "vload", defs=["v31"]))


def prod_store(o, behind):
    p = []
    a = p.append
    a(raw(f"s_waitcnt vmcnt({behind})", "wait"))
    if o.pstamp:
        p.extend(stamp3(57))
    a(salu("s_cmp_lt_u32 s2, 72", ["scc"], ["s2"]))
    a(raw("s_cbranch_scc1 L_prod_mm"))
    for r in range(24):
        a(v3("v_lshl_or_b32", f"v{P_B + r}", f"v{P_U + 2 * r + 1}", "16", f"v{P_U + 2 * r}"))
    a(raw("L_prod_mm:", "label"))
    for k in range(6):
        for h in range(2):
            a(mfma("v", P_C + 4 * h, "v", P_A + 24 * h + 4 * k, "v", P_B + 4 * k, k == 0))
    for r in range(8):
        a(v3("v_mul_f32", f"v{P_C + r}", f"s{S_PSC}", f"v{P_C + r}"))
    for r in range(4):
        a(cvtpk(P_O + r, P_C + 2 * r, P_C + 2 * r + 1))
    a(Inst(f"buffer_store_dwordx4 {T('v', P_O, 4)}, v{V_LDS[0]}, s[12:15], s{S_PSO} offen sc1", "vstore",
           uses=R('v', P_O, 4) + [f"v{V_LDS[0]}"], wide=True))
    return p


def prod_signal(o):
    p = []
    a = p.append
    a(salu("s_cmp_lt_u32 s2, 72", ["scc"], ["s2"]))
    a(salu(f"s_cselect_b32 s27, 0, {CNT_N}", ["s27"], ["scc"]))
    a(salu("s_lshr_b32 s26, s2, 3", ["s26", "scc"], ["s2"]))
    a(salu("s_xor_b32 s26, s26, s2", ["s26", "scc"], ["s2", "s26"]))
    a(salu("s_and_b32 s26, s26, 1", ["s26", "scc"], ["s26"]))
    a(salu("s_lshl_b32 s26, s26, 6", ["s26", "scc"], ["s26"]))
    a(salu("s_add_u32 s27, s27, s26", ["s27", "scc"], ["s26", "s27"]))
    for lo in (0, 72):
        assert sum(((w >> 3) ^ w) & 1 for w in range(lo, lo + 72)) == 36
    a(v3("v_mov_b32", f"v{P_C}", "1"))
    a(salu("s_mov_b64 exec, 1", ["exec"], []))
    a(raw("s_waitcnt vmcnt(0)", "wait"))
    a(Inst(f"buffer_atomic_add v{P_C}, off, s[{S_DBG}:{S_DBG+3}], s27 sc1", "vstore", uses=[f"v{P_C}", "s27"]))
    a(salu("s_mov_b64 exec, -1", ["exec"], []))
    if o.pstamp:
        p.extend(stamp3(58))
    return p


CNT_N = 4
XS = [0, 72]
AX49, AT49, AW = 144, 168, 192
NRING = 12
SB = 0
ACC = 64
TBF = 88
OPA = 100
VBF = 124
V_LDS = [220, 221, 222]
V_F = [223, 224, 225]
V_ST = {"H": (232, 233), "V": (234, 235), "Q": (236, 237), "I": (238, 239)}
V_SP = (240, 241)
V_CT = (242, 243)
AP = {1: 240, 2: 248}
V_Q3 = 250
S_TW = 73
S_XS = 76
NBASE = 73728
DSW_BUSY, ST_BUSY, LD_GRP = 40, 40, 1
DROP, PFLAGS = [], [None, None]
V_NINF = 244
V_TMP = [[245, 246, 247, 248, 249], [250, 251, 252, 253, 254]]
V_TIME = 255
S_WCUR, S_LB, S_CB, S_K, S_ROW = 16, 17, 18, 19, 20
S_IT = 28
S_M0, S_M1, S_GM, S_SH, S_SPO, S_GO = 48, 50, 52, 54, 55, 74
S_SPA, S_SPB = 56, 60


def xr(xs, t, s):
    return XS[xs] + 24 * t + 4 * s


def xop(xs, t, s):
    return AX49 + 4 * s if t == 3 else xr(xs, t, s)


def lds_at(idx):
    base, imm = divmod((idx % 144) * 1024, 65536)
    return V_LDS[base], imm


def wfrag_read(idx, slot=None, extra=(), **kw):
    va, imm = lds_at(idx)
    d = AW + 4 * (idx % NRING if slot is None else slot)
    return Inst(f"ds_read_b128 {T('a', d, 4)}, v{va} offset:{imm}", "dsr", defs=R('a', d, 4),
                uses=[f"v{va}"] + list(extra), **kw)


class Ring:
    def __init__(self, seq, have=None):
        self.seq = seq
        self.slot = [have[i] for i in seq[:NRING]] if have else list(range(NRING))
        self.pos = 0
        self.gate = lambda idx: []

    def fill(self, extra=()):
        return [wfrag_read(i, self.slot[p], extra) for p, i in enumerate(self.seq[:NRING])]

    def take(self):
        p = self.pos
        self.pos += 1
        sl = self.slot[p]
        self.slot.append(sl)
        nxt = [wfrag_read(self.seq[p + NRING], sl, self.gate(self.seq[p + NRING]))] if p + NRING < len(self.seq) else []
        return AW + 4 * sl, nxt


def xload(xs, t, s, sbase, flags="", sr=4, **kw):
    d = xr(xs, t, s)
    return Inst(f"buffer_load_dwordx4 {T('a', d, 4)}, v{V_F[t]}, s[{sr}:{sr+3}], s{sbase} offen offset:{64 * s}" + flags,
                "vload", defs=R('a', d, 4), uses=[f"v{V_F[t]}", f"s{sbase}", f"s{sr+2}"], **kw)


def xloads(xs, sbase, flags, rel=None, step=0):
    out = []
    k = 0
    for j in range(3):
        for t in range(3):
            for u in range(2):
                kw = {}
                if rel is not None:
                    at = rel + step * (k - k % LD_GRP) + 16 * (k % LD_GRP)
                    kw = dict(release=at, deadline=at + 48)
                out.append(xload(xs, t, 2 * j + u, sbase, flags, **kw))
                k += 1
    return out


def vb(ct):
    return VBF + 8 * ct


def opk(q, i, part):
    if q == 3:
        return TBF + 4 * i if part == 0 else V_Q3 + 2 * i
    return OPA + 4 * i if part == 0 else OPA + 16 + 2 * i


def o_mf(q, pr, acc=None, held=False):
    acc = SB + 16 * q + 8 if acc is None else acc
    bank, pb = ("a", AP[q]) if held else ("v", SB + 16 * q)
    out = []
    for ks in range(2):
        for e in range(2):
            out.append(mfma("v", acc + 4 * e, bank, pb + 4 * ks, "v", vb(2 * pr + e) + 4 * ks, ks == 0))
    return out


def o_pack(q, pr, acc=None):
    acc = SB + 16 * q + 8 if acc is None else acc
    out = []
    for i in range(2 if q == 3 else 4):
        d = opk(q, i, 0) + pr if pr < 4 else opk(q, i, 1) + pr - 4
        out.append(cvtpk(d, acc + i, acc + 4 + i))
    return out


def o_store(q, part, flags="", rel=None, step=0):
    out = []
    n = (4, 2)[part]
    for i in range(2 if q == 3 else 4):
        d = opk(q, i, part)
        if q == 3:
            vo, row, imm, sr = V_SP[part], None, 0, (S_SPA, S_SPB)[i]
        else:
            kind, pp = STRIPS[4 * q + i]
            vo, sr = V_ST[kind][part], 8
            row, imm = {"H": (pp, 0), "V": (0, pp * 384), "Q": (4, 4 * 384), "I": (4, 0)}[kind]
        so = f"s{S_SPO}" if row is None else f"s{S_ROW + row}"
        if part in DROP and q != 3:
            sr = 80
        if PFLAGS[part] is not None:
            flags = PFLAGS[part]
        out.append(Inst(f"buffer_store_dwordx{n} {T('v', d, n)}, v{vo}, s[{sr}:{sr+3}], {so} offen offset:{imm + 256 * part}{flags}",
                        "vstore", uses=R('v', d, n) + [f"v{vo}", so, f"s{sr+2}"], wide=(n == 4)))
        out[-1].cost, out[-1].real, out[-1].busy = 8, 4 + 4 * n, ST_BUSY
        if rel is not None:
            out[-1].release = rel + step * i
    return out


def xlane(op, m0, m1):
    p = []
    for sw in ("v_permlane32_swap_b32", "v_permlane16_swap_b32"):
        p.append(v3("v_mov_b32", f"v{m1}", f"v{m0}"))
        p.append(valu(f"{sw} v{m0}, v{m1}", [f"v{m0}", f"v{m1}"], [f"v{m0}", f"v{m1}"], kind="perm"))
        p.append(v3(op, f"v{m0}", f"v{m0}", f"v{m1}"))
    return p


def softmax(q, tset, part=3, hold=False):
    b = SB + 16 * q
    m0, m1, s0, s1, rr = V_TMP[tset]
    p = []
    p.append(cnd(f"v{b + 12}", f"v{V_NINF}", f"v{b + 12}", S_M0))
    p.append(cnd(f"v{b + 12}", f"v{b + 12}", f"v{b + 13}", S_M1))
    regs = [b + r for r in range(13)]
    m3 = lambda d, x, y, z: v3("v_max3_f32", f"v{d}", f"v{x}", f"v{y}", f"v{z}")
    p.append(m3(m0, regs[0], regs[1], regs[2]))
    p.append(m3(m1, regs[3], regs[4], regs[5]))
    p.append(m3(m0, m0, regs[6], regs[7]))
    p.append(m3(m1, m1, regs[8], regs[9]))
    p.append(m3(m0, m0, regs[10], regs[11]))
    p.append(m3(m0, m0, m1, regs[12]))
    p.extend(xlane("v_max_f32", m0, m1))
    for r in regs:
        p.append(v3("v_sub_f32", f"v{r}", f"v{r}", f"v{m0}"))
        p.append(valu(f"v_exp_f32 v{r}, v{r}", [f"v{r}"], [f"v{r}"], kind="trans"))
    p.append(v3("v_add_f32", f"v{s0}", f"v{regs[0]}", f"v{regs[1]}"))
    p.append(v3("v_add_f32", f"v{s1}", f"v{regs[2]}", f"v{regs[3]}"))
    for k in range(4, 13):
        s = (s0, s1)[k & 1]
        p.append(v3("v_add_f32", f"v{s}", f"v{s}", f"v{regs[k]}"))
    p.append(v3("v_add_f32", f"v{s0}", f"v{s0}", f"v{s1}"))
    p.extend(xlane("v_add_f32", s0, s1))
    p.append(valu(f"v_rcp_f32 v{rr}, v{s0}", [f"v{rr}"], [f"v{s0}"], kind="trans"))
    if part == 1:
        return p
    if part == 2:
        p = []
    for k in range(0, 12, 2):
        p.append(v3("v_mul_f32", f"v{regs[k]}", f"v{regs[k]}", f"v{rr}"))
        p.append(v3("v_mul_f32", f"v{regs[k + 1]}", f"v{regs[k + 1]}", f"v{rr}"))
        p.append(cvtpk(b + k // 2, regs[k], regs[k + 1]))
    p.append(v3("v_mul_f32", f"v{regs[12]}", f"v{regs[12]}", f"v{rr}"))
    p.append(cvtpk(b + 6, regs[12], None))
    p.append(v3("v_lshlrev_b32", f"v{b + 6}", f"s{S_SH}", f"v{b + 6}"))
    if not hold:
        p.append(v3("v_mov_b32", f"v{b + 7}", "0"))
    return p


def p_hold(q):
    return [valu(f"v_accvgpr_write_b32 a{AP[q] + r}, v{SB + 16 * q + r}", [f"a{AP[q] + r}"], [f"v{SB + 16 * q + r}"])
            for r in range(7)]


def win_base(dst, w, tmp):
    return [
        salu(f"s_mul_hi_u32 s{tmp}, s{w}, s29", [f"s{tmp}"], [f"s{w}", "s29"]),
        salu(f"s_mul_i32 s{dst}, s{tmp}, 73", [f"s{dst}"], [f"s{tmp}"]),
        salu(f"s_sub_u32 s{dst}, s{w}, s{dst}", [f"s{dst}", "scc"], [f"s{w}", f"s{dst}"]),
        salu(f"s_mul_i32 s{dst}, s{dst}, 2688", [f"s{dst}"], [f"s{dst}"]),
        salu(f"s_mul_i32 s{tmp}, s{tmp}, {WINROW}", [f"s{tmp}"], [f"s{tmp}"]),
        salu(f"s_add_u32 s{dst}, s{dst}, s{tmp}", [f"s{dst}", "scc"], [f"s{dst}", f"s{tmp}"]),
    ]


def row_bases(o=None):
    out = [] if o is None or o.nostore else [salu("s_mov_b32 s10, s31", ["s10"], ["s31"])]
    out += [salu(f"s_mov_b32 s{S_ROW}, s{S_CB}", [f"s{S_ROW}"], [f"s{S_CB}"])]
    for r in range(1, 7):
        out.append(salu(f"s_add_u32 s{S_ROW + r}, s{S_CB}, {r * ROWB}", [f"s{S_ROW + r}", "scc"], [f"s{S_CB}"]))
    out.append(salu(f"s_sub_u32 s{S_SPO}, s{S_ROW + 6}, s{S_GO}", [f"s{S_SPO}", "scc"], [f"s{S_ROW + 6}", f"s{S_GO}"]))
    out.append(salu(f"s_add_u32 s{S_SPO}, s{S_SPO}, {6 * 384}", [f"s{S_SPO}", "scc"], [f"s{S_SPO}"]))
    return out


def slot_masks():
    k = S_K
    return [
        salu(f"s_and_b32 s30, s{k}, 3", ["s30", "scc"], [f"s{k}"]),
        salu(f"s_mul_i32 s{S_GO}, s30, 384", [f"s{S_GO}"], ["s30"]),
        salu("s_lshl_b32 s30, s30, 4", ["s30", "scc"], ["s30"]),
        salu(f"s_lshl_b64 s[{S_GM}:{S_GM+1}], s[40:41], s30", [f"s{S_GM}", f"s{S_GM+1}", "scc"], ["s40", "s41", "s30"]),
        salu(f"s_cmp_lt_u32 s{k}, 4", ["scc"], [f"s{k}"]),
        salu(f"s_cselect_b64 s[{S_M0}:{S_M0+1}], s[{S_GM}:{S_GM+1}], 0", [f"s{S_M0}", f"s{S_M0+1}"], ["scc", f"s{S_GM}", f"s{S_GM+1}"]),
        salu(f"s_cselect_b64 s[{S_M1}:{S_M1+1}], 0, s[{S_GM}:{S_GM+1}]", [f"s{S_M1}", f"s{S_M1+1}"], ["scc", f"s{S_GM}", f"s{S_GM+1}"]),
        salu(f"s_cselect_b32 s{S_SH}, 0, 16", [f"s{S_SH}"], ["scc"]),
        salu(f"s_cselect_b32 s{S_SPA+2}, s31, 0", [f"s{S_SPA+2}"], ["scc", "s31"]),
        salu(f"s_cselect_b32 s{S_SPB+2}, 0, s31", [f"s{S_SPB+2}"], ["scc", "s31"]),
        salu(f"s_add_u32 s{k}, s{k}, 1", [f"s{k}", "scc"], [f"s{k}"]),
        cnd(f"v{V_SP[0]}", f"v{V_NINF}", f"v{V_ST['H'][0]}", S_GM),
        cnd(f"v{V_SP[1]}", f"v{V_NINF}", f"v{V_ST['H'][1]}", S_GM),
    ]


def carry_head(o):
    p = cvt_v(11)
    for q in (1, 2):
        if q in o.defer:
            p += softmax(q, q & 1, 2, True)
        p += p_hold(q)
    return p


def carry_30(o):
    p = o_mf(3, 5) + o_mf(0, 5) + o_pack(3, 5) + o_pack(0, 5)
    return p + o_store(3, 1, o.st_flags) + o_store(0, 1, o.st_flags)


def carry_grp(o, g, acc, pace=False):
    q, pr = 1 + g // 6, g % 6
    p = o_mf(q, pr, acc, True) + o_pack(q, pr, acc)
    if pr in (3, 5):
        rel, step = None, 0
        if pace and q == 2:
            rel, step = [int(x) for x in (o.q2p0, o.q2p1)[pr >> 2].split(",")]
        p += o_store(q, pr >> 2, o.st_flags, rel, step)
    return p


def cvt_v(ct):
    out = []
    for t in range(3):
        acc = ACC + 12 * (ct & 1) + 4 * t
        for h in range(2):
            out.append(cvtpk(vb(ct) + 2 * t + h, acc + 2 * h, acc + 2 * h + 1))
    return out


def s3(xs):
    return [mfma("v", SB + 48 + 4 * kt, "a", xop(xs, kt, s), "a", AT49 + 4 * s, s == 0)
            for s in range(6) for kt in range(4)]


CT = ["L_b1", "L_b1+8192", "L_main_done-8064"]


def code_touch(k, rel):
    b = 84 + 2 * k
    return [Inst(f"global_load_dword v{V_CT[1]}, v{V_CT[0]}, s[{b}:{b+1}]", "vload", defs=["~ct"], uses=[f"v{V_CT[0]}"],
                 release=rel, deadline=rel + 48, tag="pf")]


def gen_body(o, xs):
    p = []
    ext = p.extend
    NM = 624
    if o.ct and xs == 0:
        for k in range(3):
            ext(code_touch(k, o.ct + 200 * k))
    p.append(salu(f"s_add_u32 s{S_WCUR}, s{S_WCUR}, 1024", [f"s{S_WCUR}", "scc"], [f"s{S_WCUR}"], deadline=0))
    ext(win_base(S_LB, S_WCUR, 27))
    if xs == 0:
        p.append(salu(f"s_cmp_lt_u32 s{S_K}, 4", ["scc"], [f"s{S_K}"]))
        p.append(salu(f"s_cselect_b32 s6, {'0' if o.noload else 's31'}, 0", ["s6"], ["scc", "s31"]))
    ext(xloads(xs ^ 1, S_LB, o.ld_flags, o.ld_rel, o.ld_step))
    ext(carry_head(o))

    def chain(mat, ct):
        out = []
        for s in range(6):
            idx = 72 * mat + 6 * ct + s
            w = AW + 4 * (idx % NRING)
            for t in range(3):
                acc = ACC + 12 * (ct & 1) + 4 * t
                if mat == 0:
                    out.append(mfma("v", acc, "a", w, "a", xr(xs, t, s), s == 0))
                else:
                    out.append(mfma("v", acc, "a", xr(xs, t, s), "a", w, s == 0))
            kw = {}
            if idx + NRING >= 144:
                kw = dict(deadline=NM * 16 + 48 * (idx + NRING - 144) - 220)
            out.append(wfrag_read(idx + NRING, **kw))
        return out

    def cvt_t(ct):
        out = []
        for t in range(3):
            acc = ACC + 12 * (ct & 1) + 4 * t
            for h in range(2):
                out.append(cvtpk(TBF + 4 * t + 2 * (ct & 1) + h, acc + 2 * h, acc + 2 * h + 1))
        return out

    def s_mf(sp):
        return [mfma("v", SB + 16 * q + 4 * kt, "a", xop(xs, kt, sp), "v", TBF + 4 * q, sp == 0)
                for q in range(3) for kt in range(4)]

    def o_grp(pr):
        out = o_mf(3, pr) + o_mf(0, pr) + o_pack(3, pr) + o_pack(0, pr)
        if pr == 3:
            out += o_store(3, 0, o.st_flags) + o_store(0, 0, o.st_flags)
        return out

    grp = iter(range(12))

    def carried():
        return carry_grp(o, next(grp), SB + 56, True)

    ext(chain(0, 0))
    ext(carry_30(o))
    ext(slot_masks())
    ext(cvt_t(0))
    ext(chain(0, 1))
    ext(s3(xs))
    ext(softmax(3, 1))
    ext(cvt_t(1))
    for ct in range(2, 12):
        ext(chain(0, ct))
        if ct >= 4 and ct % 2 == 0:
            ext(carried())
        if ct % 2 == 0:
            ext(s_mf(ct // 2 - 1))
        ext(cvt_t(ct))
        if ct >= 4:
            ext(carried())
    ext(row_bases(o if xs == 0 else None))
    p.append(salu(f"s_mov_b32 s{S_CB}, s{S_LB}", [f"s{S_CB}"], [f"s{S_LB}"]))
    ext(chain(1, 0))
    ext(s_mf(5))
    for q in range(3):
        ext(softmax(q, q & 1, 1 if q in o.defer else 3, q > 0))
    ext(cvt_v(0))
    after = dict(zip([int(x) for x in o.after.split(",")], range(5)))
    for ct in range(1, 12):
        ext(chain(1, ct))
        if ct in after:
            ext(o_grp(after[ct]))
        if ct < 11:
            ext(cvt_v(ct))
    assert sum(i.kind == "mfma" for i in p) == NM
    for i in p:
        if i.kind != "mfma" and i.deadline is None and i.kind != "dsr":
            i.deadline = NM * 16 - 24
    for k in o.rm.split(","):
        if k == "ring":
            p = [i for i in p if i.kind != "dsr"]
        elif k:
            p = [i for i in p if i.kind != k]
    return p


def gen_epi(o):
    p = carry_head(o)
    for g in range(3):
        p += carry_grp(o, g, SB + 16 + 8 * (g % 4))
    p += carry_30(o)
    for g in range(3, 12):
        p += carry_grp(o, g, SB + 16 + 8 * (g % 4))
    return p


XSTAGED = [(0, 0), (0, 1), (1, 0), (1, 1), (2, 0), (2, 1), (1, 2), (2, 2)]
V_R0 = (226, 227)
V_NA = OPA
V_NS = VBF


def gen_shared(o, q):
    xs = 1
    p = []
    ext = p.extend
    own = [2 * q, 2 * q + 1] if q < 3 else [6, 7, 8, 9]
    solo = [ct for ct in range(10) if ct not in own]
    F = [SB + 16 * a for a in range(4) if a != q]
    v_x8 = V_TMP[(q & 1) ^ 1][0]
    st_imm = STAGE - 0x20000
    plan = [("v", ct) for ct in own]
    if q == 3:
        plan += [("s", solo[0], solo[1]), ("s", solo[2], solo[3]), ("x",), ("v", 10), ("o", 3), ("o", 4), ("s", solo[4], solo[5]),
                 ("o", 0), ("o", 1), ("v", 11), ("o", 2), ("o", 5)]
        assert solo == [0, 1, 2, 3, 4, 5]
    else:
        oth = [pr for pr in range(5) if pr != q]
        plan += [("x",), ("s", solo[0], solo[1]), ("s", solo[2], solo[3]), ("v", 10), ("o", q), ("o", oth[0]), ("s", solo[4], solo[5]),
                 ("o", oth[1]), ("s", solo[6], solo[7]), ("o", oth[2]), ("v", 11), ("o", oth[3]), ("o", 5)]
    seq = [6 * (2 * c + e) + s for c in range(6) for s in range(6) for e in range(2)]
    for st in plan:
        if st[0] == "v":
            seq += [72 + 6 * st[1] + s for s in range(6)]
        elif st[0] == "s":
            seq += [72 + 6 * ct + s for s in range(6) for ct in st[1:]]
    assert sorted(seq) == list(range(144))
    seq += list(range(NRING))
    ring = Ring(seq)
    ring.gate = lambda idx: ["~b2"] if idx >= 72 else []
    p.append(Inst("s_barrier", "other", defs=["~b1"], deadline=0))
    xrd = {}
    for f, (t, j) in enumerate(XSTAGED):
        for u in range(2):
            d = xr(xs, t, 2 * j + u)
            xrd[t, 2 * j + u] = Inst(f"ds_read_b128 {T('a', d, 4)}, v{V_R0[u]} offset:{2048 * f}", "dsr", defs=R('a', d, 4),
                                     uses=[f"v{V_R0[u]}", "~b1"])
    fill = ring.fill(["~b1"])
    first = sorted(xrd, key=lambda k: (k[0] != q, k[1], k[0]))
    nq = sum(k[0] == q for k in xrd)
    for k in range(6):
        ext(fill[2 * k:2 * k + 2])
        if k < nq:
            p.append(xrd[first[k]])
    ext(xrd[k] for k in first[nq:])
    for k in range(18):
        at = o.nl_rel + o.nl_step * k
        p.append(Inst(f"buffer_load_dwordx4 {T('v', V_NS + 4 * k, 4)}, v{V_NA + k // 3}, s[12:15], 0 offen offset:{1024 * (k % 3)} sc1", "vload",
                      defs=R('v', V_NS + 4 * k, 4), uses=[f"v{V_NA + k // 3}"], release=at, deadline=at + 48))
    nwr = []
    for k in range(18):
        w = Inst(f"ds_write_b128 v{V_NA + k // 3}, {T('v', V_NS + 4 * k, 4)} offset:{1024 * (k % 3)}", "dsw", defs=[f"~n{k}"],
                 uses=R('v', V_NS + 4 * k, 4) + [f"v{V_NA + k // 3}", "~b1"], release=o.nw_rel + o.nw_step * k)
        w.real, w.busy = 20, DSW_BUSY
        p.append(w)
        nwr.append(f"~n{k}")
    for ct in range(12):
        p.append(v3("v_mov_b32", f"v{vb(ct) + 7}", "0"))
    ext(xloads(0, S_LB, o.ld_flags, o.x0_rel - o.x0_step * o.n_early, o.x0_step)[o.n_early:])
    p.append(v3("v_lshrrev_b32", f"v{v_x8}", "1", f"v{V_LDS[0]}"))
    p.append(v3("v_add_u32", f"v{v_x8}", "0x20000", f"v{v_x8}"))

    def s_step(c):
        if q < 3:
            return [mfma("v", SB + 16 * q + 4 * kt, "a", xop(xs, kt, c), "v", TBF + 4 * (c & 1), c == 0) for kt in range(4)]
        return [mfma("v", SB + 48 + 4 * kt, "a", xop(xs, kt, c), "a", AT49 + 4 * c, c == 0) for kt in range(4)]

    for c in range(6):
        for s in range(6):
            for e in range(2):
                if ring.pos + NRING == 72:
                    p.append(Inst("s_waitcnt lgkmcnt(0)", "wait", defs=["~wN"], uses=nwr))
                    p.append(Inst("s_barrier", "other", defs=["~b2"], uses=["~wN"]))
                w, nxt = ring.take()
                p.append(mfma("v", F[0] + 8 * (c & 1) + 4 * e, "a", w, "a", AX49 + 4 * s, s == 0))
                if q < 3:
                    p.append(mfma("v", ACC + 8 * (c % 3) + 4 * e, "a", w, "a", xr(xs, q, s), s == 0))
                ext(nxt)
            if c and s == (2 if q < 3 else 4):
                ext(s_step(c - 1))
        for e in range(2):
            for h in range(2):
                if q < 3:
                    acc = ACC + 8 * (c % 3) + 4 * e
                    p.append(cvtpk(TBF + 4 * (c & 1) + 2 * e + h, acc + 2 * h, acc + 2 * h + 1))
        for e in range(2):
            for h in range(2):
                acc = F[0] + 8 * (c & 1) + 4 * e
                tmp = F[1] + 4 * (c & 1) + 2 * e + h
                p.append(cvtpk(tmp, acc + 2 * h, acc + 2 * h + 1))
                d = AT49 + 4 * c + 2 * e + h
                p.append(valu(f"v_accvgpr_write_b32 a{d}, v{tmp}", [f"a{d}"], [f"v{tmp}"]))
    a49 = iter([F[0] + 4 * (k % 4) for k in range(12)])
    oacc = iter([F[1], F[2], F[2] + 8, F[1] + 8, F[1], F[2]])
    wr = []
    done = []
    for k, st in enumerate(plan):
        if st[0] == "v":
            ct = st[1]
            a = next(a49)
            for s in range(6):
                w, nxt = ring.take()
                for t in range(3):
                    p.append(mfma("v", ACC + 12 * (ct & 1) + 4 * t, "a", xr(xs, t, s), "a", w, s == 0))
                p.append(mfma("v", a, "a", AX49 + 4 * s, "a", w, s == 0))
                ext(nxt)
                if k == 0 and s == o.tail_s:
                    ext(s_step(5))
                    ext(softmax(q, q & 1))
            ext(cvt_v(ct))
            p.append(cvtpk(vb(ct) + 6, a, a + 1))
            if ct in own:
                for va, off, h, n in ((V_LDS[2], 1024 * ct, 0, 4), (v_x8, 10240 + 512 * ct, 1, 2)):
                    w = Inst(f"ds_write_b{32 * n} v{va}, {T('v', vb(ct) + 4 * h, n)} offset:{st_imm + off}", "dsw", defs=[f"~x{ct}{h}"],
                             uses=R('v', vb(ct) + 4 * h, n) + [f"v{va}", "~b2"])
                    w.real, w.busy = 4 + 4 * n, DSW_BUSY
                    p.append(w)
                    wr.append(f"~x{ct}{h}")
        elif st[0] == "s":
            aa = [next(a49), next(a49)]
            for s in range(6):
                for a in aa:
                    w, nxt = ring.take()
                    p.append(mfma("v", a, "a", AX49 + 4 * s, "a", w, s == 0))
                    ext(nxt)
            for a, ct in zip(aa, st[1:]):
                p.append(cvtpk(vb(ct) + 6, a, a + 1))
        elif st[0] == "x":
            p.append(Inst("s_waitcnt lgkmcnt(0)", "wait", defs=["~wB"], uses=wr))
            p.append(Inst("s_barrier", "other", defs=["~b3"], uses=["~wB"]))
            for pr in [x[1] for x in plan if x[0] == "o"]:
                for ct in (2 * pr, 2 * pr + 1):
                    if ct in solo:
                        for va, off, h, n in ((V_LDS[2], 1024 * ct, 0, 4), (v_x8, 10240 + 512 * ct, 1, 2)):
                            p.append(Inst(f"ds_read_b{32 * n} {T('v', vb(ct) + 4 * h, n)}, v{va} offset:{st_imm + off}", "dsr",
                                          defs=R('v', vb(ct) + 4 * h, n), uses=[f"v{va}", "~b3"]))
        else:
            pr = st[1]
            a = next(oacc)
            ext(o_mf(q, pr, a))
            ext(o_pack(q, pr, a))
            done.append(pr)
            for part, grp2 in ((0, (0, 1, 2, 3)), (1, (4, 5))):
                if pr in grp2 and all(g in done for g in grp2):
                    ext(o_store(q, part, o.st_flags))
    p.append(salu("s_mov_b32 s10, 0", ["s10"], []))
    p.append(salu(f"s_mov_b32 s{S_SPB+2}, 0", [f"s{S_SPB+2}"], []))
    p.append(salu(f"s_mov_b32 s{S_CB}, s{S_LB}", [f"s{S_CB}"], [f"s{S_LB}"]))
    return p


def kind_offsets(a, g, regs):
    h, v, qq, ii, tmp = regs
    a(v3("v_mul_u32_u24", h, "0x180", g))
    a(v3("v_mul_lo_u32", v, g, "s39"))
    a(v3("v_lshrrev_b32", qq, "1", g))
    a(v3("v_mul_lo_u32", qq, qq, "s39"))
    a(v3("v_and_b32", ii, "1", g))
    a(v3("v_mul_u32_u24", ii, "0x180", ii))
    a(v3("v_add_u32", qq, qq, ii))
    for k in range(4):
        r, c = I_TOK[k]
        off = (r - 4) * ROWB + c * 384
        if k == 0:
            a(v3("v_mov_b32", ii, str(off)))
        else:
            a(valu(f"v_cmp_eq_u32 vcc, {k}, {g}", ["vcc"], [g]))
            a(v3("v_mov_b32", tmp, str(off)))
            a(valu(f"v_cndmask_b32 {ii}, {ii}, {tmp}, vcc", [ii], [ii, tmp, "vcc"]))


def gen_prologue(o):
    p = []
    a = p.append
    a(raw("s_cmp_lt_u32 s2, 256", "salu", ["scc"], ["s2"]))
    a(raw("s_cbranch_scc1 L_go"))
    a(raw("s_endpgm"))
    a(raw("L_go:", "label"))
    a(raw(f"s_load_dwordx8 s[{S_KA}:{S_KA+7}], s[0:1], 0"))
    a(raw(f"s_load_dwordx4 s[{S_KB}:{S_KB+3}], s[0:1], 32"))
    if o.diag:
        a(raw("s_memtime s[44:45]"))
        a(raw("s_memrealtime s[46:47]"))
    a(v3("v_and_b32", "v1", "63", "v0"))
    a(v3("v_lshrrev_b32", "v2", "6", "v0"))
    a(v3("v_and_b32", "v3", "15", "v1"))
    a(valu("v_readfirstlane_b32 s38, v2", ["s38"], ["v2"]))
    a(v3("v_lshrrev_b32", "v4", "4", "v1"))
    a(v3("v_lshlrev_b32", f"v{V_LDS[0]}", "4", "v1"))
    a(raw("s_getpc_b64 s[90:91]", "salu", ["s90", "s91"]))
    a(raw("L_here:", "label"))
    a(v3("v_lshlrev_b32", f"v{V_CT[0]}", "7", "v1"))
    a(salu(f"s_cmp_lg_u32 s38, {o.pw}", ["scc"], ["s38"]))
    a(raw("s_cbranch_scc1 L_np1"))
    a(salu("s_cmp_lt_u32 s2, 144", ["scc"], ["s2"]))
    a(raw("s_cbranch_scc1 L_p1"))
    a(salu("s_sub_u32 s3, s2, 144", ["s3", "scc"], ["s2"]))
    a(salu("s_lshr_b32 s3, s3, 3", ["s3", "scc"], ["s3"]))
    a(salu("s_lshl_b32 s3, s3, 13", ["s3", "scc"], ["s3"]))
    a(salu("s_min_u32 s3, s3, L_main_done-L_here-8064", ["s3", "scc"], ["s3"]))
    a(salu("s_add_u32 s20, s90, s3", ["s20", "scc"], ["s90", "s3"]))
    a(salu("s_addc_u32 s21, s91, 0", ["s21", "scc"], ["s91", "scc"]))
    if not o.notouch:
        a(Inst(f"global_load_dword v{V_CT[1]}, v{V_CT[0]}, s[20:21]", "vload", defs=[f"v{V_CT[1]}"], uses=[f"v{V_CT[0]}", "s20", "s21"]))
    a(raw("s_branch L_np1"))
    a(raw("L_p1:", "label"))
    p.extend(prod_load(o))
    a(raw("L_np1:", "label"))
    a(salu("s_lshl_b32 s16, s2, 2", ["s16", "scc"], ["s2"]))
    a(salu(f"s_mov_b32 s29, {MAGIC73}", ["s29"], []))
    a(salu(f"s_mov_b32 s31, {XBYTES}", ["s31"], []))
    a(salu("s_add_u32 s16, s16, s38", ["s16", "scc"], ["s16", "s38"]))
    a(salu(f"s_add_u32 s{S_TW}, s2, 5120", [f"s{S_TW}", "scc"], ["s2"]))
    a(v3("v_mov_b32", f"v{V_NINF}", "0xff800000"))
    a(v3("v_lshrrev_b32", "v10", "2", "v3"))
    a(v3("v_and_b32", "v11", "3", "v3"))
    a(v3("v_lshl_add_u32", "v8", "v11", "2", "v10"))
    a(v3("v_lshlrev_b32", "v5", "10", "v8"))
    a(v3("v_add_u32", "v5", "s16", "v5"))
    a(v3("v_mov_b32", "v9", f"s{S_TW}"))
    a(valu("v_cmp_eq_u32 vcc, 5, v8", ["vcc"], ["v8"]))
    a(valu("v_cndmask_b32 v5, v5, v9, vcc", ["v5"], ["v5", "v9", "vcc"]))
    a(v3("v_mul_hi_u32", "v6", "v5", "s29"))
    a(v3("v_mul_u32_u24", "v7", "73", "v6"))
    a(v3("v_sub_u32", "v7", "v5", "v7"))
    a(v3("v_mul_u32_u24", "v7", "0xa80", "v7"))
    a(salu(f"s_mov_b32 s43, {WINROW}", ["s43"], []))
    a(v3("v_mul_lo_u32", "v6", "v6", "s43"))
    a(v3("v_add_u32", "v6", "v6", "v7"))
    a(v3("v_lshl_add_u32", "v6", "v4", "4", "v6"))
    a(v3("v_add_u32", "v6", str(6 * ROWB + 6 * 384), "v6"))
    a(valu(f"v_cmp_gt_u32 vcc, {NWIN}, v5", ["vcc"], ["v5"]))
    a(valu(f"v_cndmask_b32 v14, v{V_NINF}, v6, vcc", ["v14"], [f"v{V_NINF}", "v6", "vcc"]))
    a(salu("s_lshr_b32 s40, s2, 3", ["s40", "scc"], ["s2"]))
    a(salu("s_mul_i32 s43, s38, 6", ["s43"], ["s38"]))
    a(salu("s_add_u32 s42, s40, s43", ["s42", "scc"], ["s40", "s43"]))
    for _ in range(2):
        a(salu("s_sub_u32 s43, s42, 24", ["s43", "scc"], ["s42"]))
        a(salu("s_cselect_b32 s42, s42, s43", ["s42"], ["scc", "s42", "s43"]))
    a(salu("s_mul_i32 s42, s42, 3072", ["s42"], ["s42"]))
    p.extend(win_base(S_LB, S_WCUR, 30))
    p.extend(win_base(S_CB, S_TW, 30))
    a(salu(f"s_mov_b32 s39, {ROWB}", ["s39"], []))
    kind_offsets(a, "v10", ("v5", "v6", "v7", "v8", "v9"))
    KO = {"H": "v5", "V": "v6", "Q": "v7", "I": "v8"}
    for i in range(1, 4):
        a(valu(f"v_cmp_eq_u32 s[{64 + 2 * i}:{65 + 2 * i}], {i}, v11", [f"s{64 + 2 * i}", f"s{65 + 2 * i}"], ["v11"]))
    a(v3("v_lshlrev_b32", "v12", "4", "v4"))
    a(v3("v_mul_lo_u32", "v13", "v11", "s39"))
    a(v3("v_add3_u32", f"v{V_F[0]}", "v13", "v5", "v12"))
    for t in (1, 2):
        f = f"v{V_F[t]}"
        for i in range(4):
            kind, pp = STRIPS[4 * t + i]
            base = {"H": pp * ROWB, "V": pp * 384, "Q": 4 * ROWB + 4 * 384, "I": 4 * ROWB}[kind]
            a(v3("v_add_u32", f if i == 0 else "v9", str(base), KO[kind]))
            if i:
                a(cnd(f, f, "v9", 64 + 2 * i))
        a(v3("v_add_u32", f, f, "v12"))
    for w in range(1, 4):
        a(valu(f"v_cmp_eq_u32 s[{64 + 2 * w}:{65 + 2 * w}], {w}, v2", [f"s{64 + 2 * w}", f"s{65 + 2 * w}"], ["v2"]))
    a(cnd("v15", f"v{V_F[0]}", f"v{V_F[1]}", 66))
    a(cnd("v15", "v15", f"v{V_F[2]}", 68))
    a(v3("v_add_u32", "v16", "0x80", "v15"))
    a(v3("v_add_u32", "v9", "0x100", f"v{V_F[1]}"))
    a(cnd("v15", "v15", "v9", 70))
    a(v3("v_add_u32", "v9", "0x100", f"v{V_F[2]}"))
    a(cnd("v16", "v16", "v9", 70))
    a(v3("v_lshrrev_b32", "v5", "1", "v1"))
    a(v3("v_and_b32", "v5", "28", "v5"))
    for c in range(2):
        for hf in range(2):
            a(Inst(f"ds_bpermute_b32 v{17 + 2 * c + hf}, v5, v{15 + c} offset:{32 * hf}", "dsr", defs=[f"v{17 + 2 * c + hf}"], uses=["v5", f"v{15 + c}"]))
    a(v3("v_and_b32", "v12", "7", "v1"))
    a(v3("v_xor_b32", "v12", "v12", "v4"))
    a(v3("v_lshlrev_b32", "v12", "4", "v12"))
    a(v3("v_xor_b32", "v13", "64", "v12"))
    a(salu("s_lshl_b32 s41, s38, 12", ["s41", "scc"], ["s38"]))
    a(salu(f"s_add_u32 s41, s41, {STAGE}", ["s41", "scc"], ["s41"]))
    a(salu(f"s_cmp_lt_u32 s{S_TW}, {NWIN}", ["scc"], [f"s{S_TW}"]))
    a(salu("s_cselect_b32 s30, s31, 0", ["s30"], ["scc", "s31"]))
    a(raw("s_waitcnt lgkmcnt(0)", "wait"))
    if o.diag:
        a(v3("v_mov_b32", f"v{V_TIME}", "s44"))
        a(valu(f"v_writelane_b32 v{V_TIME}, s46, 62", [f"v{V_TIME}"], ["s46"]))
    if o.pstamp:
        p.extend(stamp3(55))
    def x_small():
        srd(a, S_XS, S_KA, "s30")
        for i in range(4):
            a(v3("v_add_u32", f"v{17 + i}", f"v{17 + i}", ("v12", "v13")[i & 1]))
        for i in range(4):
            a(salu(f"s_add_u32 m0, s41, {1024 * i}", ["m0", "scc"], ["s41"]))
            a(Inst(f"buffer_load_dwordx4 v{17 + i}, s[{S_XS}:{S_XS+3}], s{S_CB} offen lds", "ldsdma", uses=[f"v{17 + i}", f"s{S_CB}", "m0"]))
        srd(a, 4, S_KA, "s31")
        for s in (4, 5):
            a(xload(1, 0, s, S_CB, sr=S_XS))
        for s in range(6):
            a(Inst(f"buffer_load_dwordx4 {T('a', AX49 + 4 * s, 4)}, v14, s[4:7], 0 offen offset:{64 * s}", "vload",
                   defs=R('a', AX49 + 4 * s, 4), uses=["v14"]))

    def w_load(bank, reg, addr, off):
        for g in range(6):
            if g:
                a(salu("s_add_u32 s42, s42, 3072", ["s42", "scc"], ["s42"]))
                a(salu(f"s_cmp_eq_u32 s42, {off + NBASE}", ["scc"], ["s42"]))
                a(salu(f"s_cselect_b32 s42, {off}, s42", ["s42"], ["scc", "s42"]))
            for k in range(3):
                d = reg + 4 * (3 * g + k)
                a(Inst(f"buffer_load_dwordx4 {T(bank, d, 4)}, v{V_LDS[0]}, s[12:15], s42 offen offset:{1024 * k} sc1", "vload",
                       defs=R(bank, d, 4), uses=[f"v{V_LDS[0]}", "s42"]))
            a(v3("v_add_u32", f"v{addr + g}", "s42", f"v{V_LDS[0]}"))

    warm(o, a, 1)
    a(salu(f"s_cmp_lg_u32 s38, {o.pw}", ["scc"], ["s38"]))
    a(salu("s_cselect_b32 s27, 144, s2", ["s27"], ["scc", "s2"]))
    a(salu("s_cmp_lt_u32 s27, 144", ["scc"], ["s27"]))
    a(raw("s_cbranch_scc1 L_nw"))
    warm(o, a, 2)
    a(raw("L_nw:", "label"))
    nw = 0 if o.nowarm else 2

    def producers(lab, code):
        a(salu(f"s_cmp_lg_u32 s38, {o.pw}", ["scc"], ["s38"]))
        a(raw(f"s_cbranch_scc1 {lab}"))
        a(salu("s_cmp_ge_u32 s2, 144", ["scc"], ["s2"]))
        a(raw(f"s_cbranch_scc1 {lab}"))
        p.extend(code)
        a(raw(f"{lab}:", "label"))
    if o.order == "sx":
        producers("L_np2", prod_store(o, nw))
        x_small()
        producers("L_np3", prod_signal(o))
    elif o.order == "ssx":
        producers("L_np2", prod_store(o, nw) + (stamp3(52) if o.pstamp else []) + prod_signal(o))
        if o.quiet:
            a(salu(f"s_cmp_ge_u32 s2, {o.quiet}", ["scc"], ["s2"]))
            a(raw("s_cbranch_scc1 L_nq"))
            a(raw("s_barrier"))
            a(raw("L_nq:", "label"))
        x_small()
    else:
        x_small()
        producers("L_np2", prod_store(o, 12 + nw) + prod_signal(o))
    if o.pstamp:
        p.extend(stamp3(56))
    if o.early_after:
        a(raw("s_waitcnt vmcnt(0)", "wait"))
    p.extend(xloads(0, S_LB, o.ld_flags)[:o.n_early])
    a(v3("v_lshrrev_b32", "v5", "1", "v3"))
    a(v3("v_xor_b32", "v5", "v5", "v4"))
    a(v3("v_lshlrev_b32", "v5", "4", "v5"))
    a(v3("v_lshl_add_u32", "v5", "v3", "7", "v5"))
    a(v3("v_add_u32", f"v{V_R0[0]}", str(STAGE), "v5"))
    a(v3("v_xor_b32", f"v{V_R0[1]}", "64", f"v{V_R0[0]}"))
    a(v3("v_add_u32", f"v{V_LDS[1]}", "0x10000", f"v{V_LDS[0]}"))
    a(v3("v_add_u32", f"v{V_LDS[2]}", "0x20000", f"v{V_LDS[0]}"))
    srd(a, 8, S_KA + 6, "0" if o.nostore else "s30")
    srd(a, S_SPA, S_KA + 6, "0")
    srd(a, S_SPB, S_KA + 6, "0" if o.nostore else "s30")
    V_N16, V_N8 = 15, 16
    a(v3("v_lshlrev_b32", f"v{V_N16}", "4", "v3"))
    a(v3("v_lshlrev_b32", f"v{V_N8}", "3", "v3"))
    kind_offsets(a, "v4", ("v5", "v6", "v7", "v8", "v9"))
    for kind, src in KO.items():
        a(v3("v_add_u32", f"v{V_ST[kind][0]}", src, f"v{V_N16}"))
        a(v3("v_add_u32", f"v{V_ST[kind][1]}", src, f"v{V_N8}"))
    for q in (1, 2):
        a(valu(f"v_accvgpr_write_b32 a{AP[q] + 7}, 0", [f"a{AP[q] + 7}"], []))
    for r, val in ((S_M0, "0"), (S_M0 + 1, "0"), (S_M1, "0xffff0000"), (S_M1 + 1, "0"), (S_SH, "16"), (S_GO, "384"), (S_K, "0"),
                   (40, "0xffff"), (41, "0")):
        a(salu(f"s_mov_b32 s{r}, {val}", [f"s{r}"], []))
    a(cnd(f"v{V_SP[0]}", f"v{V_NINF}", f"v{V_ST['H'][0]}", S_M1))
    a(cnd(f"v{V_SP[1]}", f"v{V_NINF}", f"v{V_ST['H'][1]}", S_M1))
    p.extend(row_bases())
    if o.ct:
        for k, ex in enumerate(CT):
            a(salu(f"s_add_u32 s{84 + 2 * k}, s90, {ex}-L_here", [f"s{84 + 2 * k}", "scc"], ["s90"]))
            a(salu(f"s_addc_u32 s{85 + 2 * k}, s91, 0", [f"s{85 + 2 * k}", "scc"], ["s91", "scc"]))
    if o.diag:
        a(salu(f"s_mov_b32 s{S_IT}, 1", [f"s{S_IT}"], []))
        a(salu("s_mov_b32 s72, 10", ["s72"], []))
    a(raw("s_getreg_b32 s3, hwreg(HW_REG_XCC_ID, 0, 4)", "salu", ["s3"]))
    a(salu("s_lshr_b32 s27, s2, 3", ["s27", "scc"], ["s2"]))
    a(salu(f"s_lshl_b32 s27, 1, s27", ["s27", "scc"], ["s27"]))
    a(salu(f"s_and_b32 s27, s27, {sum(1 << int(g) for g in o.leaders.split(','))}", ["s27", "scc"], ["s27"]))
    a(salu("s_cselect_b32 s36, 0, 255", ["s36"], ["scc"]))
    a(salu("s_mov_b32 s37, 0x4000", ["s37"], []))
    a(v3("v_and_b32", "v27", "1", "v1"))
    a(v3("v_lshlrev_b32", "v27", "6", "v27"))
    if o.diag:
        a(valu(f"v_writelane_b32 v{V_TIME}, s3, 43", [f"v{V_TIME}"], ["s3"]))
    a(salu("s_lshl_b32 s3, s3, 3", ["s3", "scc"], ["s3"]))
    a(salu("s_add_u32 s3, s3, 128", ["s3", "scc"], ["s3"]))
    a(v3("v_mov_b32", "v29", "1"))
    D = f"s[{S_DBG}:{S_DBG+3}]"

    def poll(lab, goff, loff):
        a(raw(f"{lab}:", "label"))
        a(salu("s_sub_u32 s37, s37, 1", ["s37", "scc"], ["s37"]))
        a(raw(f"s_cbranch_scc1 {lab}_x"))
        a(salu("s_and_b32 s27, s36, s37", ["s27", "scc"], ["s36", "s37"]))
        a(raw(f"s_cbranch_scc0 {lab}_g"))
        a(Inst(f"buffer_load_dword v28, off, {D}, s3 offset:{loff} {o.lflag}", "vload", defs=["v28"], uses=["s3"]))
        a(raw("s_waitcnt vmcnt(0)", "wait"))
        a(valu("v_cmp_eq_u32 vcc, 0, v28", ["vcc"], ["v28"]))
        a(raw("s_nop 1", "nop"))
        a(raw(f"s_cbranch_vccnz {lab}"))
        a(raw(f"s_branch {lab}_x"))
        a(raw(f"{lab}_g:", "label"))
        a(v3("v_mov_b32", "v28", "0"))
        a(salu("s_mov_b64 exec, 3", ["exec"], []))
        a(Inst(f"buffer_atomic_add v28, v27, {D}, 0 offen offset:{goff} sc0 sc1", "vload", defs=["v28"], uses=["v27", "v28"]))
        a(raw("s_waitcnt vmcnt(0)", "wait"))
        a(valu("v_cmp_gt_u32 vcc, 36, v28", ["vcc"], ["v28"]))
        a(salu("s_mov_b64 exec, -1", ["exec"], []))
        a(raw("s_nop 0", "nop"))
        a(raw(f"s_cbranch_vccnz {lab}"))
        a(Inst(f"buffer_store_dword v29, off, {D}, s3 offset:{loff}", "vstore", uses=["v29", "s3"]))
        a(raw(f"{lab}_x:", "label"))
    a(salu(f"s_cmp_lg_u32 s38, {o.lw}", ["scc"], ["s38"]))
    a(raw("s_cbranch_scc1 L_pm_y"))
    for k in range(0, o.psleep, 127):
        a(raw(f"s_sleep {min(127, o.psleep - k)}"))
    if o.pstamp:
        p.extend(stamp3(57))
    poll("L_pm", 0, 0)
    if o.pstamp:
        p.extend(stamp3(58))
        a(valu(f"v_writelane_b32 v{V_TIME}, s37, 54", [f"v{V_TIME}"], ["s37"]))
    a(raw("L_pm_y:", "label"))
    a(salu("s_add_u32 s27, s36, s38", ["s27", "scc"], ["s36", "s38"]))
    a(salu(f"s_cmp_eq_u32 s27, {o.lw}", ["scc"], ["s27"]))
    a(salu(f"s_cselect_b32 s27, {CNT_N}, 0x1000", ["s27"], ["scc"]))
    a(salu("s_cselect_b32 s36, 0, 255", ["s36"], ["scc"]))
    a(raw("s_barrier"))
    if o.pstamp:
        p.extend(stamp3(59))
    a(v3("v_mov_b32", "v28", "0"))
    a(salu("s_mov_b64 exec, 3", ["exec"], []))
    a(Inst(f"buffer_atomic_add v28, v27, {D}, s27 offen sc0 sc1", "vload", defs=["v28"], uses=["s27", "v27", "v28"]))
    a(salu("s_mov_b64 exec, -1", ["exec"], []))
    MB = ("v", V_NS) if o.n_early else ("a", 0)
    w_load(MB[0], MB[1], 21, 0)
    for g in range(6):
        a(v3("v_add_u32", f"v{V_NA + g}", str(NBASE), f"v{21 + g}"))
    a(salu("s_mov_b64 exec, 3", ["exec"], []))
    a(raw("s_waitcnt vmcnt(18)", "wait"))
    a(valu("v_cmp_gt_u32 vcc, 36, v28", ["vcc"], ["v28"]))
    a(salu("s_mov_b64 exec, -1", ["exec"], []))
    a(raw("s_nop 0", "nop"))
    a(raw("s_cbranch_vccnz L_nn"))
    a(Inst(f"buffer_store_dword v29, off, {D}, s3 offset:4", "vstore", uses=["v29", "s3"]))
    a(raw("L_nn:", "label"))
    for k in range(18):
        a(raw(f"s_waitcnt vmcnt({17 - k + (k > o.nlook)})", "wait"))
        if o.pstamp and k == 0:
            p.extend(stamp3(60))
        a(Inst(f"ds_write_b128 v{21 + k // 3}, {T(MB[0], MB[1] + 4 * k, 4)} offset:{1024 * (k % 3)}", "dsw", uses=R(MB[0], MB[1] + 4 * k, 4) + [f"v{21 + k // 3}"]))
        if k == o.nlook:
            a(Inst(f"buffer_load_dword v28, off, {D}, s3 offset:4 {o.lflag}", "vload", defs=["v28"], uses=["s3"]))
    a(raw("s_waitcnt vmcnt(0)", "wait"))
    a(valu("v_cmp_ne_u32 vcc, 0, v28", ["vcc"], ["v28"]))
    a(raw("s_nop 1", "nop"))
    a(raw("s_cbranch_vccnz L_pn_x"))
    poll("L_pn", CNT_N, 4)
    if o.pstamp:
        a(valu(f"v_writelane_b32 v{V_TIME}, s37, 53", [f"v{V_TIME}"], ["s37"]))
    for q in range(3):
        a(salu(f"s_cmp_eq_u32 s38, {q}", ["scc"], ["s38"]))
        a(raw(f"s_cbranch_scc1 L_sh{q}"))
    return p


def stamp3(lane):
    return [raw("s_memtime s[44:45]"), raw("s_waitcnt lgkmcnt(0)", "wait"),
            valu(f"v_writelane_b32 v{V_TIME}, s44, {lane}", [f"v{V_TIME}"], ["s44"])]


def stamp():
    return [raw("s_memtime s[44:45]"), raw("s_memrealtime s[46:47]"), salu(f"s_mov_b32 m0, s{S_IT}", ["m0"], [f"s{S_IT}"]), raw("s_waitcnt lgkmcnt(0)", "wait"),
            valu(f"v_writelane_b32 v{V_TIME}, s44, m0", [f"v{V_TIME}"], ["s44", "m0"]),
            salu(f"s_add_u32 m0, s{S_IT}, 43", ["m0", "scc"], [f"s{S_IT}"]),
            valu(f"v_writelane_b32 v{V_TIME}, s46, m0", [f"v{V_TIME}"], ["s46", "m0"]),
            salu(f"s_add_u32 s{S_IT}, s{S_IT}, 1", [f"s{S_IT}", "scc"], [f"s{S_IT}"])]


def stamp2():
    return [raw("s_memtime s[44:45]"), salu("s_mov_b32 m0, s72", ["m0"], ["s72"]), raw("s_waitcnt lgkmcnt(0)", "wait"),
            valu(f"v_writelane_b32 v{V_TIME}, s44, m0", [f"v{V_TIME}"], ["s44", "m0"]),
            salu("s_add_u32 s72, s72, 1", ["s72", "~scc"], ["s72"])]


def add_stamps(body, pts):
    out = []
    k = 0
    for i in body:
        if i.kind == "mfma":
            if k in pts:
                st = stamp2()
                st[-1] = raw("s_addk_i32 s72, 1", "salu", ["s72"], ["s72"])
                out.extend(st)
            k += 1
        out.append(i)
    return out


def texts(l):
    return [i.text for i in l]


def gen_main(o):
    pro = insert_nops(gen_prologue(o))
    pts = [int(x) for x in o.pts.split(",")] if o.pts else None

    def build(prog):
        body, cyc = schedule2(prog, verbose=o.verbose, urgent=o.urgent)
        if not o.verbose:
            print("; model cycles", cyc)
        return body, cyc

    def waits(body, cyc, pre):
        return insert_waits(body, pre=pre, early_lgkm=(o.early, cyc) if o.early else 0,
                            early_vm=(o.early_vm, cyc) if o.early_vm else 0)

    head = lambda: stamp() if o.diag else []
    shared = []
    for q in range(4):
        t, c = build(gen_shared(o, q))
        if o.tpts:
            t = add_stamps(t, [int(x) for x in o.tpts.split(",")])
        t = [raw("s_waitcnt vmcnt(0) lgkmcnt(0)", "wait")] + (stamp3(61) if o.pstamp else []) + t
        last = max(k for k, i in enumerate(t) if i.kind == "vload")
        nst = sum(i.kind == "vstore" for i in t[last:])
        t += [raw(f"s_waitcnt vmcnt({nst}) lgkmcnt(0)", "wait")]
        t = insert_waits(t, pre=pro, early_lgkm=(o.early, 1 << 30))
        shared.append(insert_nops(t, pre=[pro]))
    bodies = []
    for xs in range(2):
        body, cyc = build(gen_body(o, xs))
        if pts:
            body = add_stamps(body, pts)
        tail = [salu(f"s_cmp_eq_u32 s{S_K}, 5", ["scc"], [f"s{S_K}"]), raw("s_cbranch_scc1 L_epi")] if xs == 0 else [raw("s_branch L_b0")]
        bodies.append(head() + body + tail)
    w = [waits(bodies[0], cyc, []), None]
    for it in range(3):
        w[1] = waits(bodies[1], cyc, w[0])
        w[0] = waits(bodies[0], cyc, w[1])
    w = [hoist_waits(x) for x in w]
    n = [insert_nops(w[0], pre=shared), None]
    for it in range(3):
        n[1] = insert_nops(w[1], pre=[n[0]])
        n[0] = insert_nops(w[0], pre=shared + [n[1]])
    for i in w[0]:
        i.time = None
    epi = insert_nops(insert_waits(head() + build(gen_epi(o))[0], pre=w[0]), pre=[n[0]])
    print('; replay', model_time(n[1]), model_time(n[0]))
    fin = []
    if o.diag:
        fin += stamp()
        fin += [raw("s_waitcnt vmcnt(0)", "wait")] + stamp()
        fin += [raw("s_memrealtime s[46:47]"), raw("s_waitcnt lgkmcnt(0)", "wait"),
                valu(f"v_writelane_b32 v{V_TIME}, s46, 63", [f"v{V_TIME}"], ["s46"])]
        fin += [v3("v_lshrrev_b32", "v0", "2", f"v{V_LDS[0]}"),
                salu("s_lshl_b32 s42, s2, 2", ["s42", "scc"], ["s2"]),
                salu("s_add_u32 s42, s42, s38", ["s42", "scc"], ["s42", "s38"]),
                salu("s_lshl_b32 s42, s42, 8", ["s42", "scc"], ["s42"]),
                salu(f"s_add_u32 s42, s42, {WS_TIME_OFF}", ["s42", "scc"], ["s42"]),
                Inst(f"buffer_store_dword v{V_TIME}, v0, s[12:15], s42 offen", "vstore", uses=[f"v{V_TIME}", "v0", "s42"])]
        fin = insert_nops(fin)
    stats = {}
    for i in n[0]:
        stats[i.kind] = stats.get(i.kind, 0) + 1
    print("; body stats", stats, file=sys.stderr)
    out = emit(pro) + "\n" + emit(shared[3]) + "\n    s_branch L_b0\n"
    for q in range(3):
        out += f".p2align 6\nL_sh{q}:\n" + emit(shared[q]) + "\n"
        if q < 2:
            out += "    s_branch L_b0\n"
    out += "L_b0:\n" + emit(n[0]) + "\nL_b1:\n" + emit(n[1]) + "\n.p2align 6\nL_epi:\n"
    return out + emit(epi) + "\n" + emit(fin) + "\nL_main_done:\n    s_endpgm\n"


def merge_waits(x, y):
    def split(l):
        out, cur = [], {}
        for i in l:
            if i.kind == "wait" and not i.defs and not i.uses:
                for nm, v in re.findall(r"(vmcnt|lgkmcnt)\((\d+)\)", i.text):
                    cur[nm] = min(cur.get(nm, 99), int(v))
            else:
                out.append((cur, i))
                cur = {}
        return out
    a, b = split(x), split(y)
    assert [i.text for _, i in a] == [i.text for _, i in b]
    out = []
    for (wa, i), (wb, _) in zip(a, b):
        m = {k: min(wa.get(k, 99), wb.get(k, 99)) for k in set(wa) | set(wb)}
        if m:
            w = Inst("s_waitcnt " + " ".join(f"{k}({m[k]})" for k in ("vmcnt", "lgkmcnt") if k in m), "wait")
            w.time = i.time
            out.append(w)
        out.append(i)
    return out


def emit(insts):
    out = []
    for i in insts:
        out.append(i.text if i.kind == "label" else "    " + i.text)
    return "\n".join(out)


HEADER = """; Swin window attention: folded projections (M = a*Wq*Wk^T, N = Wv*Wo), one wave per window.
; @launch grid=(256,1,1) block=(256,1,1) lds=163840
.amdgcn_target "amdgcn-amd-amdhsa--gfx950"
.text
"""

KD = """.amdhsa_kernel {k}
  .amdhsa_next_free_vgpr {nv}
  .amdhsa_next_free_sgpr {ns}
  .amdhsa_accum_offset {ao}
  .amdhsa_group_segment_fixed_size 0
  .amdhsa_kernarg_size 48
  .amdhsa_user_sgpr_count 2
  .amdhsa_user_sgpr_kernarg_segment_ptr 1
  .amdhsa_system_sgpr_workgroup_id_x 1
.end_amdhsa_kernel
"""


def main():
    ap = argparse.ArgumentParser()
    ap.add_argument("-o", default="cdna_kernels/" + NAME + ".s")
    ap.add_argument("--diag", action="store_true")
    ap.add_argument("--pts", default="")
    ap.add_argument("--rm", default="")
    ap.add_argument("--ct", type=int, default=8000)
    ap.add_argument("--tpts", default="")
    ap.add_argument("--early", type=int, default=230)
    ap.add_argument("--early_vm", type=int, default=0)
    ap.add_argument("--ld_rel", type=int, default=300)
    ap.add_argument("--ld_step", type=int, default=400)
    ap.add_argument("--tail_s", type=int, default=1)
    ap.add_argument("--order", default="sx")
    ap.add_argument("--nl_rel", type=int, default=0)
    ap.add_argument("--nl_step", type=int, default=64)
    ap.add_argument("--nw_rel", type=int, default=800)
    ap.add_argument("--nw_step", type=int, default=64)
    ap.add_argument("--x0_rel", type=int, default=1200)
    ap.add_argument("--x0_step", type=int, default=200)
    ap.add_argument("--pw", type=int, default=3)
    ap.add_argument("--lw", type=int, default=0)
    ap.add_argument("--n_early", type=int, default=0)
    ap.add_argument("--psleep", type=int, default=0)
    ap.add_argument("--leaders", default="18")
    ap.add_argument("--own", type=int, default=0)
    ap.add_argument("--quiet", type=int, default=0)
    ap.add_argument("--nlook", type=int, default=11)
    ap.add_argument("--lflag", default="nt")
    ap.add_argument("--defer", default="12")
    ap.add_argument("--after", default="5,6,7,8,10")
    ap.add_argument("--urgent", type=int, default=0)
    ap.add_argument("--touch_rep", type=int, default=1)
    ap.add_argument("--ld_grp", type=int, default=2)
    ap.add_argument("--q2p0", default="5400,500")
    ap.add_argument("--q2p1", default="7400,350")
    ap.add_argument("--dsw_busy", type=int, default=40)
    ap.add_argument("--st_busy", type=int, default=150)
    ap.add_argument("--ld_flags", default="")
    ap.add_argument("--st_flags", default="")
    ap.add_argument("--st_flags0")
    ap.add_argument("--st_flags1")
    ap.add_argument("--drop", default="")
    for f in ("noload", "nostore", "pstamp", "verbose", "notouch", "nowarm", "early_after"):
        ap.add_argument("--" + f, action="store_true")
    o = ap.parse_args()
    o.defer = [int(c) for c in o.defer]
    if o.ld_flags:
        o.ld_flags = " " + o.ld_flags
    if o.st_flags:
        o.st_flags = " " + o.st_flags
    global DSW_BUSY, ST_BUSY, LD_GRP
    DROP.extend(int(c) for c in o.drop)
    for k, f in enumerate((o.st_flags0, o.st_flags1)):
        if f is not None:
            PFLAGS[k] = " " + f if f else ""
    DSW_BUSY, ST_BUSY, LD_GRP = o.dsw_busy, o.st_busy, o.ld_grp
    old = sys.stdout
    sys.stdout = sys.stderr
    main_text = gen_main(o)
    sys.stdout = old
    s = HEADER.format(name=NAME)
    k = NAME + "_kernel"
    s += f".globl {k}\n.p2align 12\n.type {k},@function\n{k}:\n"
    s += main_text
    s += '.section .rodata,"a"\n.p2align 6\n'
    s += KD.format(k=k, nv=512, ns=102, ao=256)
    open(o.o, "w").write(s)


if __name__ == "__main__":
    main()
```

```python
import sys, math, struct, argparse, re
from asmlib import *

NAME = "standalone__swin_window_attn__vision"
NWIN = 5329
XBYTES = 100270464
ROWB = 196224
WINROW = 7 * ROWB
MAGIC73 = (1 << 32) // 73 + 1
for w in range(0, 16384):
    assert (w * MAGIC73) >> 32 == w // 73
ALPHA = (192 ** -0.5) * math.log2(math.e)
WS_TIME_OFF = 1 << 20
STAGE = 147456


def f32bits(x):
    return struct.unpack("<I", struct.pack("<f", x))[0]


def mfma(bd, d, ba, a, bb, b, first):
    c = "0" if first else T(bd, d, 4)
    D = R(bd, d, 4)
    AB = R(ba, a, 4) + R(bb, b, 4)
    return Inst(f"v_mfma_f32_16x16x32_bf16 {T(bd, d, 4)}, {T(ba, a, 4)}, {T(bb, b, 4)}, {c}", "mfma",
                defs=D, uses=AB + ([] if first else D), srcC=([] if first else D), srcAB=AB, passes=4)


def valu(text, defs, uses, kind="valu", **kw):
    return Inst(text, kind, defs=defs, uses=uses, **kw)


def cvtpk(d, a, b, **kw):
    bt = f"v{b}" if b is not None else "0"
    return valu(f"v_cvt_pk_bf16_f32 v{d}, v{a}, {bt}", [f"v{d}"], [f"v{a}"] + ([f"v{b}"] if b is not None else []), **kw)


def salu(text, defs, uses, **kw):
    return Inst(text, "salu", defs=defs, uses=uses, **kw)


def raw(text, kind="other", defs=(), uses=()):
    return Inst(text, kind, defs=defs, uses=uses)


def v3(op, d, *srcs, **kw):
    uses = [s for s in srcs if isinstance(s, str) and (is_vreg(s) or is_sreg(s))]
    return valu(f"{op} {d}, " + ", ".join(str(s) for s in srcs), [d], uses, **kw)


def cnd(d, a, b, m):
    return valu(f"v_cndmask_b32 {d}, {a}, {b}, s[{m}:{m+1}]", [d], [a, b, f"s{m}", f"s{m+1}"])


def srd(a, dst, src, nb):
    a(salu(f"s_mov_b32 s{dst}, s{src}", [f"s{dst}"], [f"s{src}"]))
    a(salu(f"s_and_b32 s{dst+1}, s{src+1}, 0xffff", [f"s{dst+1}", "scc"], [f"s{src+1}"]))
    a(salu(f"s_mov_b32 s{dst+2}, {nb}", [f"s{dst+2}"], []))
    a(salu(f"s_mov_b32 s{dst+3}, 0x20000", [f"s{dst+3}"], []))


STRIPS = [("H", r) for r in range(7)] + [("V", 4), ("V", 5), ("V", 6), ("Q", 0), ("I", 0)]
I_TOK = [(4, 6), (5, 6), (6, 4), (6, 5)]


def token(t, n):
    g, i = n >> 2, n & 3
    kind, p = STRIPS[4 * t + i]
    if kind == "H":
        return p, g
    if kind == "V":
        return g, p
    if kind == "Q":
        return 4 + (g >> 1), 4 + (g & 1)
    return I_TOK[g]


assert sorted(token(t, n) for t in range(3) for n in range(16)) + [(6, 6)] == [(r, c) for r in range(7) for c in range(7)]


P_A, P_B, P_C, P_O, P_U = 128, 176, 200, 208, 32
S_KA = 92
S_KB = 32
S_DBG = 80
S_PSC, S_PSO = 100, 101


def prod_load(o):
    p = []
    a = p.append
    a(salu("s_cmp_ge_u32 s2, 72", ["scc"], ["s2"]))
    a(salu("s_cselect_b32 s20, 1, 0", ["s20"], ["scc"]))
    a(salu("s_mul_i32 s21, s20, 72", ["s21"], ["s20"]))
    a(salu("s_sub_u32 s21, s2, s21", ["s21", "scc"], ["s2", "s21"]))
    a(salu("s_mul_i32 s22, s21, 43", ["s22"], ["s21"]))
    a(salu("s_lshr_b32 s22, s22, 8", ["s22", "scc"], ["s22"]))
    for r in range(72):
        assert (r * 43) >> 8 == r // 6
    a(salu("s_mul_i32 s23, s22, 6", ["s23"], ["s22"]))
    a(salu("s_sub_u32 s23, s21, s23", ["s23", "scc"], ["s21", "s23"]))
    a(v3("v_lshrrev_b32", "v5", "2", "v3"))
    a(v3("v_and_b32", "v6", "3", "v3"))
    a(v3("v_lshl_add_u32", "v5", "v5", "3", "v6"))
    a(v3("v_mul_u32_u24", "v5", "0x480", "v5"))
    a(v3("v_lshl_add_u32", "v5", "v4", "4", "v5"))
    a(salu("s_mul_i32 s25, s23, 36864", ["s25"], ["s23"]))
    a(salu("s_mul_i32 s26, s20, 768", ["s26"], ["s20"]))
    a(salu("s_add_u32 s25, s25, s26", ["s25", "scc"], ["s25", "s26"]))
    a(salu("s_add_u32 s24, s25, 4608", ["s24", "scc"], ["s25"]))
    a(salu("s_lshr_b32 s26, s22, 1", ["s26", "scc"], ["s22"]))
    a(salu("s_mul_i32 s26, s26, 36864", ["s26"], ["s26"]))
    a(salu("s_and_b32 s27, s22, 1", ["s27", "scc"], ["s22"]))
    a(salu("s_mul_i32 s27, s27, 4608", ["s27"], ["s27"]))
    a(salu("s_add_u32 s26, s26, s27", ["s26", "scc"], ["s26", "s27"]))
    a(salu("s_add_u32 s26, s26, 384", ["s26", "scc"], ["s26"]))
    a(salu(f"s_lshl_b32 s{S_PSO}, s2, 10", [f"s{S_PSO}", "scc"], ["s2"]))
    a(raw("s_waitcnt lgkmcnt(0)", "wait"))
    srd(a, 56, S_KA + 2, 192 * 576 * 2)

    def a_loads():
        for k in range(6):
            for h in range(2):
                d = P_A + 24 * h + 4 * k
                a(Inst(f"buffer_load_dwordx4 {T('v', d, 4)}, v5, s[56:59], s{(25, 24)[h]} offen offset:{64 * k}", "vload",
                       defs=R('v', d, 4), uses=["v5", "s25", "s24"]))
    a(salu("s_cmp_eq_u32 s20, 1", ["scc"], ["s20"]))
    a(raw("s_cbranch_scc1 L_prod_n"))
    for k in range(6):
        a(Inst(f"buffer_load_dwordx4 {T('v', P_B + 4 * k, 4)}, v5, s[56:59], s26 offen offset:{64 * k}", "vload",
               defs=R('v', P_B + 4 * k, 4), uses=["v5", "s26"]))
    a(salu(f"s_mov_b32 s{S_PSC}, 0x{f32bits(ALPHA):08x}", [f"s{S_PSC}"], []))
    a(raw("s_branch L_prod_a"))
    a(raw("L_prod_n:", "label"))
    srd(a, 60, S_KA + 4, 192 * 192 * 2)
    a(salu("s_cmp_lt_u32 s22, 8", ["scc"], ["s22"]))
    a(salu("s_cselect_b32 s26, 3, 2", ["s26"], ["scc"]))
    a(salu("s_cselect_b32 s27, 0, 120", ["s27"], ["scc"]))
    a(salu("s_add_u32 s27, s27, s22", ["s27", "scc"], ["s27", "s22"]))
    a(v3("v_lshlrev_b32", "v6", "s26", "v3"))
    a(v3("v_add_u32", "v6", "s27", "v6"))
    a(v3("v_lshlrev_b32", "v6", "1", "v6"))
    a(v3("v_mul_u32_u24", "v7", "0xc00", "v4"))
    a(v3("v_add_u32", "v6", "v6", "v7"))
    for k in range(6):
        a(salu(f"s_mov_b32 s27, {k * 12288}", ["s27"], []))
        for j in range(8):
            r = P_U + 8 * k + j
            a(Inst(f"buffer_load_ushort v{r}, v6, s[60:63], s27 offen offset:{384 * j}", "vload",
                   defs=[f"v{r}"], uses=["v6", "s27"]))
    a(salu(f"s_mov_b32 s{S_PSC}, 1.0", [f"s{S_PSC}"], []))
    a(raw("L_prod_a:", "label"))
    a_loads()
    warm(o, a, 3, True)
    return p


def warm(o, a, part=3, own=False):
    if part & 1:
        srd(a, 12, S_KB + 2, "151552" if not o.diag else str(WS_TIME_OFF + 1024 * 256))
        srd(a, S_DBG, S_KB, "256")
    if part & 2 and not o.nowarm:
        a(salu("s_mov_b32 s27, 149504", ["s27"], []))
        if own and o.own == 1:
            a(Inst(f"buffer_load_dwordx4 {T('v', P_O, 4)}, v{V_LDS[0]}, s[12:15], s{S_PSO} offen sc1", "vload", defs=R('v', P_O, 4)))
        elif own and o.own == 2:
            a(Inst(f"buffer_store_dwordx4 {T('v', P_O, 4)}, v{V_LDS[0]}, s[12:15], s{S_PSO} offen sc1", "vstore", uses=R('v', P_O, 4)))
        else:
            a(Inst("buffer_load_dword v30, off, s[12:15], s27", "vload", defs=["v30"], uses=["s27"]))
        a(Inst(f"buffer_load_dword v31, off, s[{S_DBG}:{S_DBG+3}], 0 offset:128 nt", "vload", defs=["v31"]))


def prod_store(o, behind):
    p = []
    a = p.append
    a(raw(f"s_waitcnt vmcnt({behind})", "wait"))
    if o.pstamp:
        p.extend(stamp3(57))
    a(salu("s_cmp_lt_u32 s2, 72", ["scc"], ["s2"]))
    a(raw("s_cbranch_scc1 L_prod_mm"))
    for r in range(24):
        a(v3("v_lshl_or_b32", f"v{P_B + r}", f"v{P_U + 2 * r + 1}", "16", f"v{P_U + 2 * r}"))
    a(raw("L_prod_mm:", "label"))
    for k in range(6):
        for h in range(2):
            a(mfma("v", P_C + 4 * h, "v", P_A + 24 * h + 4 * k, "v", P_B + 4 * k, k == 0))
    for r in range(8):
        a(v3("v_mul_f32", f"v{P_C + r}", f"s{S_PSC}", f"v{P_C + r}"))
    for r in range(4):
        a(cvtpk(P_O + r, P_C + 2 * r, P_C + 2 * r + 1))
    a(Inst(f"buffer_store_dwordx4 {T('v', P_O, 4)}, v{V_LDS[0]}, s[12:15], s{S_PSO} offen sc1", "vstore",
           uses=R('v', P_O, 4) + [f"v{V_LDS[0]}"], wide=True))
    return p


def prod_signal(o):
    p = []
    a = p.append
    a(salu("s_cmp_lt_u32 s2, 72", ["scc"], ["s2"]))
    a(salu(f"s_cselect_b32 s27, 0, {CNT_N}", ["s27"], ["scc"]))
    a(salu("s_lshr_b32 s26, s2, 3", ["s26", "scc"], ["s2"]))
    a(salu("s_xor_b32 s26, s26, s2", ["s26", "scc"], ["s2", "s26"]))
    a(salu("s_and_b32 s26, s26, 1", ["s26", "scc"], ["s26"]))
    a(salu("s_lshl_b32 s26, s26, 6", ["s26", "scc"], ["s26"]))
    a(salu("s_add_u32 s27, s27, s26", ["s27", "scc"], ["s26", "s27"]))
    for lo in (0, 72):
        assert sum(((w >> 3) ^ w) & 1 for w in range(lo, lo + 72)) == 36
    a(v3("v_mov_b32", f"v{P_C}", "1"))
    a(salu("s_mov_b64 exec, 1", ["exec"], []))
    a(raw("s_waitcnt vmcnt(0)", "wait"))
    a(Inst(f"buffer_atomic_add v{P_C}, off, s[{S_DBG}:{S_DBG+3}], s27 sc1", "vstore", uses=[f"v{P_C}", "s27"]))
    a(salu("s_mov_b64 exec, -1", ["exec"], []))
    if o.pstamp:
        p.extend(stamp3(58))
    return p


CNT_N = 4
XS = [0, 72]
AX49, AT49, AW = 144, 168, 192
NRING = 12
SB = 0
ACC = 64
TBF = 88
OPA = 100
VBF = 124
V_LDS = [220, 221, 222]
V_F = [223, 224, 225]
V_ST = {"H": (232, 233), "V": (234, 235), "Q": (236, 237), "I": (238, 239)}
V_SP = (240, 241)
V_CT = (242, 243)
AP = {1: 240, 2: 248}
V_Q3 = 250
S_TW = 73
S_XS = 76
NBASE = 73728
DSW_BUSY, ST_BUSY, LD_GRP = 40, 40, 1
DROP, PFLAGS = [], [None, None]
V_NINF = 244
V_TMP = [[245, 246, 247, 248, 249], [250, 251, 252, 253, 254]]
V_TIME = 255
S_WCUR, S_LB, S_CB, S_K, S_ROW = 16, 17, 18, 19, 20
S_IT = 28
S_M0, S_M1, S_GM, S_SH, S_SPO, S_GO = 48, 50, 52, 54, 55, 74
S_SPA, S_SPB = 56, 60


def xr(xs, t, s):
    return XS[xs] + 24 * t + 4 * s


def xop(xs, t, s):
    return AX49 + 4 * s if t == 3 else xr(xs, t, s)


def lds_at(idx):
    base, imm = divmod((idx % 144) * 1024, 65536)
    return V_LDS[base], imm


def wfrag_read(idx, slot=None, extra=(), **kw):
    va, imm = lds_at(idx)
    d = AW + 4 * (idx % NRING if slot is None else slot)
    return Inst(f"ds_read_b128 {T('a', d, 4)}, v{va} offset:{imm}", "dsr", defs=R('a', d, 4),
                uses=[f"v{va}"] + list(extra), **kw)


class Ring:
    def __init__(self, seq, have=None):
        self.seq = seq
        self.slot = [have[i] for i in seq[:NRING]] if have else list(range(NRING))
        self.pos = 0
        self.gate = lambda idx: []

    def fill(self, extra=()):
        return [wfrag_read(i, self.slot[p], extra) for p, i in enumerate(self.seq[:NRING])]

    def take(self):
        p = self.pos
        self.pos += 1
        sl = self.slot[p]
        self.slot.append(sl)
        nxt = [wfrag_read(self.seq[p + NRING], sl, self.gate(self.seq[p + NRING]))] if p + NRING < len(self.seq) else []
        return AW + 4 * sl, nxt


def xload(xs, t, s, sbase, flags="", sr=4, **kw):
    d = xr(xs, t, s)
    return Inst(f"buffer_load_dwordx4 {T('a', d, 4)}, v{V_F[t]}, s[{sr}:{sr+3}], s{sbase} offen offset:{64 * s}" + flags,
                "vload", defs=R('a', d, 4), uses=[f"v{V_F[t]}", f"s{sbase}", f"s{sr+2}"], **kw)


def xloads(xs, sbase, flags, rel=None, step=0):
    out = []
    k = 0
    for j in range(3):
        for t in range(3):
            for u in range(2):
                kw = {}
                if rel is not None:
                    at = rel + step * (k - k % LD_GRP) + 16 * (k % LD_GRP)
                    kw = dict(release=at, deadline=at + 48)
                out.append(xload(xs, t, 2 * j + u, sbase, flags, **kw))
                k += 1
    return out


def vb(ct):
    return VBF + 8 * ct


def opk(q, i, part):
    if q == 3:
        return TBF + 4 * i if part == 0 else V_Q3 + 2 * i
    return OPA + 4 * i if part == 0 else OPA + 16 + 2 * i


def o_mf(q, pr, acc=None, held=False):
    acc = SB + 16 * q + 8 if acc is None else acc
    bank, pb = ("a", AP[q]) if held else ("v", SB + 16 * q)
    out = []
    for ks in range(2):
        for e in range(2):
            out.append(mfma("v", acc + 4 * e, bank, pb + 4 * ks, "v", vb(2 * pr + e) + 4 * ks, ks == 0))
    return out


def o_pack(q, pr, acc=None):
    acc = SB + 16 * q + 8 if acc is None else acc
    out = []
    for i in range(2 if q == 3 else 4):
        d = opk(q, i, 0) + pr if pr < 4 else opk(q, i, 1) + pr - 4
        out.append(cvtpk(d, acc + i, acc + 4 + i))
    return out


def o_store(q, part, flags="", rel=None, step=0):
    out = []
    n = (4, 2)[part]
    for i in range(2 if q == 3 else 4):
        d = opk(q, i, part)
        if q == 3:
            vo, row, imm, sr = V_SP[part], None, 0, (S_SPA, S_SPB)[i]
        else:
            kind, pp = STRIPS[4 * q + i]
            vo, sr = V_ST[kind][part], 8
            row, imm = {"H": (pp, 0), "V": (0, pp * 384), "Q": (4, 4 * 384), "I": (4, 0)}[kind]
        so = f"s{S_SPO}" if row is None else f"s{S_ROW + row}"
        if part in DROP and q != 3:
            sr = 80
        if PFLAGS[part] is not None:
            flags = PFLAGS[part]
        out.append(Inst(f"buffer_store_dwordx{n} {T('v', d, n)}, v{vo}, s[{sr}:{sr+3}], {so} offen offset:{imm + 256 * part}{flags}",
                        "vstore", uses=R('v', d, n) + [f"v{vo}", so, f"s{sr+2}"], wide=(n == 4)))
        out[-1].cost, out[-1].real, out[-1].busy = 8, 4 + 4 * n, ST_BUSY
        if rel is not None:
            out[-1].release = rel + step * i
    return out


def xlane(op, m0, m1):
    p = []
    for sw in ("v_permlane32_swap_b32", "v_permlane16_swap_b32"):
        p.append(v3("v_mov_b32", f"v{m1}", f"v{m0}"))
        p.append(valu(f"{sw} v{m0}, v{m1}", [f"v{m0}", f"v{m1}"], [f"v{m0}", f"v{m1}"], kind="perm"))
        p.append(v3(op, f"v{m0}", f"v{m0}", f"v{m1}"))
    return p


def softmax(q, tset, part=3, hold=False):
    b = SB + 16 * q
    m0, m1, s0, s1, rr = V_TMP[tset]
    p = []
    p.append(cnd(f"v{b + 12}", f"v{V_NINF}", f"v{b + 12}", S_M0))
    p.append(cnd(f"v{b + 12}", f"v{b + 12}", f"v{b + 13}", S_M1))
    regs = [b + r for r in range(13)]
    m3 = lambda d, x, y, z: v3("v_max3_f32", f"v{d}", f"v{x}", f"v{y}", f"v{z}")
    p.append(m3(m0, regs[0], regs[1], regs[2]))
    p.append(m3(m1, regs[3], regs[4], regs[5]))
    p.append(m3(m0, m0, regs[6], regs[7]))
    p.append(m3(m1, m1, regs[8], regs[9]))
    p.append(m3(m0, m0, regs[10], regs[11]))
    p.append(m3(m0, m0, m1, regs[12]))
    p.extend(xlane("v_max_f32", m0, m1))
    for r in regs:
        p.append(v3("v_sub_f32", f"v{r}", f"v{r}", f"v{m0}"))
        p.append(valu(f"v_exp_f32 v{r}, v{r}", [f"v{r}"], [f"v{r}"], kind="trans"))
    p.append(v3("v_add_f32", f"v{s0}", f"v{regs[0]}", f"v{regs[1]}"))
    p.append(v3("v_add_f32", f"v{s1}", f"v{regs[2]}", f"v{regs[3]}"))
    for k in range(4, 13):
        s = (s0, s1)[k & 1]
        p.append(v3("v_add_f32", f"v{s}", f"v{s}", f"v{regs[k]}"))
    p.append(v3("v_add_f32", f"v{s0}", f"v{s0}", f"v{s1}"))
    p.extend(xlane("v_add_f32", s0, s1))
    p.append(valu(f"v_rcp_f32 v{rr}, v{s0}", [f"v{rr}"], [f"v{s0}"], kind="trans"))
    if part == 1:
        return p
    if part == 2:
        p = []
    for k in range(0, 12, 2):
        p.append(v3("v_mul_f32", f"v{regs[k]}", f"v{regs[k]}", f"v{rr}"))
        p.append(v3("v_mul_f32", f"v{regs[k + 1]}", f"v{regs[k + 1]}", f"v{rr}"))
        p.append(cvtpk(b + k // 2, regs[k], regs[k + 1]))
    p.append(v3("v_mul_f32", f"v{regs[12]}", f"v{regs[12]}", f"v{rr}"))
    p.append(cvtpk(b + 6, regs[12], None))
    p.append(v3("v_lshlrev_b32", f"v{b + 6}", f"s{S_SH}", f"v{b + 6}"))
    if not hold:
        p.append(v3("v_mov_b32", f"v{b + 7}", "0"))
    return p


def p_hold(q):
    return [valu(f"v_accvgpr_write_b32 a{AP[q] + r}, v{SB + 16 * q + r}", [f"a{AP[q] + r}"], [f"v{SB + 16 * q + r}"])
            for r in range(7)]


def win_base(dst, w, tmp):
    return [
        salu(f"s_mul_hi_u32 s{tmp}, s{w}, s29", [f"s{tmp}"], [f"s{w}", "s29"]),
        salu(f"s_mul_i32 s{dst}, s{tmp}, 73", [f"s{dst}"], [f"s{tmp}"]),
        salu(f"s_sub_u32 s{dst}, s{w}, s{dst}", [f"s{dst}", "scc"], [f"s{w}", f"s{dst}"]),
        salu(f"s_mul_i32 s{dst}, s{dst}, 2688", [f"s{dst}"], [f"s{dst}"]),
        salu(f"s_mul_i32 s{tmp}, s{tmp}, {WINROW}", [f"s{tmp}"], [f"s{tmp}"]),
        salu(f"s_add_u32 s{dst}, s{dst}, s{tmp}", [f"s{dst}", "scc"], [f"s{dst}", f"s{tmp}"]),
    ]


def row_bases(o=None):
    out = [] if o is None or o.nostore else [salu("s_mov_b32 s10, s31", ["s10"], ["s31"])]
    out += [salu(f"s_mov_b32 s{S_ROW}, s{S_CB}", [f"s{S_ROW}"], [f"s{S_CB}"])]
    for r in range(1, 7):
        out.append(salu(f"s_add_u32 s{S_ROW + r}, s{S_CB}, {r * ROWB}", [f"s{S_ROW + r}", "scc"], [f"s{S_CB}"]))
    out.append(salu(f"s_sub_u32 s{S_SPO}, s{S_ROW + 6}, s{S_GO}", [f"s{S_SPO}", "scc"], [f"s{S_ROW + 6}", f"s{S_GO}"]))
    out.append(salu(f"s_add_u32 s{S_SPO}, s{S_SPO}, {6 * 384}", [f"s{S_SPO}", "scc"], [f"s{S_SPO}"]))
    return out


def slot_masks():
    k = S_K
    return [
        salu(f"s_and_b32 s30, s{k}, 3", ["s30", "scc"], [f"s{k}"]),
        salu(f"s_mul_i32 s{S_GO}, s30, 384", [f"s{S_GO}"], ["s30"]),
        salu("s_lshl_b32 s30, s30, 4", ["s30", "scc"], ["s30"]),
        salu(f"s_lshl_b64 s[{S_GM}:{S_GM+1}], s[40:41], s30", [f"s{S_GM}", f"s{S_GM+1}", "scc"], ["s40", "s41", "s30"]),
        salu(f"s_cmp_lt_u32 s{k}, 4", ["scc"], [f"s{k}"]),
        salu(f"s_cselect_b64 s[{S_M0}:{S_M0+1}], s[{S_GM}:{S_GM+1}], 0", [f"s{S_M0}", f"s{S_M0+1}"], ["scc", f"s{S_GM}", f"s{S_GM+1}"]),
        salu(f"s_cselect_b64 s[{S_M1}:{S_M1+1}], 0, s[{S_GM}:{S_GM+1}]", [f"s{S_M1}", f"s{S_M1+1}"], ["scc", f"s{S_GM}", f"s{S_GM+1}"]),
        salu(f"s_cselect_b32 s{S_SH}, 0, 16", [f"s{S_SH}"], ["scc"]),
        salu(f"s_cselect_b32 s{S_SPA+2}, s31, 0", [f"s{S_SPA+2}"], ["scc", "s31"]),
        salu(f"s_cselect_b32 s{S_SPB+2}, 0, s31", [f"s{S_SPB+2}"], ["scc", "s31"]),
        salu(f"s_add_u32 s{k}, s{k}, 1", [f"s{k}", "scc"], [f"s{k}"]),
        cnd(f"v{V_SP[0]}", f"v{V_NINF}", f"v{V_ST['H'][0]}", S_GM),
        cnd(f"v{V_SP[1]}", f"v{V_NINF}", f"v{V_ST['H'][1]}", S_GM),
    ]


def carry_head(o):
    p = cvt_v(11)
    for q in (1, 2):
        if q in o.defer:
            p += softmax(q, q & 1, 2, True)
        p += p_hold(q)
    return p


def carry_30(o):
    p = o_mf(3, 5) + o_mf(0, 5) + o_pack(3, 5) + o_pack(0, 5)
    return p + o_store(3, 1, o.st_flags) + o_store(0, 1, o.st_flags)


def carry_grp(o, g, acc, pace=False):
    q, pr = 1 + g // 6, g % 6
    p = o_mf(q, pr, acc, True) + o_pack(q, pr, acc)
    if pr in (3, 5):
        rel, step = None, 0
        if pace and q == 2:
            rel, step = [int(x) for x in (o.q2p0, o.q2p1)[pr >> 2].split(",")]
        p += o_store(q, pr >> 2, o.st_flags, rel, step)
    return p


def cvt_v(ct):
    out = []
    for t in range(3):
        acc = ACC + 12 * (ct & 1) + 4 * t
        for h in range(2):
            out.append(cvtpk(vb(ct) + 2 * t + h, acc + 2 * h, acc + 2 * h + 1))
    return out


def s3(xs):
    return [mfma("v", SB + 48 + 4 * kt, "a", xop(xs, kt, s), "a", AT49 + 4 * s, s == 0)
            for s in range(6) for kt in range(4)]


CT = ["L_b1", "L_b1+8192", "L_main_done-8064"]


def code_touch(k, rel):
    b = 84 + 2 * k
    return [Inst(f"global_load_dword v{V_CT[1]}, v{V_CT[0]}, s[{b}:{b+1}]", "vload", defs=["~ct"], uses=[f"v{V_CT[0]}"],
                 release=rel, deadline=rel + 48, tag="pf")]


def gen_body(o, xs):
    p = []
    ext = p.extend
    NM = 624
    if o.ct and xs == 0:
        for k in range(3):
            ext(code_touch(k, o.ct + 200 * k))
    p.append(salu(f"s_add_u32 s{S_WCUR}, s{S_WCUR}, 1024", [f"s{S_WCUR}", "scc"], [f"s{S_WCUR}"], deadline=0))
    ext(win_base(S_LB, S_WCUR, 27))
    if xs == 0:
        p.append(salu(f"s_cmp_lt_u32 s{S_K}, 4", ["scc"], [f"s{S_K}"]))
        p.append(salu(f"s_cselect_b32 s6, {'0' if o.noload else 's31'}, 0", ["s6"], ["scc", "s31"]))
    ext(xloads(xs ^ 1, S_LB, o.ld_flags, o.ld_rel, o.ld_step))
    ext(carry_head(o))

    def chain(mat, ct):
        out = []
        for s in range(6):
            idx = 72 * mat + 6 * ct + s
            w = AW + 4 * (idx % NRING)
            for t in range(3):
                acc = ACC + 12 * (ct & 1) + 4 * t
                if mat == 0:
                    out.append(mfma("v", acc, "a", w, "a", xr(xs, t, s), s == 0))
                else:
                    out.append(mfma("v", acc, "a", xr(xs, t, s), "a", w, s == 0))
            kw = {}
            if idx + NRING >= 144:
                kw = dict(deadline=NM * 16 + 48 * (idx + NRING - 144) - 220)
            out.append(wfrag_read(idx + NRING, **kw))
        return out

    def cvt_t(ct):
        out = []
        for t in range(3):
            acc = ACC + 12 * (ct & 1) + 4 * t
            for h in range(2):
                out.append(cvtpk(TBF + 4 * t + 2 * (ct & 1) + h, acc + 2 * h, acc + 2 * h + 1))
        return out

    def s_mf(sp):
        return [mfma("v", SB + 16 * q + 4 * kt, "a", xop(xs, kt, sp), "v", TBF + 4 * q, sp == 0)
                for q in range(3) for kt in range(4)]

    def o_grp(pr):
        out = o_mf(3, pr) + o_mf(0, pr) + o_pack(3, pr) + o_pack(0, pr)
        if pr == 3:
            out += o_store(3, 0, o.st_flags) + o_store(0, 0, o.st_flags)
        return out

    grp = iter(range(12))

    def carried():
        return carry_grp(o, next(grp), SB + 56, True)

    ext(chain(0, 0))
    ext(carry_30(o))
    ext(slot_masks())
    ext(cvt_t(0))
    ext(chain(0, 1))
    ext(s3(xs))
    ext(softmax(3, 1))
    ext(cvt_t(1))
    for ct in range(2, 12):
        ext(chain(0, ct))
        if ct >= 4 and ct % 2 == 0:
            ext(carried())
        if ct % 2 == 0:
            ext(s_mf(ct // 2 - 1))
        ext(cvt_t(ct))
        if ct >= 4:
            ext(carried())
    ext(row_bases(o if xs == 0 else None))
    p.append(salu(f"s_mov_b32 s{S_CB}, s{S_LB}", [f"s{S_CB}"], [f"s{S_LB}"]))
    ext(chain(1, 0))
    ext(s_mf(5))
    for q in range(3):
        ext(softmax(q, q & 1, 1 if q in o.defer else 3, q > 0))
    ext(cvt_v(0))
    after = dict(zip([int(x) for x in o.after.split(",")], range(5)))
    for ct in range(1, 12):
        ext(chain(1, ct))
        if ct in after:
            ext(o_grp(after[ct]))
        if ct < 11:
            ext(cvt_v(ct))
    assert sum(i.kind == "mfma" for i in p) == NM
    for i in p:
        if i.kind != "mfma" and i.deadline is None and i.kind != "dsr":
            i.deadline = NM * 16 - 24
    for k in o.rm.split(","):
        if k == "ring":
            p = [i for i in p if i.kind != "dsr"]
        elif k:
            p = [i for i in p if i.kind != k]
    return p


def gen_epi(o):
    p = carry_head(o)
    for g in range(3):
        p += carry_grp(o, g, SB + 16 + 8 * (g % 4))
    p += carry_30(o)
    for g in range(3, 12):
        p += carry_grp(o, g, SB + 16 + 8 * (g % 4))
    return p


XSTAGED = [(0, 0), (0, 1), (1, 0), (1, 1), (2, 0), (2, 1), (1, 2), (2, 2)]
V_R0 = (226, 227)
V_NA = OPA
V_NS = VBF


def gen_shared(o, q):
    xs = 1
    p = []
    ext = p.extend
    own = [2 * q, 2 * q + 1] if q < 3 else [6, 7, 8, 9]
    solo = [ct for ct in range(10) if ct not in own]
    F = [SB + 16 * a for a in range(4) if a != q]
    v_x8 = V_TMP[(q & 1) ^ 1][0]
    st_imm = STAGE - 0x20000
    plan = [("v", ct) for ct in own]
    if q == 3:
        plan += [("s", solo[0], solo[1]), ("s", solo[2], solo[3]), ("x",), ("v", 10), ("o", 3), ("o", 4), ("s", solo[4], solo[5]),
                 ("o", 0), ("o", 1), ("v", 11), ("o", 2), ("o", 5)]
        assert solo == [0, 1, 2, 3, 4, 5]
    else:
        oth = [pr for pr in range(5) if pr != q]
        plan += [("x",), ("s", solo[0], solo[1]), ("s", solo[2], solo[3]), ("v", 10), ("o", q), ("o", oth[0]), ("s", solo[4], solo[5]),
                 ("o", oth[1]), ("s", solo[6], solo[7]), ("o", oth[2]), ("v", 11), ("o", oth[3]), ("o", 5)]
    seq = [6 * (2 * c + e) + s for c in range(6) for s in range(6) for e in range(2)]
    for st in plan:
        if st[0] == "v":
            seq += [72 + 6 * st[1] + s for s in range(6)]
        elif st[0] == "s":
            seq += [72 + 6 * ct + s for s in range(6) for ct in st[1:]]
    assert sorted(seq) == list(range(144))
    seq += list(range(NRING))
    ring = Ring(seq)
    ring.gate = lambda idx: ["~b2"] if idx >= 72 else []
    p.append(Inst("s_barrier", "other", defs=["~b1"], deadline=0))
    xrd = {}
    for f, (t, j) in enumerate(XSTAGED):
        for u in range(2):
            d = xr(xs, t, 2 * j + u)
            xrd[t, 2 * j + u] = Inst(f"ds_read_b128 {T('a', d, 4)}, v{V_R0[u]} offset:{2048 * f}", "dsr", defs=R('a', d, 4),
                                     uses=[f"v{V_R0[u]}", "~b1"])
    fill = ring.fill(["~b1"])
    first = sorted(xrd, key=lambda k: (k[0] != q, k[1], k[0]))
    nq = sum(k[0] == q for k in xrd)
    for k in range(6):
        ext(fill[2 * k:2 * k + 2])
        if k < nq:
            p.append(xrd[first[k]])
    ext(xrd[k] for k in first[nq:])
    for k in range(18):
        at = o.nl_rel + o.nl_step * k
        p.append(Inst(f"buffer_load_dwordx4 {T('v', V_NS + 4 * k, 4)}, v{V_NA + k // 3}, s[12:15], 0 offen offset:{1024 * (k % 3)} sc1", "vload",
                      defs=R('v', V_NS + 4 * k, 4), uses=[f"v{V_NA + k // 3}"], release=at, deadline=at + 48))
    nwr = []
    for k in range(18):
        w = Inst(f"ds_write_b128 v{V_NA + k // 3}, {T('v', V_NS + 4 * k, 4)} offset:{1024 * (k % 3)}", "dsw", defs=[f"~n{k}"],
                 uses=R('v', V_NS + 4 * k, 4) + [f"v{V_NA + k // 3}", "~b1"], release=o.nw_rel + o.nw_step * k)
        w.real, w.busy = 20, DSW_BUSY
        p.append(w)
        nwr.append(f"~n{k}")
    for ct in range(12):
        p.append(v3("v_mov_b32", f"v{vb(ct) + 7}", "0"))
    ext(xloads(0, S_LB, o.ld_flags, o.x0_rel - o.x0_step * o.n_early, o.x0_step)[o.n_early:])
    p.append(v3("v_lshrrev_b32", f"v{v_x8}", "1", f"v{V_LDS[0]}"))
    p.append(v3("v_add_u32", f"v{v_x8}", "0x20000", f"v{v_x8}"))

    def s_step(c):
        if q < 3:
            return [mfma("v", SB + 16 * q + 4 * kt, "a", xop(xs, kt, c), "v", TBF + 4 * (c & 1), c == 0) for kt in range(4)]
        return [mfma("v", SB + 48 + 4 * kt, "a", xop(xs, kt, c), "a", AT49 + 4 * c, c == 0) for kt in range(4)]

    for c in range(6):
        for s in range(6):
            for e in range(2):
                if ring.pos + NRING == 72:
                    p.append(Inst("s_waitcnt lgkmcnt(0)", "wait", defs=["~wN"], uses=nwr))
                    p.append(Inst("s_barrier", "other", defs=["~b2"], uses=["~wN"]))
                w, nxt = ring.take()
                p.append(mfma("v", F[0] + 8 * (c & 1) + 4 * e, "a", w, "a", AX49 + 4 * s, s == 0))
                if q < 3:
                    p.append(mfma("v", ACC + 8 * (c % 3) + 4 * e, "a", w, "a", xr(xs, q, s), s == 0))
                ext(nxt)
            if c and s == (2 if q < 3 else 4):
                ext(s_step(c - 1))
        for e in range(2):
            for h in range(2):
                if q < 3:
                    acc = ACC + 8 * (c % 3) + 4 * e
                    p.append(cvtpk(TBF + 4 * (c & 1) + 2 * e + h, acc + 2 * h, acc + 2 * h + 1))
        for e in range(2):
            for h in range(2):
                acc = F[0] + 8 * (c & 1) + 4 * e
                tmp = F[1] + 4 * (c & 1) + 2 * e + h
                p.append(cvtpk(tmp, acc + 2 * h, acc + 2 * h + 1))
                d = AT49 + 4 * c + 2 * e + h
                p.append(valu(f"v_accvgpr_write_b32 a{d}, v{tmp}", [f"a{d}"], [f"v{tmp}"]))
    a49 = iter([F[0] + 4 * (k % 4) for k in range(12)])
    oacc = iter([F[1], F[2], F[2] + 8, F[1] + 8, F[1], F[2]])
    wr = []
    done = []
    for k, st in enumerate(plan):
        if st[0] == "v":
            ct = st[1]
            a = next(a49)
            for s in range(6):
                w, nxt = ring.take()
                for t in range(3):
                    p.append(mfma("v", ACC + 12 * (ct & 1) + 4 * t, "a", xr(xs, t, s), "a", w, s == 0))
                p.append(mfma("v", a, "a", AX49 + 4 * s, "a", w, s == 0))
                ext(nxt)
                if k == 0 and s == o.tail_s:
                    ext(s_step(5))
                    ext(softmax(q, q & 1))
            ext(cvt_v(ct))
            p.append(cvtpk(vb(ct) + 6, a, a + 1))
            if ct in own:
                for va, off, h, n in ((V_LDS[2], 1024 * ct, 0, 4), (v_x8, 10240 + 512 * ct, 1, 2)):
                    w = Inst(f"ds_write_b{32 * n} v{va}, {T('v', vb(ct) + 4 * h, n)} offset:{st_imm + off}", "dsw", defs=[f"~x{ct}{h}"],
                             uses=R('v', vb(ct) + 4 * h, n) + [f"v{va}", "~b2"])
                    w.real, w.busy = 4 + 4 * n, DSW_BUSY
                    p.append(w)
                    wr.append(f"~x{ct}{h}")
        elif st[0] == "s":
            aa = [next(a49), next(a49)]
            for s in range(6):
                for a in aa:
                    w, nxt = ring.take()
                    p.append(mfma("v", a, "a", AX49 + 4 * s, "a", w, s == 0))
                    ext(nxt)
            for a, ct in zip(aa, st[1:]):
                p.append(cvtpk(vb(ct) + 6, a, a + 1))
        elif st[0] == "x":
            p.append(Inst("s_waitcnt lgkmcnt(0)", "wait", defs=["~wB"], uses=wr))
            p.append(Inst("s_barrier", "other", defs=["~b3"], uses=["~wB"]))
            for pr in [x[1] for x in plan if x[0] == "o"]:
                for ct in (2 * pr, 2 * pr + 1):
                    if ct in solo:
                        for va, off, h, n in ((V_LDS[2], 1024 * ct, 0, 4), (v_x8, 10240 + 512 * ct, 1, 2)):
                            p.append(Inst(f"ds_read_b{32 * n} {T('v', vb(ct) + 4 * h, n)}, v{va} offset:{st_imm + off}", "dsr",
                                          defs=R('v', vb(ct) + 4 * h, n), uses=[f"v{va}", "~b3"]))
        else:
            pr = st[1]
            a = next(oacc)
            ext(o_mf(q, pr, a))
            ext(o_pack(q, pr, a))
            done.append(pr)
            for part, grp2 in ((0, (0, 1, 2, 3)), (1, (4, 5))):
                if pr in grp2 and all(g in done for g in grp2):
                    ext(o_store(q, part, o.st_flags))
    p.append(salu("s_mov_b32 s10, 0", ["s10"], []))
    p.append(salu(f"s_mov_b32 s{S_SPB+2}, 0", [f"s{S_SPB+2}"], []))
    p.append(salu(f"s_mov_b32 s{S_CB}, s{S_LB}", [f"s{S_CB}"], [f"s{S_LB}"]))
    return p


def kind_offsets(a, g, regs):
    h, v, qq, ii, tmp = regs
    a(v3("v_mul_u32_u24", h, "0x180", g))
    a(v3("v_mul_lo_u32", v, g, "s39"))
    a(v3("v_lshrrev_b32", qq, "1", g))
    a(v3("v_mul_lo_u32", qq, qq, "s39"))
    a(v3("v_and_b32", ii, "1", g))
    a(v3("v_mul_u32_u24", ii, "0x180", ii))
    a(v3("v_add_u32", qq, qq, ii))
    for k in range(4):
        r, c = I_TOK[k]
        off = (r - 4) * ROWB + c * 384
        if k == 0:
            a(v3("v_mov_b32", ii, str(off)))
        else:
            a(valu(f"v_cmp_eq_u32 vcc, {k}, {g}", ["vcc"], [g]))
            a(v3("v_mov_b32", tmp, str(off)))
            a(valu(f"v_cndmask_b32 {ii}, {ii}, {tmp}, vcc", [ii], [ii, tmp, "vcc"]))


def gen_prologue(o):
    p = []
    a = p.append
    a(raw("s_cmp_lt_u32 s2, 256", "salu", ["scc"], ["s2"]))
    a(raw("s_cbranch_scc1 L_go"))
    a(raw("s_endpgm"))
    a(raw("L_go:", "label"))
    a(raw(f"s_load_dwordx8 s[{S_KA}:{S_KA+7}], s[0:1], 0"))
    a(raw(f"s_load_dwordx4 s[{S_KB}:{S_KB+3}], s[0:1], 32"))
    if o.diag:
        a(raw("s_memtime s[44:45]"))
        a(raw("s_memrealtime s[46:47]"))
    a(v3("v_and_b32", "v1", "63", "v0"))
    a(v3("v_lshrrev_b32", "v2", "6", "v0"))
    a(v3("v_and_b32", "v3", "15", "v1"))
    a(valu("v_readfirstlane_b32 s38, v2", ["s38"], ["v2"]))
    a(v3("v_lshrrev_b32", "v4", "4", "v1"))
    a(v3("v_lshlrev_b32", f"v{V_LDS[0]}", "4", "v1"))
    a(raw("s_getpc_b64 s[90:91]", "salu", ["s90", "s91"]))
    a(raw("L_here:", "label"))
    a(v3("v_lshlrev_b32", f"v{V_CT[0]}", "7", "v1"))
    a(salu(f"s_cmp_lg_u32 s38, {o.pw}", ["scc"], ["s38"]))
    a(raw("s_cbranch_scc1 L_np1"))
    a(salu("s_cmp_lt_u32 s2, 144", ["scc"], ["s2"]))
    a(raw("s_cbranch_scc1 L_p1"))
    a(salu("s_sub_u32 s3, s2, 144", ["s3", "scc"], ["s2"]))
    a(salu("s_lshr_b32 s3, s3, 3", ["s3", "scc"], ["s3"]))
    a(salu("s_lshl_b32 s3, s3, 13", ["s3", "scc"], ["s3"]))
    a(salu("s_min_u32 s3, s3, L_main_done-L_here-8064", ["s3", "scc"], ["s3"]))
    a(salu("s_add_u32 s20, s90, s3", ["s20", "scc"], ["s90", "s3"]))
    a(salu("s_addc_u32 s21, s91, 0", ["s21", "scc"], ["s91", "scc"]))
    if not o.notouch:
        a(Inst(f"global_load_dword v{V_CT[1]}, v{V_CT[0]}, s[20:21]", "vload", defs=[f"v{V_CT[1]}"], uses=[f"v{V_CT[0]}", "s20", "s21"]))
    a(raw("s_branch L_np1"))
    a(raw("L_p1:", "label"))
    p.extend(prod_load(o))
    a(raw("L_np1:", "label"))
    a(salu("s_lshl_b32 s16, s2, 2", ["s16", "scc"], ["s2"]))
    a(salu(f"s_mov_b32 s29, {MAGIC73}", ["s29"], []))
    a(salu(f"s_mov_b32 s31, {XBYTES}", ["s31"], []))
    a(salu("s_add_u32 s16, s16, s38", ["s16", "scc"], ["s16", "s38"]))
    a(salu(f"s_add_u32 s{S_TW}, s2, 5120", [f"s{S_TW}", "scc"], ["s2"]))
    a(v3("v_mov_b32", f"v{V_NINF}", "0xff800000"))
    a(v3("v_lshrrev_b32", "v10", "2", "v3"))
    a(v3("v_and_b32", "v11", "3", "v3"))
    a(v3("v_lshl_add_u32", "v8", "v11", "2", "v10"))
    a(v3("v_lshlrev_b32", "v5", "10", "v8"))
    a(v3("v_add_u32", "v5", "s16", "v5"))
    a(v3("v_mov_b32", "v9", f"s{S_TW}"))
    a(valu("v_cmp_eq_u32 vcc, 5, v8", ["vcc"], ["v8"]))
    a(valu("v_cndmask_b32 v5, v5, v9, vcc", ["v5"], ["v5", "v9", "vcc"]))
    a(v3("v_mul_hi_u32", "v6", "v5", "s29"))
    a(v3("v_mul_u32_u24", "v7", "73", "v6"))
    a(v3("v_sub_u32", "v7", "v5", "v7"))
    a(v3("v_mul_u32_u24", "v7", "0xa80", "v7"))
    a(salu(f"s_mov_b32 s43, {WINROW}", ["s43"], []))
    a(v3("v_mul_lo_u32", "v6", "v6", "s43"))
    a(v3("v_add_u32", "v6", "v6", "v7"))
    a(v3("v_lshl_add_u32", "v6", "v4", "4", "v6"))
    a(v3("v_add_u32", "v6", str(6 * ROWB + 6 * 384), "v6"))
    a(valu(f"v_cmp_gt_u32 vcc, {NWIN}, v5", ["vcc"], ["v5"]))
    a(valu(f"v_cndmask_b32 v14, v{V_NINF}, v6, vcc", ["v14"], [f"v{V_NINF}", "v6", "vcc"]))
    a(salu("s_lshr_b32 s40, s2, 3", ["s40", "scc"], ["s2"]))
    a(salu("s_mul_i32 s43, s38, 6", ["s43"], ["s38"]))
    a(salu("s_add_u32 s42, s40, s43", ["s42", "scc"], ["s40", "s43"]))
    for _ in range(2):
        a(salu("s_sub_u32 s43, s42, 24", ["s43", "scc"], ["s42"]))
        a(salu("s_cselect_b32 s42, s42, s43", ["s42"], ["scc", "s42", "s43"]))
    a(salu("s_mul_i32 s42, s42, 3072", ["s42"], ["s42"]))
    p.extend(win_base(S_LB, S_WCUR, 30))
    p.extend(win_base(S_CB, S_TW, 30))
    a(salu(f"s_mov_b32 s39, {ROWB}", ["s39"], []))
    kind_offsets(a, "v10", ("v5", "v6", "v7", "v8", "v9"))
    KO = {"H": "v5", "V": "v6", "Q": "v7", "I": "v8"}
    for i in range(1, 4):
        a(valu(f"v_cmp_eq_u32 s[{64 + 2 * i}:{65 + 2 * i}], {i}, v11", [f"s{64 + 2 * i}", f"s{65 + 2 * i}"], ["v11"]))
    a(v3("v_lshlrev_b32", "v12", "4", "v4"))
    a(v3("v_mul_lo_u32", "v13", "v11", "s39"))
    a(v3("v_add3_u32", f"v{V_F[0]}", "v13", "v5", "v12"))
    for t in (1, 2):
        f = f"v{V_F[t]}"
        for i in range(4):
            kind, pp = STRIPS[4 * t + i]
            base = {"H": pp * ROWB, "V": pp * 384, "Q": 4 * ROWB + 4 * 384, "I": 4 * ROWB}[kind]
            a(v3("v_add_u32", f if i == 0 else "v9", str(base), KO[kind]))
            if i:
                a(cnd(f, f, "v9", 64 + 2 * i))
        a(v3("v_add_u32", f, f, "v12"))
    for w in range(1, 4):
        a(valu(f"v_cmp_eq_u32 s[{64 + 2 * w}:{65 + 2 * w}], {w}, v2", [f"s{64 + 2 * w}", f"s{65 + 2 * w}"], ["v2"]))
    a(cnd("v15", f"v{V_F[0]}", f"v{V_F[1]}", 66))
    a(cnd("v15", "v15", f"v{V_F[2]}", 68))
    a(v3("v_add_u32", "v16", "0x80", "v15"))
    a(v3("v_add_u32", "v9", "0x100", f"v{V_F[1]}"))
    a(cnd("v15", "v15", "v9", 70))
    a(v3("v_add_u32", "v9", "0x100", f"v{V_F[2]}"))
    a(cnd("v16", "v16", "v9", 70))
    a(v3("v_lshrrev_b32", "v5", "1", "v1"))
    a(v3("v_and_b32", "v5", "28", "v5"))
    for c in range(2):
        for hf in range(2):
            a(Inst(f"ds_bpermute_b32 v{17 + 2 * c + hf}, v5, v{15 + c} offset:{32 * hf}", "dsr", defs=[f"v{17 + 2 * c + hf}"], uses=["v5", f"v{15 + c}"]))
    a(v3("v_and_b32", "v12", "7", "v1"))
    a(v3("v_xor_b32", "v12", "v12", "v4"))
    a(v3("v_lshlrev_b32", "v12", "4", "v12"))
    a(v3("v_xor_b32", "v13", "64", "v12"))
    a(salu("s_lshl_b32 s41, s38, 12", ["s41", "scc"], ["s38"]))
    a(salu(f"s_add_u32 s41, s41, {STAGE}", ["s41", "scc"], ["s41"]))
    a(salu(f"s_cmp_lt_u32 s{S_TW}, {NWIN}", ["scc"], [f"s{S_TW}"]))
    a(salu("s_cselect_b32 s30, s31, 0", ["s30"], ["scc", "s31"]))
    a(raw("s_waitcnt lgkmcnt(0)", "wait"))
    if o.diag:
        a(v3("v_mov_b32", f"v{V_TIME}", "s44"))
        a(valu(f"v_writelane_b32 v{V_TIME}, s46, 62", [f"v{V_TIME}"], ["s46"]))
    if o.pstamp:
        p.extend(stamp3(55))
    def x_small():
        srd(a, S_XS, S_KA, "s30")
        for i in range(4):
            a(v3("v_add_u32", f"v{17 + i}", f"v{17 + i}", ("v12", "v13")[i & 1]))
        for i in range(4):
            a(salu(f"s_add_u32 m0, s41, {1024 * i}", ["m0", "scc"], ["s41"]))
            a(Inst(f"buffer_load_dwordx4 v{17 + i}, s[{S_XS}:{S_XS+3}], s{S_CB} offen lds", "ldsdma", uses=[f"v{17 + i}", f"s{S_CB}", "m0"]))
        srd(a, 4, S_KA, "s31")
        for s in (4, 5):
            a(xload(1, 0, s, S_CB, sr=S_XS))
        for s in range(6):
            a(Inst(f"buffer_load_dwordx4 {T('a', AX49 + 4 * s, 4)}, v14, s[4:7], 0 offen offset:{64 * s}", "vload",
                   defs=R('a', AX49 + 4 * s, 4), uses=["v14"]))

    def w_load(bank, reg, addr, off):
        for g in range(6):
            if g:
                a(salu("s_add_u32 s42, s42, 3072", ["s42", "scc"], ["s42"]))
                a(salu(f"s_cmp_eq_u32 s42, {off + NBASE}", ["scc"], ["s42"]))
                a(salu(f"s_cselect_b32 s42, {off}, s42", ["s42"], ["scc", "s42"]))
            for k in range(3):
                d = reg + 4 * (3 * g + k)
                a(Inst(f"buffer_load_dwordx4 {T(bank, d, 4)}, v{V_LDS[0]}, s[12:15], s42 offen offset:{1024 * k} sc1", "vload",
                       defs=R(bank, d, 4), uses=[f"v{V_LDS[0]}", "s42"]))
            a(v3("v_add_u32", f"v{addr + g}", "s42", f"v{V_LDS[0]}"))

    warm(o, a, 1)
    a(salu(f"s_cmp_lg_u32 s38, {o.pw}", ["scc"], ["s38"]))
    a(salu("s_cselect_b32 s27, 144, s2", ["s27"], ["scc", "s2"]))
    a(salu("s_cmp_lt_u32 s27, 144", ["scc"], ["s27"]))
    a(raw("s_cbranch_scc1 L_nw"))
    warm(o, a, 2)
    a(raw("L_nw:", "label"))
    nw = 0 if o.nowarm else 2

    def producers(lab, code):
        a(salu(f"s_cmp_lg_u32 s38, {o.pw}", ["scc"], ["s38"]))
        a(raw(f"s_cbranch_scc1 {lab}"))
        a(salu("s_cmp_ge_u32 s2, 144", ["scc"], ["s2"]))
        a(raw(f"s_cbranch_scc1 {lab}"))
        p.extend(code)
        a(raw(f"{lab}:", "label"))
    if o.order == "sx":
        producers("L_np2", prod_store(o, nw))
        x_small()
        producers("L_np3", prod_signal(o))
    elif o.order == "ssx":
        producers("L_np2", prod_store(o, nw) + (stamp3(52) if o.pstamp else []) + prod_signal(o))
        if o.quiet:
            a(salu(f"s_cmp_ge_u32 s2, {o.quiet}", ["scc"], ["s2"]))
            a(raw("s_cbranch_scc1 L_nq"))
            a(raw("s_barrier"))
            a(raw("L_nq:", "label"))
        x_small()
    else:
        x_small()
        producers("L_np2", prod_store(o, 12 + nw) + prod_signal(o))
    if o.pstamp:
        p.extend(stamp3(56))
    if o.early_after:
        a(raw("s_waitcnt vmcnt(0)", "wait"))
    p.extend(xloads(0, S_LB, o.ld_flags)[:o.n_early])
    a(v3("v_lshrrev_b32", "v5", "1", "v3"))
    a(v3("v_xor_b32", "v5", "v5", "v4"))
    a(v3("v_lshlrev_b32", "v5", "4", "v5"))
    a(v3("v_lshl_add_u32", "v5", "v3", "7", "v5"))
    a(v3("v_add_u32", f"v{V_R0[0]}", str(STAGE), "v5"))
    a(v3("v_xor_b32", f"v{V_R0[1]}", "64", f"v{V_R0[0]}"))
    a(v3("v_add_u32", f"v{V_LDS[1]}", "0x10000", f"v{V_LDS[0]}"))
    a(v3("v_add_u32", f"v{V_LDS[2]}", "0x20000", f"v{V_LDS[0]}"))
    srd(a, 8, S_KA + 6, "0" if o.nostore else "s30")
    srd(a, S_SPA, S_KA + 6, "0")
    srd(a, S_SPB, S_KA + 6, "0" if o.nostore else "s30")
    V_N16, V_N8 = 15, 16
    a(v3("v_lshlrev_b32", f"v{V_N16}", "4", "v3"))
    a(v3("v_lshlrev_b32", f"v{V_N8}", "3", "v3"))
    kind_offsets(a, "v4", ("v5", "v6", "v7", "v8", "v9"))
    for kind, src in KO.items():
        a(v3("v_add_u32", f"v{V_ST[kind][0]}", src, f"v{V_N16}"))
        a(v3("v_add_u32", f"v{V_ST[kind][1]}", src, f"v{V_N8}"))
    for q in (1, 2):
        a(valu(f"v_accvgpr_write_b32 a{AP[q] + 7}, 0", [f"a{AP[q] + 7}"], []))
    for r, val in ((S_M0, "0"), (S_M0 + 1, "0"), (S_M1, "0xffff0000"), (S_M1 + 1, "0"), (S_SH, "16"), (S_GO, "384"), (S_K, "0"),
                   (40, "0xffff"), (41, "0")):
        a(salu(f"s_mov_b32 s{r}, {val}", [f"s{r}"], []))
    a(cnd(f"v{V_SP[0]}", f"v{V_NINF}", f"v{V_ST['H'][0]}", S_M1))
    a(cnd(f"v{V_SP[1]}", f"v{V_NINF}", f"v{V_ST['H'][1]}", S_M1))
    p.extend(row_bases())
    if o.ct:
        for k, ex in enumerate(CT):
            a(salu(f"s_add_u32 s{84 + 2 * k}, s90, {ex}-L_here", [f"s{84 + 2 * k}", "scc"], ["s90"]))
            a(salu(f"s_addc_u32 s{85 + 2 * k}, s91, 0", [f"s{85 + 2 * k}", "scc"], ["s91", "scc"]))
    if o.diag:
        a(salu(f"s_mov_b32 s{S_IT}, 1", [f"s{S_IT}"], []))
        a(salu("s_mov_b32 s72, 10", ["s72"], []))
    a(raw("s_getreg_b32 s3, hwreg(HW_REG_XCC_ID, 0, 4)", "salu", ["s3"]))
    a(salu("s_lshr_b32 s27, s2, 3", ["s27", "scc"], ["s2"]))
    a(salu(f"s_lshl_b32 s27, 1, s27", ["s27", "scc"], ["s27"]))
    a(salu(f"s_and_b32 s27, s27, {sum(1 << int(g) for g in o.leaders.split(','))}", ["s27", "scc"], ["s27"]))
    a(salu("s_cselect_b32 s36, 0, 255", ["s36"], ["scc"]))
    a(salu("s_mov_b32 s37, 0x4000", ["s37"], []))
    a(v3("v_and_b32", "v27", "1", "v1"))
    a(v3("v_lshlrev_b32", "v27", "6", "v27"))
    if o.diag:
        a(valu(f"v_writelane_b32 v{V_TIME}, s3, 43", [f"v{V_TIME}"], ["s3"]))
    a(salu("s_lshl_b32 s3, s3, 3", ["s3", "scc"], ["s3"]))
    a(salu("s_add_u32 s3, s3, 128", ["s3", "scc"], ["s3"]))
    a(v3("v_mov_b32", "v29", "1"))
    D = f"s[{S_DBG}:{S_DBG+3}]"

    def poll(lab, goff, loff):
        a(raw(f"{lab}:", "label"))
        a(salu("s_sub_u32 s37, s37, 1", ["s37", "scc"], ["s37"]))
        a(raw(f"s_cbranch_scc1 {lab}_x"))
        a(salu("s_and_b32 s27, s36, s37", ["s27", "scc"], ["s36", "s37"]))
        a(raw(f"s_cbranch_scc0 {lab}_g"))
        a(Inst(f"buffer_load_dword v28, off, {D}, s3 offset:{loff} {o.lflag}", "vload", defs=["v28"], uses=["s3"]))
        a(raw("s_waitcnt vmcnt(0)", "wait"))
        a(valu("v_cmp_eq_u32 vcc, 0, v28", ["vcc"], ["v28"]))
        a(raw("s_nop 1", "nop"))
        a(raw(f"s_cbranch_vccnz {lab}"))
        a(raw(f"s_branch {lab}_x"))
        a(raw(f"{lab}_g:", "label"))
        a(v3("v_mov_b32", "v28", "0"))
        a(salu("s_mov_b64 exec, 3", ["exec"], []))
        a(Inst(f"buffer_atomic_add v28, v27, {D}, 0 offen offset:{goff} sc0 sc1", "vload", defs=["v28"], uses=["v27", "v28"]))
        a(raw("s_waitcnt vmcnt(0)", "wait"))
        a(valu("v_cmp_gt_u32 vcc, 36, v28", ["vcc"], ["v28"]))
        a(salu("s_mov_b64 exec, -1", ["exec"], []))
        a(raw("s_nop 0", "nop"))
        a(raw(f"s_cbranch_vccnz {lab}"))
        a(Inst(f"buffer_store_dword v29, off, {D}, s3 offset:{loff}", "vstore", uses=["v29", "s3"]))
        a(raw(f"{lab}_x:", "label"))
    a(salu(f"s_cmp_lg_u32 s38, {o.lw}", ["scc"], ["s38"]))
    a(raw("s_cbranch_scc1 L_pm_y"))
    for k in range(0, o.psleep, 127):
        a(raw(f"s_sleep {min(127, o.psleep - k)}"))
    if o.pstamp:
        p.extend(stamp3(57))
    poll("L_pm", 0, 0)
    if o.pstamp:
        p.extend(stamp3(58))
        a(valu(f"v_writelane_b32 v{V_TIME}, s37, 54", [f"v{V_TIME}"], ["s37"]))
    a(raw("L_pm_y:", "label"))
    a(salu("s_add_u32 s27, s36, s38", ["s27", "scc"], ["s36", "s38"]))
    a(salu(f"s_cmp_eq_u32 s27, {o.lw}", ["scc"], ["s27"]))
    a(salu(f"s_cselect_b32 s27, {CNT_N}, 0x1000", ["s27"], ["scc"]))
    a(salu("s_cselect_b32 s36, 0, 255", ["s36"], ["scc"]))
    a(raw("s_barrier"))
    if o.pstamp:
        p.extend(stamp3(59))
    a(v3("v_mov_b32", "v28", "0"))
    a(salu("s_mov_b64 exec, 3", ["exec"], []))
    a(Inst(f"buffer_atomic_add v28, v27, {D}, s27 offen sc0 sc1", "vload", defs=["v28"], uses=["s27", "v27", "v28"]))
    a(salu("s_mov_b64 exec, -1", ["exec"], []))
    MB = ("v", V_NS) if o.n_early else ("a", 0)
    w_load(MB[0], MB[1], 21, 0)
    for g in range(6):
        a(v3("v_add_u32", f"v{V_NA + g}", str(NBASE), f"v{21 + g}"))
    a(salu("s_mov_b64 exec, 3", ["exec"], []))
    a(raw("s_waitcnt vmcnt(18)", "wait"))
    a(valu("v_cmp_gt_u32 vcc, 36, v28", ["vcc"], ["v28"]))
    a(salu("s_mov_b64 exec, -1", ["exec"], []))
    a(raw("s_nop 0", "nop"))
    a(raw("s_cbranch_vccnz L_nn"))
    a(Inst(f"buffer_store_dword v29, off, {D}, s3 offset:4", "vstore", uses=["v29", "s3"]))
    a(raw("L_nn:", "label"))
    for k in range(18):
        a(raw(f"s_waitcnt vmcnt({17 - k + (k > o.nlook)})", "wait"))
        if o.pstamp and k == 0:
            p.extend(stamp3(60))
        a(Inst(f"ds_write_b128 v{21 + k // 3}, {T(MB[0], MB[1] + 4 * k, 4)} offset:{1024 * (k % 3)}", "dsw", uses=R(MB[0], MB[1] + 4 * k, 4) + [f"v{21 + k // 3}"]))
        if k == o.nlook:
            a(Inst(f"buffer_load_dword v28, off, {D}, s3 offset:4 {o.lflag}", "vload", defs=["v28"], uses=["s3"]))
    a(raw("s_waitcnt vmcnt(0)", "wait"))
    a(valu("v_cmp_ne_u32 vcc, 0, v28", ["vcc"], ["v28"]))
    a(raw("s_nop 1", "nop"))
    a(raw("s_cbranch_vccnz L_pn_x"))
    poll("L_pn", CNT_N, 4)
    if o.pstamp:
        a(valu(f"v_writelane_b32 v{V_TIME}, s37, 53", [f"v{V_TIME}"], ["s37"]))
    for q in range(3):
        a(salu(f"s_cmp_eq_u32 s38, {q}", ["scc"], ["s38"]))
        a(raw(f"s_cbranch_scc1 L_sh{q}"))
    return p


def stamp3(lane):
    return [raw("s_memtime s[44:45]"), raw("s_waitcnt lgkmcnt(0)", "wait"),
            valu(f"v_writelane_b32 v{V_TIME}, s44, {lane}", [f"v{V_TIME}"], ["s44"])]


def stamp():
    return [raw("s_memtime s[44:45]"), raw("s_memrealtime s[46:47]"), salu(f"s_mov_b32 m0, s{S_IT}", ["m0"], [f"s{S_IT}"]), raw("s_waitcnt lgkmcnt(0)", "wait"),
            valu(f"v_writelane_b32 v{V_TIME}, s44, m0", [f"v{V_TIME}"], ["s44", "m0"]),
            salu(f"s_add_u32 m0, s{S_IT}, 43", ["m0", "scc"], [f"s{S_IT}"]),
            valu(f"v_writelane_b32 v{V_TIME}, s46, m0", [f"v{V_TIME}"], ["s46", "m0"]),
            salu(f"s_add_u32 s{S_IT}, s{S_IT}, 1", [f"s{S_IT}", "scc"], [f"s{S_IT}"])]


def stamp2():
    return [raw("s_memtime s[44:45]"), salu("s_mov_b32 m0, s72", ["m0"], ["s72"]), raw("s_waitcnt lgkmcnt(0)", "wait"),
            valu(f"v_writelane_b32 v{V_TIME}, s44, m0", [f"v{V_TIME}"], ["s44", "m0"]),
            salu("s_add_u32 s72, s72, 1", ["s72", "~scc"], ["s72"])]


def add_stamps(body, pts):
    out = []
    k = 0
    for i in body:
        if i.kind == "mfma":
            if k in pts:
                st = stamp2()
                st[-1] = raw("s_addk_i32 s72, 1", "salu", ["s72"], ["s72"])
                out.extend(st)
            k += 1
        out.append(i)
    return out


def texts(l):
    return [i.text for i in l]


def gen_main(o):
    pro = insert_nops(gen_prologue(o))
    pts = [int(x) for x in o.pts.split(",")] if o.pts else None

    def build(prog):
        body, cyc = schedule2(prog, verbose=o.verbose, urgent=o.urgent)
        if not o.verbose:
            print("; model cycles", cyc)
        return body, cyc

    def waits(body, cyc, pre):
        return insert_waits(body, pre=pre, early_lgkm=(o.early, cyc) if o.early else 0,
                            early_vm=(o.early_vm, cyc) if o.early_vm else 0)

    head = lambda: stamp() if o.diag else []
    shared = []
    for q in range(4):
        t, c = build(gen_shared(o, q))
        if o.tpts:
            t = add_stamps(t, [int(x) for x in o.tpts.split(",")])
        t = [raw("s_waitcnt vmcnt(0) lgkmcnt(0)", "wait")] + (stamp3(61) if o.pstamp else []) + t
        last = max(k for k, i in enumerate(t) if i.kind == "vload")
        nst = sum(i.kind == "vstore" for i in t[last:])
        t += [raw(f"s_waitcnt vmcnt({nst}) lgkmcnt(0)", "wait")]
        t = insert_waits(t, pre=pro, early_lgkm=(o.early, 1 << 30))
        shared.append(insert_nops(t, pre=[pro]))
    bodies = []
    for xs in range(2):
        body, cyc = build(gen_body(o, xs))
        if pts:
            body = add_stamps(body, pts)
        tail = [salu(f"s_cmp_eq_u32 s{S_K}, 5", ["scc"], [f"s{S_K}"]), raw("s_cbranch_scc1 L_epi")] if xs == 0 else [raw("s_branch L_b0")]
        bodies.append(head() + body + tail)
    w = [waits(bodies[0], cyc, []), None]
    for it in range(3):
        w[1] = waits(bodies[1], cyc, w[0])
        w[0] = waits(bodies[0], cyc, w[1])
    w = [hoist_waits(x) for x in w]
    n = [insert_nops(w[0], pre=shared), None]
    for it in range(3):
        n[1] = insert_nops(w[1], pre=[n[0]])
        n[0] = insert_nops(w[0], pre=shared + [n[1]])
    for i in w[0]:
        i.time = None
    epi = insert_nops(insert_waits(head() + build(gen_epi(o))[0], pre=w[0]), pre=[n[0]])
    print('; replay', model_time(n[1]), model_time(n[0]))
    fin = []
    if o.diag:
        fin += stamp()
        fin += [raw("s_waitcnt vmcnt(0)", "wait")] + stamp()
        fin += [raw("s_memrealtime s[46:47]"), raw("s_waitcnt lgkmcnt(0)", "wait"),
                valu(f"v_writelane_b32 v{V_TIME}, s46, 63", [f"v{V_TIME}"], ["s46"])]
        fin += [v3("v_lshrrev_b32", "v0", "2", f"v{V_LDS[0]}"),
                salu("s_lshl_b32 s42, s2, 2", ["s42", "scc"], ["s2"]),
                salu("s_add_u32 s42, s42, s38", ["s42", "scc"], ["s42", "s38"]),
                salu("s_lshl_b32 s42, s42, 8", ["s42", "scc"], ["s42"]),
                salu(f"s_add_u32 s42, s42, {WS_TIME_OFF}", ["s42", "scc"], ["s42"]),
                Inst(f"buffer_store_dword v{V_TIME}, v0, s[12:15], s42 offen", "vstore", uses=[f"v{V_TIME}", "v0", "s42"])]
        if o.dbgst >= 0:
            fin += [valu(f"v_readlane_b32 s43, v{V_TIME}, 62", ["s43"], [f"v{V_TIME}"]),
                    raw("s_nop 4", "nop"),
                    salu("s_sub_u32 s43, s46, s43", ["s43", "scc"], ["s46", "s43"]),
                    valu(f"v_readlane_b32 s42, v{V_TIME}, 0", ["s42"], [f"v{V_TIME}"]),
                    raw("s_nop 4", "nop"),
                    v3("v_subrev_u32", f"v{V_TIME}", "s42", f"v{V_TIME}"),
                    valu(f"v_writelane_b32 v{V_TIME}, s43, 0", [f"v{V_TIME}"], ["s43"]),
                    salu("s_lshl_b32 s43, s2, 2", ["s43", "scc"], ["s2"]),
                    salu("s_add_u32 s43, s43, s38", ["s43", "scc"], ["s43", "s38"]),
                    salu(f"s_cmp_eq_u32 s43, {o.dbgst}", ["scc"], ["s43"]),
                    salu("s_cselect_b32 s43, 16, 0x1000", ["s43"], ["scc"]),
                    salu("s_mov_b64 exec, 0x1ff", ["exec"], []),
                    Inst(f"buffer_store_dword v{V_TIME}, v0, s[{S_DBG}:{S_DBG+3}], s43 offen", "vstore", uses=[f"v{V_TIME}", "v0", "s43"])]
        if o.spin:
            T, la, lb, mult, wv = [int(x) for x in o.spin.split(",")]
            fin += [valu(f"v_readlane_b32 s40, v{V_TIME}, 62", ["s40"], [f"v{V_TIME}"]),
                    valu(f"v_readlane_b32 s41, v{V_TIME}, {la}", ["s41"], [f"v{V_TIME}"]),
                    valu(f"v_readlane_b32 s42, v{V_TIME}, {lb}", ["s42"], [f"v{V_TIME}"]),
                    raw("s_nop 4", "nop"),
                    salu("s_sub_u32 s42, s42, s41", ["s42", "scc"], ["s42", "s41"]),
                    salu(f"s_mul_i32 s42, s42, {mult}", ["s42"], ["s42"]),
                    salu("s_min_u32 s42, s42, 30000", ["s42", "scc"], ["s42"]),
                    salu("s_lshl_b32 s43, s2, 2", ["s43", "scc"], ["s2"]),
                    salu("s_add_u32 s43, s43, s38", ["s43", "scc"], ["s43", "s38"]),
                    salu(f"s_cmp_eq_u32 s43, {wv}", ["scc"], ["s43"]),
                    salu("s_cselect_b32 s42, s42, -500", ["s42"], ["scc", "s42"]),
                    salu(f"s_add_u32 s42, s42, {T * 100}", ["s42", "scc"], ["s42"]),
                    raw("L_spin:", "label"),
                    raw("s_sleep 4"),
                    raw("s_memrealtime s[46:47]"), raw("s_waitcnt lgkmcnt(0)", "wait"),
                    salu("s_sub_u32 s43, s46, s40", ["s43", "scc"], ["s46", "s40"]),
                    salu("s_cmp_lt_u32 s43, s42", ["scc"], ["s43", "s42"]),
                    raw("s_cbranch_scc1 L_spin")]
        fin = insert_nops(fin)
    stats = {}
    for i in n[0]:
        stats[i.kind] = stats.get(i.kind, 0) + 1
    print("; body stats", stats, file=sys.stderr)
    out = emit(pro) + "\n" + emit(shared[3]) + "\n    s_branch L_b0\n"
    for q in range(3):
        out += f".p2align 6\nL_sh{q}:\n" + emit(shared[q]) + "\n"
        if q < 2:
            out += "    s_branch L_b0\n"
    out += "L_b0:\n" + emit(n[0]) + "\nL_b1:\n" + emit(n[1]) + "\n.p2align 6\nL_epi:\n"
    return out + emit(epi) + "\n" + emit(fin) + "\nL_main_done:\n    s_endpgm\n"


def merge_waits(x, y):
    def split(l):
        out, cur = [], {}
        for i in l:
            if i.kind == "wait" and not i.defs and not i.uses:
                for nm, v in re.findall(r"(vmcnt|lgkmcnt)\((\d+)\)", i.text):
                    cur[nm] = min(cur.get(nm, 99), int(v))
            else:
                out.append((cur, i))
                cur = {}
        return out
    a, b = split(x), split(y)
    assert [i.text for _, i in a] == [i.text for _, i in b]
    out = []
    for (wa, i), (wb, _) in zip(a, b):
        m = {k: min(wa.get(k, 99), wb.get(k, 99)) for k in set(wa) | set(wb)}
        if m:
            w = Inst("s_waitcnt " + " ".join(f"{k}({m[k]})" for k in ("vmcnt", "lgkmcnt") if k in m), "wait")
            w.time = i.time
            out.append(w)
        out.append(i)
    return out


def emit(insts):
    out = []
    for i in insts:
        out.append(i.text if i.kind == "label" else "    " + i.text)
    return "\n".join(out)


HEADER = """; Swin window attention: folded projections (M = a*Wq*Wk^T, N = Wv*Wo), one wave per window.
; @launch grid=(256,1,1) block=(256,1,1) lds=163840
.amdgcn_target "amdgcn-amd-amdhsa--gfx950"
.text
"""

KD = """.amdhsa_kernel {k}
  .amdhsa_next_free_vgpr {nv}
  .amdhsa_next_free_sgpr {ns}
  .amdhsa_accum_offset {ao}
  .amdhsa_group_segment_fixed_size 0
  .amdhsa_kernarg_size 48
  .amdhsa_user_sgpr_count 2
  .amdhsa_user_sgpr_kernarg_segment_ptr 1
  .amdhsa_system_sgpr_workgroup_id_x 1
.end_amdhsa_kernel
"""


def main():
    ap = argparse.ArgumentParser()
    ap.add_argument("-o", default="cdna_kernels/" + NAME + ".s")
    ap.add_argument("--diag", action="store_true")
    ap.add_argument("--pts", default="")
    ap.add_argument("--rm", default="")
    ap.add_argument("--ct", type=int, default=8000)
    ap.add_argument("--tpts", default="")
    ap.add_argument("--early", type=int, default=230)
    ap.add_argument("--early_vm", type=int, default=0)
    ap.add_argument("--ld_rel", type=int, default=300)
    ap.add_argument("--ld_step", type=int, default=400)
    ap.add_argument("--tail_s", type=int, default=1)
    ap.add_argument("--order", default="sx")
    ap.add_argument("--nl_rel", type=int, default=0)
    ap.add_argument("--nl_step", type=int, default=64)
    ap.add_argument("--nw_rel", type=int, default=800)
    ap.add_argument("--nw_step", type=int, default=64)
    ap.add_argument("--x0_rel", type=int, default=1200)
    ap.add_argument("--x0_step", type=int, default=200)
    ap.add_argument("--pw", type=int, default=3)
    ap.add_argument("--lw", type=int, default=0)
    ap.add_argument("--n_early", type=int, default=0)
    ap.add_argument("--psleep", type=int, default=0)
    ap.add_argument("--leaders", default="18")
    ap.add_argument("--own", type=int, default=0)
    ap.add_argument("--quiet", type=int, default=0)
    ap.add_argument("--nlook", type=int, default=11)
    ap.add_argument("--lflag", default="nt")
    ap.add_argument("--defer", default="12")
    ap.add_argument("--after", default="5,6,7,8,10")
    ap.add_argument("--urgent", type=int, default=0)
    ap.add_argument("--touch_rep", type=int, default=1)
    ap.add_argument("--ld_grp", type=int, default=2)
    ap.add_argument("--q2p0", default="5400,500")
    ap.add_argument("--q2p1", default="7400,350")
    ap.add_argument("--dsw_busy", type=int, default=40)
    ap.add_argument("--st_busy", type=int, default=150)
    ap.add_argument("--ld_flags", default="")
    ap.add_argument("--st_flags", default="")
    ap.add_argument("--st_flags0")
    ap.add_argument("--st_flags1")
    ap.add_argument("--drop", default="")
    ap.add_argument("--spin", default="")
    ap.add_argument("--dbgst", type=int, default=-1)
    for f in ("noload", "nostore", "pstamp", "verbose", "notouch", "nowarm", "early_after"):
        ap.add_argument("--" + f, action="store_true")
    o = ap.parse_args()
    o.defer = [int(c) for c in o.defer]
    if o.ld_flags:
        o.ld_flags = " " + o.ld_flags
    if o.st_flags:
        o.st_flags = " " + o.st_flags
    global DSW_BUSY, ST_BUSY, LD_GRP
    DROP.extend(int(c) for c in o.drop)
    for k, f in enumerate((o.st_flags0, o.st_flags1)):
        if f is not None:
            PFLAGS[k] = " " + f if f else ""
    DSW_BUSY, ST_BUSY, LD_GRP = o.dsw_busy, o.st_busy, o.ld_grp
    old = sys.stdout
    sys.stdout = sys.stderr
    main_text = gen_main(o)
    sys.stdout = old
    s = HEADER.format(name=NAME)
    k = NAME + "_kernel"
    s += f".globl {k}\n.p2align 12\n.type {k},@function\n{k}:\n"
    s += main_text
    s += '.section .rodata,"a"\n.p2align 6\n'
    s += KD.format(k=k, nv=512, ns=102, ao=256)
    open(o.o, "w").write(s)


if __name__ == "__main__":
    main()
```

```python
import sys, math, struct, argparse, re
from asmlib import *

NAME = "standalone__swin_window_attn__vision"
NWIN = 5329
XBYTES = 100270464
ROWB = 196224
WINROW = 7 * ROWB
MAGIC73 = (1 << 32) // 73 + 1
for w in range(0, 16384):
    assert (w * MAGIC73) >> 32 == w // 73
ALPHA = (192 ** -0.5) * math.log2(math.e)
WS_TIME_OFF = 1 << 20
STAGE = 147456


def f32bits(x):
    return struct.unpack("<I", struct.pack("<f", x))[0]


def mfma(bd, d, ba, a, bb, b, first):
    c = "0" if first else T(bd, d, 4)
    D = R(bd, d, 4)
    AB = R(ba, a, 4) + R(bb, b, 4)
    return Inst(f"v_mfma_f32_16x16x32_bf16 {T(bd, d, 4)}, {T(ba, a, 4)}, {T(bb, b, 4)}, {c}", "mfma",
                defs=D, uses=AB + ([] if first else D), srcC=([] if first else D), srcAB=AB, passes=4)


def valu(text, defs, uses, kind="valu", **kw):
    return Inst(text, kind, defs=defs, uses=uses, **kw)


def cvtpk(d, a, b, **kw):
    bt = f"v{b}" if b is not None else "0"
    return valu(f"v_cvt_pk_bf16_f32 v{d}, v{a}, {bt}", [f"v{d}"], [f"v{a}"] + ([f"v{b}"] if b is not None else []), **kw)


def salu(text, defs, uses, **kw):
    return Inst(text, "salu", defs=defs, uses=uses, **kw)


def raw(text, kind="other", defs=(), uses=()):
    return Inst(text, kind, defs=defs, uses=uses)


def v3(op, d, *srcs, **kw):
    uses = [s for s in srcs if isinstance(s, str) and (is_vreg(s) or is_sreg(s))]
    return valu(f"{op} {d}, " + ", ".join(str(s) for s in srcs), [d], uses, **kw)


def cnd(d, a, b, m):
    return valu(f"v_cndmask_b32 {d}, {a}, {b}, s[{m}:{m+1}]", [d], [a, b, f"s{m}", f"s{m+1}"])


def srd(a, dst, src, nb):
    a(salu(f"s_mov_b32 s{dst}, s{src}", [f"s{dst}"], [f"s{src}"]))
    a(salu(f"s_and_b32 s{dst+1}, s{src+1}, 0xffff", [f"s{dst+1}", "scc"], [f"s{src+1}"]))
    a(salu(f"s_mov_b32 s{dst+2}, {nb}", [f"s{dst+2}"], []))
    a(salu(f"s_mov_b32 s{dst+3}, 0x20000", [f"s{dst+3}"], []))


STRIPS = [("H", r) for r in range(7)] + [("V", 4), ("V", 5), ("V", 6), ("Q", 0), ("I", 0)]
I_TOK = [(4, 6), (5, 6), (6, 4), (6, 5)]


def token(t, n):
    g, i = n >> 2, n & 3
    kind, p = STRIPS[4 * t + i]
    if kind == "H":
        return p, g
    if kind == "V":
        return g, p
    if kind == "Q":
        return 4 + (g >> 1), 4 + (g & 1)
    return I_TOK[g]


assert sorted(token(t, n) for t in range(3) for n in range(16)) + [(6, 6)] == [(r, c) for r in range(7) for c in range(7)]


P_A, P_B, P_C, P_O, P_U = 128, 176, 200, 216, 32
P_RA, P_RB, P_SO = (80, 81), (82, 83), (84, 85)
S_KA = 92
S_KB = 32
S_DBG = 80
S_PSC, S_PSO = 100, 101
S_J, S_ROT = 36, 75
SLOT = 147456
WS_SLOT, WS_PRIV = 4 << 20, 8 << 20
NJM, NJN = 18, 9
V_POLL, V_EXP, V_FLG, V_CHK, V_FL2 = 27, 29, 28, 30, 31
S_GRP = 64
PST = 73728


def ws_srd(a, off):
    a(salu(f"s_add_u32 s12, s{S_KB+2}, s{off}", ["s12", "scc"], [f"s{S_KB+2}", f"s{off}"]))
    a(salu(f"s_addc_u32 s13, s{S_KB+3}, 0", ["s13", "scc"], [f"s{S_KB+3}", "scc"]))
    a(salu("s_and_b32 s13, s13, 0xffff", ["s13", "scc"], ["s13"]))
    a(salu(f"s_mov_b32 s14, {SLOT}", ["s14"], []))
    a(salu("s_mov_b32 s15, 0x20000", ["s15"], []))


WST = [None]


def dma(a, vo, sr, so, imm=0, fl=""):
    a(Inst(f"buffer_load_dwordx4 v{vo}, s[{sr}:{sr+3}], s{so} offen offset:{imm} lds{fl}", "ldsdma", uses=[f"v{vo}", f"s{so}", "m0"]))
    if WST[0] is not None:
        for i in stamp3(WST[0]):
            a(i)
        WST[0] += 1


def job_decode(a):
    a(salu(f"s_cmp_ge_u32 s{S_J}, {NJM}", ["scc"], [f"s{S_J}"]))
    a(salu("s_cselect_b32 s20, 1, 0", ["s20"], ["scc"]))
    a(salu(f"s_cselect_b32 s22, {NJM}, 0", ["s22"], ["scc"]))
    a(salu("s_cselect_b32 s23, 86, 43", ["s23"], ["scc"]))
    a(salu("s_cselect_b32 s24, 3, 6", ["s24"], ["scc"]))
    a(salu(f"s_sub_u32 s22, s{S_J}, s22", ["s22", "scc"], [f"s{S_J}", "s22"]))
    a(salu("s_mul_i32 s21, s22, s23", ["s21"], ["s22", "s23"]))
    a(salu("s_lshr_b32 s21, s21, 8", ["s21", "scc"], ["s21"]))
    assert all((r * 43) >> 8 == r // 6 for r in range(NJM)) and all((r * 86) >> 8 == r // 3 for r in range(NJN))
    a(salu("s_mul_i32 s24, s24, s21", ["s24"], ["s24", "s21"]))
    a(salu("s_sub_u32 s22, s22, s24", ["s22", "scc"], ["s22", "s24"]))


def prod_pre(a):
    job_decode(a)
    a(v3("v_lshrrev_b32", "v5", "3", "v1"))
    a(v3("v_and_b32", "v6", "7", "v1"))
    a(v3("v_and_b32", "v7", "1", "v4"))
    a(v3("v_xor_b32", "v8", "v6", "v7"))
    a(v3("v_mul_u32_u24", "v9", "0x480", "v5"))
    a(v3("v_lshl_add_u32", "v8", "v8", "4", "v9"))
    a(salu("s_lshl_b32 s23, s38, 5", ["s23", "scc"], ["s38"]))
    a(v3("v_xor_b32", "v12", "s23", "v8"))
    a(salu("s_lshl_b32 s23, s38, 6", ["s23", "scc"], ["s38"]))
    a(salu("s_and_b32 s23, s23, 64", ["s23", "scc"], ["s23"]))
    a(v3("v_xor_b32", "v10", "s23", "v8"))
    a(v3("v_xor_b32", "v11", "32", "v10"))
    a(salu("s_lshl_b32 s23, s21, 2", ["s23", "scc"], ["s21"]))
    a(salu("s_add_u32 s23, s23, s38", ["s23", "scc"], ["s23", "s38"]))
    a(salu("s_mul_i32 s25, s23, 18432", ["s25"], ["s23"]))
    a(salu("s_mul_i32 s23, s20, 768", ["s23"], ["s20"]))
    a(salu("s_add_u32 s25, s25, s23", ["s25", "scc"], ["s25", "s23"]))
    a(salu("s_add_u32 s24, s25, 9216", ["s24", "scc"], ["s25"]))
    a(salu("s_mul_i32 s27, s38, 6144", ["s27"], ["s38"]))
    a(salu(f"s_mov_b32 s{S_PSC}, s22", [f"s{S_PSC}"], ["s22"]))
    for r in range(4):
        a(v3("v_mov_b32", f"v{P_O + r}", "-1"))
    a(v3("v_lshlrev_b32", "v7", "1", "v7"))
    a(v3("v_xor_b32", "v13", "v6", "v7"))
    a(v3("v_mul_u32_u24", "v9", "0x180", "v5"))
    a(v3("v_lshl_add_u32", "v9", "v13", "4", "v9"))
    a(v3("v_xor_b32", "v13", "64", "v9"))
    a(salu("s_lshl_b32 s26, s22, 2", ["s26", "scc"], ["s22"]))
    a(salu("s_add_u32 s26, s26, s38", ["s26", "scc"], ["s26", "s38"]))
    a(salu("s_mul_i32 s26, s26, 9216", ["s26"], ["s26"]))
    a(salu("s_add_u32 s26, s26, 384", ["s26", "scc"], ["s26"]))
    a(salu("s_mul_i32 s43, s38, 18432", ["s43"], ["s38"]))
    a(salu("s_lshl_b32 s23, s22, 7", ["s23", "scc"], ["s22"]))
    a(salu("s_add_u32 s43, s43, s23", ["s43", "scc"], ["s43", "s23"]))
    a(salu("s_cmp_eq_u32 s20, 1", ["scc"], ["s20"]))
    a(salu("s_cselect_b32 s26, s43, s26", ["s26"], ["scc", "s43", "s26"]))
    a(salu("s_cselect_b64 vcc, -1, 0", ["vcc"], ["scc"]))
    a(salu("s_mul_i32 s43, s38, 3072", ["s43"], ["s38"]))
    a(valu("v_cndmask_b32 v12, v12, v9, vcc", ["v12"], ["v12", "v9", "vcc"]))
    a(salu("s_and_b32 s23, s38, 1", ["s23", "scc"], ["s38"]))
    a(salu("s_lshl1_add_u32 s23, s22, s23", ["s23", "scc"], ["s22", "s23"]))
    a(salu("s_mul_i32 s23, s23, 6", ["s23"], ["s23"]))
    a(salu("s_lshr_b32 s42, s38, 1", ["s42", "scc"], ["s38"]))
    a(salu("s_lshl1_add_u32 s42, s21, s42", ["s42", "scc"], ["s21", "s42"]))
    a(salu("s_add_u32 s23, s23, s42", ["s23", "scc"], ["s23", "s42"]))
    a(salu(f"s_lshl_b32 s{S_PSO}, s23, 10", [f"s{S_PSO}", "scc"], ["s23"]))


def prod_load(o, a):
    def clear(vo, sos):
        for so in sos:
            a(Inst(f"buffer_store_dwordx4 {T('v', P_O, 4)}, v{vo}, s[12:15], s{so} offen{o.clr}", "vstore",
                   uses=R('v', P_O, 4) + [f"v{vo}", f"s{so}"], wide=True))
        for k, so in enumerate(sos):
            if not o.clr:
                a(Inst(f"buffer_load_dwordx4 {T('v', P_C + 4 * k, 4)}, v{vo}, s[12:15], s{so} offen sc1", "vload",
                       defs=R('v', P_C + 4 * k, 4), uses=[f"v{vo}", f"s{so}"]))
    srd(a, 56, S_KA + 2, 192 * 576 * 2)
    if o.wstamp:
        WST[0] = 10
    for i in range(2):
        for cb in range(3):
            a(salu(f"s_add_u32 m0, s27, {PST + 3072 * i + 896 * cb}", ["m0", "scc"], ["s27"]))
            dma(a, 10 + i, 56, (25, 24)[i], 128 * cb)
    a(salu("s_cmp_eq_u32 s20, 1", ["scc"], ["s20"]))
    a(raw("s_cbranch_scc1 L_pl_n"))
    for cb in range(3):
        a(salu(f"s_add_u32 m0, s43, {PST + 24576 + 896 * cb}", ["m0", "scc"], ["s43"]))
        dma(a, 12, 56, 26, 128 * cb)
    ws_srd(a, 42)
    if not o.noclear:
        clear(V_LDS[0], [S_PSO])
    a(raw("s_branch L_np1"))
    a(raw("L_pl_n:", "label"))
    if o.wstamp:
        WST[0] = 16
    srd(a, 60, S_KA + 4, 192 * 192 * 2)
    for i in range(6):
        a(salu(f"s_add_u32 m0, s27, {PST + 24576 + 1024 * i}", ["m0", "scc"], ["s27"]))
        if i:
            a(salu("s_add_u32 s26, s26, 3072", ["s26", "scc"], ["s26"]))
        dma(a, 12 + (i & 1), 60, 26)
    ws_srd(a, 42)
    a(v3("v_lshrrev_b32", "v9", "5", "v1"))
    a(v3("v_lshlrev_b32", "v9", "10", "v9"))
    a(v3("v_and_b32", "v5", "3", "v5"))
    a(v3("v_lshl_add_u32", "v9", "v5", "8", "v9"))
    a(v3("v_lshl_add_u32", "v9", "v6", "4", "v9"))
    a(salu("s_lshl_b32 s23, s22, 7", ["s23", "scc"], ["s22"]))
    a(salu("s_cmp_eq_u32 s22, 2", ["scc"], ["s22"]))
    a(salu("s_cselect_b64 vcc, -1, 0", ["vcc"], ["scc"]))
    a(salu("s_cselect_b32 s26, 1, 2", ["s26"], ["scc"]))
    a(salu("s_cselect_b32 s23, 49152, s23", ["s23"], ["scc", "s23"]))
    a(salu("s_cselect_b32 s43, 1, 6", ["s43"], ["scc"]))
    a(valu(f"v_cndmask_b32 v9, v9, v{V_LDS[0]}, vcc", ["v9"], ["v9", f"v{V_LDS[0]}", "vcc"]))
    a(salu("s_mul_i32 s26, s26, s27", ["s26"], ["s26", "s27"]))
    a(salu("s_lshl_b32 s43, s43, 10", ["s43", "scc"], ["s43"]))
    a(salu("s_add_u32 s26, s26, s23", ["s26", "scc"], ["s26", "s23"]))
    a(salu(f"s_lshl_b32 s{S_PSO}, s21, 11", [f"s{S_PSO}", "scc"], ["s21"]))
    a(salu(f"s_add_u32 s{S_PSO}, s{S_PSO}, {NBASE}", [f"s{S_PSO}", "scc"], [f"s{S_PSO}"]))
    a(salu(f"s_add_u32 s26, s26, s{S_PSO}", ["s26", "scc"], ["s26", f"s{S_PSO}"]))
    a(salu("s_add_u32 s43, s43, s26", ["s43", "scc"], ["s43", "s26"]))
    if not o.noclear:
        clear(9, [26, 43])
    a(salu("s_lshr_b32 s23, s38, 1", ["s23", "scc"], ["s38"]))
    a(salu("s_lshl_b32 s23, s23, 10", ["s23", "scc"], ["s23"]))
    a(salu(f"s_add_u32 s{S_PSO}, s{S_PSO}, s23", [f"s{S_PSO}", "scc"], [f"s{S_PSO}", "s23"]))


def prod_make(o, a, x_small):
    a(v3("v_lshrrev_b32", "v5", "2", "v3"))
    a(v3("v_and_b32", "v6", "3", "v3"))
    a(v3("v_lshrrev_b32", "v7", "1", "v3"))
    a(v3("v_xor_b32", "v7", "v7", "v4"))
    a(v3("v_lshlrev_b32", "v7", "4", "v7"))
    a(v3("v_lshl_add_u32", "v7", "v6", "7", "v7"))
    a(v3("v_mul_u32_u24", "v8", "0xc00", "v5"))
    a(salu("s_lshr_b32 s23, s38, 1", ["s23", "scc"], ["s38"]))
    a(salu("s_mul_i32 s23, s23, 12288", ["s23"], ["s23"]))
    a(salu(f"s_add_u32 s23, s23, {PST}", ["s23", "scc"], ["s23"]))
    a(v3("v_add3_u32", f"v{P_RA[0]}", "v7", "v8", "s23"))
    a(v3("v_xor_b32", f"v{P_RA[1]}", "64", f"v{P_RA[0]}"))
    a(salu("s_and_b32 s24, s38, 1", ["s24", "scc"], ["s38"]))
    a(salu(f"s_cmp_ge_u32 s{S_J}, {NJM}", ["scc"], [f"s{S_J}"]))
    a(salu(f"s_addc_u32 s26, s{S_J}, s3", ["s26", "scc"], [f"s{S_J}", "s3", "scc"]))
    a(salu(f"s_cmp_ge_u32 s{S_J}, {NJM}", ["scc"], [f"s{S_J}"]))
    a(salu("s_addc_u32 s26, s26, 0", ["s26", "scc"], ["s26", "scc"]))
    a(salu(f"s_cmp_lg_u32 s38, {o.fw}", ["scc"], ["s38"]))
    a(salu("s_cselect_b32 s26, 0x1000, s26", ["s26"], ["scc", "s26"]))
    a(v3("v_mov_b32", "v9", "1"))
    a(salu(f"s_cmp_ge_u32 s{S_J}, {NJM}", ["scc"], [f"s{S_J}"]))
    a(raw("s_cbranch_scc1 L_pm_n"))

    def a_read(k):
        for h in range(2):
            d = P_A + 24 * h + 4 * k
            a(Inst(f"ds_read_b128 {T('v', d, 4)}, v{P_RA[k & 1]} offset:{1024 * (k >> 1) + 512 * h}", "dsr", defs=R('v', d, 4), uses=[f"v{P_RA[k & 1]}"]))

    def finish(acc, out, scale):
        for r in range(4):
            if scale:
                for e in range(2):
                    a(v3("v_mul_f32", f"v{acc + 2 * r + e}", f"0x{f32bits(ALPHA):08x}", f"v{acc + 2 * r + e}"))
            a(cvtpk(out + r, acc + 2 * r, acc + 2 * r + 1))
            a(v3("v_min_u32", f"v{out + r}", "-2", f"v{out + r}"))

    def flag():
        if not o.nofb:
            a(raw("s_barrier"))
        a(salu("s_mov_b64 exec, 1", ["exec"], []))
        a(Inst(f"buffer_store_byte v9, off, s[{S_DBG}:{S_DBG+3}], s26", "vstore", uses=["v9", "s26"]))
        a(salu("s_mov_b64 exec, -1", ["exec"], []))
        if o.pstamp:
            for i in stamp3(52):
                a(i)

    xm, xn = o.order.split(","), o.ordern.split(",")
    for xo in (xm, xn):
        assert sorted("".join(xo).replace("A", "DE")) == ["B", "C", "D", "E"]

    def gate(xo):
        x_small(xo[0])
        behind = 1 + sum({"A": 4, "B": 2, "C": 6, "D": 2, "E": 2}[c] for c in xo[0])
        if o.wstamp:
            for k in range(8):
                a(raw(f"s_waitcnt vmcnt({behind + 7 - k})", "wait"))
                for i in stamp3(22 + k):
                    a(i)
        a(raw(f"s_waitcnt vmcnt({behind})", "wait"))
        if o.pstamp:
            for i in stamp3(57):
                a(i)
        a(raw("s_barrier"))
    a(salu("s_lshl_b32 s24, s24, 9", ["s24", "scc"], ["s24"]))
    a(salu(f"s_add_u32 s24, s24, {PST + 24576}", ["s24", "scc"], ["s24"]))
    a(v3("v_add3_u32", f"v{P_RB[0]}", "v7", "v8", "s24"))
    a(v3("v_xor_b32", f"v{P_RB[1]}", "64", f"v{P_RB[0]}"))
    gate(xm)
    def m_read(k):
        d = P_B + 4 * k
        a(Inst(f"ds_read_b128 {T('v', d, 4)}, v{P_RB[k & 1]} offset:{1024 * (k >> 1)}", "dsr", defs=R('v', d, 4), uses=[f"v{P_RB[k & 1]}"]))
        a_read(k)
    for k in range(5):
        m_read(k)
    x_small(xm[1])
    for k in range(6):
        a(raw(f"s_waitcnt lgkmcnt({min(15 - 3 * k, 12)})", "wait"))
        for h in range(2):
            a(mfma("v", P_C + 4 * h, "v", P_A + 24 * h + 4 * k, "v", P_B + 4 * k, k == 0))
        if k == 0:
            m_read(5)
    finish(P_C, P_O, True)
    a(Inst(f"buffer_store_dwordx4 {T('v', P_O, 4)}, v{V_LDS[0]}, s[12:15], s{S_PSO} offen", "vstore",
           uses=R('v', P_O, 4) + [f"v{V_LDS[0]}", f"s{S_PSO}"], wide=True))
    flag()
    x_small(xm[2])
    a(raw("s_branch L_np3"))
    a(raw("L_pm_n:", "label"))
    a(v3("v_lshrrev_b32", "v7", "1", "v6"))
    a(v3("v_and_b32", "v8", "2", "v5"))
    a(v3("v_xor_b32", "v7", "v7", "v8"))
    a(v3("v_and_b32", "v8", "1", "v4"))
    a(v3("v_xor_b32", "v8", "s24", "v8"))
    a(v3("v_lshl_add_u32", "v7", "v8", "2", "v7"))
    a(v3("v_lshlrev_b32", "v7", "4", "v7"))
    a(v3("v_and_b32", "v8", "1", "v3"))
    a(v3("v_lshl_add_u32", "v7", "v8", "3", "v7"))
    a(v3("v_lshl_add_u32", "v7", "v5", "7", "v7"))
    a(v3("v_lshl_add_u32", "v7", "v4", "10", "v7"))
    a(v3("v_add_u32", f"v{P_RB[0]}", str(PST + 24576), "v7"))
    a(v3("v_xor_b32", f"v{P_RB[1]}", "32", f"v{P_RB[0]}"))
    a(salu(f"s_cmp_eq_u32 s{S_PSC}, 2", ["scc"], [f"s{S_PSC}"]))
    a(salu("s_cselect_b32 s23, 2, 3", ["s23"], ["scc"]))
    a(salu("s_cselect_b32 s25, 3, 7", ["s25"], ["scc"]))
    a(salu("s_cselect_b32 s27, 49152, 0", ["s27"], ["scc"]))
    a(salu(f"s_cselect_b32 s43, 0, s{S_PSC}", ["s43"], ["scc", f"s{S_PSC}"]))
    a(salu("s_lshl1_add_u32 s43, s43, s24", ["s43", "scc"], ["s43", "s24"]))
    a(salu("s_lshl_b32 s43, s43, 5", ["s43", "scc"], ["s43"]))
    a(salu(f"s_add_u32 s{S_PSO}, s{S_PSO}, s27", [f"s{S_PSO}", "scc"], [f"s{S_PSO}", "s27"]))
    a(v3("v_and_b32", "v7", "s25", "v3"))
    a(v3("v_mul_u32_u24", "v7", "0x1800", "v7"))
    a(v3("v_lshl_add_u32", "v7", "v4", "8", "v7"))
    for u in range(2):
        a(v3("v_add_u32", "v8", "s43", "v3"))
        if u:
            a(v3("v_add_u32", "v8", "16", "v8"))
        a(v3("v_lshrrev_b32", "v8", "s23", "v8"))
        a(v3("v_lshl_add_u32", f"v{P_SO[u]}", "v8", "4", "v7"))
    gate(xn)
    for k in range(6):
        a_read(k)
        for u in range(2):
            for j in range(2):
                d = P_U + 24 * u + 4 * k + 2 * j
                a(Inst(f"ds_read_b64_tr_b16 {T('v', d, 2)}, v{P_RB[u]} offset:{4096 * k + 512 * j}", "dsr", defs=R('v', d, 2), uses=[f"v{P_RB[u]}"]))
        if k == 1:
            x_small(xn[1])
        if k >= 2:
            a(raw("s_waitcnt lgkmcnt(12)", "wait"))
            for u in range(2):
                for h in range(2):
                    a(mfma("v", P_C + 8 * u + 4 * h, "v", P_A + 24 * h + 4 * (k - 2), "v", P_U + 24 * u + 4 * (k - 2), k == 2))
    for k in (4, 5):
        a(raw(f"s_waitcnt lgkmcnt({6 * (5 - k)})", "wait"))
        for u in range(2):
            for h in range(2):
                a(mfma("v", P_C + 8 * u + 4 * h, "v", P_A + 24 * h + 4 * k, "v", P_U + 24 * u + 4 * k, False))
    for u in range(2):
        finish(P_C + 8 * u, P_B + 4 * u, False)
        a(Inst(f"buffer_store_dwordx4 {T('v', P_B + 4 * u, 4)}, v{P_SO[u]}, s[12:15], s{S_PSO} offen", "vstore",
               uses=R('v', P_B + 4 * u, 4) + [f"v{P_SO[u]}", f"s{S_PSO}"], wide=True))
    flag()
    x_small(xn[2])
    a(raw("s_branch L_np3"))


def gen_alone(o):
    p = []
    a = p.append
    J, MAT, CTX, SS, T0, T1, T2, IT = 44, 45, 46, 47, 42, 43, 27, 30
    a(raw("L_alone:", "label"))
    a(raw("s_waitcnt vmcnt(0) lgkmcnt(0)", "wait"))
    a(salu(f"s_lshl_b32 s{T0}, s2, 2", [f"s{T0}", "scc"], ["s2"]))
    a(salu(f"s_add_u32 s{T0}, s{T0}, s38", [f"s{T0}", "scc"], [f"s{T0}", "s38"]))
    a(salu(f"s_mul_i32 s{T0}, s{T0}, {SLOT}", [f"s{T0}"], [f"s{T0}"]))
    a(salu(f"s_add_u32 s{T0}, s{T0}, {WS_PRIV}", [f"s{T0}", "scc"], [f"s{T0}"]))
    ws_srd(a, T0)
    srd(a, 64, S_KA + 2, 192 * 576 * 2)
    srd(a, 68, S_KA + 4, 192 * 192 * 2)
    a(v3("v_lshrrev_b32", "v5", "2", "v3"))
    a(v3("v_and_b32", "v6", "3", "v3"))
    a(v3("v_lshl_add_u32", "v5", "v5", "3", "v6"))
    a(v3("v_mul_u32_u24", "v5", "0x480", "v5"))
    a(v3("v_lshl_add_u32", "v5", "v4", "4", "v5"))
    a(salu(f"s_mov_b32 s{IT}, 0", [f"s{IT}"], []))
    a(raw("L_al_loop:", "label"))
    a(salu(f"s_cmp_ge_u32 s{IT}, 18", ["scc"], [f"s{IT}"]))
    a(salu(f"s_cselect_b32 s{MAT}, 1, 0", [f"s{MAT}"], ["scc"]))
    a(salu(f"s_cselect_b32 s{T0}, 18, 0", [f"s{T0}"], ["scc"]))
    a(salu(f"s_sub_u32 s{J}, s{IT}, s{T0}", [f"s{J}", "scc"], [f"s{IT}", f"s{T0}"]))
    a(salu(f"s_lshr_b32 s{T0}, s{S_ROT}, 10", [f"s{T0}", "scc"], [f"s{S_ROT}"]))
    a(salu(f"s_add_u32 s{J}, s{J}, s{T0}", [f"s{J}", "scc"], [f"s{J}", f"s{T0}"]))
    a(salu(f"s_sub_u32 s{T0}, s{J}, 72", [f"s{T0}", "scc"], [f"s{J}"]))
    a(salu(f"s_cselect_b32 s{J}, s{J}, s{T0}", [f"s{J}"], ["scc", f"s{J}", f"s{T0}"]))
    a(salu(f"s_mul_i32 s{CTX}, s{J}, 43", [f"s{CTX}"], [f"s{J}"]))
    a(salu(f"s_lshr_b32 s{CTX}, s{CTX}, 8", [f"s{CTX}", "scc"], [f"s{CTX}"]))
    assert all((r * 43) >> 8 == r // 6 for r in range(72))
    a(salu(f"s_mul_i32 s{SS}, s{CTX}, 6", [f"s{SS}"], [f"s{CTX}"]))
    a(salu(f"s_sub_u32 s{SS}, s{J}, s{SS}", [f"s{SS}", "scc"], [f"s{J}", f"s{SS}"]))
    a(salu(f"s_mul_i32 s{T0}, s{MAT}, 72", [f"s{T0}"], [f"s{MAT}"]))
    a(salu(f"s_add_u32 s{J}, s{J}, s{T0}", [f"s{J}", "scc"], [f"s{J}", f"s{T0}"]))
    a(salu(f"s_lshl_b32 s{S_PSO}, s{J}, 10", [f"s{S_PSO}", "scc"], [f"s{J}"]))
    a(salu(f"s_mul_i32 s{T0}, s{SS}, 36864", [f"s{T0}"], [f"s{SS}"]))
    a(salu(f"s_mul_i32 s{T1}, s{MAT}, 768", [f"s{T1}"], [f"s{MAT}"]))
    a(salu(f"s_add_u32 s{T0}, s{T0}, s{T1}", [f"s{T0}", "scc"], [f"s{T0}", f"s{T1}"]))
    a(salu(f"s_add_u32 s{T1}, s{T0}, 4608", [f"s{T1}", "scc"], [f"s{T0}"]))
    for k in range(6):
        for h in range(2):
            d = P_A + 24 * h + 4 * k
            a(Inst(f"buffer_load_dwordx4 {T('v', d, 4)}, v5, s[64:67], s{(T0, T1)[h]} offen offset:{64 * k}", "vload",
                   defs=R('v', d, 4), uses=["v5", f"s{T0}", f"s{T1}"]))
    a(salu(f"s_cmp_eq_u32 s{MAT}, 1", ["scc"], [f"s{MAT}"]))
    a(raw("s_cbranch_scc1 L_al_n"))
    a(salu(f"s_lshr_b32 s{T0}, s{CTX}, 1", [f"s{T0}", "scc"], [f"s{CTX}"]))
    a(salu(f"s_mul_i32 s{T0}, s{T0}, 36864", [f"s{T0}"], [f"s{T0}"]))
    a(salu(f"s_and_b32 s{T1}, s{CTX}, 1", [f"s{T1}", "scc"], [f"s{CTX}"]))
    a(salu(f"s_mul_i32 s{T1}, s{T1}, 4608", [f"s{T1}"], [f"s{T1}"]))
    a(salu(f"s_add_u32 s{T0}, s{T0}, s{T1}", [f"s{T0}", "scc"], [f"s{T0}", f"s{T1}"]))
    a(salu(f"s_add_u32 s{T0}, s{T0}, 384", [f"s{T0}", "scc"], [f"s{T0}"]))
    for k in range(6):
        a(Inst(f"buffer_load_dwordx4 {T('v', P_B + 4 * k, 4)}, v5, s[64:67], s{T0} offen offset:{64 * k}", "vload",
               defs=R('v', P_B + 4 * k, 4), uses=["v5", f"s{T0}"]))
    a(salu(f"s_mov_b32 s{S_PSC}, 0x{f32bits(ALPHA):08x}", [f"s{S_PSC}"], []))
    a(raw("s_waitcnt vmcnt(0)", "wait"))
    a(raw("s_branch L_al_mm"))
    a(raw("L_al_n:", "label"))
    a(salu(f"s_cmp_lt_u32 s{CTX}, 8", ["scc"], [f"s{CTX}"]))
    a(salu(f"s_cselect_b32 s{T0}, 3, 2", [f"s{T0}"], ["scc"]))
    a(salu(f"s_cselect_b32 s{T1}, 0, 120", [f"s{T1}"], ["scc"]))
    a(salu(f"s_add_u32 s{T1}, s{T1}, s{CTX}", [f"s{T1}", "scc"], [f"s{T1}", f"s{CTX}"]))
    a(v3("v_lshlrev_b32", "v6", f"s{T0}", "v3"))
    a(v3("v_add_u32", "v6", f"s{T1}", "v6"))
    a(v3("v_lshlrev_b32", "v6", "1", "v6"))
    a(v3("v_mul_u32_u24", "v7", "0xc00", "v4"))
    a(v3("v_add_u32", "v6", "v6", "v7"))
    for k in range(6):
        a(salu(f"s_mov_b32 s{T2}, {k * 12288}", [f"s{T2}"], []))
        for j in range(8):
            r = P_U + 8 * k + j
            a(Inst(f"buffer_load_ushort v{r}, v6, s[68:71], s{T2} offen offset:{384 * j}", "vload", defs=[f"v{r}"], uses=["v6", f"s{T2}"]))
    a(salu(f"s_mov_b32 s{S_PSC}, 1.0", [f"s{S_PSC}"], []))
    a(raw("s_waitcnt vmcnt(0)", "wait"))
    for r in range(24):
        a(v3("v_lshl_or_b32", f"v{P_B + r}", f"v{P_U + 2 * r + 1}", "16", f"v{P_U + 2 * r}"))
    a(raw("L_al_mm:", "label"))
    a(raw("s_nop 1", "nop"))
    for k in range(6):
        for h in range(2):
            a(mfma("v", P_C + 4 * h, "v", P_A + 24 * h + 4 * k, "v", P_B + 4 * k, k == 0))
    for r in range(8):
        a(v3("v_mul_f32", f"v{P_C + r}", f"s{S_PSC}", f"v{P_C + r}"))
    for r in range(4):
        a(cvtpk(P_O + r, P_C + 2 * r, P_C + 2 * r + 1))
        a(v3("v_min_u32", f"v{P_O + r}", "-2", f"v{P_O + r}"))
    a(Inst(f"buffer_store_dwordx4 {T('v', P_O, 4)}, v{V_LDS[0]}, s[12:15], s{S_PSO} offen sc1", "vstore",
           uses=R('v', P_O, 4) + [f"v{V_LDS[0]}", f"s{S_PSO}"], wide=True))
    a(raw("s_waitcnt vmcnt(0)", "wait"))
    a(salu(f"s_add_u32 s{IT}, s{IT}, 1", [f"s{IT}", "scc"], [f"s{IT}"]))
    a(salu(f"s_cmp_lt_u32 s{IT}, 36", ["scc"], [f"s{IT}"]))
    a(raw("s_cbranch_scc1 L_al_loop"))
    a(v3("v_mov_b32", f"v{V_EXP}", "0"))
    a(salu("s_mov_b32 s37, 0x10000", ["s37"], []))
    a(raw("s_branch L_ldm"))
    return p


XS = [0, 72]
AX49, AT49, AW = 144, 168, 192
NRING = 12
SB = 0
ACC = 64
TBF = 88
OPA = 100
VBF = 124
V_LDS = [220, 221, 222]
V_F = [223, 224, 225]
V_ST = {"H": (232, 233), "V": (234, 235), "Q": (236, 237), "I": (238, 239)}
V_SP = (240, 241)
V_CT = (242, 243)
AP = {1: 240, 2: 248}
V_Q3 = 250
S_TW = 73
S_XS = 76
NBASE = 73728
DSW_BUSY, ST_BUSY, LD_GRP = 40, 40, 1
DROP, PFLAGS = [], [None, None]
CHAIN = set()
V_NINF = 244
V_TMP = [[245, 246, 247, 248, 249], [250, 251, 252, 253, 254]]
V_TIME = 255
S_WCUR, S_LB, S_CB, S_K, S_ROW = 16, 17, 18, 19, 20
S_IT = 28
S_M0, S_M1, S_GM, S_SH, S_SPO, S_GO = 48, 50, 52, 54, 55, 74
S_SPA, S_SPB = 56, 60


def xr(xs, t, s):
    return XS[xs] + 24 * t + 4 * s


def xop(xs, t, s):
    return AX49 + 4 * s if t == 3 else xr(xs, t, s)


def lds_at(idx):
    base, imm = divmod((idx % 144) * 1024, 65536)
    return V_LDS[base], imm


def wfrag_read(idx, slot=None, extra=(), **kw):
    va, imm = lds_at(idx)
    d = AW + 4 * (idx % NRING if slot is None else slot)
    return Inst(f"ds_read_b128 {T('a', d, 4)}, v{va} offset:{imm}", "dsr", defs=R('a', d, 4),
                uses=[f"v{va}"] + list(extra), **kw)


class Ring:
    def __init__(self, seq, have=None):
        self.seq = seq
        self.slot = [have[i] for i in seq[:NRING]] if have else list(range(NRING))
        self.pos = 0
        self.gate = lambda idx: []

    def fill(self, extra=()):
        return [wfrag_read(i, self.slot[p], extra) for p, i in enumerate(self.seq[:NRING])]

    def take(self):
        p = self.pos
        self.pos += 1
        sl = self.slot[p]
        self.slot.append(sl)
        nxt = [wfrag_read(self.seq[p + NRING], sl, self.gate(self.seq[p + NRING]))] if p + NRING < len(self.seq) else []
        return AW + 4 * sl, nxt


def xload(xs, t, s, sbase, flags="", sr=4, **kw):
    d = xr(xs, t, s)
    return Inst(f"buffer_load_dwordx4 {T('a', d, 4)}, v{V_F[t]}, s[{sr}:{sr+3}], s{sbase} offen offset:{64 * s}" + flags,
                "vload", defs=R('a', d, 4), uses=[f"v{V_F[t]}", f"s{sbase}", f"s{sr+2}"], **kw)


def xloads(xs, sbase, flags, rel=None, step=0):
    out = []
    k = 0
    for j in range(3):
        for t in range(3):
            for u in range(2):
                kw = {}
                if rel is not None:
                    at = rel + step * (k - k % LD_GRP) + 16 * (k % LD_GRP)
                    kw = dict(release=at, deadline=at + 48)
                out.append(xload(xs, t, 2 * j + u, sbase, flags, **kw))
                k += 1
    return out


def vb(ct):
    return VBF + 8 * ct


def opk(q, i, part):
    if q == 3:
        return TBF + 4 * i if part == 0 else V_Q3 + 2 * i
    return OPA + 4 * i if part == 0 else OPA + 16 + 2 * i


def o_mf(q, pr, acc=None, held=False):
    acc = SB + 16 * q + 8 if acc is None else acc
    bank, pb = ("a", AP[q]) if held else ("v", SB + 16 * q)
    out = []
    for ks, e in ([(0, 0), (1, 0), (0, 1), (1, 1)] if "o" in CHAIN else [(0, 0), (0, 1), (1, 0), (1, 1)]):
        out.append(mfma("v", acc + 4 * e, bank, pb + 4 * ks, "v", vb(2 * pr + e) + 4 * ks, ks == 0))
    return out


def o_pack(q, pr, acc=None):
    acc = SB + 16 * q + 8 if acc is None else acc
    out = []
    for i in range(2 if q == 3 else 4):
        d = opk(q, i, 0) + pr if pr < 4 else opk(q, i, 1) + pr - 4
        out.append(cvtpk(d, acc + i, acc + 4 + i))
    return out


def o_store(q, part, flags="", rel=None, step=0):
    out = []
    n = (4, 2)[part]
    for i in range(2 if q == 3 else 4):
        d = opk(q, i, part)
        if q == 3:
            vo, row, imm, sr = V_SP[part], None, 0, (S_SPA, S_SPB)[i]
        else:
            kind, pp = STRIPS[4 * q + i]
            vo, sr = V_ST[kind][part], 8
            row, imm = {"H": (pp, 0), "V": (0, pp * 384), "Q": (4, 4 * 384), "I": (4, 0)}[kind]
        so = f"s{S_SPO}" if row is None else f"s{S_ROW + row}"
        if part in DROP and q != 3:
            sr = 80
        if PFLAGS[part] is not None:
            flags = PFLAGS[part]
        out.append(Inst(f"buffer_store_dwordx{n} {T('v', d, n)}, v{vo}, s[{sr}:{sr+3}], {so} offen offset:{imm + 256 * part}{flags}",
                        "vstore", uses=R('v', d, n) + [f"v{vo}", so, f"s{sr+2}"], wide=(n == 4)))
        out[-1].cost, out[-1].real, out[-1].busy = 8, 4 + 4 * n, ST_BUSY
        if rel is not None:
            out[-1].release = rel + step * i
    return out


def xlane(op, m0, m1):
    p = []
    for sw in ("v_permlane32_swap_b32", "v_permlane16_swap_b32"):
        p.append(v3("v_mov_b32", f"v{m1}", f"v{m0}"))
        p.append(valu(f"{sw} v{m0}, v{m1}", [f"v{m0}", f"v{m1}"], [f"v{m0}", f"v{m1}"], kind="perm"))
        p.append(v3(op, f"v{m0}", f"v{m0}", f"v{m1}"))
    return p


def softmax(q, tset, part=3, hold=False):
    b = SB + 16 * q
    m0, m1, s0, s1, rr = V_TMP[tset]
    p = []
    p.append(cnd(f"v{b + 12}", f"v{V_NINF}", f"v{b + 12}", S_M0))
    p.append(cnd(f"v{b + 12}", f"v{b + 12}", f"v{b + 13}", S_M1))
    regs = [b + r for r in range(13)]
    m3 = lambda d, x, y, z: v3("v_max3_f32", f"v{d}", f"v{x}", f"v{y}", f"v{z}")
    p.append(m3(m0, regs[0], regs[1], regs[2]))
    p.append(m3(m1, regs[3], regs[4], regs[5]))
    p.append(m3(m0, m0, regs[6], regs[7]))
    p.append(m3(m1, m1, regs[8], regs[9]))
    p.append(m3(m0, m0, regs[10], regs[11]))
    p.append(m3(m0, m0, m1, regs[12]))
    p.extend(xlane("v_max_f32", m0, m1))
    for r in regs:
        p.append(v3("v_sub_f32", f"v{r}", f"v{r}", f"v{m0}"))
        p.append(valu(f"v_exp_f32 v{r}, v{r}", [f"v{r}"], [f"v{r}"], kind="trans"))
    p.append(v3("v_add_f32", f"v{s0}", f"v{regs[0]}", f"v{regs[1]}"))
    p.append(v3("v_add_f32", f"v{s1}", f"v{regs[2]}", f"v{regs[3]}"))
    for k in range(4, 13):
        s = (s0, s1)[k & 1]
        p.append(v3("v_add_f32", f"v{s}", f"v{s}", f"v{regs[k]}"))
    p.append(v3("v_add_f32", f"v{s0}", f"v{s0}", f"v{s1}"))
    p.extend(xlane("v_add_f32", s0, s1))
    p.append(valu(f"v_rcp_f32 v{rr}, v{s0}", [f"v{rr}"], [f"v{s0}"], kind="trans"))
    if part == 1:
        return p
    if part == 2:
        p = []
    for k in range(0, 12, 2):
        p.append(v3("v_mul_f32", f"v{regs[k]}", f"v{regs[k]}", f"v{rr}"))
        p.append(v3("v_mul_f32", f"v{regs[k + 1]}", f"v{regs[k + 1]}", f"v{rr}"))
        p.append(cvtpk(b + k // 2, regs[k], regs[k + 1]))
    p.append(v3("v_mul_f32", f"v{regs[12]}", f"v{regs[12]}", f"v{rr}"))
    p.append(cvtpk(b + 6, regs[12], None))
    p.append(v3("v_lshlrev_b32", f"v{b + 6}", f"s{S_SH}", f"v{b + 6}"))
    if not hold:
        p.append(v3("v_mov_b32", f"v{b + 7}", "0"))
    return p


def p_hold(q):
    return [valu(f"v_accvgpr_write_b32 a{AP[q] + r}, v{SB + 16 * q + r}", [f"a{AP[q] + r}"], [f"v{SB + 16 * q + r}"])
            for r in range(7)]


def win_base(dst, w, tmp):
    return [
        salu(f"s_mul_hi_u32 s{tmp}, s{w}, s29", [f"s{tmp}"], [f"s{w}", "s29"]),
        salu(f"s_mul_i32 s{dst}, s{tmp}, 73", [f"s{dst}"], [f"s{tmp}"]),
        salu(f"s_sub_u32 s{dst}, s{w}, s{dst}", [f"s{dst}", "scc"], [f"s{w}", f"s{dst}"]),
        salu(f"s_mul_i32 s{dst}, s{dst}, 2688", [f"s{dst}"], [f"s{dst}"]),
        salu(f"s_mul_i32 s{tmp}, s{tmp}, {WINROW}", [f"s{tmp}"], [f"s{tmp}"]),
        salu(f"s_add_u32 s{dst}, s{dst}, s{tmp}", [f"s{dst}", "scc"], [f"s{dst}", f"s{tmp}"]),
    ]


def row_bases(o=None):
    out = [] if o is None or o.nostore else [salu("s_mov_b32 s10, s31", ["s10"], ["s31"])]
    out += [salu(f"s_mov_b32 s{S_ROW}, s{S_CB}", [f"s{S_ROW}"], [f"s{S_CB}"])]
    for r in range(1, 7):
        out.append(salu(f"s_add_u32 s{S_ROW + r}, s{S_CB}, {r * ROWB}", [f"s{S_ROW + r}", "scc"], [f"s{S_CB}"]))
    out.append(salu(f"s_sub_u32 s{S_SPO}, s{S_ROW + 6}, s{S_GO}", [f"s{S_SPO}", "scc"], [f"s{S_ROW + 6}", f"s{S_GO}"]))
    out.append(salu(f"s_add_u32 s{S_SPO}, s{S_SPO}, {6 * 384}", [f"s{S_SPO}", "scc"], [f"s{S_SPO}"]))
    return out


def slot_masks():
    k = S_K
    return [
        salu(f"s_and_b32 s30, s{k}, 3", ["s30", "scc"], [f"s{k}"]),
        salu(f"s_mul_i32 s{S_GO}, s30, 384", [f"s{S_GO}"], ["s30"]),
        salu("s_lshl_b32 s30, s30, 4", ["s30", "scc"], ["s30"]),
        salu(f"s_lshl_b64 s[{S_GM}:{S_GM+1}], s[40:41], s30", [f"s{S_GM}", f"s{S_GM+1}", "scc"], ["s40", "s41", "s30"]),
        salu(f"s_cmp_lt_u32 s{k}, 4", ["scc"], [f"s{k}"]),
        salu(f"s_cselect_b64 s[{S_M0}:{S_M0+1}], s[{S_GM}:{S_GM+1}], 0", [f"s{S_M0}", f"s{S_M0+1}"], ["scc", f"s{S_GM}", f"s{S_GM+1}"]),
        salu(f"s_cselect_b64 s[{S_M1}:{S_M1+1}], 0, s[{S_GM}:{S_GM+1}]", [f"s{S_M1}", f"s{S_M1+1}"], ["scc", f"s{S_GM}", f"s{S_GM+1}"]),
        salu(f"s_cselect_b32 s{S_SH}, 0, 16", [f"s{S_SH}"], ["scc"]),
        salu(f"s_cselect_b32 s{S_SPA+2}, s31, 0", [f"s{S_SPA+2}"], ["scc", "s31"]),
        salu(f"s_cselect_b32 s{S_SPB+2}, 0, s31", [f"s{S_SPB+2}"], ["scc", "s31"]),
        salu(f"s_add_u32 s{k}, s{k}, 1", [f"s{k}", "scc"], [f"s{k}"]),
        cnd(f"v{V_SP[0]}", f"v{V_NINF}", f"v{V_ST['H'][0]}", S_GM),
        cnd(f"v{V_SP[1]}", f"v{V_NINF}", f"v{V_ST['H'][1]}", S_GM),
    ]


def carry_head(o):
    p = cvt_v(11)
    for q in (1, 2):
        if q in o.defer:
            p += softmax(q, q & 1, 2, True)
        p += p_hold(q)
    return p


def carry_30(o):
    p = o_mf(3, 5) + o_mf(0, 5) + o_pack(3, 5) + o_pack(0, 5)
    return p + o_store(3, 1, o.st_flags) + o_store(0, 1, o.st_flags)


def carry_grp(o, g, acc, pace=False):
    q, pr = 1 + g // 6, g % 6
    p = o_mf(q, pr, acc, True) + o_pack(q, pr, acc)
    if pr in (3, 5):
        rel, step = None, 0
        if pace and q == 2:
            rel, step = [int(x) for x in (o.q2p0, o.q2p1)[pr >> 2].split(",")]
        p += o_store(q, pr >> 2, o.st_flags, rel, step)
    return p


def cvt_v(ct):
    out = []
    for t in range(3):
        acc = ACC + 12 * (ct & 1) + 4 * t
        for h in range(2):
            out.append(cvtpk(vb(ct) + 2 * t + h, acc + 2 * h, acc + 2 * h + 1))
    return out


def s3(xs):
    order = [(s, kt) for kt in range(4) for s in range(6)] if "s" in CHAIN else [(s, kt) for s in range(6) for kt in range(4)]
    return [mfma("v", SB + 48 + 4 * kt, "a", xop(xs, kt, s), "a", AT49 + 4 * s, s == 0) for s, kt in order]


CT = ["L_b1", "L_b1+8192", "L_main_done-8064"]


def code_touch(k, rel):
    b = 84 + 2 * k
    return [Inst(f"global_load_dword v{V_CT[1]}, v{V_CT[0]}, s[{b}:{b+1}]", "vload", defs=["~ct"], uses=[f"v{V_CT[0]}"],
                 release=rel, deadline=rel + 48, tag="pf")]


def gen_body(o, xs):
    p = []
    ext = p.extend
    NM = 624
    if o.ct and xs == 0:
        for k in range(3):
            ext(code_touch(k, o.ct + 200 * k))
    p.append(salu(f"s_add_u32 s{S_WCUR}, s{S_WCUR}, 1024", [f"s{S_WCUR}", "scc"], [f"s{S_WCUR}"], deadline=0))
    ext(win_base(S_LB, S_WCUR, 27))
    if xs == 0:
        p.append(salu(f"s_cmp_lt_u32 s{S_K}, 4", ["scc"], [f"s{S_K}"]))
        p.append(salu(f"s_cselect_b32 s6, {'0' if o.noload else 's31'}, 0", ["s6"], ["scc", "s31"]))
    ext(xloads(xs ^ 1, S_LB, o.ld_flags, o.ld_rel, o.ld_step))
    ext(carry_head(o))

    def chain(mat, ct):
        out = []
        if "t" in CHAIN:
            order = [(t, s) for t in range(3) for s in range(6)]
        elif "h" in CHAIN:
            order = [(t, s) for h in range(2) for t in range(3) for s in range(3 * h, 3 * h + 3)]
        else:
            order = [(t, s) for s in range(6) for t in range(3)]
        for t, s in order:
            idx = 72 * mat + 6 * ct + s
            w = AW + 4 * (idx % NRING)
            acc = ACC + 12 * (ct & 1) + 4 * t
            if mat == 0:
                out.append(mfma("v", acc, "a", w, "a", xr(xs, t, s), s == 0))
            else:
                out.append(mfma("v", acc, "a", xr(xs, t, s), "a", w, s == 0))
            if t == 2:
                kw = {}
                if idx + NRING >= 144:
                    kw = dict(deadline=NM * 16 + (16 if "t" in CHAIN else 48) * (idx + NRING - 144) - 220)
                out.append(wfrag_read(idx + NRING, **kw))
        return out

    def cvt_t(ct):
        out = []
        for t in range(3):
            acc = ACC + 12 * (ct & 1) + 4 * t
            for h in range(2):
                out.append(cvtpk(TBF + 4 * t + 2 * (ct & 1) + h, acc + 2 * h, acc + 2 * h + 1))
        return out

    def s_mf(sp):
        return [mfma("v", SB + 16 * q + 4 * kt, "a", xop(xs, kt, sp), "v", TBF + 4 * q, sp == 0)
                for q in range(3) for kt in range(4)]

    def o_grp(pr):
        out = o_mf(3, pr) + o_mf(0, pr) + o_pack(3, pr) + o_pack(0, pr)
        if pr == 3:
            out += o_store(3, 0, o.st_flags) + o_store(0, 0, o.st_flags)
        return out

    grp = iter(range(12))

    def carried():
        return carry_grp(o, next(grp), SB + 56, True)

    ext(chain(0, 0))
    ext(carry_30(o))
    ext(slot_masks())
    ext(cvt_t(0))
    ext(chain(0, 1))
    ext(s3(xs))
    ext(softmax(3, 1))
    ext(cvt_t(1))
    for ct in range(2, 12):
        ext(chain(0, ct))
        if ct >= 4 and ct % 2 == 0:
            ext(carried())
        if ct % 2 == 0:
            ext(s_mf(ct // 2 - 1))
        ext(cvt_t(ct))
        if ct >= 4:
            ext(carried())
    ext(row_bases(o if xs == 0 else None))
    p.append(salu(f"s_mov_b32 s{S_CB}, s{S_LB}", [f"s{S_CB}"], [f"s{S_LB}"]))
    ext(chain(1, 0))
    ext(s_mf(5))
    for q in range(3):
        ext(softmax(q, q & 1, 1 if q in o.defer else 3, q > 0))
    ext(cvt_v(0))
    after = dict(zip([int(x) for x in o.after.split(",")], range(5)))
    for ct in range(1, 12):
        ext(chain(1, ct))
        if ct in after:
            ext(o_grp(after[ct]))
        if ct < 11:
            ext(cvt_v(ct))
    assert sum(i.kind == "mfma" for i in p) == NM
    for i in p:
        if i.kind != "mfma" and i.deadline is None and i.kind != "dsr":
            i.deadline = NM * 16 - 24
    for k in o.rm.split(","):
        if k == "ring":
            p = [i for i in p if i.kind != "dsr"]
        elif k:
            p = [i for i in p if i.kind != k]
    return p


def gen_epi(o):
    p = carry_head(o)
    for g in range(3):
        p += carry_grp(o, g, SB + 16 + 8 * (g % 4))
    p += carry_30(o)
    for g in range(3, 12):
        p += carry_grp(o, g, SB + 16 + 8 * (g % 4))
    return p


XSTAGED = [(0, 0), (0, 1), (1, 0), (1, 1), (2, 0), (2, 1), (1, 2), (2, 2)]
V_R0 = (226, 227)
V_NA = OPA
V_NS = VBF


def n_load(k, **kw):
    return Inst(f"buffer_load_dwordx4 {T('v', V_NS + 4 * k, 4)}, v{V_NA + k // 3}, s[12:15], 0 offen offset:{1024 * (k % 3)} sc1", "vload",
                defs=R('v', V_NS + 4 * k, 4), uses=[f"v{V_NA + k // 3}"], **kw)


def gen_shared(o, q):
    xs = 1
    p = []
    ext = p.extend
    own = [2 * q, 2 * q + 1] if q < 3 else [6, 7, 8, 9]
    solo = [ct for ct in range(10) if ct not in own]
    F = [SB + 16 * a for a in range(4) if a != q]
    v_x8 = V_TMP[(q & 1) ^ 1][0]
    st_imm = STAGE - 0x20000
    plan = [("v", ct) for ct in own]
    if q == 3:
        plan += [("s", solo[0], solo[1]), ("s", solo[2], solo[3]), ("x",), ("v", 10), ("o", 3), ("o", 4), ("s", solo[4], solo[5]),
                 ("o", 0), ("o", 1), ("v", 11), ("o", 2), ("o", 5)]
        assert solo == [0, 1, 2, 3, 4, 5]
    else:
        oth = [pr for pr in range(5) if pr != q]
        plan += [("x",), ("s", solo[0], solo[1]), ("s", solo[2], solo[3]), ("v", 10), ("o", q), ("o", oth[0]), ("s", solo[4], solo[5]),
                 ("o", oth[1]), ("s", solo[6], solo[7]), ("o", oth[2]), ("v", 11), ("o", oth[3]), ("o", 5)]
    seq = [6 * (2 * c + e) + s for c in range(6) for s in range(6) for e in range(2)]
    for st in plan:
        if st[0] == "v":
            seq += [72 + 6 * st[1] + s for s in range(6)]
        elif st[0] == "s":
            seq += [72 + 6 * ct + s for s in range(6) for ct in st[1:]]
    assert sorted(seq) == list(range(144))
    seq += list(range(NRING))
    ring = Ring(seq)
    ring.gate = lambda idx: ["~b2"] if idx >= 72 else []
    p.append(Inst("s_barrier", "other", defs=["~b1"], deadline=0))
    xrd = {}
    for f, (t, j) in enumerate(XSTAGED):
        for u in range(2):
            d = xr(xs, t, 2 * j + u)
            xrd[t, 2 * j + u] = Inst(f"ds_read_b128 {T('a', d, 4)}, v{V_R0[u]} offset:{2048 * f}", "dsr", defs=R('a', d, 4),
                                     uses=[f"v{V_R0[u]}", "~b1"])
    fill = ring.fill(["~b1"])
    first = sorted(xrd, key=lambda k: (k[0] != q, k[1], k[0]))
    nq = sum(k[0] == q for k in xrd)
    for k in range(6):
        ext(fill[2 * k:2 * k + 2])
        if k < nq:
            p.append(xrd[first[k]])
    ext(xrd[k] for k in first[nq:])
    for k in range(o.mdep, 18):
        at = o.nl_rel + o.nl_step * (k - o.mdep)
        p.append(n_load(k, release=at, deadline=at + 48))
    nwr = []
    for k in range(18):
        w = Inst(f"ds_write_b128 v{V_NA + k // 3}, {T('v', V_NS + 4 * k, 4)} offset:{1024 * (k % 3)}", "dsw", defs=[f"~n{k}"],
                 uses=R('v', V_NS + 4 * k, 4) + [f"v{V_NA + k // 3}", "~b1"], release=o.nw_rel + o.nw_step * k)
        w.real, w.busy = 20, DSW_BUSY
        p.append(w)
        nwr.append(f"~n{k}")
    v_chk = V_TMP[(q & 1) ^ 1][1]
    p.append(v3("v_mov_b32", f"v{v_chk}", "0"))
    for k in range(18):
        for h in range(2):
            chk = v3("v_max3_u32", f"v{v_chk}", f"v{v_chk}", f"v{V_NS + 4 * k + 2 * h}", f"v{V_NS + 4 * k + 2 * h + 1}")
            chk.release = o.nw_rel + o.nw_step * k
            p.append(chk)
    p.append(valu(f"v_cmp_eq_u32 vcc, -1, v{v_chk}", ["vcc"], [f"v{v_chk}"]))
    for ct in range(12):
        p.append(v3("v_mov_b32", f"v{vb(ct) + 7}", "0"))
    ext(xloads(0, S_LB, o.ld_flags, o.x0_rel - o.x0_step * o.n_early, o.x0_step)[o.n_early:])
    p.append(v3("v_lshrrev_b32", f"v{v_x8}", "1", f"v{V_LDS[0]}"))
    p.append(v3("v_add_u32", f"v{v_x8}", "0x20000", f"v{v_x8}"))

    def s_step(c):
        if q < 3:
            return [mfma("v", SB + 16 * q + 4 * kt, "a", xop(xs, kt, c), "v", TBF + 4 * (c & 1), c == 0) for kt in range(4)]
        return [mfma("v", SB + 48 + 4 * kt, "a", xop(xs, kt, c), "a", AT49 + 4 * c, c == 0) for kt in range(4)]

    for c in range(6):
        for s in range(6):
            for e in range(2):
                if ring.pos + NRING == 72:
                    p.append(Inst(f"s_nop 1\n    s_cbranch_vccnz L_again\nL_back{q}:", "other", defs=["~ok"], uses=nwr + ["vcc"]))
                    p.append(Inst("s_waitcnt lgkmcnt(0)", "wait", defs=["~wN"], uses=nwr + ["~ok"]))
                    p.append(Inst("s_barrier", "other", defs=["~b2"], uses=["~wN"]))
                w, nxt = ring.take()
                p.append(mfma("v", F[0] + 8 * (c & 1) + 4 * e, "a", w, "a", AX49 + 4 * s, s == 0))
                if q < 3:
                    p.append(mfma("v", ACC + 8 * (c % 3) + 4 * e, "a", w, "a", xr(xs, q, s), s == 0))
                ext(nxt)
            if c and s == (2 if q < 3 else 4):
                ext(s_step(c - 1))
        for e in range(2):
            for h in range(2):
                if q < 3:
                    acc = ACC + 8 * (c % 3) + 4 * e
                    p.append(cvtpk(TBF + 4 * (c & 1) + 2 * e + h, acc + 2 * h, acc + 2 * h + 1))
        for e in range(2):
            for h in range(2):
                acc = F[0] + 8 * (c & 1) + 4 * e
                tmp = F[1] + 4 * (c & 1) + 2 * e + h
                p.append(cvtpk(tmp, acc + 2 * h, acc + 2 * h + 1))
                d = AT49 + 4 * c + 2 * e + h
                p.append(valu(f"v_accvgpr_write_b32 a{d}, v{tmp}", [f"a{d}"], [f"v{tmp}"]))
    a49 = iter([F[0] + 4 * (k % 4) for k in range(12)])
    oacc = iter([F[1], F[2], F[2] + 8, F[1] + 8, F[1], F[2]])
    wr = []
    done = []
    for k, st in enumerate(plan):
        if st[0] == "v":
            ct = st[1]
            a = next(a49)
            for s in range(6):
                w, nxt = ring.take()
                for t in range(3):
                    p.append(mfma("v", ACC + 12 * (ct & 1) + 4 * t, "a", xr(xs, t, s), "a", w, s == 0))
                p.append(mfma("v", a, "a", AX49 + 4 * s, "a", w, s == 0))
                ext(nxt)
                if k == 0 and s == o.tail_s:
                    ext(s_step(5))
                    ext(softmax(q, q & 1))
            ext(cvt_v(ct))
            p.append(cvtpk(vb(ct) + 6, a, a + 1))
            if ct in own:
                for va, off, h, n in ((V_LDS[2], 1024 * ct, 0, 4), (v_x8, 10240 + 512 * ct, 1, 2)):
                    w = Inst(f"ds_write_b{32 * n} v{va}, {T('v', vb(ct) + 4 * h, n)} offset:{st_imm + off}", "dsw", defs=[f"~x{ct}{h}"],
                             uses=R('v', vb(ct) + 4 * h, n) + [f"v{va}", "~b2"])
                    w.real, w.busy = 4 + 4 * n, DSW_BUSY
                    p.append(w)
                    wr.append(f"~x{ct}{h}")
        elif st[0] == "s":
            aa = [next(a49), next(a49)]
            for s in range(6):
                for a in aa:
                    w, nxt = ring.take()
                    p.append(mfma("v", a, "a", AX49 + 4 * s, "a", w, s == 0))
                    ext(nxt)
            for a, ct in zip(aa, st[1:]):
                p.append(cvtpk(vb(ct) + 6, a, a + 1))
        elif st[0] == "x":
            p.append(Inst("s_waitcnt lgkmcnt(0)", "wait", defs=["~wB"], uses=wr))
            p.append(Inst("s_barrier", "other", defs=["~b3"], uses=["~wB"]))
            for pr in [x[1] for x in plan if x[0] == "o"]:
                for ct in (2 * pr, 2 * pr + 1):
                    if ct in solo:
                        for va, off, h, n in ((V_LDS[2], 1024 * ct, 0, 4), (v_x8, 10240 + 512 * ct, 1, 2)):
                            p.append(Inst(f"ds_read_b{32 * n} {T('v', vb(ct) + 4 * h, n)}, v{va} offset:{st_imm + off}", "dsr",
                                          defs=R('v', vb(ct) + 4 * h, n), uses=[f"v{va}", "~b3"]))
        else:
            pr = st[1]
            a = next(oacc)
            ext(o_mf(q, pr, a))
            ext(o_pack(q, pr, a))
            done.append(pr)
            for part, grp2 in ((0, (0, 1, 2, 3)), (1, (4, 5))):
                if pr in grp2 and all(g in done for g in grp2):
                    ext(o_store(q, part, o.st_flags))
    p.append(salu("s_mov_b32 s10, 0", ["s10"], []))
    p.append(salu(f"s_mov_b32 s{S_SPB+2}, 0", [f"s{S_SPB+2}"], []))
    p.append(salu(f"s_mov_b32 s{S_CB}, s{S_LB}", [f"s{S_CB}"], [f"s{S_LB}"]))
    return p


def kind_offsets(a, g, regs):
    h, v, qq, ii, tmp = regs
    a(v3("v_mul_u32_u24", h, "0x180", g))
    a(v3("v_mul_lo_u32", v, g, "s39"))
    a(v3("v_lshrrev_b32", qq, "1", g))
    a(v3("v_mul_lo_u32", qq, qq, "s39"))
    a(v3("v_and_b32", ii, "1", g))
    a(v3("v_mul_u32_u24", ii, "0x180", ii))
    a(v3("v_add_u32", qq, qq, ii))
    for k in range(4):
        r, c = I_TOK[k]
        off = (r - 4) * ROWB + c * 384
        if k == 0:
            a(v3("v_mov_b32", ii, str(off)))
        else:
            a(valu(f"v_cmp_eq_u32 vcc, {k}, {g}", ["vcc"], [g]))
            a(v3("v_mov_b32", tmp, str(off)))
            a(valu(f"v_cndmask_b32 {ii}, {ii}, {tmp}, vcc", [ii], [ii, tmp, "vcc"]))


def gen_prologue(o):
    p = []
    a = p.append
    a(raw("s_cmp_lt_u32 s2, 256", "salu", ["scc"], ["s2"]))
    a(raw("s_cbranch_scc1 L_go"))
    a(raw("s_endpgm"))
    a(raw("L_go:", "label"))
    a(raw(f"s_load_dwordx8 s[{S_KA}:{S_KA+7}], s[0:1], 0"))
    a(raw(f"s_load_dwordx4 s[{S_KB}:{S_KB+3}], s[0:1], 32"))
    if o.diag:
        a(raw("s_memtime s[44:45]"))
        a(raw("s_memrealtime s[46:47]"))
    a(v3("v_and_b32", "v1", "63", "v0"))
    a(v3("v_lshrrev_b32", "v2", "6", "v0"))
    a(v3("v_and_b32", "v3", "15", "v1"))
    a(valu("v_readfirstlane_b32 s38, v2", ["s38"], ["v2"]))
    a(v3("v_lshrrev_b32", "v4", "4", "v1"))
    a(v3("v_lshlrev_b32", f"v{V_LDS[0]}", "4", "v1"))
    a(raw("s_getpc_b64 s[90:91]", "salu", ["s90", "s91"]))
    a(raw("L_here:", "label"))
    a(v3("v_lshlrev_b32", f"v{V_CT[0]}", "7", "v1"))
    a(raw("s_getreg_b32 s3, hwreg(HW_REG_XCC_ID, 0, 4)", "salu", ["s3"]))
    a(salu(f"s_lshr_b32 s{S_J}, s2, 3", [f"s{S_J}", "scc"], ["s2"]))
    if not o.nomap:
        a(salu(f"s_cmp_ge_u32 s{S_J}, {32 - NJN}", ["scc"], [f"s{S_J}"]))
        a(salu(f"s_cselect_b32 s20, {NJM + NJN - 32}, {NJN}", ["s20"], ["scc"]))
        a(salu(f"s_cmp_ge_u32 s{S_J}, {NJM}", ["scc"], [f"s{S_J}"]))
        a(salu("s_cselect_b32 s20, s20, 0", ["s20"], ["scc", "s20"]))
        a(salu(f"s_add_u32 s{S_J}, s{S_J}, s20", [f"s{S_J}", "scc"], [f"s{S_J}", "s20"]))
    if not o.notouch:
        a(salu(f"s_cmp_lg_u32 s38, {o.tw}", ["scc"], ["s38"]))
        a(raw("s_cbranch_scc1 L_nt0"))
        a(salu(f"s_lshl_b32 s20, s{S_J}, 7", ["s20", "scc"], [f"s{S_J}"]))
        a(v3("v_lshl_add_u32", "v5", "v1", "12", "s20"))
        a(v3("v_min_u32", "v5", "L_main_done-L_here", "v5"))
        a(salu(f"s_mov_b64 exec, {(1 << o.tl) - 1}", ["exec"], []))
        a(Inst(f"global_load_dword v{V_CT[1]}, v5, s[90:91]", "vload", defs=[f"v{V_CT[1]}"], uses=["v5", "s90", "s91"]))
        a(salu("s_mov_b64 exec, -1", ["exec"], []))
        a(raw("L_nt0:", "label"))
        rest = -(-(448 - 32 * o.tl) // 20)
        if rest > 0:
            a(salu(f"s_cmp_lt_u32 s{S_J}, {NJM + NJN}", ["scc"], [f"s{S_J}"]))
            a(raw("s_cbranch_scc1 L_nt"))
            a(salu(f"s_lshl2_add_u32 s20, s{S_J}, s38", ["s20", "scc"], [f"s{S_J}", "s38"]))
            a(salu(f"s_mul_i32 s20, s20, {128 * rest}", ["s20"], ["s20"]))
            a(salu(f"s_add_u32 s20, s20, {(4096 * o.tl - 128 * rest * 4 * (NJM + NJN)) & 0xffffffff}", ["s20", "scc"], ["s20"]))
            a(v3("v_add_u32", "v5", "s20", f"v{V_CT[0]}"))
            a(v3("v_min_u32", "v5", "L_main_done-L_here", "v5"))
            a(salu(f"s_mov_b64 exec, {(1 << rest) - 1}", ["exec"], []))
            a(Inst(f"global_load_dword v{V_CT[1]}, v5, s[90:91]", "vload", defs=[f"v{V_CT[1]}"], uses=["v5", "s90", "s91"]))
            a(salu("s_mov_b64 exec, -1", ["exec"], []))
    a(raw("L_nt:", "label"))
    prod_pre(a)
    def win_block():
        a(salu("s_lshl_b32 s16, s2, 2", ["s16", "scc"], ["s2"]))
        a(salu(f"s_mov_b32 s29, {MAGIC73}", ["s29"], []))
        a(salu(f"s_mov_b32 s31, {XBYTES}", ["s31"], []))
        a(salu("s_add_u32 s16, s16, s38", ["s16", "scc"], ["s16", "s38"]))
        a(salu(f"s_add_u32 s{S_TW}, s2, 5120", [f"s{S_TW}", "scc"], ["s2"]))
        a(v3("v_mov_b32", f"v{V_NINF}", "0xff800000"))
        a(v3("v_lshrrev_b32", "v45", "2", "v3"))
        a(v3("v_and_b32", "v46", "3", "v3"))
        a(v3("v_lshl_add_u32", "v43", "v46", "2", "v45"))
        a(v3("v_lshlrev_b32", "v40", "10", "v43"))
        a(v3("v_add_u32", "v40", "s16", "v40"))
        a(v3("v_mov_b32", "v44", f"s{S_TW}"))
        a(valu("v_cmp_eq_u32 vcc, 5, v43", ["vcc"], ["v43"]))
        a(valu("v_cndmask_b32 v40, v40, v44, vcc", ["v40"], ["v40", "v44", "vcc"]))
        a(v3("v_mul_hi_u32", "v41", "v40", "s29"))
        a(v3("v_mul_u32_u24", "v42", "73", "v41"))
        a(v3("v_sub_u32", "v42", "v40", "v42"))
        a(v3("v_mul_u32_u24", "v42", "0xa80", "v42"))
        a(salu(f"s_mov_b32 s30, {WINROW}", ["s30"], []))
        a(v3("v_mul_lo_u32", "v41", "v41", "s30"))
        a(v3("v_add_u32", "v41", "v41", "v42"))
        a(v3("v_lshl_add_u32", "v41", "v4", "4", "v41"))
        a(v3("v_add_u32", "v41", str(6 * ROWB + 6 * 384), "v41"))
        a(valu(f"v_cmp_gt_u32 vcc, {NWIN}, v40", ["vcc"], ["v40"]))
        a(valu(f"v_cndmask_b32 v14, v{V_NINF}, v41, vcc", ["v14"], [f"v{V_NINF}", "v41", "vcc"]))
    if o.wpre:
        win_block()
    a(salu(f"s_mul_i32 s42, s3, {SLOT}", ["s42"], ["s3"]))
    a(salu(f"s_add_u32 s42, s42, {WS_SLOT}", ["s42", "scc"], ["s42"]))
    if o.diag:
        a(salu("s_mov_b32 s74, s3", ["s74"], ["s3"]))
    a(salu("s_lshl_b32 s3, s3, 5", ["s3", "scc"], ["s3"]))
    a(salu(f"s_cmp_ge_u32 s{S_J}, {NJM + NJN}", ["scc"], [f"s{S_J}"]))
    a(raw("s_waitcnt lgkmcnt(0)", "wait"))
    if o.diag:
        a(v3("v_mov_b32", f"v{V_TIME}", "s44"))
        a(valu(f"v_writelane_b32 v{V_TIME}, s46, 62", [f"v{V_TIME}"], ["s46"]))
        a(valu(f"v_writelane_b32 v{V_TIME}, s74, 43", [f"v{V_TIME}"], ["s74"]))
    if o.pstamp:
        p.extend(stamp3(54))
    a(raw("s_cbranch_scc1 L_np0"))
    prod_load(o, a)
    a(raw("s_branch L_np1"))
    a(raw("L_np0:", "label"))
    ws_srd(a, 42)
    a(Inst("buffer_load_dword v30, off, s[12:15], 0 sc1", "vload", defs=["v30"]))
    a(raw("L_np1:", "label"))
    srd(a, S_DBG, S_KB, "256")
    a(Inst(f"buffer_load_dword v31, off, s[{S_DBG}:{S_DBG+3}], s3 sc1", "vload", defs=["v31"], uses=["s3"]))
    if o.pstamp:
        p.extend(stamp3(53))
    if not o.wpre:
        win_block()
    srd(a, 4, S_KA, "s31")
    a(salu("s_lshr_b32 s40, s2, 3", ["s40", "scc"], ["s2"]))
    a(salu("s_mul_i32 s43, s38, 6", ["s43"], ["s38"]))
    a(salu("s_add_u32 s42, s40, s43", ["s42", "scc"], ["s40", "s43"]))
    for _ in range(2):
        a(salu("s_sub_u32 s43, s42, 24", ["s43", "scc"], ["s42"]))
        a(salu("s_cselect_b32 s42, s42, s43", ["s42"], ["scc", "s42", "s43"]))
    a(salu(f"s_mul_i32 s{S_ROT}, s42, 3072", [f"s{S_ROT}"], ["s42"]))
    p.extend(win_base(S_LB, S_WCUR, 30))
    p.extend(win_base(S_CB, S_TW, 30))
    a(salu(f"s_mov_b32 s39, {ROWB}", ["s39"], []))
    kind_offsets(a, "v45", ("v5", "v6", "v7", "v8", "v9"))
    KO = {"H": "v5", "V": "v6", "Q": "v7", "I": "v8"}
    for i in range(1, 4):
        a(valu(f"v_cmp_eq_u32 s[{64 + 2 * i}:{65 + 2 * i}], {i}, v46", [f"s{64 + 2 * i}", f"s{65 + 2 * i}"], ["v46"]))
    a(v3("v_lshlrev_b32", "v12", "4", "v4"))
    a(v3("v_mul_lo_u32", "v13", "v46", "s39"))
    a(v3("v_add3_u32", f"v{V_F[0]}", "v13", "v5", "v12"))
    for t in (1, 2):
        f = f"v{V_F[t]}"
        for i in range(4):
            kind, pp = STRIPS[4 * t + i]
            base = {"H": pp * ROWB, "V": pp * 384, "Q": 4 * ROWB + 4 * 384, "I": 4 * ROWB}[kind]
            a(v3("v_add_u32", f if i == 0 else "v9", str(base), KO[kind]))
            if i:
                a(cnd(f, f, "v9", 64 + 2 * i))
        a(v3("v_add_u32", f, f, "v12"))
    for w in range(1, 4):
        a(valu(f"v_cmp_eq_u32 s[{64 + 2 * w}:{65 + 2 * w}], {w}, v2", [f"s{64 + 2 * w}", f"s{65 + 2 * w}"], ["v2"]))
    a(cnd("v15", f"v{V_F[0]}", f"v{V_F[1]}", 66))
    a(cnd("v15", "v15", f"v{V_F[2]}", 68))
    a(v3("v_add_u32", "v16", "0x80", "v15"))
    a(v3("v_add_u32", "v9", "0x100", f"v{V_F[1]}"))
    a(cnd("v15", "v15", "v9", 70))
    a(v3("v_add_u32", "v9", "0x100", f"v{V_F[2]}"))
    a(cnd("v16", "v16", "v9", 70))
    a(v3("v_lshrrev_b32", "v5", "1", "v1"))
    a(v3("v_and_b32", "v5", "28", "v5"))
    for c in range(2):
        for hf in range(2):
            a(Inst(f"ds_bpermute_b32 v{17 + 2 * c + hf}, v5, v{15 + c} offset:{32 * hf}", "dsr", defs=[f"v{17 + 2 * c + hf}"], uses=["v5", f"v{15 + c}"]))
    a(v3("v_and_b32", "v12", "7", "v1"))
    a(v3("v_xor_b32", "v12", "v12", "v4"))
    a(v3("v_lshlrev_b32", "v12", "4", "v12"))
    a(v3("v_xor_b32", "v13", "64", "v12"))
    a(salu("s_lshl_b32 s41, s38, 12", ["s41", "scc"], ["s38"]))
    a(salu(f"s_add_u32 s41, s41, {STAGE}", ["s41", "scc"], ["s41"]))
    a(salu(f"s_cmp_lt_u32 s{S_TW}, {NWIN}", ["scc"], [f"s{S_TW}"]))
    a(salu("s_cselect_b32 s30, s31, 0", ["s30"], ["scc", "s31"]))
    a(raw("s_waitcnt lgkmcnt(0)", "wait"))
    if o.pstamp:
        p.extend(stamp3(55))
    srd(a, S_XS, S_KA, "s30")
    for i in range(4):
        a(v3("v_add_u32", f"v{17 + i}", f"v{17 + i}", ("v12", "v13")[i & 1]))

    def x_small(parts):
        for c in parts:
            if c in "ADE":
                for i in {"A": range(4), "D": (0, 1), "E": (2, 3)}[c]:
                    a(salu(f"s_add_u32 m0, s41, {1024 * i}", ["m0", "scc"], ["s41"]))
                    a(Inst(f"buffer_load_dwordx4 v{17 + i}, s[{S_XS}:{S_XS+3}], s{S_CB} offen lds", "ldsdma", uses=[f"v{17 + i}", f"s{S_CB}", "m0"]))
            elif c == "B":
                for s in (4, 5):
                    a(xload(1, 0, s, S_CB, sr=S_XS))
            else:
                for s in range(6):
                    a(Inst(f"buffer_load_dwordx4 {T('a', AX49 + 4 * s, 4)}, v14, s[4:7], 0 offen offset:{64 * s}", "vload",
                           defs=R('a', AX49 + 4 * s, 4), uses=["v14"]))

    a(salu(f"s_cmp_ge_u32 s{S_J}, {NJM + NJN}", ["scc"], [f"s{S_J}"]))
    a(raw("s_cbranch_scc1 L_np2"))
    prod_make(o, a, x_small)
    a(raw("L_np2:", "label"))
    x_small("ABC")
    a(raw("L_np3:", "label"))
    if o.xstamp:
        for k in range(13):
            a(raw(f"s_waitcnt vmcnt({12 - k})", "wait"))
            p.extend(stamp3(22 + k))
    if o.pstamp:
        p.extend(stamp3(56))
    if o.early_after:
        a(raw("s_waitcnt vmcnt(0)", "wait"))
    p.extend(xloads(0, S_LB, o.ld_flags)[:o.n_early])
    a(v3("v_lshrrev_b32", "v5", "1", "v3"))
    a(v3("v_xor_b32", "v5", "v5", "v4"))
    a(v3("v_lshlrev_b32", "v5", "4", "v5"))
    a(v3("v_lshl_add_u32", "v5", "v3", "7", "v5"))
    a(v3("v_add_u32", f"v{V_R0[0]}", str(STAGE), "v5"))
    a(v3("v_xor_b32", f"v{V_R0[1]}", "64", f"v{V_R0[0]}"))
    a(v3("v_add_u32", f"v{V_LDS[1]}", "0x10000", f"v{V_LDS[0]}"))
    a(v3("v_add_u32", f"v{V_LDS[2]}", "0x20000", f"v{V_LDS[0]}"))
    srd(a, 8, S_KA + 6, "0" if o.nostore else "s30")
    srd(a, S_SPA, S_KA + 6, "0")
    srd(a, S_SPB, S_KA + 6, "0" if o.nostore else "s30")
    V_N16, V_N8 = 15, 16
    a(v3("v_lshlrev_b32", f"v{V_N16}", "4", "v3"))
    a(v3("v_lshlrev_b32", f"v{V_N8}", "3", "v3"))
    kind_offsets(a, "v4", ("v5", "v6", "v7", "v8", "v9"))
    for kind, src in KO.items():
        a(v3("v_add_u32", f"v{V_ST[kind][0]}", src, f"v{V_N16}"))
        a(v3("v_add_u32", f"v{V_ST[kind][1]}", src, f"v{V_N8}"))
    for q in (1, 2):
        a(valu(f"v_accvgpr_write_b32 a{AP[q] + 7}, 0", [f"a{AP[q] + 7}"], []))
    for r, val in ((S_M0, "0"), (S_M0 + 1, "0"), (S_M1, "0xffff0000"), (S_M1 + 1, "0"), (S_SH, "16"), (S_GO, "384"), (S_K, "0"),
                   (40, "0xffff"), (41, "0")):
        a(salu(f"s_mov_b32 s{r}, {val}", [f"s{r}"], []))
    a(cnd(f"v{V_SP[0]}", f"v{V_NINF}", f"v{V_ST['H'][0]}", S_M1))
    a(cnd(f"v{V_SP[1]}", f"v{V_NINF}", f"v{V_ST['H'][1]}", S_M1))
    p.extend(row_bases())
    if o.ct:
        for k, ex in enumerate(CT):
            a(salu(f"s_add_u32 s{84 + 2 * k}, s90, {ex}-L_here", [f"s{84 + 2 * k}", "scc"], ["s90"]))
            a(salu(f"s_addc_u32 s{85 + 2 * k}, s91, 0", [f"s{85 + 2 * k}", "scc"], ["s91", "scc"]))
    if o.diag:
        a(salu(f"s_mov_b32 s{S_IT}, 1", [f"s{S_IT}"], []))
        a(salu("s_mov_b32 s72, 10", ["s72"], []))
    a(salu(f"s_mov_b32 s37, {o.polls}", ["s37"], []))
    a(v3("v_lshlrev_b32", f"v{V_POLL}", "2", "v1"))
    a(valu("v_cmp_gt_u32 vcc, 8, v1", ["vcc"], ["v1"]))
    a(valu(f"v_cndmask_b32 v{V_POLL}, v{V_NINF}, v{V_POLL}, vcc", [f"v{V_POLL}"], [f"v{V_NINF}", f"v{V_POLL}", "vcc"]))
    a(v3("v_mov_b32", f"v{V_EXP}", "0x01010101"))
    a(salu("s_mov_b32 s27, 0x0101", ["s27"], []))
    a(valu(f"v_writelane_b32 v{V_EXP}, s27, 4", [f"v{V_EXP}"], ["s27"]))
    a(valu(f"v_writelane_b32 v{V_EXP}, 1, 7", [f"v{V_EXP}"], []))
    D = f"s[{S_DBG}:{S_DBG+3}]"

    def look(r=V_FLG):
        a(Inst(f"buffer_load_dword v{r}, v{V_POLL}, {D}, s3 offen {o.lflag}", "vload", defs=[f"v{r}"], uses=[f"v{V_POLL}", "s3"]))

    def test(mask, r=V_FLG):
        a(valu(f"v_cmp_gt_u32 vcc, v{V_EXP}, v{r}", ["vcc"], [f"v{V_EXP}", f"v{r}"]))
        a(salu(f"s_and_b32 s27, vcc_lo, {mask}", ["s27", "scc"], ["vcc"]))

    def poll(lab, mask):
        look(V_FLG)
        a(raw(f"{lab}:", "label"))
        look(V_FL2)
        a(raw("s_waitcnt vmcnt(1)", "wait"))
        test(mask, V_FLG)
        a(raw(f"s_cbranch_scc0 {lab}_x"))
        a(salu("s_sub_u32 s37, s37, 1", ["s37", "scc"], ["s37"]))
        a(raw("s_cbranch_scc1 L_alone"))
        look(V_FLG)
        a(raw("s_waitcnt vmcnt(1)", "wait"))
        test(mask, V_FL2)
        a(raw(f"s_cbranch_scc1 {lab}"))
        a(raw(f"{lab}_x:", "label"))
    a(salu(f"s_mov_b32 s{S_GRP}, s{S_ROT}", [f"s{S_GRP}"], [f"s{S_ROT}"]))
    for g in range(6):
        if g:
            a(salu(f"s_add_u32 s{S_GRP + g}, s{S_GRP + g - 1}, 3072", [f"s{S_GRP + g}", "scc"], [f"s{S_GRP + g - 1}"]))
            a(salu(f"s_cmp_eq_u32 s{S_GRP + g}, {NBASE}", ["scc"], [f"s{S_GRP + g}"]))
            a(salu(f"s_cselect_b32 s{S_GRP + g}, 0, s{S_GRP + g}", [f"s{S_GRP + g}"], ["scc", f"s{S_GRP + g}"]))
        a(v3("v_add_u32", f"v{21 + g}", f"s{S_GRP + g}", f"v{V_LDS[0]}"))
        a(v3("v_add_u32", f"v{V_NA + g}", str(NBASE), f"v{21 + g}"))
    if o.pstamp:
        p.extend(stamp3(58))
    poll("L_pm", 0x1f)
    a(raw("L_ldm:", "label"))
    if o.pstamp:
        p.extend(stamp3(59))
    mreg = lambda k: 32 + 4 * k if k < 17 else 108
    DEP = o.mdep

    def m_load(k):
        a(Inst(f"buffer_load_dwordx4 {T('v', mreg(k), 4)}, v{21 + k // 3}, s[12:15], 0 offen offset:{1024 * (k % 3)} sc1", "vload",
               defs=R('v', mreg(k), 4), uses=[f"v{21 + k // 3}"]))
        if k == 17 - DEP:
            look()

    def m_put(k, behind):
        a(raw(f"s_waitcnt vmcnt({behind})", "wait"))
        if o.pstamp and k == 0:
            p.extend(stamp3(60))
        d = mreg(k)
        a(Inst(f"ds_write_b128 v{21 + k // 3}, {T('v', d, 4)} offset:{1024 * (k % 3)}", "dsw", uses=R('v', d, 4) + [f"v{21 + k // 3}"]))
        for h in range(2):
            a(v3("v_max3_u32", f"v{V_CHK}", f"v{V_CHK}", f"v{d + 2 * h}", f"v{d + 2 * h + 1}"))

    def m_check(lab):
        a(valu(f"v_cmp_eq_u32 vcc, -1, v{V_CHK}", ["vcc"], [f"v{V_CHK}"]))
        a(raw("s_nop 1", "nop"))
        a(raw(f"s_cbranch_vccz {lab}"))
        a(raw("s_waitcnt vmcnt(0) lgkmcnt(0)", "wait"))
        if o.diag:
            a(salu("s_sub_u32 s37, s37, 0x1000000", ["s37", "scc"], ["s37"]))
        a(salu(f"s_add_u32 s{S_K}, s{S_K}, 1", [f"s{S_K}", "scc"], [f"s{S_K}"]))
        a(salu(f"s_cmp_lt_u32 s{S_K}, 0x4000", ["scc"], [f"s{S_K}"]))
        a(raw("s_cbranch_scc1 L_ldm"))
    for k in range(DEP):
        m_load(k)
    a(v3("v_mov_b32", f"v{V_CHK}", "0"))
    for k in range(18 - DEP):
        m_put(k, DEP - 1 + (k <= 17 - DEP < k + DEP))
        m_load(k + DEP)
    a(raw(f"s_waitcnt vmcnt({DEP})", "wait"))
    test(0xe0)
    a(raw("s_cbranch_scc1 L_nlate"))
    for k in range(18 - DEP, 18):
        m_put(k, DEP - 1)
        a(n_load(k - 18 + DEP))
    m_check("L_mok")
    a(raw("s_branch L_mok"))
    a(raw("L_nlate:", "label"))
    if o.diag:
        a(valu(f"v_writelane_b32 v{V_TIME}, s37, 40", [f"v{V_TIME}"], ["s37"]))
    for k in range(18 - DEP, 18):
        m_put(k, 17 - k)
    m_check("L_mok2")
    a(raw("L_mok2:", "label"))
    poll("L_pn", 0xe0)
    for k in range(DEP):
        a(n_load(k))
    a(raw("L_mok:", "label"))
    a(salu(f"s_mov_b32 s{S_K}, 0", [f"s{S_K}"], []))
    if o.pstamp:
        a(valu(f"v_writelane_b32 v{V_TIME}, s37, 41", [f"v{V_TIME}"], ["s37"]))
    if o.samerole:
        a(raw("s_branch L_sh1"))
    for q in range(3):
        a(salu(f"s_cmp_eq_u32 s38, {q}", ["scc"], ["s38"]))
        a(raw(f"s_cbranch_scc1 L_sh{q}"))
    return p


def gen_again(o):
    p = []
    a = p.append
    chk = V_TMP[0][4]
    a(raw("L_again:", "label"))
    a(raw("s_waitcnt vmcnt(0) lgkmcnt(0)", "wait"))
    a(valu(f"v_accvgpr_write_b32 a{AP[1]}, v{chk}", [f"a{AP[1]}"], [f"v{chk}"]))
    a(salu("s_mov_b32 s27, 0x4000", ["s27"], []))
    a(raw("L_ag_loop:", "label"))
    a(v3("v_mov_b32", f"v{chk}", "0"))
    for k in range(18):
        a(Inst(f"buffer_load_dwordx4 {T('v', V_NS + 4 * k, 4)}, v{V_NA + k // 3}, s[12:15], 0 offen offset:{1024 * (k % 3)} sc1", "vload",
               defs=R('v', V_NS + 4 * k, 4), uses=[f"v{V_NA + k // 3}"]))
    a(raw("s_waitcnt vmcnt(0)", "wait"))
    for r in range(0, 72, 2):
        a(v3("v_max3_u32", f"v{chk}", f"v{chk}", f"v{V_NS + r}", f"v{V_NS + r + 1}"))
    a(valu(f"v_cmp_eq_u32 vcc, -1, v{chk}", ["vcc"], [f"v{chk}"]))
    a(salu("s_sub_u32 s27, s27, 1", ["s27", "scc"], ["s27"]))
    a(raw("s_cbranch_scc1 L_ag_x"))
    a(raw("s_nop 1", "nop"))
    a(raw("s_cbranch_vccnz L_ag_loop"))
    a(raw("L_ag_x:", "label"))
    for k in range(18):
        a(Inst(f"ds_write_b128 v{V_NA + k // 3}, {T('v', V_NS + 4 * k, 4)} offset:{1024 * (k % 3)}", "dsw",
               uses=R('v', V_NS + 4 * k, 4) + [f"v{V_NA + k // 3}"]))
    a(raw("s_waitcnt lgkmcnt(0)", "wait"))
    for ct in range(12):
        a(v3("v_mov_b32", f"v{vb(ct) + 7}", "0"))
    a(valu(f"v_accvgpr_read_b32 v{chk}, a{AP[1]}", [f"v{chk}"], [f"a{AP[1]}"]))
    if o.diag:
        a(valu(f"v_writelane_b32 v{V_TIME}, s27, 42", [f"v{V_TIME}"], ["s27"]))
    a(raw("s_nop 4", "nop"))
    for q in range(3):
        a(salu(f"s_cmp_eq_u32 s38, {q}", ["scc"], ["s38"]))
        a(raw(f"s_cbranch_scc1 L_back{q}"))
    a(raw("s_branch L_back3"))
    return p


def gen_reset():
    return [v3("v_lshrrev_b32", f"v{V_CT[0]}", "2", f"v{V_LDS[0]}"), v3("v_mov_b32", f"v{V_CT[1]}", "0"),
            salu("s_mov_b64 exec, 0xff", ["exec"], []),
            Inst(f"buffer_store_dword v{V_CT[1]}, v{V_CT[0]}, s[{S_DBG}:{S_DBG+3}], s3 offen", "vstore", uses=[f"v{V_CT[0]}", f"v{V_CT[1]}", "s3"]),
            salu("s_mov_b64 exec, -1", ["exec"], [])]


def stamp3(lane):
    return [raw("s_memtime s[44:45]"), raw("s_waitcnt lgkmcnt(0)", "wait"),
            valu(f"v_writelane_b32 v{V_TIME}, s44, {lane}", [f"v{V_TIME}"], ["s44"])]


def stamp():
    return [raw("s_memtime s[44:45]"), raw("s_memrealtime s[46:47]"), salu(f"s_mov_b32 m0, s{S_IT}", ["m0"], [f"s{S_IT}"]), raw("s_waitcnt lgkmcnt(0)", "wait"),
            valu(f"v_writelane_b32 v{V_TIME}, s44, m0", [f"v{V_TIME}"], ["s44", "m0"]),
            salu(f"s_add_u32 m0, s{S_IT}, 43", ["m0", "scc"], [f"s{S_IT}"]),
            valu(f"v_writelane_b32 v{V_TIME}, s46, m0", [f"v{V_TIME}"], ["s46", "m0"]),
            salu(f"s_add_u32 s{S_IT}, s{S_IT}, 1", [f"s{S_IT}", "scc"], [f"s{S_IT}"])]


def stamp2():
    return [raw("s_memtime s[44:45]"), salu("s_mov_b32 m0, s72", ["m0"], ["s72"]), raw("s_waitcnt lgkmcnt(0)", "wait"),
            valu(f"v_writelane_b32 v{V_TIME}, s44, m0", [f"v{V_TIME}"], ["s44", "m0"]),
            salu("s_add_u32 s72, s72, 1", ["s72", "~scc"], ["s72"])]


def add_stamps(body, pts):
    out = []
    k = 0
    for i in body:
        if i.kind == "mfma":
            if k in pts:
                st = stamp2()
                st[-1] = raw("s_addk_i32 s72, 1", "salu", ["s72"], ["s72"])
                out.extend(st)
            k += 1
        out.append(i)
    return out


def texts(l):
    return [i.text for i in l]


def gen_main(o):
    pro = insert_nops(gen_prologue(o))
    pts = [int(x) for x in o.pts.split(",")] if o.pts else None

    def build(prog):
        body, cyc = schedule2(prog, verbose=o.verbose, urgent=o.urgent)
        if not o.verbose:
            print("; model cycles", cyc)
        return body, cyc

    def waits(body, cyc, pre):
        return insert_waits(body, pre=pre, early_lgkm=(o.early, cyc) if o.early else 0,
                            early_vm=(o.early_vm, cyc) if o.early_vm else 0)

    head = lambda: stamp() if o.diag else []
    shared = []
    for q in range(4):
        t, c = build(gen_shared(o, q))
        if o.tpts:
            t = add_stamps(t, [int(x) for x in o.tpts.split(",")])
        t = [raw(f"s_waitcnt vmcnt({o.mdep}) lgkmcnt(0)", "wait")] + (stamp3(61) if o.pstamp else []) + t
        last = max(k for k, i in enumerate(t) if i.kind == "vload")
        nst = sum(i.kind == "vstore" for i in t[last:])
        t += [raw(f"s_waitcnt vmcnt({nst}) lgkmcnt(0)", "wait")]
        t = insert_waits(t, pre=[n_load(k) for k in range(o.mdep)], early_lgkm=(o.early, 1 << 30))
        shared.append(insert_nops(t, pre=[pro]))
    bodies = []
    for xs in range(2):
        body, cyc = build(gen_body(o, xs))
        if pts:
            body = add_stamps(body, pts)
        tail = [salu(f"s_cmp_eq_u32 s{S_K}, 5", ["scc"], [f"s{S_K}"]), raw("s_cbranch_scc1 L_epi")] if xs == 0 else [raw("s_branch L_b0")]
        bodies.append(head() + body + tail)
    w = [waits(bodies[0], cyc, []), None]
    for it in range(3):
        w[1] = waits(bodies[1], cyc, w[0])
        w[0] = waits(bodies[0], cyc, w[1])
    w = [hoist_waits(x) for x in w]
    n = [insert_nops(w[0], pre=shared), None]
    for it in range(3):
        n[1] = insert_nops(w[1], pre=[n[0]])
        n[0] = insert_nops(w[0], pre=shared + [n[1]])
    for i in w[0]:
        i.time = None
    epi = insert_nops(insert_waits(head() + build(gen_epi(o))[0], pre=w[0]), pre=[n[0]])
    print('; replay', model_time(n[1]), model_time(n[0]))
    fin = [] if o.noreset else insert_nops(gen_reset(), pre=[epi])
    rst = list(fin)
    if o.diag:
        srd(fin.append, 12, S_KB + 2, str(WS_TIME_OFF + 1024 * 256))
        fin += stamp()
        fin += [raw("s_waitcnt vmcnt(0)", "wait")] + stamp()
        fin += [raw("s_memrealtime s[46:47]"), raw("s_waitcnt lgkmcnt(0)", "wait"),
                valu(f"v_writelane_b32 v{V_TIME}, s46, 63", [f"v{V_TIME}"], ["s46"])]
        fin += [v3("v_lshrrev_b32", "v0", "2", f"v{V_LDS[0]}"),
                salu("s_lshl_b32 s42, s2, 2", ["s42", "scc"], ["s2"]),
                salu("s_add_u32 s42, s42, s38", ["s42", "scc"], ["s42", "s38"]),
                salu("s_lshl_b32 s42, s42, 8", ["s42", "scc"], ["s42"]),
                salu(f"s_add_u32 s42, s42, {WS_TIME_OFF}", ["s42", "scc"], ["s42"]),
                Inst(f"buffer_store_dword v{V_TIME}, v0, s[12:15], s42 offen", "vstore", uses=[f"v{V_TIME}", "v0", "s42"])]
        if o.dbgst >= 0:
            fin += [valu(f"v_readlane_b32 s43, v{V_TIME}, 62", ["s43"], [f"v{V_TIME}"]),
                    raw("s_nop 4", "nop"),
                    salu("s_sub_u32 s43, s46, s43", ["s43", "scc"], ["s46", "s43"]),
                    valu(f"v_readlane_b32 s42, v{V_TIME}, 0", ["s42"], [f"v{V_TIME}"]),
                    raw("s_nop 4", "nop"),
                    v3("v_subrev_u32", f"v{V_TIME}", "s42", f"v{V_TIME}"),
                    valu(f"v_writelane_b32 v{V_TIME}, s43, 0", [f"v{V_TIME}"], ["s43"]),
                    salu("s_lshl_b32 s43, s2, 2", ["s43", "scc"], ["s2"]),
                    salu("s_add_u32 s43, s43, s38", ["s43", "scc"], ["s43", "s38"]),
                    salu(f"s_cmp_eq_u32 s43, {o.dbgst}", ["scc"], ["s43"]),
                    salu("s_cselect_b32 s43, 16, 0x1000", ["s43"], ["scc"]),
                    salu("s_mov_b64 exec, 0x1ff", ["exec"], []),
                    Inst(f"buffer_store_dword v{V_TIME}, v0, s[{S_DBG}:{S_DBG+3}], s43 offen", "vstore", uses=[f"v{V_TIME}", "v0", "s43"])]
        if o.spin:
            T, la, lb, mult, wv = [int(x) for x in o.spin.split(",")]
            fin += [valu(f"v_readlane_b32 s40, v{V_TIME}, 62", ["s40"], [f"v{V_TIME}"]),
                    valu(f"v_readlane_b32 s41, v{V_TIME}, {la}", ["s41"], [f"v{V_TIME}"]),
                    valu(f"v_readlane_b32 s42, v{V_TIME}, {lb}", ["s42"], [f"v{V_TIME}"]),
                    raw("s_nop 4", "nop"),
                    salu("s_sub_u32 s42, s42, s41", ["s42", "scc"], ["s42", "s41"]),
                    salu(f"s_mul_i32 s42, s42, {mult}", ["s42"], ["s42"]),
                    salu("s_min_u32 s42, s42, 30000", ["s42", "scc"], ["s42"]),
                    salu("s_lshl_b32 s43, s2, 2", ["s43", "scc"], ["s2"]),
                    salu("s_add_u32 s43, s43, s38", ["s43", "scc"], ["s43", "s38"]),
                    salu(f"s_cmp_eq_u32 s43, {wv}", ["scc"], ["s43"]),
                    salu("s_cselect_b32 s42, s42, -500", ["s42"], ["scc", "s42"]),
                    salu(f"s_add_u32 s42, s42, {T * 100}", ["s42", "scc"], ["s42"]),
                    raw("L_spin:", "label"),
                    raw("s_sleep 4"),
                    raw("s_memrealtime s[46:47]"), raw("s_waitcnt lgkmcnt(0)", "wait"),
                    salu("s_sub_u32 s43, s46, s40", ["s43", "scc"], ["s46", "s40"]),
                    salu("s_cmp_lt_u32 s43, s42", ["scc"], ["s43", "s42"]),
                    raw("s_cbranch_scc1 L_spin")]
        fin = insert_nops(fin)
    stats = {}
    for i in n[0]:
        stats[i.kind] = stats.get(i.kind, 0) + 1
    print("; body stats", stats, file=sys.stderr)
    out = emit(pro) + "\n" + emit(shared[3]) + "\n    s_branch L_b0\n"
    for q in range(3):
        out += f".p2align 6\nL_sh{q}:\n" + emit(shared[q]) + "\n"
        if q < 2:
            out += "    s_branch L_b0\n"
    out += "L_b0:\n" + emit(n[0]) + "\nL_b1:\n" + emit(n[1]) + "\n.p2align 6\nL_epi:\n"
    out += emit(epi) + "\n" + emit(fin) + "\nL_main_done:\n    s_endpgm\n"
    return out + emit(insert_nops(gen_again(o))) + "\n" + emit(insert_nops(gen_alone(o))) + "\n"


def merge_waits(x, y):
    def split(l):
        out, cur = [], {}
        for i in l:
            if i.kind == "wait" and not i.defs and not i.uses:
                for nm, v in re.findall(r"(vmcnt|lgkmcnt)\((\d+)\)", i.text):
                    cur[nm] = min(cur.get(nm, 99), int(v))
            else:
                out.append((cur, i))
                cur = {}
        return out
    a, b = split(x), split(y)
    assert [i.text for _, i in a] == [i.text for _, i in b]
    out = []
    for (wa, i), (wb, _) in zip(a, b):
        m = {k: min(wa.get(k, 99), wb.get(k, 99)) for k in set(wa) | set(wb)}
        if m:
            w = Inst("s_waitcnt " + " ".join(f"{k}({m[k]})" for k in ("vmcnt", "lgkmcnt") if k in m), "wait")
            w.time = i.time
            out.append(w)
        out.append(i)
    return out


def emit(insts):
    out = []
    for i in insts:
        out.append(i.text if i.kind == "label" else "    " + i.text)
    return "\n".join(out)


HEADER = """; Swin window attention: folded projections (M = a*Wq*Wk^T, N = Wv*Wo), one wave per window.
; @launch grid=(256,1,1) block=(256,1,1) lds=163840
.amdgcn_target "amdgcn-amd-amdhsa--gfx950"
.text
"""

KD = """.amdhsa_kernel {k}
  .amdhsa_next_free_vgpr {nv}
  .amdhsa_next_free_sgpr {ns}
  .amdhsa_accum_offset {ao}
  .amdhsa_group_segment_fixed_size 0
  .amdhsa_kernarg_size 48
  .amdhsa_user_sgpr_count 2
  .amdhsa_user_sgpr_kernarg_segment_ptr 1
  .amdhsa_system_sgpr_workgroup_id_x 1
.end_amdhsa_kernel
"""


def main():
    ap = argparse.ArgumentParser()
    ap.add_argument("-o", default="cdna_kernels/" + NAME + ".s")
    ap.add_argument("--diag", action="store_true")
    ap.add_argument("--pts", default="")
    ap.add_argument("--rm", default="")
    ap.add_argument("--ct", type=int, default=8000)
    ap.add_argument("--tpts", default="")
    ap.add_argument("--early", type=int, default=230)
    ap.add_argument("--early_vm", type=int, default=0)
    ap.add_argument("--ld_rel", type=int, default=300)
    ap.add_argument("--ld_step", type=int, default=400)
    ap.add_argument("--tail_s", type=int, default=1)
    ap.add_argument("--order", default="ABC,,")
    ap.add_argument("--ordern", default=",,ABC")
    ap.add_argument("--nl_rel", type=int, default=0)
    ap.add_argument("--nl_step", type=int, default=64)
    ap.add_argument("--nw_rel", type=int, default=800)
    ap.add_argument("--nw_step", type=int, default=64)
    ap.add_argument("--x0_rel", type=int, default=1200)
    ap.add_argument("--x0_step", type=int, default=200)
    ap.add_argument("--pw", type=int, default=3)
    ap.add_argument("--lw", type=int, default=0)
    ap.add_argument("--n_early", type=int, default=0)
    ap.add_argument("--psleep", type=int, default=0)
    ap.add_argument("--leaders", default="18")
    ap.add_argument("--own", type=int, default=0)
    ap.add_argument("--quiet", type=int, default=0)
    ap.add_argument("--mdep", type=int, default=8)
    ap.add_argument("--lflag", default="sc1")
    ap.add_argument("--defer", default="12")
    ap.add_argument("--after", default="5,6,7,8,10")
    ap.add_argument("--urgent", type=int, default=0)
    ap.add_argument("--touch_rep", type=int, default=1)
    ap.add_argument("--ld_grp", type=int, default=2)
    ap.add_argument("--q2p0", default="5400,500")
    ap.add_argument("--q2p1", default="7400,350")
    ap.add_argument("--dsw_busy", type=int, default=40)
    ap.add_argument("--st_busy", type=int, default=150)
    ap.add_argument("--ld_flags", default="")
    ap.add_argument("--st_flags", default="sc0 sc1")
    ap.add_argument("--st_flags0")
    ap.add_argument("--st_flags1")
    ap.add_argument("--drop", default="")
    ap.add_argument("--polls", type=int, default=256)
    ap.add_argument("--tw", type=int, default=0)
    ap.add_argument("--tl", type=int, default=2)
    ap.add_argument("--clr", default="sc1")
    ap.add_argument("--fw", type=int, default=3)
    ap.add_argument("--chain", default="hos")
    ap.add_argument("--spin", default="")
    ap.add_argument("--dbgst", type=int, default=-1)
    for f in ("noload", "nostore", "pstamp", "verbose", "notouch", "nowarm", "early_after", "samerole", "noreset", "wstamp", "noclear", "wpre", "nofb", "nomap", "xstamp"):
        ap.add_argument("--" + f, action="store_true")
    o = ap.parse_args()
    o.defer = [int(c) for c in o.defer]
    if o.clr:
        o.clr = " " + o.clr
    if o.ld_flags:
        o.ld_flags = " " + o.ld_flags
    if o.st_flags:
        o.st_flags = " " + o.st_flags
    global DSW_BUSY, ST_BUSY, LD_GRP
    DROP.extend(int(c) for c in o.drop)
    CHAIN.update(o.chain)
    for k, f in enumerate((o.st_flags0, o.st_flags1)):
        if f is not None:
            PFLAGS[k] = " " + f if f else ""
    DSW_BUSY, ST_BUSY, LD_GRP = o.dsw_busy, o.st_busy, o.ld_grp
    old = sys.stdout
    sys.stdout = sys.stderr
    main_text = gen_main(o)
    sys.stdout = old
    s = HEADER.format(name=NAME)
    k = NAME + "_kernel"
    s += f".globl {k}\n.p2align 12\n.type {k},@function\n{k}:\n"
    s += main_text
    s += '.section .rodata,"a"\n.p2align 6\n'
    s += KD.format(k=k, nv=512, ns=102, ao=256)
    open(o.o, "w").write(s)


if __name__ == "__main__":
    main()
```

```python
import sys, math, struct, argparse, re
from asmlib import *

NAME = "standalone__swin_window_attn__vision"
NWIN = 5329
XBYTES = 100270464
ROWB = 196224
WINROW = 7 * ROWB
MAGIC73 = (1 << 32) // 73 + 1
for w in range(0, 16384):
    assert (w * MAGIC73) >> 32 == w // 73
ALPHA = (192 ** -0.5) * math.log2(math.e)
WS_TIME_OFF = 1 << 20
STAGE = 147456


def f32bits(x):
    return struct.unpack("<I", struct.pack("<f", x))[0]


def mfma(bd, d, ba, a, bb, b, first):
    c = "0" if first else T(bd, d, 4)
    D = R(bd, d, 4)
    AB = R(ba, a, 4) + R(bb, b, 4)
    return Inst(f"v_mfma_f32_16x16x32_bf16 {T(bd, d, 4)}, {T(ba, a, 4)}, {T(bb, b, 4)}, {c}", "mfma",
                defs=D, uses=AB + ([] if first else D), srcC=([] if first else D), srcAB=AB, passes=4)


def valu(text, defs, uses, kind="valu", **kw):
    return Inst(text, kind, defs=defs, uses=uses, **kw)


def cvtpk(d, a, b, **kw):
    bt = f"v{b}" if b is not None else "0"
    return valu(f"v_cvt_pk_bf16_f32 v{d}, v{a}, {bt}", [f"v{d}"], [f"v{a}"] + ([f"v{b}"] if b is not None else []), **kw)


def salu(text, defs, uses, **kw):
    return Inst(text, "salu", defs=defs, uses=uses, **kw)


def raw(text, kind="other", defs=(), uses=()):
    return Inst(text, kind, defs=defs, uses=uses)


def v3(op, d, *srcs, **kw):
    uses = [s for s in srcs if isinstance(s, str) and (is_vreg(s) or is_sreg(s))]
    return valu(f"{op} {d}, " + ", ".join(str(s) for s in srcs), [d], uses, **kw)


def cnd(d, a, b, m):
    return valu(f"v_cndmask_b32 {d}, {a}, {b}, s[{m}:{m+1}]", [d], [a, b, f"s{m}", f"s{m+1}"])


def srd(a, dst, src, nb):
    a(salu(f"s_mov_b32 s{dst}, s{src}", [f"s{dst}"], [f"s{src}"]))
    a(salu(f"s_and_b32 s{dst+1}, s{src+1}, 0xffff", [f"s{dst+1}", "scc"], [f"s{src+1}"]))
    a(salu(f"s_mov_b32 s{dst+2}, {nb}", [f"s{dst+2}"], []))
    a(salu(f"s_mov_b32 s{dst+3}, 0x20000", [f"s{dst+3}"], []))


STRIPS = [("H", r) for r in range(7)] + [("V", 4), ("V", 5), ("V", 6), ("Q", 0), ("I", 0)]
I_TOK = [(4, 6), (5, 6), (6, 4), (6, 5)]


def token(t, n):
    g, i = n >> 2, n & 3
    kind, p = STRIPS[4 * t + i]
    if kind == "H":
        return p, g
    if kind == "V":
        return g, p
    if kind == "Q":
        return 4 + (g >> 1), 4 + (g & 1)
    return I_TOK[g]


assert sorted(token(t, n) for t in range(3) for n in range(16)) + [(6, 6)] == [(r, c) for r in range(7) for c in range(7)]


P_A, P_B, P_C, P_O, P_U = 128, 176, 200, 216, 32
P_RA, P_RB, P_SO = (80, 81), (82, 83), (84, 85)
S_KA = 92
S_KB = 32
S_DBG = 80
S_PSC, S_PSO = 100, 101
S_J, S_ROT = 36, 75
SLOT = 147456
WS_SLOT, WS_PRIV = 4 << 20, 8 << 20
NJM, NJN = 18, 9
V_POLL, V_EXP, V_FLG, V_CHK, V_FL2 = 27, 29, 28, 30, 31
S_GRP = 64
PST = 73728


def ws_srd(a, off):
    a(salu(f"s_add_u32 s12, s{S_KB+2}, s{off}", ["s12", "scc"], [f"s{S_KB+2}", f"s{off}"]))
    a(salu(f"s_addc_u32 s13, s{S_KB+3}, 0", ["s13", "scc"], [f"s{S_KB+3}", "scc"]))
    a(salu("s_and_b32 s13, s13, 0xffff", ["s13", "scc"], ["s13"]))
    a(salu(f"s_mov_b32 s14, {SLOT}", ["s14"], []))
    a(salu("s_mov_b32 s15, 0x20000", ["s15"], []))


WST = [None]


def dma(a, vo, sr, so, imm=0, fl=""):
    a(Inst(f"buffer_load_dwordx4 v{vo}, s[{sr}:{sr+3}], s{so} offen offset:{imm} lds{fl}", "ldsdma", uses=[f"v{vo}", f"s{so}", "m0"]))
    if WST[0] is not None:
        for i in stamp3(WST[0]):
            a(i)
        WST[0] += 1


def job_decode(a):
    a(salu(f"s_cmp_ge_u32 s{S_J}, {NJM}", ["scc"], [f"s{S_J}"]))
    a(salu("s_cselect_b32 s20, 1, 0", ["s20"], ["scc"]))
    a(salu(f"s_cselect_b32 s22, {NJM}, 0", ["s22"], ["scc"]))
    a(salu("s_cselect_b32 s23, 86, 43", ["s23"], ["scc"]))
    a(salu("s_cselect_b32 s24, 3, 6", ["s24"], ["scc"]))
    a(salu(f"s_sub_u32 s22, s{S_J}, s22", ["s22", "scc"], [f"s{S_J}", "s22"]))
    a(salu("s_mul_i32 s21, s22, s23", ["s21"], ["s22", "s23"]))
    a(salu("s_lshr_b32 s21, s21, 8", ["s21", "scc"], ["s21"]))
    assert all((r * 43) >> 8 == r // 6 for r in range(NJM)) and all((r * 86) >> 8 == r // 3 for r in range(NJN))
    a(salu("s_mul_i32 s24, s24, s21", ["s24"], ["s24", "s21"]))
    a(salu("s_sub_u32 s22, s22, s24", ["s22", "scc"], ["s22", "s24"]))


def prod_pre(a):
    job_decode(a)
    a(v3("v_lshrrev_b32", "v5", "3", "v1"))
    a(v3("v_and_b32", "v6", "7", "v1"))
    a(v3("v_and_b32", "v7", "1", "v4"))
    a(v3("v_xor_b32", "v8", "v6", "v7"))
    a(v3("v_mul_u32_u24", "v9", "0x480", "v5"))
    a(v3("v_lshl_add_u32", "v8", "v8", "4", "v9"))
    a(salu("s_lshl_b32 s23, s38, 5", ["s23", "scc"], ["s38"]))
    a(v3("v_xor_b32", "v12", "s23", "v8"))
    a(salu("s_lshl_b32 s23, s38, 6", ["s23", "scc"], ["s38"]))
    a(salu("s_and_b32 s23, s23, 64", ["s23", "scc"], ["s23"]))
    a(v3("v_xor_b32", "v10", "s23", "v8"))
    a(v3("v_xor_b32", "v11", "32", "v10"))
    a(salu("s_lshl_b32 s23, s21, 2", ["s23", "scc"], ["s21"]))
    a(salu("s_add_u32 s23, s23, s38", ["s23", "scc"], ["s23", "s38"]))
    a(salu("s_mul_i32 s25, s23, 18432", ["s25"], ["s23"]))
    a(salu("s_mul_i32 s23, s20, 768", ["s23"], ["s20"]))
    a(salu("s_add_u32 s25, s25, s23", ["s25", "scc"], ["s25", "s23"]))
    a(salu("s_add_u32 s24, s25, 9216", ["s24", "scc"], ["s25"]))
    a(salu("s_mul_i32 s27, s38, 6144", ["s27"], ["s38"]))
    a(salu(f"s_mov_b32 s{S_PSC}, s22", [f"s{S_PSC}"], ["s22"]))
    for r in range(4):
        a(v3("v_mov_b32", f"v{P_O + r}", "-1"))
    a(v3("v_lshlrev_b32", "v7", "1", "v7"))
    a(v3("v_xor_b32", "v13", "v6", "v7"))
    a(v3("v_mul_u32_u24", "v9", "0x180", "v5"))
    a(v3("v_lshl_add_u32", "v9", "v13", "4", "v9"))
    a(v3("v_xor_b32", "v13", "64", "v9"))
    a(salu("s_lshl_b32 s26, s22, 2", ["s26", "scc"], ["s22"]))
    a(salu("s_add_u32 s26, s26, s38", ["s26", "scc"], ["s26", "s38"]))
    a(salu("s_mul_i32 s26, s26, 9216", ["s26"], ["s26"]))
    a(salu("s_add_u32 s26, s26, 384", ["s26", "scc"], ["s26"]))
    a(salu("s_mul_i32 s43, s38, 18432", ["s43"], ["s38"]))
    a(salu("s_lshl_b32 s23, s22, 7", ["s23", "scc"], ["s22"]))
    a(salu("s_add_u32 s43, s43, s23", ["s43", "scc"], ["s43", "s23"]))
    a(salu("s_cmp_eq_u32 s20, 1", ["scc"], ["s20"]))
    a(salu("s_cselect_b32 s26, s43, s26", ["s26"], ["scc", "s43", "s26"]))
    a(salu("s_cselect_b64 vcc, -1, 0", ["vcc"], ["scc"]))
    a(salu("s_mul_i32 s43, s38, 3072", ["s43"], ["s38"]))
    a(valu("v_cndmask_b32 v12, v12, v9, vcc", ["v12"], ["v12", "v9", "vcc"]))
    a(salu("s_and_b32 s23, s38, 1", ["s23", "scc"], ["s38"]))
    a(salu("s_lshl1_add_u32 s23, s22, s23", ["s23", "scc"], ["s22", "s23"]))
    a(salu("s_mul_i32 s23, s23, 6", ["s23"], ["s23"]))
    a(salu("s_lshr_b32 s42, s38, 1", ["s42", "scc"], ["s38"]))
    a(salu("s_lshl1_add_u32 s42, s21, s42", ["s42", "scc"], ["s21", "s42"]))
    a(salu("s_add_u32 s23, s23, s42", ["s23", "scc"], ["s23", "s42"]))
    a(salu(f"s_lshl_b32 s{S_PSO}, s23, 10", [f"s{S_PSO}", "scc"], ["s23"]))


def prod_load(o, a):
    def clear(vo, sos):
        for so in sos:
            a(Inst(f"buffer_store_dwordx4 {T('v', P_O, 4)}, v{vo}, s[12:15], s{so} offen{o.clr}", "vstore",
                   uses=R('v', P_O, 4) + [f"v{vo}", f"s{so}"], wide=True))
        for k, so in enumerate(sos):
            if not o.clr:
                a(Inst(f"buffer_load_dwordx4 {T('v', P_C + 4 * k, 4)}, v{vo}, s[12:15], s{so} offen sc1", "vload",
                       defs=R('v', P_C + 4 * k, 4), uses=[f"v{vo}", f"s{so}"]))
    srd(a, 56, S_KA + 2, 192 * 576 * 2)
    if o.wstamp:
        WST[0] = 10
    for i in range(2):
        for cb in range(3):
            a(salu(f"s_add_u32 m0, s27, {PST + 3072 * i + 896 * cb}", ["m0", "scc"], ["s27"]))
            dma(a, 10 + i, 56, (25, 24)[i], 128 * cb)
    a(salu("s_cmp_eq_u32 s20, 1", ["scc"], ["s20"]))
    a(raw("s_cbranch_scc1 L_pl_n"))
    for cb in range(3):
        a(salu(f"s_add_u32 m0, s43, {PST + 24576 + 896 * cb}", ["m0", "scc"], ["s43"]))
        dma(a, 12, 56, 26, 128 * cb)
    ws_srd(a, 42)
    if not o.noclear:
        clear(V_LDS[0], [S_PSO])
    a(raw("s_branch L_np1"))
    a(raw("L_pl_n:", "label"))
    if o.wstamp:
        WST[0] = 16
    srd(a, 60, S_KA + 4, 192 * 192 * 2)
    for i in range(6):
        a(salu(f"s_add_u32 m0, s27, {PST + 24576 + 1024 * i}", ["m0", "scc"], ["s27"]))
        if i:
            a(salu("s_add_u32 s26, s26, 3072", ["s26", "scc"], ["s26"]))
        dma(a, 12 + (i & 1), 60, 26)
    ws_srd(a, 42)
    a(v3("v_lshrrev_b32", "v9", "5", "v1"))
    a(v3("v_lshlrev_b32", "v9", "10", "v9"))
    a(v3("v_and_b32", "v5", "3", "v5"))
    a(v3("v_lshl_add_u32", "v9", "v5", "8", "v9"))
    a(v3("v_lshl_add_u32", "v9", "v6", "4", "v9"))
    a(salu("s_lshl_b32 s23, s22, 7", ["s23", "scc"], ["s22"]))
    a(salu("s_cmp_eq_u32 s22, 2", ["scc"], ["s22"]))
    a(salu("s_cselect_b64 vcc, -1, 0", ["vcc"], ["scc"]))
    a(salu("s_cselect_b32 s26, 1, 2", ["s26"], ["scc"]))
    a(salu("s_cselect_b32 s23, 49152, s23", ["s23"], ["scc", "s23"]))
    a(salu("s_cselect_b32 s43, 1, 6", ["s43"], ["scc"]))
    a(valu(f"v_cndmask_b32 v9, v9, v{V_LDS[0]}, vcc", ["v9"], ["v9", f"v{V_LDS[0]}", "vcc"]))
    a(salu("s_mul_i32 s26, s26, s27", ["s26"], ["s26", "s27"]))
    a(salu("s_lshl_b32 s43, s43, 10", ["s43", "scc"], ["s43"]))
    a(salu("s_add_u32 s26, s26, s23", ["s26", "scc"], ["s26", "s23"]))
    a(salu(f"s_lshl_b32 s{S_PSO}, s21, 11", [f"s{S_PSO}", "scc"], ["s21"]))
    a(salu(f"s_add_u32 s{S_PSO}, s{S_PSO}, {NBASE}", [f"s{S_PSO}", "scc"], [f"s{S_PSO}"]))
    a(salu(f"s_add_u32 s26, s26, s{S_PSO}", ["s26", "scc"], ["s26", f"s{S_PSO}"]))
    a(salu("s_add_u32 s43, s43, s26", ["s43", "scc"], ["s43", "s26"]))
    if not o.noclear:
        clear(9, [26, 43])
    a(salu("s_lshr_b32 s23, s38, 1", ["s23", "scc"], ["s38"]))
    a(salu("s_lshl_b32 s23, s23, 10", ["s23", "scc"], ["s23"]))
    a(salu(f"s_add_u32 s{S_PSO}, s{S_PSO}, s23", [f"s{S_PSO}", "scc"], [f"s{S_PSO}", "s23"]))


def prod_make(o, a, x_small):
    a(v3("v_lshrrev_b32", "v5", "2", "v3"))
    a(v3("v_and_b32", "v6", "3", "v3"))
    a(v3("v_lshrrev_b32", "v7", "1", "v3"))
    a(v3("v_xor_b32", "v7", "v7", "v4"))
    a(v3("v_lshlrev_b32", "v7", "4", "v7"))
    a(v3("v_lshl_add_u32", "v7", "v6", "7", "v7"))
    a(v3("v_mul_u32_u24", "v8", "0xc00", "v5"))
    a(salu("s_lshr_b32 s23, s38, 1", ["s23", "scc"], ["s38"]))
    a(salu("s_mul_i32 s23, s23, 12288", ["s23"], ["s23"]))
    a(salu(f"s_add_u32 s23, s23, {PST}", ["s23", "scc"], ["s23"]))
    a(v3("v_add3_u32", f"v{P_RA[0]}", "v7", "v8", "s23"))
    a(v3("v_xor_b32", f"v{P_RA[1]}", "64", f"v{P_RA[0]}"))
    a(salu("s_and_b32 s24, s38, 1", ["s24", "scc"], ["s38"]))
    a(salu(f"s_cmp_ge_u32 s{S_J}, {NJM}", ["scc"], [f"s{S_J}"]))
    a(salu(f"s_addc_u32 s26, s{S_J}, s3", ["s26", "scc"], [f"s{S_J}", "s3", "scc"]))
    a(salu(f"s_cmp_ge_u32 s{S_J}, {NJM}", ["scc"], [f"s{S_J}"]))
    a(salu("s_addc_u32 s26, s26, 0", ["s26", "scc"], ["s26", "scc"]))
    a(salu(f"s_cmp_lg_u32 s38, {o.fw}", ["scc"], ["s38"]))
    a(salu("s_cselect_b32 s26, 0x1000, s26", ["s26"], ["scc", "s26"]))
    a(v3("v_mov_b32", "v9", "1"))
    a(salu(f"s_cmp_ge_u32 s{S_J}, {NJM}", ["scc"], [f"s{S_J}"]))
    a(raw("s_cbranch_scc1 L_pm_n"))

    def a_read(k):
        for h in range(2):
            d = P_A + 24 * h + 4 * k
            a(Inst(f"ds_read_b128 {T('v', d, 4)}, v{P_RA[k & 1]} offset:{1024 * (k >> 1) + 512 * h}", "dsr", defs=R('v', d, 4), uses=[f"v{P_RA[k & 1]}"]))

    def finish(acc, out, scale):
        for r in range(4):
            if scale:
                for e in range(2):
                    a(v3("v_mul_f32", f"v{acc + 2 * r + e}", f"0x{f32bits(ALPHA):08x}", f"v{acc + 2 * r + e}"))
            a(cvtpk(out + r, acc + 2 * r, acc + 2 * r + 1))
            a(v3("v_min_u32", f"v{out + r}", "-2", f"v{out + r}"))

    def flag():
        if not o.nofb:
            a(raw("s_barrier"))
        a(salu("s_mov_b64 exec, 1", ["exec"], []))
        a(Inst(f"buffer_store_byte v9, off, s[{S_DBG}:{S_DBG+3}], s26", "vstore", uses=["v9", "s26"]))
        a(salu("s_mov_b64 exec, -1", ["exec"], []))
        if o.pstamp:
            for i in stamp3(52):
                a(i)

    xm, xn = o.order.split(","), o.ordern.split(",")
    for xo in (xm, xn):
        assert sorted("".join(xo).replace("A", "DE")) == ["B", "C", "D", "E"]

    def gate(xo):
        x_small(xo[0])
        behind = 1 + sum({"A": 4, "B": 2, "C": 6, "D": 2, "E": 2}[c] for c in xo[0])
        if o.wstamp:
            for k in range(8):
                a(raw(f"s_waitcnt vmcnt({behind + 7 - k})", "wait"))
                for i in stamp3(22 + k):
                    a(i)
        a(raw(f"s_waitcnt vmcnt({behind})", "wait"))
        if o.pstamp:
            for i in stamp3(57):
                a(i)
        a(raw("s_barrier"))
    a(salu("s_lshl_b32 s24, s24, 9", ["s24", "scc"], ["s24"]))
    a(salu(f"s_add_u32 s24, s24, {PST + 24576}", ["s24", "scc"], ["s24"]))
    a(v3("v_add3_u32", f"v{P_RB[0]}", "v7", "v8", "s24"))
    a(v3("v_xor_b32", f"v{P_RB[1]}", "64", f"v{P_RB[0]}"))
    gate(xm)
    def m_read(k):
        d = P_B + 4 * k
        a(Inst(f"ds_read_b128 {T('v', d, 4)}, v{P_RB[k & 1]} offset:{1024 * (k >> 1)}", "dsr", defs=R('v', d, 4), uses=[f"v{P_RB[k & 1]}"]))
        a_read(k)
    for k in range(5):
        m_read(k)
    x_small(xm[1])
    for k in range(6):
        a(raw(f"s_waitcnt lgkmcnt({min(15 - 3 * k, 12)})", "wait"))
        for h in range(2):
            a(mfma("v", P_C + 4 * h, "v", P_A + 24 * h + 4 * k, "v", P_B + 4 * k, k == 0))
        if k == 0:
            m_read(5)
    finish(P_C, P_O, True)
    a(Inst(f"buffer_store_dwordx4 {T('v', P_O, 4)}, v{V_LDS[0]}, s[12:15], s{S_PSO} offen", "vstore",
           uses=R('v', P_O, 4) + [f"v{V_LDS[0]}", f"s{S_PSO}"], wide=True))
    flag()
    x_small(xm[2])
    a(raw("s_branch L_np3"))
    a(raw("L_pm_n:", "label"))
    a(v3("v_lshrrev_b32", "v7", "1", "v6"))
    a(v3("v_and_b32", "v8", "2", "v5"))
    a(v3("v_xor_b32", "v7", "v7", "v8"))
    a(v3("v_and_b32", "v8", "1", "v4"))
    a(v3("v_xor_b32", "v8", "s24", "v8"))
    a(v3("v_lshl_add_u32", "v7", "v8", "2", "v7"))
    a(v3("v_lshlrev_b32", "v7", "4", "v7"))
    a(v3("v_and_b32", "v8", "1", "v3"))
    a(v3("v_lshl_add_u32", "v7", "v8", "3", "v7"))
    a(v3("v_lshl_add_u32", "v7", "v5", "7", "v7"))
    a(v3("v_lshl_add_u32", "v7", "v4", "10", "v7"))
    a(v3("v_add_u32", f"v{P_RB[0]}", str(PST + 24576), "v7"))
    a(v3("v_xor_b32", f"v{P_RB[1]}", "32", f"v{P_RB[0]}"))
    a(salu(f"s_cmp_eq_u32 s{S_PSC}, 2", ["scc"], [f"s{S_PSC}"]))
    a(salu("s_cselect_b32 s23, 2, 3", ["s23"], ["scc"]))
    a(salu("s_cselect_b32 s25, 3, 7", ["s25"], ["scc"]))
    a(salu("s_cselect_b32 s27, 49152, 0", ["s27"], ["scc"]))
    a(salu(f"s_cselect_b32 s43, 0, s{S_PSC}", ["s43"], ["scc", f"s{S_PSC}"]))
    a(salu("s_lshl1_add_u32 s43, s43, s24", ["s43", "scc"], ["s43", "s24"]))
    a(salu("s_lshl_b32 s43, s43, 5", ["s43", "scc"], ["s43"]))
    a(salu(f"s_add_u32 s{S_PSO}, s{S_PSO}, s27", [f"s{S_PSO}", "scc"], [f"s{S_PSO}", "s27"]))
    a(v3("v_and_b32", "v7", "s25", "v3"))
    a(v3("v_mul_u32_u24", "v7", "0x1800", "v7"))
    a(v3("v_lshl_add_u32", "v7", "v4", "8", "v7"))
    for u in range(2):
        a(v3("v_add_u32", "v8", "s43", "v3"))
        if u:
            a(v3("v_add_u32", "v8", "16", "v8"))
        a(v3("v_lshrrev_b32", "v8", "s23", "v8"))
        a(v3("v_lshl_add_u32", f"v{P_SO[u]}", "v8", "4", "v7"))
    gate(xn)
    for k in range(6):
        a_read(k)
        for u in range(2):
            for j in range(2):
                d = P_U + 24 * u + 4 * k + 2 * j
                a(Inst(f"ds_read_b64_tr_b16 {T('v', d, 2)}, v{P_RB[u]} offset:{4096 * k + 512 * j}", "dsr", defs=R('v', d, 2), uses=[f"v{P_RB[u]}"]))
        if k == 1:
            x_small(xn[1])
        if k >= 2:
            a(raw("s_waitcnt lgkmcnt(12)", "wait"))
            for u in range(2):
                for h in range(2):
                    a(mfma("v", P_C + 8 * u + 4 * h, "v", P_A + 24 * h + 4 * (k - 2), "v", P_U + 24 * u + 4 * (k - 2), k == 2))
    for k in (4, 5):
        a(raw(f"s_waitcnt lgkmcnt({6 * (5 - k)})", "wait"))
        for u in range(2):
            for h in range(2):
                a(mfma("v", P_C + 8 * u + 4 * h, "v", P_A + 24 * h + 4 * k, "v", P_U + 24 * u + 4 * k, False))
    for u in range(2):
        finish(P_C + 8 * u, P_B + 4 * u, False)
        a(Inst(f"buffer_store_dwordx4 {T('v', P_B + 4 * u, 4)}, v{P_SO[u]}, s[12:15], s{S_PSO} offen", "vstore",
               uses=R('v', P_B + 4 * u, 4) + [f"v{P_SO[u]}", f"s{S_PSO}"], wide=True))
    flag()
    x_small(xn[2])
    a(raw("s_branch L_np3"))


def gen_alone(o):
    p = []
    a = p.append
    J, MAT, CTX, SS, T0, T1, T2, IT = 44, 45, 46, 47, 42, 43, 27, 30
    a(raw("L_alone:", "label"))
    a(raw("s_waitcnt vmcnt(0) lgkmcnt(0)", "wait"))
    a(salu(f"s_lshl_b32 s{T0}, s2, 2", [f"s{T0}", "scc"], ["s2"]))
    a(salu(f"s_add_u32 s{T0}, s{T0}, s38", [f"s{T0}", "scc"], [f"s{T0}", "s38"]))
    a(salu(f"s_mul_i32 s{T0}, s{T0}, {SLOT}", [f"s{T0}"], [f"s{T0}"]))
    a(salu(f"s_add_u32 s{T0}, s{T0}, {WS_PRIV}", [f"s{T0}", "scc"], [f"s{T0}"]))
    ws_srd(a, T0)
    srd(a, 64, S_KA + 2, 192 * 576 * 2)
    srd(a, 68, S_KA + 4, 192 * 192 * 2)
    a(v3("v_lshrrev_b32", "v5", "2", "v3"))
    a(v3("v_and_b32", "v6", "3", "v3"))
    a(v3("v_lshl_add_u32", "v5", "v5", "3", "v6"))
    a(v3("v_mul_u32_u24", "v5", "0x480", "v5"))
    a(v3("v_lshl_add_u32", "v5", "v4", "4", "v5"))
    a(salu(f"s_mov_b32 s{IT}, 0", [f"s{IT}"], []))
    a(raw("L_al_loop:", "label"))
    a(salu(f"s_cmp_ge_u32 s{IT}, 18", ["scc"], [f"s{IT}"]))
    a(salu(f"s_cselect_b32 s{MAT}, 1, 0", [f"s{MAT}"], ["scc"]))
    a(salu(f"s_cselect_b32 s{T0}, 18, 0", [f"s{T0}"], ["scc"]))
    a(salu(f"s_sub_u32 s{J}, s{IT}, s{T0}", [f"s{J}", "scc"], [f"s{IT}", f"s{T0}"]))
    a(salu(f"s_lshr_b32 s{T0}, s{S_ROT}, 10", [f"s{T0}", "scc"], [f"s{S_ROT}"]))
    a(salu(f"s_add_u32 s{J}, s{J}, s{T0}", [f"s{J}", "scc"], [f"s{J}", f"s{T0}"]))
    a(salu(f"s_sub_u32 s{T0}, s{J}, 72", [f"s{T0}", "scc"], [f"s{J}"]))
    a(salu(f"s_cselect_b32 s{J}, s{J}, s{T0}", [f"s{J}"], ["scc", f"s{J}", f"s{T0}"]))
    a(salu(f"s_mul_i32 s{CTX}, s{J}, 43", [f"s{CTX}"], [f"s{J}"]))
    a(salu(f"s_lshr_b32 s{CTX}, s{CTX}, 8", [f"s{CTX}", "scc"], [f"s{CTX}"]))
    assert all((r * 43) >> 8 == r // 6 for r in range(72))
    a(salu(f"s_mul_i32 s{SS}, s{CTX}, 6", [f"s{SS}"], [f"s{CTX}"]))
    a(salu(f"s_sub_u32 s{SS}, s{J}, s{SS}", [f"s{SS}", "scc"], [f"s{J}", f"s{SS}"]))
    a(salu(f"s_mul_i32 s{T0}, s{MAT}, 72", [f"s{T0}"], [f"s{MAT}"]))
    a(salu(f"s_add_u32 s{J}, s{J}, s{T0}", [f"s{J}", "scc"], [f"s{J}", f"s{T0}"]))
    a(salu(f"s_lshl_b32 s{S_PSO}, s{J}, 10", [f"s{S_PSO}", "scc"], [f"s{J}"]))
    a(salu(f"s_mul_i32 s{T0}, s{SS}, 36864", [f"s{T0}"], [f"s{SS}"]))
    a(salu(f"s_mul_i32 s{T1}, s{MAT}, 768", [f"s{T1}"], [f"s{MAT}"]))
    a(salu(f"s_add_u32 s{T0}, s{T0}, s{T1}", [f"s{T0}", "scc"], [f"s{T0}", f"s{T1}"]))
    a(salu(f"s_add_u32 s{T1}, s{T0}, 4608", [f"s{T1}", "scc"], [f"s{T0}"]))
    for k in range(6):
        for h in range(2):
            d = P_A + 24 * h + 4 * k
            a(Inst(f"buffer_load_dwordx4 {T('v', d, 4)}, v5, s[64:67], s{(T0, T1)[h]} offen offset:{64 * k}", "vload",
                   defs=R('v', d, 4), uses=["v5", f"s{T0}", f"s{T1}"]))
    a(salu(f"s_cmp_eq_u32 s{MAT}, 1", ["scc"], [f"s{MAT}"]))
    a(raw("s_cbranch_scc1 L_al_n"))
    a(salu(f"s_lshr_b32 s{T0}, s{CTX}, 1", [f"s{T0}", "scc"], [f"s{CTX}"]))
    a(salu(f"s_mul_i32 s{T0}, s{T0}, 36864", [f"s{T0}"], [f"s{T0}"]))
    a(salu(f"s_and_b32 s{T1}, s{CTX}, 1", [f"s{T1}", "scc"], [f"s{CTX}"]))
    a(salu(f"s_mul_i32 s{T1}, s{T1}, 4608", [f"s{T1}"], [f"s{T1}"]))
    a(salu(f"s_add_u32 s{T0}, s{T0}, s{T1}", [f"s{T0}", "scc"], [f"s{T0}", f"s{T1}"]))
    a(salu(f"s_add_u32 s{T0}, s{T0}, 384", [f"s{T0}", "scc"], [f"s{T0}"]))
    for k in range(6):
        a(Inst(f"buffer_load_dwordx4 {T('v', P_B + 4 * k, 4)}, v5, s[64:67], s{T0} offen offset:{64 * k}", "vload",
               defs=R('v', P_B + 4 * k, 4), uses=["v5", f"s{T0}"]))
    a(salu(f"s_mov_b32 s{S_PSC}, 0x{f32bits(ALPHA):08x}", [f"s{S_PSC}"], []))
    a(raw("s_waitcnt vmcnt(0)", "wait"))
    a(raw("s_branch L_al_mm"))
    a(raw("L_al_n:", "label"))
    a(salu(f"s_cmp_lt_u32 s{CTX}, 8", ["scc"], [f"s{CTX}"]))
    a(salu(f"s_cselect_b32 s{T0}, 3, 2", [f"s{T0}"], ["scc"]))
    a(salu(f"s_cselect_b32 s{T1}, 0, 120", [f"s{T1}"], ["scc"]))
    a(salu(f"s_add_u32 s{T1}, s{T1}, s{CTX}", [f"s{T1}", "scc"], [f"s{T1}", f"s{CTX}"]))
    a(v3("v_lshlrev_b32", "v6", f"s{T0}", "v3"))
    a(v3("v_add_u32", "v6", f"s{T1}", "v6"))
    a(v3("v_lshlrev_b32", "v6", "1", "v6"))
    a(v3("v_mul_u32_u24", "v7", "0xc00", "v4"))
    a(v3("v_add_u32", "v6", "v6", "v7"))
    for k in range(6):
        a(salu(f"s_mov_b32 s{T2}, {k * 12288}", [f"s{T2}"], []))
        for j in range(8):
            r = P_U + 8 * k + j
            a(Inst(f"buffer_load_ushort v{r}, v6, s[68:71], s{T2} offen offset:{384 * j}", "vload", defs=[f"v{r}"], uses=["v6", f"s{T2}"]))
    a(salu(f"s_mov_b32 s{S_PSC}, 1.0", [f"s{S_PSC}"], []))
    a(raw("s_waitcnt vmcnt(0)", "wait"))
    for r in range(24):
        a(v3("v_lshl_or_b32", f"v{P_B + r}", f"v{P_U + 2 * r + 1}", "16", f"v{P_U + 2 * r}"))
    a(raw("L_al_mm:", "label"))
    a(raw("s_nop 1", "nop"))
    for k in range(6):
        for h in range(2):
            a(mfma("v", P_C + 4 * h, "v", P_A + 24 * h + 4 * k, "v", P_B + 4 * k, k == 0))
    for r in range(8):
        a(v3("v_mul_f32", f"v{P_C + r}", f"s{S_PSC}", f"v{P_C + r}"))
    for r in range(4):
        a(cvtpk(P_O + r, P_C + 2 * r, P_C + 2 * r + 1))
        a(v3("v_min_u32", f"v{P_O + r}", "-2", f"v{P_O + r}"))
    a(Inst(f"buffer_store_dwordx4 {T('v', P_O, 4)}, v{V_LDS[0]}, s[12:15], s{S_PSO} offen sc1", "vstore",
           uses=R('v', P_O, 4) + [f"v{V_LDS[0]}", f"s{S_PSO}"], wide=True))
    a(raw("s_waitcnt vmcnt(0)", "wait"))
    a(salu(f"s_add_u32 s{IT}, s{IT}, 1", [f"s{IT}", "scc"], [f"s{IT}"]))
    a(salu(f"s_cmp_lt_u32 s{IT}, 36", ["scc"], [f"s{IT}"]))
    a(raw("s_cbranch_scc1 L_al_loop"))
    a(v3("v_mov_b32", f"v{V_EXP}", "0"))
    a(salu("s_mov_b32 s37, 0x10000", ["s37"], []))
    a(raw("s_branch L_ldm"))
    return p


XS = [0, 72]
AX49, AT49, AW = 144, 168, 192
NRING = 12
SB = 0
ACC = 64
TBF = 88
OPA = 100
VBF = 124
V_LDS = [220, 221, 222]
V_F = [223, 224, 225]
V_ST = {"H": (232, 233), "V": (234, 235), "Q": (236, 237), "I": (238, 239)}
V_SP = (240, 241)
V_CT = (242, 243)
AP = {1: 240, 2: 248}
V_Q3 = 250
S_TW = 73
S_XS = 76
NBASE = 73728
DSW_BUSY, ST_BUSY, LD_GRP = 40, 40, 1
DROP, PFLAGS = [], [None, None]
CHAIN = set()
V_NINF = 244
V_TMP = [[245, 246, 247, 248, 249], [250, 251, 252, 253, 254]]
V_TIME = 255
S_WCUR, S_LB, S_CB, S_K, S_ROW = 16, 17, 18, 19, 20
S_IT = 28
S_M0, S_M1, S_GM, S_SH, S_SPO, S_GO = 48, 50, 52, 54, 55, 74
S_SPA, S_SPB = 56, 60


def xr(xs, t, s):
    return XS[xs] + 24 * t + 4 * s


def xop(xs, t, s):
    return AX49 + 4 * s if t == 3 else xr(xs, t, s)


def lds_at(idx):
    base, imm = divmod((idx % 144) * 1024, 65536)
    return V_LDS[base], imm


def wfrag_read(idx, slot=None, extra=(), **kw):
    va, imm = lds_at(idx)
    d = AW + 4 * (idx % NRING if slot is None else slot)
    return Inst(f"ds_read_b128 {T('a', d, 4)}, v{va} offset:{imm}", "dsr", defs=R('a', d, 4),
                uses=[f"v{va}"] + list(extra), **kw)


class Ring:
    def __init__(self, seq, have=None):
        self.seq = seq
        self.slot = [have[i] for i in seq[:NRING]] if have else list(range(NRING))
        self.pos = 0
        self.gate = lambda idx: []

    def fill(self, extra=()):
        return [wfrag_read(i, self.slot[p], extra) for p, i in enumerate(self.seq[:NRING])]

    def take(self):
        p = self.pos
        self.pos += 1
        sl = self.slot[p]
        self.slot.append(sl)
        nxt = [wfrag_read(self.seq[p + NRING], sl, self.gate(self.seq[p + NRING]))] if p + NRING < len(self.seq) else []
        return AW + 4 * sl, nxt


def xload(xs, t, s, sbase, flags="", sr=4, **kw):
    d = xr(xs, t, s)
    return Inst(f"buffer_load_dwordx4 {T('a', d, 4)}, v{V_F[t]}, s[{sr}:{sr+3}], s{sbase} offen offset:{64 * s}" + flags,
                "vload", defs=R('a', d, 4), uses=[f"v{V_F[t]}", f"s{sbase}", f"s{sr+2}"], **kw)


def xloads(xs, sbase, flags, rel=None, step=0):
    out = []
    k = 0
    for j in range(3):
        for t in range(3):
            for u in range(2):
                kw = {}
                if rel is not None:
                    at = rel + step * (k - k % LD_GRP) + 16 * (k % LD_GRP)
                    kw = dict(release=at, deadline=at + 48)
                out.append(xload(xs, t, 2 * j + u, sbase, flags, **kw))
                k += 1
    return out


def vb(ct):
    return VBF + 8 * ct


def opk(q, i, part):
    if q == 3:
        return TBF + 4 * i if part == 0 else V_Q3 + 2 * i
    return OPA + 4 * i if part == 0 else OPA + 16 + 2 * i


def o_mf(q, pr, acc=None, held=False):
    acc = SB + 16 * q + 8 if acc is None else acc
    bank, pb = ("a", AP[q]) if held else ("v", SB + 16 * q)
    out = []
    for ks, e in ([(0, 0), (1, 0), (0, 1), (1, 1)] if "o" in CHAIN else [(0, 0), (0, 1), (1, 0), (1, 1)]):
        out.append(mfma("v", acc + 4 * e, bank, pb + 4 * ks, "v", vb(2 * pr + e) + 4 * ks, ks == 0))
    return out


def o_pack(q, pr, acc=None):
    acc = SB + 16 * q + 8 if acc is None else acc
    out = []
    for i in range(2 if q == 3 else 4):
        d = opk(q, i, 0) + pr if pr < 4 else opk(q, i, 1) + pr - 4
        out.append(cvtpk(d, acc + i, acc + 4 + i))
    return out


def o_store(q, part, flags="", rel=None, step=0):
    out = []
    n = (4, 2)[part]
    for i in range(2 if q == 3 else 4):
        d = opk(q, i, part)
        if q == 3:
            vo, row, imm, sr = V_SP[part], None, 0, (S_SPA, S_SPB)[i]
        else:
            kind, pp = STRIPS[4 * q + i]
            vo, sr = V_ST[kind][part], 8
            row, imm = {"H": (pp, 0), "V": (0, pp * 384), "Q": (4, 4 * 384), "I": (4, 0)}[kind]
        so = f"s{S_SPO}" if row is None else f"s{S_ROW + row}"
        if part in DROP and q != 3:
            sr = 80
        if PFLAGS[part] is not None:
            flags = PFLAGS[part]
        out.append(Inst(f"buffer_store_dwordx{n} {T('v', d, n)}, v{vo}, s[{sr}:{sr+3}], {so} offen offset:{imm + 256 * part}{flags}",
                        "vstore", uses=R('v', d, n) + [f"v{vo}", so, f"s{sr+2}"], wide=(n == 4)))
        out[-1].cost, out[-1].real, out[-1].busy = 8, 4 + 4 * n, ST_BUSY
        if rel is not None:
            out[-1].release = rel + step * i
    return out


def xlane(op, m0, m1):
    p = []
    for sw in ("v_permlane32_swap_b32", "v_permlane16_swap_b32"):
        p.append(v3("v_mov_b32", f"v{m1}", f"v{m0}"))
        p.append(valu(f"{sw} v{m0}, v{m1}", [f"v{m0}", f"v{m1}"], [f"v{m0}", f"v{m1}"], kind="perm"))
        p.append(v3(op, f"v{m0}", f"v{m0}", f"v{m1}"))
    return p


def softmax(q, tset, part=3, hold=False):
    b = SB + 16 * q
    m0, m1, s0, s1, rr = V_TMP[tset]
    p = []
    p.append(cnd(f"v{b + 12}", f"v{V_NINF}", f"v{b + 12}", S_M0))
    p.append(cnd(f"v{b + 12}", f"v{b + 12}", f"v{b + 13}", S_M1))
    regs = [b + r for r in range(13)]
    m3 = lambda d, x, y, z: v3("v_max3_f32", f"v{d}", f"v{x}", f"v{y}", f"v{z}")
    p.append(m3(m0, regs[0], regs[1], regs[2]))
    p.append(m3(m1, regs[3], regs[4], regs[5]))
    p.append(m3(m0, m0, regs[6], regs[7]))
    p.append(m3(m1, m1, regs[8], regs[9]))
    p.append(m3(m0, m0, regs[10], regs[11]))
    p.append(m3(m0, m0, m1, regs[12]))
    p.extend(xlane("v_max_f32", m0, m1))
    for r in regs:
        p.append(v3("v_sub_f32", f"v{r}", f"v{r}", f"v{m0}"))
        p.append(valu(f"v_exp_f32 v{r}, v{r}", [f"v{r}"], [f"v{r}"], kind="trans"))
    p.append(v3("v_add_f32", f"v{s0}", f"v{regs[0]}", f"v{regs[1]}"))
    p.append(v3("v_add_f32", f"v{s1}", f"v{regs[2]}", f"v{regs[3]}"))
    for k in range(4, 13):
        s = (s0, s1)[k & 1]
        p.append(v3("v_add_f32", f"v{s}", f"v{s}", f"v{regs[k]}"))
    p.append(v3("v_add_f32", f"v{s0}", f"v{s0}", f"v{s1}"))
    p.extend(xlane("v_add_f32", s0, s1))
    p.append(valu(f"v_rcp_f32 v{rr}, v{s0}", [f"v{rr}"], [f"v{s0}"], kind="trans"))
    if part == 1:
        return p
    if part == 2:
        p = []
    for k in range(0, 12, 2):
        p.append(v3("v_mul_f32", f"v{regs[k]}", f"v{regs[k]}", f"v{rr}"))
        p.append(v3("v_mul_f32", f"v{regs[k + 1]}", f"v{regs[k + 1]}", f"v{rr}"))
        p.append(cvtpk(b + k // 2, regs[k], regs[k + 1]))
    p.append(v3("v_mul_f32", f"v{regs[12]}", f"v{regs[12]}", f"v{rr}"))
    p.append(cvtpk(b + 6, regs[12], None))
    p.append(v3("v_lshlrev_b32", f"v{b + 6}", f"s{S_SH}", f"v{b + 6}"))
    if not hold:
        p.append(v3("v_mov_b32", f"v{b + 7}", "0"))
    return p


def p_hold(q):
    return [valu(f"v_accvgpr_write_b32 a{AP[q] + r}, v{SB + 16 * q + r}", [f"a{AP[q] + r}"], [f"v{SB + 16 * q + r}"])
            for r in range(7)]


def win_base(dst, w, tmp):
    return [
        salu(f"s_mul_hi_u32 s{tmp}, s{w}, s29", [f"s{tmp}"], [f"s{w}", "s29"]),
        salu(f"s_mul_i32 s{dst}, s{tmp}, 73", [f"s{dst}"], [f"s{tmp}"]),
        salu(f"s_sub_u32 s{dst}, s{w}, s{dst}", [f"s{dst}", "scc"], [f"s{w}", f"s{dst}"]),
        salu(f"s_mul_i32 s{dst}, s{dst}, 2688", [f"s{dst}"], [f"s{dst}"]),
        salu(f"s_mul_i32 s{tmp}, s{tmp}, {WINROW}", [f"s{tmp}"], [f"s{tmp}"]),
        salu(f"s_add_u32 s{dst}, s{dst}, s{tmp}", [f"s{dst}", "scc"], [f"s{dst}", f"s{tmp}"]),
    ]


def row_bases(o=None):
    out = [] if o is None or o.nostore else [salu("s_mov_b32 s10, s31", ["s10"], ["s31"])]
    out += [salu(f"s_mov_b32 s{S_ROW}, s{S_CB}", [f"s{S_ROW}"], [f"s{S_CB}"])]
    for r in range(1, 7):
        out.append(salu(f"s_add_u32 s{S_ROW + r}, s{S_CB}, {r * ROWB}", [f"s{S_ROW + r}", "scc"], [f"s{S_CB}"]))
    out.append(salu(f"s_sub_u32 s{S_SPO}, s{S_ROW + 6}, s{S_GO}", [f"s{S_SPO}", "scc"], [f"s{S_ROW + 6}", f"s{S_GO}"]))
    out.append(salu(f"s_add_u32 s{S_SPO}, s{S_SPO}, {6 * 384}", [f"s{S_SPO}", "scc"], [f"s{S_SPO}"]))
    return out


def slot_masks():
    k = S_K
    return [
        salu(f"s_and_b32 s30, s{k}, 3", ["s30", "scc"], [f"s{k}"]),
        salu(f"s_mul_i32 s{S_GO}, s30, 384", [f"s{S_GO}"], ["s30"]),
        salu("s_lshl_b32 s30, s30, 4", ["s30", "scc"], ["s30"]),
        salu(f"s_lshl_b64 s[{S_GM}:{S_GM+1}], s[40:41], s30", [f"s{S_GM}", f"s{S_GM+1}", "scc"], ["s40", "s41", "s30"]),
        salu(f"s_cmp_lt_u32 s{k}, 4", ["scc"], [f"s{k}"]),
        salu(f"s_cselect_b64 s[{S_M0}:{S_M0+1}], s[{S_GM}:{S_GM+1}], 0", [f"s{S_M0}", f"s{S_M0+1}"], ["scc", f"s{S_GM}", f"s{S_GM+1}"]),
        salu(f"s_cselect_b64 s[{S_M1}:{S_M1+1}], 0, s[{S_GM}:{S_GM+1}]", [f"s{S_M1}", f"s{S_M1+1}"], ["scc", f"s{S_GM}", f"s{S_GM+1}"]),
        salu(f"s_cselect_b32 s{S_SH}, 0, 16", [f"s{S_SH}"], ["scc"]),
        salu(f"s_cselect_b32 s{S_SPA+2}, s31, 0", [f"s{S_SPA+2}"], ["scc", "s31"]),
        salu(f"s_cselect_b32 s{S_SPB+2}, 0, s31", [f"s{S_SPB+2}"], ["scc", "s31"]),
        salu(f"s_add_u32 s{k}, s{k}, 1", [f"s{k}", "scc"], [f"s{k}"]),
        cnd(f"v{V_SP[0]}", f"v{V_NINF}", f"v{V_ST['H'][0]}", S_GM),
        cnd(f"v{V_SP[1]}", f"v{V_NINF}", f"v{V_ST['H'][1]}", S_GM),
    ]


def carry_head(o):
    p = cvt_v(11)
    for q in (1, 2):
        if q in o.defer:
            p += softmax(q, q & 1, 2, True)
        p += p_hold(q)
    return p


def carry_30(o):
    p = o_mf(3, 5) + o_mf(0, 5) + o_pack(3, 5) + o_pack(0, 5)
    return p + o_store(3, 1, o.st_flags) + o_store(0, 1, o.st_flags)


def carry_grp(o, g, acc, pace=False):
    q, pr = 1 + g // 6, g % 6
    p = o_mf(q, pr, acc, True) + o_pack(q, pr, acc)
    if pr in (3, 5):
        rel, step = None, 0
        if pace and q == 2:
            rel, step = [int(x) for x in (o.q2p0, o.q2p1)[pr >> 2].split(",")]
        p += o_store(q, pr >> 2, o.st_flags, rel, step)
    return p


def cvt_v(ct):
    out = []
    for t in range(3):
        acc = ACC + 12 * (ct & 1) + 4 * t
        for h in range(2):
            out.append(cvtpk(vb(ct) + 2 * t + h, acc + 2 * h, acc + 2 * h + 1))
    return out


def s3(xs):
    order = [(s, kt) for kt in range(4) for s in range(6)] if "s" in CHAIN else [(s, kt) for s in range(6) for kt in range(4)]
    return [mfma("v", SB + 48 + 4 * kt, "a", xop(xs, kt, s), "a", AT49 + 4 * s, s == 0) for s, kt in order]


CT = ["L_b1", "L_b1+8192", "L_main_done-8064"]


def code_touch(k, rel):
    b = 84 + 2 * k
    return [Inst(f"global_load_dword v{V_CT[1]}, v{V_CT[0]}, s[{b}:{b+1}]", "vload", defs=["~ct"], uses=[f"v{V_CT[0]}"],
                 release=rel, deadline=rel + 48, tag="pf")]


def gen_body(o, xs):
    p = []
    ext = p.extend
    NM = 624
    if o.ct and xs == 0:
        for k in range(3):
            ext(code_touch(k, o.ct + 200 * k))
    p.append(salu(f"s_{'add' if o.up else 'sub'}_u32 s{S_WCUR}, s{S_WCUR}, 1024", [f"s{S_WCUR}", "scc"], [f"s{S_WCUR}"], deadline=0))
    if o.up and o.w0:
        p.append(salu(f"s_sub_u32 s27, s{S_WCUR}, 5120", ["s27", "scc"], [f"s{S_WCUR}"], deadline=0))
        p.append(salu(f"s_min_u32 s{S_WCUR}, s{S_WCUR}, s27", [f"s{S_WCUR}", "scc"], [f"s{S_WCUR}", "s27"], deadline=0))
    ext(win_base(S_LB, S_WCUR, 27))
    if xs == 0:
        p.append(salu(f"s_cmp_lt_u32 s{S_K}, 4", ["scc"], [f"s{S_K}"]))
        p.append(salu(f"s_cselect_b32 s6, {'0' if o.noload else 's31'}, 0", ["s6"], ["scc", "s31"]))
    ext(xloads(xs ^ 1, S_LB, o.ld_flags, o.ld_rel, o.ld_step))
    ext(carry_head(o))

    def chain(mat, ct):
        out = []
        if "t" in CHAIN:
            order = [(t, s) for t in range(3) for s in range(6)]
        elif "h" in CHAIN:
            order = [(t, s) for h in range(2) for t in range(3) for s in range(3 * h, 3 * h + 3)]
        else:
            order = [(t, s) for s in range(6) for t in range(3)]
        for t, s in order:
            idx = 72 * mat + 6 * ct + s
            w = AW + 4 * (idx % NRING)
            acc = ACC + 12 * (ct & 1) + 4 * t
            if mat == 0:
                out.append(mfma("v", acc, "a", w, "a", xr(xs, t, s), s == 0))
            else:
                out.append(mfma("v", acc, "a", xr(xs, t, s), "a", w, s == 0))
            if t == 2:
                kw = {}
                if idx + NRING >= 144:
                    kw = dict(deadline=NM * 16 + (16 if "t" in CHAIN else 48) * (idx + NRING - 144) - 220)
                out.append(wfrag_read(idx + NRING, **kw))
        return out

    def cvt_t(ct):
        out = []
        for t in range(3):
            acc = ACC + 12 * (ct & 1) + 4 * t
            for h in range(2):
                out.append(cvtpk(TBF + 4 * t + 2 * (ct & 1) + h, acc + 2 * h, acc + 2 * h + 1))
        return out

    def s_mf(sp):
        return [mfma("v", SB + 16 * q + 4 * kt, "a", xop(xs, kt, sp), "v", TBF + 4 * q, sp == 0)
                for q in range(3) for kt in range(4)]

    def o_grp(pr):
        out = o_mf(3, pr) + o_mf(0, pr) + o_pack(3, pr) + o_pack(0, pr)
        if pr == 3:
            out += o_store(3, 0, o.st_flags) + o_store(0, 0, o.st_flags)
        return out

    grp = iter(range(12))

    def carried():
        return carry_grp(o, next(grp), SB + 56, True)

    ext(chain(0, 0))
    ext(carry_30(o))
    ext(slot_masks())
    ext(cvt_t(0))
    ext(chain(0, 1))
    ext(s3(xs))
    ext(softmax(3, 1))
    ext(cvt_t(1))
    for ct in range(2, 12):
        ext(chain(0, ct))
        if ct >= 4 and ct % 2 == 0:
            ext(carried())
        if ct % 2 == 0:
            ext(s_mf(ct // 2 - 1))
        ext(cvt_t(ct))
        if ct >= 4:
            ext(carried())
    ext(row_bases(o if xs == 0 else None))
    p.append(salu(f"s_mov_b32 s{S_CB}, s{S_LB}", [f"s{S_CB}"], [f"s{S_LB}"]))
    ext(chain(1, 0))
    ext(s_mf(5))
    for q in range(3):
        ext(softmax(q, q & 1, 1 if q in o.defer else 3, q > 0))
    ext(cvt_v(0))
    after = dict(zip([int(x) for x in o.after.split(",")], range(5)))
    for ct in range(1, 12):
        ext(chain(1, ct))
        if ct in after:
            ext(o_grp(after[ct]))
        if ct < 11:
            ext(cvt_v(ct))
    assert sum(i.kind == "mfma" for i in p) == NM
    for i in p:
        if i.kind != "mfma" and i.deadline is None and i.kind != "dsr":
            i.deadline = NM * 16 - 24
    for k in o.rm.split(","):
        if k == "ring":
            p = [i for i in p if i.kind != "dsr"]
        elif k:
            p = [i for i in p if i.kind != k]
    return p


def gen_epi(o):
    p = carry_head(o)
    for g in range(3):
        p += carry_grp(o, g, SB + 16 + 8 * (g % 4))
    p += carry_30(o)
    for g in range(3, 12):
        p += carry_grp(o, g, SB + 16 + 8 * (g % 4))
    return p


XSTAGED = [(0, 0), (0, 1), (1, 0), (1, 1), (2, 0), (2, 1), (1, 2), (2, 2)]
V_R0 = (226, 227)
V_NA = OPA
V_NS = VBF


def n_load(k, **kw):
    return Inst(f"buffer_load_dwordx4 {T('v', V_NS + 4 * k, 4)}, v{V_NA + k // 3}, s[12:15], 0 offen offset:{1024 * (k % 3)} sc1", "vload",
                defs=R('v', V_NS + 4 * k, 4), uses=[f"v{V_NA + k // 3}"], **kw)


def gen_shared(o, q):
    xs = 1
    p = []
    ext = p.extend
    own = [2 * q, 2 * q + 1] if q < 3 else [6, 7, 8, 9]
    solo = [ct for ct in range(10) if ct not in own]
    F = [SB + 16 * a for a in range(4) if a != q]
    v_x8 = V_TMP[(q & 1) ^ 1][0]
    st_imm = STAGE - 0x20000
    plan = [("v", ct) for ct in own]
    sp = [("s", solo[k], solo[k + 1]) for k in range(0, len(solo), 2)]
    if q == 3:
        n = o.pre3
        plan += sp[:n] + [("x",)] + sp[n:2] + [("v", 10), ("o", 3), ("o", 4), sp[2], ("o", 0), ("o", 1), ("v", 11), ("o", 2), ("o", 5)]
        assert solo == [0, 1, 2, 3, 4, 5]
    else:
        oth = [pr for pr in range(5) if pr != q]
        n = o.pre
        plan += sp[:n] + [("x",)] + sp[n:2] + [("v", 10), ("o", q), ("o", oth[0]), sp[2],
                 ("o", oth[1]), sp[3], ("o", oth[2]), ("v", 11), ("o", oth[3]), ("o", 5)]
    seq = [6 * (2 * c + e) + s for c in range(6) for s in range(6) for e in range(2)]
    for st in plan:
        if st[0] == "v":
            seq += [72 + 6 * st[1] + s for s in range(6)]
        elif st[0] == "s":
            seq += [72 + 6 * ct + s for s in range(6) for ct in st[1:]]
    assert sorted(seq) == list(range(144))
    seq += list(range(NRING))
    ring = Ring(seq)
    ring.gate = lambda idx: ["~b2"] if idx >= 72 else []
    p.append(Inst("s_barrier", "other", defs=["~b1"], deadline=0))
    xrd = {}
    for f, (t, j) in enumerate(XSTAGED):
        for u in range(2):
            d = xr(xs, t, 2 * j + u)
            xrd[t, 2 * j + u] = Inst(f"ds_read_b128 {T('a', d, 4)}, v{V_R0[u]} offset:{2048 * f}", "dsr", defs=R('a', d, 4),
                                     uses=[f"v{V_R0[u]}", "~b1"])
    fill = ring.fill(["~b1"])
    first = sorted(xrd, key=lambda k: (k[0] != q, k[1], k[0]))
    nq = sum(k[0] == q for k in xrd)
    for k in range(6):
        ext(fill[2 * k:2 * k + 2])
        if k < nq:
            p.append(xrd[first[k]])
    ext(xrd[k] for k in first[nq:])
    for k in range(o.mdep, 18):
        at = o.nl_rel + o.nl_step * (k - o.mdep)
        p.append(n_load(k, release=at, deadline=at + 48))
    nwr = []
    for k in range(18):
        w = Inst(f"ds_write_b128 v{V_NA + k // 3}, {T('v', V_NS + 4 * k, 4)} offset:{1024 * (k % 3)}", "dsw", defs=[f"~n{k}"],
                 uses=R('v', V_NS + 4 * k, 4) + [f"v{V_NA + k // 3}", "~b1"], release=o.nw_rel + o.nw_step * k)
        w.real, w.busy = 20, DSW_BUSY
        if o.nwhot:
            w.deadline = w.release
        p.append(w)
        nwr.append(f"~n{k}")
    v_chk = V_TMP[(q & 1) ^ 1][1]
    p.append(v3("v_mov_b32", f"v{v_chk}", "0"))
    for k in range(18):
        for h in range(2):
            chk = v3("v_max3_u32", f"v{v_chk}", f"v{v_chk}", f"v{V_NS + 4 * k + 2 * h}", f"v{V_NS + 4 * k + 2 * h + 1}")
            chk.release = o.nw_rel + o.nw_step * k
            p.append(chk)
    p.append(valu(f"v_cmp_eq_u32 vcc, -1, v{v_chk}", ["vcc"], [f"v{v_chk}"]))
    for ct in range(12):
        p.append(v3("v_mov_b32", f"v{vb(ct) + 7}", "0"))
    ext(xloads(0, S_LB, o.ld_flags, o.x0_rel - o.x0_step * o.n_early, o.x0_step)[o.n_early:])
    p.append(v3("v_lshrrev_b32", f"v{v_x8}", "1", f"v{V_LDS[0]}"))
    p.append(v3("v_add_u32", f"v{v_x8}", "0x20000", f"v{v_x8}"))

    def s_step(c):
        if q < 3:
            return [mfma("v", SB + 16 * q + 4 * kt, "a", xop(xs, kt, c), "v", TBF + 4 * (c & 1), c == 0) for kt in range(4)]
        return [mfma("v", SB + 48 + 4 * kt, "a", xop(xs, kt, c), "a", AT49 + 4 * c, c == 0) for kt in range(4)]

    for c in range(6):
        for s in range(6):
            for e in range(2):
                if ring.pos + NRING == 72:
                    p.append(Inst(f"s_nop 1\n    s_cbranch_vccnz L_again\nL_back{q}:", "other", defs=["~ok"], uses=nwr + ["vcc"]))
                    p.append(Inst("s_waitcnt lgkmcnt(0)", "wait", defs=["~wN"], uses=nwr + ["~ok"]))
                    p.append(Inst("s_barrier", "other", defs=["~b2"], uses=["~wN"]))
                w, nxt = ring.take()
                p.append(mfma("v", F[0] + 8 * (c & 1) + 4 * e, "a", w, "a", AX49 + 4 * s, s == 0))
                if q < 3:
                    p.append(mfma("v", ACC + 8 * (c % 3) + 4 * e, "a", w, "a", xr(xs, q, s), s == 0))
                ext(nxt)
            if c and s == (2 if q < 3 else 4):
                ext(s_step(c - 1))
        for e in range(2):
            for h in range(2):
                if q < 3:
                    acc = ACC + 8 * (c % 3) + 4 * e
                    p.append(cvtpk(TBF + 4 * (c & 1) + 2 * e + h, acc + 2 * h, acc + 2 * h + 1))
        for e in range(2):
            for h in range(2):
                acc = F[0] + 8 * (c & 1) + 4 * e
                tmp = F[1] + 4 * (c & 1) + 2 * e + h
                p.append(cvtpk(tmp, acc + 2 * h, acc + 2 * h + 1))
                d = AT49 + 4 * c + 2 * e + h
                p.append(valu(f"v_accvgpr_write_b32 a{d}, v{tmp}", [f"a{d}"], [f"v{tmp}"]))
    a49 = iter([F[0] + 4 * (k % 4) for k in range(12)])
    oacc = iter([F[1], F[2], F[2] + 8, F[1] + 8, F[1], F[2]])
    wr = []
    done = []
    for k, st in enumerate(plan):
        if st[0] == "v":
            ct = st[1]
            a = next(a49)
            for s in range(6):
                w, nxt = ring.take()
                for t in range(3):
                    p.append(mfma("v", ACC + 12 * (ct & 1) + 4 * t, "a", xr(xs, t, s), "a", w, s == 0))
                p.append(mfma("v", a, "a", AX49 + 4 * s, "a", w, s == 0))
                ext(nxt)
                if k == 0 and s == o.tail_s:
                    ext(s_step(5))
                    ext(softmax(q, q & 1))
            ext(cvt_v(ct))
            p.append(cvtpk(vb(ct) + 6, a, a + 1))
            if ct in own:
                for va, off, h, n in ((V_LDS[2], 1024 * ct, 0, 4), (v_x8, 10240 + 512 * ct, 1, 2)):
                    w = Inst(f"ds_write_b{32 * n} v{va}, {T('v', vb(ct) + 4 * h, n)} offset:{st_imm + off}", "dsw", defs=[f"~x{ct}{h}"],
                             uses=R('v', vb(ct) + 4 * h, n) + [f"v{va}", "~b2"])
                    w.real, w.busy = 4 + 4 * n, DSW_BUSY
                    p.append(w)
                    wr.append(f"~x{ct}{h}")
        elif st[0] == "s":
            aa = [next(a49), next(a49)]
            for s in range(6):
                for a in aa:
                    w, nxt = ring.take()
                    p.append(mfma("v", a, "a", AX49 + 4 * s, "a", w, s == 0))
                    ext(nxt)
            for a, ct in zip(aa, st[1:]):
                p.append(cvtpk(vb(ct) + 6, a, a + 1))
        elif st[0] == "x":
            p.append(Inst("s_waitcnt lgkmcnt(0)", "wait", defs=["~wB"], uses=wr))
            p.append(Inst("s_barrier", "other", defs=["~b3"], uses=["~wB"]))
            for pr in [x[1] for x in plan if x[0] == "o"]:
                for ct in (2 * pr, 2 * pr + 1):
                    if ct in solo:
                        for va, off, h, n in ((V_LDS[2], 1024 * ct, 0, 4), (v_x8, 10240 + 512 * ct, 1, 2)):
                            p.append(Inst(f"ds_read_b{32 * n} {T('v', vb(ct) + 4 * h, n)}, v{va} offset:{st_imm + off}", "dsr",
                                          defs=R('v', vb(ct) + 4 * h, n), uses=[f"v{va}", "~b3"]))
        else:
            pr = st[1]
            a = next(oacc)
            ext(o_mf(q, pr, a))
            ext(o_pack(q, pr, a))
            done.append(pr)
            for part, grp2 in ((0, (0, 1, 2, 3)), (1, (4, 5))):
                if pr in grp2 and all(g in done for g in grp2):
                    ext(o_store(q, part, o.st_flags))
    p.append(salu("s_mov_b32 s10, 0", ["s10"], []))
    p.append(salu(f"s_mov_b32 s{S_SPB+2}, 0", [f"s{S_SPB+2}"], []))
    p.append(salu(f"s_mov_b32 s{S_CB}, s{S_LB}", [f"s{S_CB}"], [f"s{S_LB}"]))
    return p


def kind_offsets(a, g, regs):
    h, v, qq, ii, tmp = regs
    a(v3("v_mul_u32_u24", h, "0x180", g))
    a(v3("v_mul_lo_u32", v, g, "s39"))
    a(v3("v_lshrrev_b32", qq, "1", g))
    a(v3("v_mul_lo_u32", qq, qq, "s39"))
    a(v3("v_and_b32", ii, "1", g))
    a(v3("v_mul_u32_u24", ii, "0x180", ii))
    a(v3("v_add_u32", qq, qq, ii))
    for k in range(4):
        r, c = I_TOK[k]
        off = (r - 4) * ROWB + c * 384
        if k == 0:
            a(v3("v_mov_b32", ii, str(off)))
        else:
            a(valu(f"v_cmp_eq_u32 vcc, {k}, {g}", ["vcc"], [g]))
            a(v3("v_mov_b32", tmp, str(off)))
            a(valu(f"v_cndmask_b32 {ii}, {ii}, {tmp}, vcc", [ii], [ii, tmp, "vcc"]))


def gen_prologue(o):
    p = []
    a = p.append
    a(raw("s_cmp_lt_u32 s2, 256", "salu", ["scc"], ["s2"]))
    a(raw("s_cbranch_scc1 L_go"))
    a(raw("s_endpgm"))
    a(raw("L_go:", "label"))
    a(raw(f"s_load_dwordx8 s[{S_KA}:{S_KA+7}], s[0:1], 0"))
    a(raw(f"s_load_dwordx4 s[{S_KB}:{S_KB+3}], s[0:1], 32"))
    if o.diag:
        a(raw("s_memtime s[44:45]"))
        a(raw("s_memrealtime s[46:47]"))
    a(v3("v_and_b32", "v1", "63", "v0"))
    a(v3("v_lshrrev_b32", "v2", "6", "v0"))
    a(v3("v_and_b32", "v3", "15", "v1"))
    a(valu("v_readfirstlane_b32 s38, v2", ["s38"], ["v2"]))
    a(v3("v_lshrrev_b32", "v4", "4", "v1"))
    a(v3("v_lshlrev_b32", f"v{V_LDS[0]}", "4", "v1"))
    a(raw("s_getpc_b64 s[90:91]", "salu", ["s90", "s91"]))
    a(raw("L_here:", "label"))
    a(v3("v_lshlrev_b32", f"v{V_CT[0]}", "7", "v1"))
    a(raw("s_getreg_b32 s3, hwreg(HW_REG_XCC_ID, 0, 4)", "salu", ["s3"]))
    a(salu(f"s_lshr_b32 s{S_J}, s2, 3", [f"s{S_J}", "scc"], ["s2"]))
    if not o.nomap:
        a(salu(f"s_cmp_ge_u32 s{S_J}, {32 - NJN}", ["scc"], [f"s{S_J}"]))
        a(salu(f"s_cselect_b32 s20, {NJM + NJN - 32}, {NJN}", ["s20"], ["scc"]))
        a(salu(f"s_cmp_ge_u32 s{S_J}, {NJM}", ["scc"], [f"s{S_J}"]))
        a(salu("s_cselect_b32 s20, s20, 0", ["s20"], ["scc", "s20"]))
        a(salu(f"s_add_u32 s{S_J}, s{S_J}, s20", [f"s{S_J}", "scc"], [f"s{S_J}", "s20"]))
    if not o.notouch:
        a(salu(f"s_cmp_lg_u32 s38, {o.tw}", ["scc"], ["s38"]))
        a(raw("s_cbranch_scc1 L_nt0"))
        a(salu(f"s_lshl_b32 s20, s{S_J}, 7", ["s20", "scc"], [f"s{S_J}"]))
        a(v3("v_lshl_add_u32", "v5", "v1", "12", "s20"))
        a(v3("v_min_u32", "v5", "L_main_done-L_here", "v5"))
        a(salu(f"s_mov_b64 exec, {(1 << o.tl) - 1}", ["exec"], []))
        a(Inst(f"global_load_dword v{V_CT[1]}, v5, s[90:91]", "vload", defs=[f"v{V_CT[1]}"], uses=["v5", "s90", "s91"]))
        a(salu("s_mov_b64 exec, -1", ["exec"], []))
        a(raw("L_nt0:", "label"))
        rest = -(-(448 - 32 * o.tl) // 20)
        if rest > 0:
            a(salu(f"s_cmp_lt_u32 s{S_J}, {NJM + NJN}", ["scc"], [f"s{S_J}"]))
            a(raw("s_cbranch_scc1 L_nt"))
            a(salu(f"s_lshl2_add_u32 s20, s{S_J}, s38", ["s20", "scc"], [f"s{S_J}", "s38"]))
            a(salu(f"s_mul_i32 s20, s20, {128 * rest}", ["s20"], ["s20"]))
            a(salu(f"s_add_u32 s20, s20, {(4096 * o.tl - 128 * rest * 4 * (NJM + NJN)) & 0xffffffff}", ["s20", "scc"], ["s20"]))
            a(v3("v_add_u32", "v5", "s20", f"v{V_CT[0]}"))
            a(v3("v_min_u32", "v5", "L_main_done-L_here", "v5"))
            a(salu(f"s_mov_b64 exec, {(1 << rest) - 1}", ["exec"], []))
            a(Inst(f"global_load_dword v{V_CT[1]}, v5, s[90:91]", "vload", defs=[f"v{V_CT[1]}"], uses=["v5", "s90", "s91"]))
            a(salu("s_mov_b64 exec, -1", ["exec"], []))
    a(raw("L_nt:", "label"))
    prod_pre(a)
    def win_block():
        a(salu("s_lshl_b32 s16, s2, 2", ["s16", "scc"], ["s2"]))
        a(salu(f"s_mov_b32 s29, {MAGIC73}", ["s29"], []))
        a(salu(f"s_mov_b32 s31, {XBYTES}", ["s31"], []))
        a(salu("s_add_u32 s16, s16, s38", ["s16", "scc"], ["s16", "s38"]))
        if not o.up or o.w0:
            a(salu(f"s_add_u32 s16, s16, {1024 * o.w0 if o.up else 4096}", ["s16", "scc"], ["s16"]))
        a(salu(f"s_add_u32 s{S_TW}, s2, 5120", [f"s{S_TW}", "scc"], ["s2"]))
        a(v3("v_mov_b32", f"v{V_NINF}", "0xff800000"))
        a(v3("v_lshrrev_b32", "v45", "2", "v3"))
        a(v3("v_and_b32", "v46", "3", "v3"))
        a(v3("v_lshl_add_u32", "v43", "v46", "2", "v45"))
        a(v3("v_lshlrev_b32", "v40", "10", "v43"))
        a(v3("v_add_u32" if o.up else "v_sub_u32", "v40", "s16", "v40"))
        if o.up and o.w0:
            a(v3("v_subrev_u32", "v44", "0x1400", "v40"))
            a(v3("v_min_u32", "v40", "v40", "v44"))
            a(valu("v_cmp_lt_u32 vcc, 5, v43", ["vcc"], ["v43"]))
            a(valu(f"v_cndmask_b32 v40, v40, v{V_NINF}, vcc", ["v40"], ["v40", f"v{V_NINF}", "vcc"]))
        a(v3("v_mov_b32", "v44", f"s{S_TW}"))
        a(valu("v_cmp_eq_u32 vcc, 5, v43", ["vcc"], ["v43"]))
        a(valu("v_cndmask_b32 v40, v40, v44, vcc", ["v40"], ["v40", "v44", "vcc"]))
        a(v3("v_mul_hi_u32", "v41", "v40", "s29"))
        a(v3("v_mul_u32_u24", "v42", "73", "v41"))
        a(v3("v_sub_u32", "v42", "v40", "v42"))
        a(v3("v_mul_u32_u24", "v42", "0xa80", "v42"))
        a(salu(f"s_mov_b32 s30, {WINROW}", ["s30"], []))
        a(v3("v_mul_lo_u32", "v41", "v41", "s30"))
        a(v3("v_add_u32", "v41", "v41", "v42"))
        a(v3("v_lshl_add_u32", "v41", "v4", "4", "v41"))
        a(v3("v_add_u32", "v41", str(6 * ROWB + 6 * 384), "v41"))
        a(valu(f"v_cmp_gt_u32 vcc, {NWIN}, v40", ["vcc"], ["v40"]))
        a(valu(f"v_cndmask_b32 v14, v{V_NINF}, v41, vcc", ["v14"], [f"v{V_NINF}", "v41", "vcc"]))
    if o.wpre:
        win_block()
    a(salu(f"s_mul_i32 s42, s3, {SLOT}", ["s42"], ["s3"]))
    a(salu(f"s_add_u32 s42, s42, {WS_SLOT}", ["s42", "scc"], ["s42"]))
    if o.diag:
        a(salu("s_mov_b32 s74, s3", ["s74"], ["s3"]))
    a(salu("s_lshl_b32 s3, s3, 5", ["s3", "scc"], ["s3"]))
    a(salu(f"s_cmp_ge_u32 s{S_J}, {NJM + NJN}", ["scc"], [f"s{S_J}"]))
    a(raw("s_waitcnt lgkmcnt(0)", "wait"))
    if o.diag:
        a(v3("v_mov_b32", f"v{V_TIME}", "s44"))
        a(valu(f"v_writelane_b32 v{V_TIME}, s46, 62", [f"v{V_TIME}"], ["s46"]))
        a(valu(f"v_writelane_b32 v{V_TIME}, s74, 43", [f"v{V_TIME}"], ["s74"]))
    if o.pstamp:
        p.extend(stamp3(54))
    a(raw("s_cbranch_scc1 L_np0"))
    prod_load(o, a)
    a(raw("s_branch L_np1"))
    a(raw("L_np0:", "label"))
    ws_srd(a, 42)
    a(Inst("buffer_load_dword v30, off, s[12:15], 0 sc1", "vload", defs=["v30"]))
    a(raw("L_np1:", "label"))
    srd(a, S_DBG, S_KB, "256")
    a(Inst(f"buffer_load_dword v31, off, s[{S_DBG}:{S_DBG+3}], s3 sc1", "vload", defs=["v31"], uses=["s3"]))
    if o.pstamp:
        p.extend(stamp3(53))
    if not o.wpre:
        win_block()
    srd(a, 4, S_KA, "s31")
    a(salu("s_lshr_b32 s40, s2, 3", ["s40", "scc"], ["s2"]))
    a(salu("s_mul_i32 s43, s38, 6", ["s43"], ["s38"]))
    a(salu("s_add_u32 s42, s40, s43", ["s42", "scc"], ["s40", "s43"]))
    for _ in range(2):
        a(salu("s_sub_u32 s43, s42, 24", ["s43", "scc"], ["s42"]))
        a(salu("s_cselect_b32 s42, s42, s43", ["s42"], ["scc", "s42", "s43"]))
    a(salu(f"s_mul_i32 s{S_ROT}, s42, 3072", [f"s{S_ROT}"], ["s42"]))
    p.extend(win_base(S_LB, S_WCUR, 30))
    p.extend(win_base(S_CB, S_TW, 30))
    a(salu(f"s_mov_b32 s39, {ROWB}", ["s39"], []))
    kind_offsets(a, "v45", ("v5", "v6", "v7", "v8", "v9"))
    KO = {"H": "v5", "V": "v6", "Q": "v7", "I": "v8"}
    for i in range(1, 4):
        a(valu(f"v_cmp_eq_u32 s[{64 + 2 * i}:{65 + 2 * i}], {i}, v46", [f"s{64 + 2 * i}", f"s{65 + 2 * i}"], ["v46"]))
    a(v3("v_lshlrev_b32", "v12", "4", "v4"))
    a(v3("v_mul_lo_u32", "v13", "v46", "s39"))
    a(v3("v_add3_u32", f"v{V_F[0]}", "v13", "v5", "v12"))
    for t in (1, 2):
        f = f"v{V_F[t]}"
        for i in range(4):
            kind, pp = STRIPS[4 * t + i]
            base = {"H": pp * ROWB, "V": pp * 384, "Q": 4 * ROWB + 4 * 384, "I": 4 * ROWB}[kind]
            a(v3("v_add_u32", f if i == 0 else "v9", str(base), KO[kind]))
            if i:
                a(cnd(f, f, "v9", 64 + 2 * i))
        a(v3("v_add_u32", f, f, "v12"))
    for w in range(1, 4):
        a(valu(f"v_cmp_eq_u32 s[{64 + 2 * w}:{65 + 2 * w}], {w}, v2", [f"s{64 + 2 * w}", f"s{65 + 2 * w}"], ["v2"]))
    a(cnd("v15", f"v{V_F[0]}", f"v{V_F[1]}", 66))
    a(cnd("v15", "v15", f"v{V_F[2]}", 68))
    a(v3("v_add_u32", "v16", "0x80", "v15"))
    a(v3("v_add_u32", "v9", "0x100", f"v{V_F[1]}"))
    a(cnd("v15", "v15", "v9", 70))
    a(v3("v_add_u32", "v9", "0x100", f"v{V_F[2]}"))
    a(cnd("v16", "v16", "v9", 70))
    a(v3("v_lshrrev_b32", "v5", "1", "v1"))
    a(v3("v_and_b32", "v5", "28", "v5"))
    for c in range(2):
        for hf in range(2):
            a(Inst(f"ds_bpermute_b32 v{17 + 2 * c + hf}, v5, v{15 + c} offset:{32 * hf}", "dsr", defs=[f"v{17 + 2 * c + hf}"], uses=["v5", f"v{15 + c}"]))
    a(v3("v_and_b32", "v12", "7", "v1"))
    a(v3("v_xor_b32", "v12", "v12", "v4"))
    a(v3("v_lshlrev_b32", "v12", "4", "v12"))
    a(v3("v_xor_b32", "v13", "64", "v12"))
    a(salu("s_lshl_b32 s41, s38, 12", ["s41", "scc"], ["s38"]))
    a(salu(f"s_add_u32 s41, s41, {STAGE}", ["s41", "scc"], ["s41"]))
    a(salu(f"s_cmp_lt_u32 s{S_TW}, {NWIN}", ["scc"], [f"s{S_TW}"]))
    a(salu("s_cselect_b32 s30, s31, 0", ["s30"], ["scc", "s31"]))
    a(raw("s_waitcnt lgkmcnt(0)", "wait"))
    if o.pstamp:
        p.extend(stamp3(55))
    srd(a, S_XS, S_KA, "s30")
    for i in range(4):
        a(v3("v_add_u32", f"v{17 + i}", f"v{17 + i}", ("v12", "v13")[i & 1]))

    def x_small(parts):
        for c in parts:
            if c in "ADE":
                for i in {"A": range(4), "D": (0, 1), "E": (2, 3)}[c]:
                    a(salu(f"s_add_u32 m0, s41, {1024 * i}", ["m0", "scc"], ["s41"]))
                    a(Inst(f"buffer_load_dwordx4 v{17 + i}, s[{S_XS}:{S_XS+3}], s{S_CB} offen lds", "ldsdma", uses=[f"v{17 + i}", f"s{S_CB}", "m0"]))
            elif c == "B":
                for s in (4, 5):
                    a(xload(1, 0, s, S_CB, sr=S_XS))
            else:
                for s in range(6):
                    a(Inst(f"buffer_load_dwordx4 {T('a', AX49 + 4 * s, 4)}, v14, s[4:7], 0 offen offset:{64 * s}", "vload",
                           defs=R('a', AX49 + 4 * s, 4), uses=["v14"]))

    a(salu(f"s_cmp_ge_u32 s{S_J}, {NJM + NJN}", ["scc"], [f"s{S_J}"]))
    a(raw("s_cbranch_scc1 L_np2"))
    prod_make(o, a, x_small)
    a(raw("L_np2:", "label"))
    x_small("ABC")
    a(raw("L_np3:", "label"))
    if o.xstamp:
        for k in range(13):
            a(raw(f"s_waitcnt vmcnt({12 - k})", "wait"))
            p.extend(stamp3(22 + k))
    if o.pstamp:
        p.extend(stamp3(56))
    if o.early_after:
        a(raw("s_waitcnt vmcnt(0)", "wait"))
    p.extend(xloads(0, S_LB, o.ld_flags)[:o.n_early])
    a(v3("v_lshrrev_b32", "v5", "1", "v3"))
    a(v3("v_xor_b32", "v5", "v5", "v4"))
    a(v3("v_lshlrev_b32", "v5", "4", "v5"))
    a(v3("v_lshl_add_u32", "v5", "v3", "7", "v5"))
    a(v3("v_add_u32", f"v{V_R0[0]}", str(STAGE), "v5"))
    a(v3("v_xor_b32", f"v{V_R0[1]}", "64", f"v{V_R0[0]}"))
    a(v3("v_add_u32", f"v{V_LDS[1]}", "0x10000", f"v{V_LDS[0]}"))
    a(v3("v_add_u32", f"v{V_LDS[2]}", "0x20000", f"v{V_LDS[0]}"))
    srd(a, 8, S_KA + 6, "0" if o.nostore else "s30")
    srd(a, S_SPA, S_KA + 6, "0")
    srd(a, S_SPB, S_KA + 6, "0" if o.nostore else "s30")
    V_N16, V_N8 = 15, 16
    a(v3("v_lshlrev_b32", f"v{V_N16}", "4", "v3"))
    a(v3("v_lshlrev_b32", f"v{V_N8}", "3", "v3"))
    kind_offsets(a, "v4", ("v5", "v6", "v7", "v8", "v9"))
    for kind, src in KO.items():
        a(v3("v_add_u32", f"v{V_ST[kind][0]}", src, f"v{V_N16}"))
        a(v3("v_add_u32", f"v{V_ST[kind][1]}", src, f"v{V_N8}"))
    for q in (1, 2):
        a(valu(f"v_accvgpr_write_b32 a{AP[q] + 7}, 0", [f"a{AP[q] + 7}"], []))
    for r, val in ((S_M0, "0"), (S_M0 + 1, "0"), (S_M1, "0xffff0000"), (S_M1 + 1, "0"), (S_SH, "16"), (S_GO, "384"), (S_K, "0"),
                   (40, "0xffff"), (41, "0")):
        a(salu(f"s_mov_b32 s{r}, {val}", [f"s{r}"], []))
    a(cnd(f"v{V_SP[0]}", f"v{V_NINF}", f"v{V_ST['H'][0]}", S_M1))
    a(cnd(f"v{V_SP[1]}", f"v{V_NINF}", f"v{V_ST['H'][1]}", S_M1))
    p.extend(row_bases())
    if o.ct:
        for k, ex in enumerate(CT):
            a(salu(f"s_add_u32 s{84 + 2 * k}, s90, {ex}-L_here", [f"s{84 + 2 * k}", "scc"], ["s90"]))
            a(salu(f"s_addc_u32 s{85 + 2 * k}, s91, 0", [f"s{85 + 2 * k}", "scc"], ["s91", "scc"]))
    if o.diag:
        a(salu(f"s_mov_b32 s{S_IT}, 1", [f"s{S_IT}"], []))
        a(salu("s_mov_b32 s72, 10", ["s72"], []))
    a(salu(f"s_mov_b32 s37, {o.polls}", ["s37"], []))
    a(v3("v_lshlrev_b32", f"v{V_POLL}", "2", "v1"))
    a(valu("v_cmp_gt_u32 vcc, 8, v1", ["vcc"], ["v1"]))
    a(valu(f"v_cndmask_b32 v{V_POLL}, v{V_NINF}, v{V_POLL}, vcc", [f"v{V_POLL}"], [f"v{V_NINF}", f"v{V_POLL}", "vcc"]))
    a(v3("v_mov_b32", f"v{V_EXP}", "0x01010101"))
    a(salu("s_mov_b32 s27, 0x0101", ["s27"], []))
    a(valu(f"v_writelane_b32 v{V_EXP}, s27, 4", [f"v{V_EXP}"], ["s27"]))
    a(valu(f"v_writelane_b32 v{V_EXP}, 1, 7", [f"v{V_EXP}"], []))
    D = f"s[{S_DBG}:{S_DBG+3}]"

    def look(r=V_FLG):
        a(Inst(f"buffer_load_dword v{r}, v{V_POLL}, {D}, s3 offen {o.lflag}", "vload", defs=[f"v{r}"], uses=[f"v{V_POLL}", "s3"]))

    def test(mask, r=V_FLG):
        a(valu(f"v_cmp_gt_u32 vcc, v{V_EXP}, v{r}", ["vcc"], [f"v{V_EXP}", f"v{r}"]))
        a(salu(f"s_and_b32 s27, vcc_lo, {mask}", ["s27", "scc"], ["vcc"]))

    def poll(lab, mask):
        look(V_FLG)
        a(raw(f"{lab}:", "label"))
        look(V_FL2)
        a(raw("s_waitcnt vmcnt(1)", "wait"))
        test(mask, V_FLG)
        a(raw(f"s_cbranch_scc0 {lab}_x"))
        a(salu("s_sub_u32 s37, s37, 1", ["s37", "scc"], ["s37"]))
        a(raw("s_cbranch_scc1 L_alone"))
        look(V_FLG)
        a(raw("s_waitcnt vmcnt(1)", "wait"))
        test(mask, V_FL2)
        a(raw(f"s_cbranch_scc1 {lab}"))
        a(raw(f"{lab}_x:", "label"))
    a(salu(f"s_mov_b32 s{S_GRP}, s{S_ROT}", [f"s{S_GRP}"], [f"s{S_ROT}"]))
    for g in range(6):
        if g:
            a(salu(f"s_add_u32 s{S_GRP + g}, s{S_GRP + g - 1}, 3072", [f"s{S_GRP + g}", "scc"], [f"s{S_GRP + g - 1}"]))
            a(salu(f"s_cmp_eq_u32 s{S_GRP + g}, {NBASE}", ["scc"], [f"s{S_GRP + g}"]))
            a(salu(f"s_cselect_b32 s{S_GRP + g}, 0, s{S_GRP + g}", [f"s{S_GRP + g}"], ["scc", f"s{S_GRP + g}"]))
        a(v3("v_add_u32", f"v{21 + g}", f"s{S_GRP + g}", f"v{V_LDS[0]}"))
        a(v3("v_add_u32", f"v{V_NA + g}", str(NBASE), f"v{21 + g}"))
    if o.pstamp:
        p.extend(stamp3(58))
    poll("L_pm", 0x1f)
    a(raw("L_ldm:", "label"))
    if o.pstamp:
        p.extend(stamp3(59))
    mreg = lambda k: 32 + 4 * k if k < 17 else 108
    DEP = o.mdep

    def m_load(k):
        a(Inst(f"buffer_load_dwordx4 {T('v', mreg(k), 4)}, v{21 + k // 3}, s[12:15], 0 offen offset:{1024 * (k % 3)} sc1", "vload",
               defs=R('v', mreg(k), 4), uses=[f"v{21 + k // 3}"]))
        if k == 17 - DEP:
            look()

    def m_put(k, behind):
        a(raw(f"s_waitcnt vmcnt({behind})", "wait"))
        if o.pstamp and k == 0:
            p.extend(stamp3(60))
        d = mreg(k)
        a(Inst(f"ds_write_b128 v{21 + k // 3}, {T('v', d, 4)} offset:{1024 * (k % 3)}", "dsw", uses=R('v', d, 4) + [f"v{21 + k // 3}"]))
        for h in range(2):
            a(v3("v_max3_u32", f"v{V_CHK}", f"v{V_CHK}", f"v{d + 2 * h}", f"v{d + 2 * h + 1}"))

    def m_check(lab):
        a(valu(f"v_cmp_eq_u32 vcc, -1, v{V_CHK}", ["vcc"], [f"v{V_CHK}"]))
        a(raw("s_nop 1", "nop"))
        a(raw(f"s_cbranch_vccz {lab}"))
        a(raw("s_waitcnt vmcnt(0) lgkmcnt(0)", "wait"))
        if o.diag:
            a(salu("s_sub_u32 s37, s37, 0x1000000", ["s37", "scc"], ["s37"]))
        a(salu(f"s_add_u32 s{S_K}, s{S_K}, 1", [f"s{S_K}", "scc"], [f"s{S_K}"]))
        a(salu(f"s_cmp_lt_u32 s{S_K}, 0x4000", ["scc"], [f"s{S_K}"]))
        a(raw("s_cbranch_scc1 L_ldm"))
    for k in range(DEP):
        m_load(k)
    a(v3("v_mov_b32", f"v{V_CHK}", "0"))
    for k in range(18 - DEP):
        m_put(k, DEP - 1 + (k <= 17 - DEP < k + DEP))
        m_load(k + DEP)
    a(raw(f"s_waitcnt vmcnt({DEP})", "wait"))
    test(0xe0)
    a(raw("s_cbranch_scc1 L_nlate"))
    for k in range(18 - DEP, 18):
        m_put(k, DEP - 1)
        a(n_load(k - 18 + DEP))
    m_check("L_mok")
    a(raw("s_branch L_mok"))
    a(raw("L_nlate:", "label"))
    if o.diag:
        a(valu(f"v_writelane_b32 v{V_TIME}, s37, 40", [f"v{V_TIME}"], ["s37"]))
    for k in range(18 - DEP, 18):
        m_put(k, 17 - k)
    m_check("L_mok2")
    a(raw("L_mok2:", "label"))
    poll("L_pn", 0xe0)
    for k in range(DEP):
        a(n_load(k))
    a(raw("L_mok:", "label"))
    a(salu(f"s_mov_b32 s{S_K}, 0", [f"s{S_K}"], []))
    if o.pstamp:
        a(valu(f"v_writelane_b32 v{V_TIME}, s37, 41", [f"v{V_TIME}"], ["s37"]))
    if o.samerole:
        a(raw("s_branch L_sh1"))
    for q in range(3):
        a(salu(f"s_cmp_eq_u32 s38, {q}", ["scc"], ["s38"]))
        a(raw(f"s_cbranch_scc1 L_sh{q}"))
    return p


def gen_again(o):
    p = []
    a = p.append
    chk = V_TMP[0][4]
    a(raw("L_again:", "label"))
    a(raw("s_waitcnt vmcnt(0) lgkmcnt(0)", "wait"))
    a(valu(f"v_accvgpr_write_b32 a{AP[1]}, v{chk}", [f"a{AP[1]}"], [f"v{chk}"]))
    a(salu("s_mov_b32 s27, 0x4000", ["s27"], []))
    a(raw("L_ag_loop:", "label"))
    a(v3("v_mov_b32", f"v{chk}", "0"))
    for k in range(18):
        a(Inst(f"buffer_load_dwordx4 {T('v', V_NS + 4 * k, 4)}, v{V_NA + k // 3}, s[12:15], 0 offen offset:{1024 * (k % 3)} sc1", "vload",
               defs=R('v', V_NS + 4 * k, 4), uses=[f"v{V_NA + k // 3}"]))
    a(raw("s_waitcnt vmcnt(0)", "wait"))
    for r in range(0, 72, 2):
        a(v3("v_max3_u32", f"v{chk}", f"v{chk}", f"v{V_NS + r}", f"v{V_NS + r + 1}"))
    a(valu(f"v_cmp_eq_u32 vcc, -1, v{chk}", ["vcc"], [f"v{chk}"]))
    a(salu("s_sub_u32 s27, s27, 1", ["s27", "scc"], ["s27"]))
    a(raw("s_cbranch_scc1 L_ag_x"))
    a(raw("s_nop 1", "nop"))
    a(raw("s_cbranch_vccnz L_ag_loop"))
    a(raw("L_ag_x:", "label"))
    for k in range(18):
        a(Inst(f"ds_write_b128 v{V_NA + k // 3}, {T('v', V_NS + 4 * k, 4)} offset:{1024 * (k % 3)}", "dsw",
               uses=R('v', V_NS + 4 * k, 4) + [f"v{V_NA + k // 3}"]))
    a(raw("s_waitcnt lgkmcnt(0)", "wait"))
    for ct in range(12):
        a(v3("v_mov_b32", f"v{vb(ct) + 7}", "0"))
    a(valu(f"v_accvgpr_read_b32 v{chk}, a{AP[1]}", [f"v{chk}"], [f"a{AP[1]}"]))
    if o.diag:
        a(valu(f"v_writelane_b32 v{V_TIME}, s27, 42", [f"v{V_TIME}"], ["s27"]))
    a(raw("s_nop 4", "nop"))
    for q in range(3):
        a(salu(f"s_cmp_eq_u32 s38, {q}", ["scc"], ["s38"]))
        a(raw(f"s_cbranch_scc1 L_back{q}"))
    a(raw("s_branch L_back3"))
    return p


def gen_reset():
    return [v3("v_lshrrev_b32", f"v{V_CT[0]}", "2", f"v{V_LDS[0]}"), v3("v_mov_b32", f"v{V_CT[1]}", "0"),
            salu("s_mov_b64 exec, 0xff", ["exec"], []),
            Inst(f"buffer_store_dword v{V_CT[1]}, v{V_CT[0]}, s[{S_DBG}:{S_DBG+3}], s3 offen", "vstore", uses=[f"v{V_CT[0]}", f"v{V_CT[1]}", "s3"]),
            salu("s_mov_b64 exec, -1", ["exec"], [])]


def stamp3(lane):
    return [raw("s_memtime s[44:45]"), raw("s_waitcnt lgkmcnt(0)", "wait"),
            valu(f"v_writelane_b32 v{V_TIME}, s44, {lane}", [f"v{V_TIME}"], ["s44"])]


def stamp():
    return [raw("s_memtime s[44:45]"), raw("s_memrealtime s[46:47]"), salu(f"s_mov_b32 m0, s{S_IT}", ["m0"], [f"s{S_IT}"]), raw("s_waitcnt lgkmcnt(0)", "wait"),
            valu(f"v_writelane_b32 v{V_TIME}, s44, m0", [f"v{V_TIME}"], ["s44", "m0"]),
            salu(f"s_add_u32 m0, s{S_IT}, 43", ["m0", "scc"], [f"s{S_IT}"]),
            valu(f"v_writelane_b32 v{V_TIME}, s46, m0", [f"v{V_TIME}"], ["s46", "m0"]),
            salu(f"s_add_u32 s{S_IT}, s{S_IT}, 1", [f"s{S_IT}", "scc"], [f"s{S_IT}"])]


def stamp2():
    return [raw("s_memtime s[44:45]"), salu("s_mov_b32 m0, s72", ["m0"], ["s72"]), raw("s_waitcnt lgkmcnt(0)", "wait"),
            valu(f"v_writelane_b32 v{V_TIME}, s44, m0", [f"v{V_TIME}"], ["s44", "m0"]),
            salu("s_add_u32 s72, s72, 1", ["s72", "~scc"], ["s72"])]


def add_stamps(body, pts):
    out = []
    k = 0
    for i in body:
        if i.kind == "mfma":
            if k in pts:
                st = stamp2()
                st[-1] = raw("s_addk_i32 s72, 1", "salu", ["s72"], ["s72"])
                out.extend(st)
            k += 1
        out.append(i)
    return out


def texts(l):
    return [i.text for i in l]


def gen_main(o):
    pro = insert_nops(gen_prologue(o))
    pts = [int(x) for x in o.pts.split(",")] if o.pts else None

    def build(prog):
        body, cyc = schedule2(prog, verbose=o.verbose, urgent=o.urgent)
        if not o.verbose:
            print("; model cycles", cyc)
        return body, cyc

    def waits(body, cyc, pre):
        return insert_waits(body, pre=pre, early_lgkm=(o.early, cyc) if o.early else 0,
                            early_vm=(o.early_vm, cyc) if o.early_vm else 0)

    head = lambda: stamp() if o.diag else []
    shared = []
    for q in range(4):
        t, c = build(gen_shared(o, q))
        if o.tpts:
            t = add_stamps(t, [int(x) for x in o.tpts.split(",")])
        t = [raw(f"s_waitcnt vmcnt({o.mdep}) lgkmcnt(0)", "wait")] + (stamp3(61) if o.pstamp else []) + t
        last = max(k for k, i in enumerate(t) if i.kind == "vload")
        nst = sum(i.kind == "vstore" for i in t[last:])
        t += (stamp3(39) if o.pstamp else []) + [raw(f"s_waitcnt vmcnt({nst}) lgkmcnt(0)", "wait")]
        t = insert_waits(t, pre=[n_load(k) for k in range(o.mdep)], early_lgkm=(o.early, 1 << 30))
        shared.append(insert_nops(t, pre=[pro]))
    bodies = []
    for xs in range(2):
        body, cyc = build(gen_body(o, xs))
        if pts:
            body = add_stamps(body, pts)
        tail = [salu(f"s_cmp_eq_u32 s{S_K}, 5", ["scc"], [f"s{S_K}"]), raw("s_cbranch_scc1 L_epi")] if xs == 0 else [raw("s_branch L_b0")]
        bodies.append(head() + body + tail)
    w = [waits(bodies[0], cyc, []), None]
    for it in range(3):
        w[1] = waits(bodies[1], cyc, w[0])
        w[0] = waits(bodies[0], cyc, w[1])
    w = [hoist_waits(x) for x in w]
    n = [insert_nops(w[0], pre=shared), None]
    for it in range(3):
        n[1] = insert_nops(w[1], pre=[n[0]])
        n[0] = insert_nops(w[0], pre=shared + [n[1]])
    for i in w[0]:
        i.time = None
    epi = insert_nops(insert_waits(head() + build(gen_epi(o))[0], pre=w[0]), pre=[n[0]])
    print('; replay', model_time(n[1]), model_time(n[0]))
    fin = [] if o.noreset else insert_nops(gen_reset(), pre=[epi])
    rst = list(fin)
    if o.diag:
        srd(fin.append, 12, S_KB + 2, str(WS_TIME_OFF + 1024 * 256))
        fin += stamp()
        fin += [raw("s_waitcnt vmcnt(0)", "wait")] + stamp()
        fin += [raw("s_memrealtime s[46:47]"), raw("s_waitcnt lgkmcnt(0)", "wait"),
                valu(f"v_writelane_b32 v{V_TIME}, s46, 63", [f"v{V_TIME}"], ["s46"])]
        fin += [v3("v_lshrrev_b32", "v0", "2", f"v{V_LDS[0]}"),
                salu("s_lshl_b32 s42, s2, 2", ["s42", "scc"], ["s2"]),
                salu("s_add_u32 s42, s42, s38", ["s42", "scc"], ["s42", "s38"]),
                salu("s_lshl_b32 s42, s42, 8", ["s42", "scc"], ["s42"]),
                salu(f"s_add_u32 s42, s42, {WS_TIME_OFF}", ["s42", "scc"], ["s42"]),
                Inst(f"buffer_store_dword v{V_TIME}, v0, s[12:15], s42 offen", "vstore", uses=[f"v{V_TIME}", "v0", "s42"])]
        if o.dbgst >= 0:
            fin += [valu(f"v_readlane_b32 s43, v{V_TIME}, 62", ["s43"], [f"v{V_TIME}"]),
                    raw("s_nop 4", "nop"),
                    salu("s_sub_u32 s43, s46, s43", ["s43", "scc"], ["s46", "s43"]),
                    valu(f"v_readlane_b32 s42, v{V_TIME}, 0", ["s42"], [f"v{V_TIME}"]),
                    raw("s_nop 4", "nop"),
                    v3("v_subrev_u32", f"v{V_TIME}", "s42", f"v{V_TIME}"),
                    valu(f"v_writelane_b32 v{V_TIME}, s43, 0", [f"v{V_TIME}"], ["s43"]),
                    salu("s_lshl_b32 s43, s2, 2", ["s43", "scc"], ["s2"]),
                    salu("s_add_u32 s43, s43, s38", ["s43", "scc"], ["s43", "s38"]),
                    salu(f"s_cmp_eq_u32 s43, {o.dbgst}", ["scc"], ["s43"]),
                    salu("s_cselect_b32 s43, 16, 0x1000", ["s43"], ["scc"]),
                    salu("s_mov_b64 exec, 0x1ff", ["exec"], []),
                    Inst(f"buffer_store_dword v{V_TIME}, v0, s[{S_DBG}:{S_DBG+3}], s43 offen", "vstore", uses=[f"v{V_TIME}", "v0", "s43"])]
        if o.spin:
            T, la, lb, mult, wv = [int(x) for x in o.spin.split(",")]
            fin += [valu(f"v_readlane_b32 s40, v{V_TIME}, 62", ["s40"], [f"v{V_TIME}"]),
                    valu(f"v_readlane_b32 s41, v{V_TIME}, {la}", ["s41"], [f"v{V_TIME}"]),
                    valu(f"v_readlane_b32 s42, v{V_TIME}, {lb}", ["s42"], [f"v{V_TIME}"]),
                    raw("s_nop 4", "nop"),
                    salu("s_sub_u32 s42, s42, s41", ["s42", "scc"], ["s42", "s41"]),
                    salu(f"s_mul_i32 s42, s42, {mult}", ["s42"], ["s42"]),
                    salu("s_min_u32 s42, s42, 30000", ["s42", "scc"], ["s42"]),
                    salu("s_lshl_b32 s43, s2, 2", ["s43", "scc"], ["s2"]),
                    salu("s_add_u32 s43, s43, s38", ["s43", "scc"], ["s43", "s38"]),
                    salu(f"s_cmp_eq_u32 s43, {wv}", ["scc"], ["s43"]),
                    salu("s_cselect_b32 s42, s42, -500", ["s42"], ["scc", "s42"]),
                    salu(f"s_add_u32 s42, s42, {T * 100}", ["s42", "scc"], ["s42"]),
                    raw("L_spin:", "label"),
                    raw("s_sleep 4"),
                    raw("s_memrealtime s[46:47]"), raw("s_waitcnt lgkmcnt(0)", "wait"),
                    salu("s_sub_u32 s43, s46, s40", ["s43", "scc"], ["s46", "s40"]),
                    salu("s_cmp_lt_u32 s43, s42", ["scc"], ["s43", "s42"]),
                    raw("s_cbranch_scc1 L_spin")]
        fin = insert_nops(fin)
    stats = {}
    for i in n[0]:
        stats[i.kind] = stats.get(i.kind, 0) + 1
    print("; body stats", stats, file=sys.stderr)
    out = emit(pro) + "\n" + emit(shared[3]) + "\n    s_branch L_b0\n"
    for q in range(3):
        out += f".p2align 6\nL_sh{q}:\n" + emit(shared[q]) + "\n"
        if q < 2:
            out += "    s_branch L_b0\n"
    out += "L_b0:\n" + emit(n[0]) + "\nL_b1:\n" + emit(n[1]) + "\n.p2align 6\nL_epi:\n"
    out += emit(epi) + "\n" + emit(fin) + "\nL_main_done:\n    s_endpgm\n"
    return out + emit(insert_nops(gen_again(o))) + "\n" + emit(insert_nops(gen_alone(o))) + "\n"


def merge_waits(x, y):
    def split(l):
        out, cur = [], {}
        for i in l:
            if i.kind == "wait" and not i.defs and not i.uses:
                for nm, v in re.findall(r"(vmcnt|lgkmcnt)\((\d+)\)", i.text):
                    cur[nm] = min(cur.get(nm, 99), int(v))
            else:
                out.append((cur, i))
                cur = {}
        return out
    a, b = split(x), split(y)
    assert [i.text for _, i in a] == [i.text for _, i in b]
    out = []
    for (wa, i), (wb, _) in zip(a, b):
        m = {k: min(wa.get(k, 99), wb.get(k, 99)) for k in set(wa) | set(wb)}
        if m:
            w = Inst("s_waitcnt " + " ".join(f"{k}({m[k]})" for k in ("vmcnt", "lgkmcnt") if k in m), "wait")
            w.time = i.time
            out.append(w)
        out.append(i)
    return out


def emit(insts):
    out = []
    for i in insts:
        out.append(i.text if i.kind == "label" else "    " + i.text)
    return "\n".join(out)


HEADER = """; Swin window attention: folded projections (M = a*Wq*Wk^T, N = Wv*Wo), one wave per window.
; @launch grid=(256,1,1) block=(256,1,1) lds=163840
.amdgcn_target "amdgcn-amd-amdhsa--gfx950"
.text
"""

KD = """.amdhsa_kernel {k}
  .amdhsa_next_free_vgpr {nv}
  .amdhsa_next_free_sgpr {ns}
  .amdhsa_accum_offset {ao}
  .amdhsa_group_segment_fixed_size 0
  .amdhsa_kernarg_size 48
  .amdhsa_user_sgpr_count 2
  .amdhsa_user_sgpr_kernarg_segment_ptr 1
  .amdhsa_system_sgpr_workgroup_id_x 1
.end_amdhsa_kernel
"""


def main():
    ap = argparse.ArgumentParser()
    ap.add_argument("-o", default="cdna_kernels/" + NAME + ".s")
    ap.add_argument("--diag", action="store_true")
    ap.add_argument("--pts", default="")
    ap.add_argument("--rm", default="")
    ap.add_argument("--ct", type=int, default=8000)
    ap.add_argument("--tpts", default="")
    ap.add_argument("--early", type=int, default=230)
    ap.add_argument("--early_vm", type=int, default=0)
    ap.add_argument("--ld_rel", type=int, default=300)
    ap.add_argument("--ld_step", type=int, default=400)
    ap.add_argument("--tail_s", type=int, default=1)
    ap.add_argument("--order", default="DE,,BC")
    ap.add_argument("--ordern", default=",,DEBC")
    ap.add_argument("--nl_rel", type=int, default=64)
    ap.add_argument("--nl_step", type=int, default=64)
    ap.add_argument("--nw_rel", type=int, default=200)
    ap.add_argument("--nw_step", type=int, default=64)
    ap.add_argument("--x0_rel", type=int, default=1200)
    ap.add_argument("--x0_step", type=int, default=150)
    ap.add_argument("--pw", type=int, default=3)
    ap.add_argument("--lw", type=int, default=0)
    ap.add_argument("--n_early", type=int, default=0)
    ap.add_argument("--psleep", type=int, default=0)
    ap.add_argument("--leaders", default="18")
    ap.add_argument("--own", type=int, default=0)
    ap.add_argument("--quiet", type=int, default=0)
    ap.add_argument("--mdep", type=int, default=8)
    ap.add_argument("--lflag", default="sc1")
    ap.add_argument("--defer", default="12")
    ap.add_argument("--after", default="5,6,7,8,10")
    ap.add_argument("--urgent", type=int, default=0)
    ap.add_argument("--touch_rep", type=int, default=1)
    ap.add_argument("--ld_grp", type=int, default=2)
    ap.add_argument("--q2p0", default="5400,500")
    ap.add_argument("--q2p1", default="7400,350")
    ap.add_argument("--dsw_busy", type=int, default=40)
    ap.add_argument("--st_busy", type=int, default=150)
    ap.add_argument("--ld_flags", default="")
    ap.add_argument("--st_flags", default="sc0 sc1")
    ap.add_argument("--st_flags0")
    ap.add_argument("--st_flags1")
    ap.add_argument("--drop", default="")
    ap.add_argument("--polls", type=int, default=256)
    ap.add_argument("--tw", type=int, default=0)
    ap.add_argument("--tl", type=int, default=2)
    ap.add_argument("--w0", type=int, default=0)
    ap.add_argument("--pre", type=int, default=0)
    ap.add_argument("--pre3", type=int, default=2)
    ap.add_argument("--clr", default="sc1")
    ap.add_argument("--fw", type=int, default=3)
    ap.add_argument("--chain", default="hos")
    ap.add_argument("--spin", default="")
    ap.add_argument("--dbgst", type=int, default=-1)
    for f in ("noload", "nostore", "pstamp", "verbose", "notouch", "nowarm", "early_after", "samerole", "noreset", "wstamp", "noclear", "wpre", "nofb", "nomap", "xstamp", "up", "nwhot"):
        ap.add_argument("--" + f, action="store_true")
    o = ap.parse_args()
    o.defer = [int(c) for c in o.defer]
    if o.clr:
        o.clr = " " + o.clr
    if o.ld_flags:
        o.ld_flags = " " + o.ld_flags
    if o.st_flags:
        o.st_flags = " " + o.st_flags
    global DSW_BUSY, ST_BUSY, LD_GRP
    DROP.extend(int(c) for c in o.drop)
    CHAIN.update(o.chain)
    for k, f in enumerate((o.st_flags0, o.st_flags1)):
        if f is not None:
            PFLAGS[k] = " " + f if f else ""
    DSW_BUSY, ST_BUSY, LD_GRP = o.dsw_busy, o.st_busy, o.ld_grp
    old = sys.stdout
    sys.stdout = sys.stderr
    main_text = gen_main(o)
    sys.stdout = old
    s = HEADER.format(name=NAME)
    k = NAME + "_kernel"
    s += f".globl {k}\n.p2align 12\n.type {k},@function\n{k}:\n"
    s += main_text
    s += '.section .rodata,"a"\n.p2align 6\n'
    s += KD.format(k=k, nv=512, ns=102, ao=256)
    open(o.o, "w").write(s)


if __name__ == "__main__":
    main()
```

```python
import sys, math, struct, argparse, re
from asmlib import *

NAME = "standalone__swin_window_attn__vision"
NWIN = 5329
XBYTES = 100270464
ROWB = 196224
WINROW = 7 * ROWB
MAGIC73 = (1 << 32) // 73 + 1
for w in range(0, 16384):
    assert (w * MAGIC73) >> 32 == w // 73
ALPHA = (192 ** -0.5) * math.log2(math.e)
WS_TIME_OFF = 1 << 20
STAGE = 147456


def f32bits(x):
    return struct.unpack("<I", struct.pack("<f", x))[0]


def mfma(bd, d, ba, a, bb, b, first):
    c = "0" if first else T(bd, d, 4)
    D = R(bd, d, 4)
    AB = R(ba, a, 4) + R(bb, b, 4)
    return Inst(f"v_mfma_f32_16x16x32_bf16 {T(bd, d, 4)}, {T(ba, a, 4)}, {T(bb, b, 4)}, {c}", "mfma",
                defs=D, uses=AB + ([] if first else D), srcC=([] if first else D), srcAB=AB, passes=4)


def valu(text, defs, uses, kind="valu", **kw):
    return Inst(text, kind, defs=defs, uses=uses, **kw)


def cvtpk(d, a, b, **kw):
    bt = f"v{b}" if b is not None else "0"
    return valu(f"v_cvt_pk_bf16_f32 v{d}, v{a}, {bt}", [f"v{d}"], [f"v{a}"] + ([f"v{b}"] if b is not None else []), **kw)


def salu(text, defs, uses, **kw):
    return Inst(text, "salu", defs=defs, uses=uses, **kw)


def raw(text, kind="other", defs=(), uses=()):
    return Inst(text, kind, defs=defs, uses=uses)


def v3(op, d, *srcs, **kw):
    uses = [s for s in srcs if isinstance(s, str) and (is_vreg(s) or is_sreg(s))]
    return valu(f"{op} {d}, " + ", ".join(str(s) for s in srcs), [d], uses, **kw)


def cnd(d, a, b, m):
    return valu(f"v_cndmask_b32 {d}, {a}, {b}, s[{m}:{m+1}]", [d], [a, b, f"s{m}", f"s{m+1}"])


def srd(a, dst, src, nb):
    a(salu(f"s_mov_b32 s{dst}, s{src}", [f"s{dst}"], [f"s{src}"]))
    a(salu(f"s_and_b32 s{dst+1}, s{src+1}, 0xffff", [f"s{dst+1}", "scc"], [f"s{src+1}"]))
    a(salu(f"s_mov_b32 s{dst+2}, {nb}", [f"s{dst+2}"], []))
    a(salu(f"s_mov_b32 s{dst+3}, 0x20000", [f"s{dst+3}"], []))


STRIPS = [("H", r) for r in range(7)] + [("V", 4), ("V", 5), ("V", 6), ("Q", 0), ("I", 0)]
I_TOK = [(4, 6), (5, 6), (6, 4), (6, 5)]


def token(t, n):
    g, i = n >> 2, n & 3
    kind, p = STRIPS[4 * t + i]
    if kind == "H":
        return p, g
    if kind == "V":
        return g, p
    if kind == "Q":
        return 4 + (g >> 1), 4 + (g & 1)
    return I_TOK[g]


assert sorted(token(t, n) for t in range(3) for n in range(16)) + [(6, 6)] == [(r, c) for r in range(7) for c in range(7)]


P_A, P_B, P_C, P_O, P_U = 128, 176, 200, 216, 32
P_RA, P_RB, P_SO = (80, 81), (82, 83), (84, 85)
S_KA = 92
S_KB = 32
S_DBG = 80
S_PSC, S_PSO = 100, 101
S_J, S_ROT = 36, 75
SLOT = 147456
WS_SLOT, WS_PRIV = 4 << 20, 8 << 20
NJM, NJN = 18, 9
V_POLL, V_EXP, V_FLG, V_CHK, V_FL2 = 27, 29, 28, 30, 31
S_GRP = 64
PST = 73728


def ws_srd(a, off):
    a(salu(f"s_add_u32 s12, s{S_KB+2}, s{off}", ["s12", "scc"], [f"s{S_KB+2}", f"s{off}"]))
    a(salu(f"s_addc_u32 s13, s{S_KB+3}, 0", ["s13", "scc"], [f"s{S_KB+3}", "scc"]))
    a(salu("s_and_b32 s13, s13, 0xffff", ["s13", "scc"], ["s13"]))
    a(salu(f"s_mov_b32 s14, {SLOT}", ["s14"], []))
    a(salu("s_mov_b32 s15, 0x20000", ["s15"], []))


WST = [None]


def dma(a, vo, sr, so, imm=0, fl=""):
    a(Inst(f"buffer_load_dwordx4 v{vo}, s[{sr}:{sr+3}], s{so} offen offset:{imm} lds{fl}", "ldsdma", uses=[f"v{vo}", f"s{so}", "m0"]))
    if WST[0] is not None:
        for i in stamp3(WST[0]):
            a(i)
        WST[0] += 1


def job_decode(a):
    a(salu(f"s_cmp_ge_u32 s{S_J}, {NJM}", ["scc"], [f"s{S_J}"]))
    a(salu("s_cselect_b32 s20, 1, 0", ["s20"], ["scc"]))
    a(salu(f"s_cselect_b32 s22, {NJM}, 0", ["s22"], ["scc"]))
    a(salu("s_cselect_b32 s23, 86, 43", ["s23"], ["scc"]))
    a(salu("s_cselect_b32 s24, 3, 6", ["s24"], ["scc"]))
    a(salu(f"s_sub_u32 s22, s{S_J}, s22", ["s22", "scc"], [f"s{S_J}", "s22"]))
    a(salu("s_mul_i32 s21, s22, s23", ["s21"], ["s22", "s23"]))
    a(salu("s_lshr_b32 s21, s21, 8", ["s21", "scc"], ["s21"]))
    assert all((r * 43) >> 8 == r // 6 for r in range(NJM)) and all((r * 86) >> 8 == r // 3 for r in range(NJN))
    a(salu("s_mul_i32 s24, s24, s21", ["s24"], ["s24", "s21"]))
    a(salu("s_sub_u32 s22, s22, s24", ["s22", "scc"], ["s22", "s24"]))


def prod_pre(a):
    job_decode(a)
    a(v3("v_lshrrev_b32", "v5", "3", "v1"))
    a(v3("v_and_b32", "v6", "7", "v1"))
    a(v3("v_and_b32", "v7", "1", "v4"))
    a(v3("v_xor_b32", "v8", "v6", "v7"))
    a(v3("v_mul_u32_u24", "v9", "0x480", "v5"))
    a(v3("v_lshl_add_u32", "v8", "v8", "4", "v9"))
    a(salu("s_lshl_b32 s23, s38, 5", ["s23", "scc"], ["s38"]))
    a(v3("v_xor_b32", "v12", "s23", "v8"))
    a(salu("s_lshl_b32 s23, s38, 6", ["s23", "scc"], ["s38"]))
    a(salu("s_and_b32 s23, s23, 64", ["s23", "scc"], ["s23"]))
    a(v3("v_xor_b32", "v10", "s23", "v8"))
    a(v3("v_xor_b32", "v11", "32", "v10"))
    a(salu("s_lshl_b32 s23, s21, 2", ["s23", "scc"], ["s21"]))
    a(salu("s_add_u32 s23, s23, s38", ["s23", "scc"], ["s23", "s38"]))
    a(salu("s_mul_i32 s25, s23, 18432", ["s25"], ["s23"]))
    a(salu("s_mul_i32 s23, s20, 768", ["s23"], ["s20"]))
    a(salu("s_add_u32 s25, s25, s23", ["s25", "scc"], ["s25", "s23"]))
    a(salu("s_add_u32 s24, s25, 9216", ["s24", "scc"], ["s25"]))
    a(salu("s_mul_i32 s27, s38, 6144", ["s27"], ["s38"]))
    a(salu(f"s_mov_b32 s{S_PSC}, s22", [f"s{S_PSC}"], ["s22"]))
    for r in range(4):
        a(v3("v_mov_b32", f"v{P_O + r}", "-1"))
    a(v3("v_lshlrev_b32", "v7", "1", "v7"))
    a(v3("v_xor_b32", "v13", "v6", "v7"))
    a(v3("v_mul_u32_u24", "v9", "0x180", "v5"))
    a(v3("v_lshl_add_u32", "v9", "v13", "4", "v9"))
    a(v3("v_xor_b32", "v13", "64", "v9"))
    a(salu("s_lshl_b32 s26, s22, 2", ["s26", "scc"], ["s22"]))
    a(salu("s_add_u32 s26, s26, s38", ["s26", "scc"], ["s26", "s38"]))
    a(salu("s_mul_i32 s26, s26, 9216", ["s26"], ["s26"]))
    a(salu("s_add_u32 s26, s26, 384", ["s26", "scc"], ["s26"]))
    a(salu("s_mul_i32 s43, s38, 18432", ["s43"], ["s38"]))
    a(salu("s_lshl_b32 s23, s22, 7", ["s23", "scc"], ["s22"]))
    a(salu("s_add_u32 s43, s43, s23", ["s43", "scc"], ["s43", "s23"]))
    a(salu("s_cmp_eq_u32 s20, 1", ["scc"], ["s20"]))
    a(salu("s_cselect_b32 s26, s43, s26", ["s26"], ["scc", "s43", "s26"]))
    a(salu("s_cselect_b64 vcc, -1, 0", ["vcc"], ["scc"]))
    a(salu("s_mul_i32 s43, s38, 3072", ["s43"], ["s38"]))
    a(valu("v_cndmask_b32 v12, v12, v9, vcc", ["v12"], ["v12", "v9", "vcc"]))
    a(salu("s_and_b32 s23, s38, 1", ["s23", "scc"], ["s38"]))
    a(salu("s_lshl1_add_u32 s23, s22, s23", ["s23", "scc"], ["s22", "s23"]))
    a(salu("s_mul_i32 s23, s23, 6", ["s23"], ["s23"]))
    a(salu("s_lshr_b32 s42, s38, 1", ["s42", "scc"], ["s38"]))
    a(salu("s_lshl1_add_u32 s42, s21, s42", ["s42", "scc"], ["s21", "s42"]))
    a(salu("s_add_u32 s23, s23, s42", ["s23", "scc"], ["s23", "s42"]))
    a(salu(f"s_lshl_b32 s{S_PSO}, s23, 10", [f"s{S_PSO}", "scc"], ["s23"]))


def prod_load(o, a):
    def clear(vo, sos):
        for so in sos:
            a(Inst(f"buffer_store_dwordx4 {T('v', P_O, 4)}, v{vo}, s[12:15], s{so} offen{o.clr}", "vstore",
                   uses=R('v', P_O, 4) + [f"v{vo}", f"s{so}"], wide=True))
        for k, so in enumerate(sos):
            if not o.clr:
                a(Inst(f"buffer_load_dwordx4 {T('v', P_C + 4 * k, 4)}, v{vo}, s[12:15], s{so} offen sc1", "vload",
                       defs=R('v', P_C + 4 * k, 4), uses=[f"v{vo}", f"s{so}"]))
    srd(a, 56, S_KA + 2, 192 * 576 * 2)
    if o.wstamp:
        WST[0] = 10
    for i in range(2):
        for cb in range(3):
            a(salu(f"s_add_u32 m0, s27, {PST + 3072 * i + 896 * cb}", ["m0", "scc"], ["s27"]))
            dma(a, 10 + i, 56, (25, 24)[i], 128 * cb)
    a(salu("s_cmp_eq_u32 s20, 1", ["scc"], ["s20"]))
    a(raw("s_cbranch_scc1 L_pl_n"))
    for cb in range(3):
        a(salu(f"s_add_u32 m0, s43, {PST + 24576 + 896 * cb}", ["m0", "scc"], ["s43"]))
        dma(a, 12, 56, 26, 128 * cb)
    ws_srd(a, 42)
    if not o.noclear:
        clear(V_LDS[0], [S_PSO])
    a(raw("s_branch L_np1"))
    a(raw("L_pl_n:", "label"))
    if o.wstamp:
        WST[0] = 16
    srd(a, 60, S_KA + 4, 192 * 192 * 2)
    for i in range(6):
        a(salu(f"s_add_u32 m0, s27, {PST + 24576 + 1024 * i}", ["m0", "scc"], ["s27"]))
        if i:
            a(salu("s_add_u32 s26, s26, 3072", ["s26", "scc"], ["s26"]))
        dma(a, 12 + (i & 1), 60, 26)
    ws_srd(a, 42)
    a(v3("v_lshrrev_b32", "v9", "5", "v1"))
    a(v3("v_lshlrev_b32", "v9", "10", "v9"))
    a(v3("v_and_b32", "v5", "3", "v5"))
    a(v3("v_lshl_add_u32", "v9", "v5", "8", "v9"))
    a(v3("v_lshl_add_u32", "v9", "v6", "4", "v9"))
    a(salu("s_lshl_b32 s23, s22, 7", ["s23", "scc"], ["s22"]))
    a(salu("s_cmp_eq_u32 s22, 2", ["scc"], ["s22"]))
    a(salu("s_cselect_b64 vcc, -1, 0", ["vcc"], ["scc"]))
    a(salu("s_cselect_b32 s26, 1, 2", ["s26"], ["scc"]))
    a(salu("s_cselect_b32 s23, 49152, s23", ["s23"], ["scc", "s23"]))
    a(salu("s_cselect_b32 s43, 1, 6", ["s43"], ["scc"]))
    a(valu(f"v_cndmask_b32 v9, v9, v{V_LDS[0]}, vcc", ["v9"], ["v9", f"v{V_LDS[0]}", "vcc"]))
    a(salu("s_mul_i32 s26, s26, s27", ["s26"], ["s26", "s27"]))
    a(salu("s_lshl_b32 s43, s43, 10", ["s43", "scc"], ["s43"]))
    a(salu("s_add_u32 s26, s26, s23", ["s26", "scc"], ["s26", "s23"]))
    a(salu(f"s_lshl_b32 s{S_PSO}, s21, 11", [f"s{S_PSO}", "scc"], ["s21"]))
    a(salu(f"s_add_u32 s{S_PSO}, s{S_PSO}, {NBASE}", [f"s{S_PSO}", "scc"], [f"s{S_PSO}"]))
    a(salu(f"s_add_u32 s26, s26, s{S_PSO}", ["s26", "scc"], ["s26", f"s{S_PSO}"]))
    a(salu("s_add_u32 s43, s43, s26", ["s43", "scc"], ["s43", "s26"]))
    if not o.noclear:
        clear(9, [26, 43])
    a(salu("s_lshr_b32 s23, s38, 1", ["s23", "scc"], ["s38"]))
    a(salu("s_lshl_b32 s23, s23, 10", ["s23", "scc"], ["s23"]))
    a(salu(f"s_add_u32 s{S_PSO}, s{S_PSO}, s23", [f"s{S_PSO}", "scc"], [f"s{S_PSO}", "s23"]))


def prod_make(o, a, x_small):
    a(v3("v_lshrrev_b32", "v5", "2", "v3"))
    a(v3("v_and_b32", "v6", "3", "v3"))
    a(v3("v_lshrrev_b32", "v7", "1", "v3"))
    a(v3("v_xor_b32", "v7", "v7", "v4"))
    a(v3("v_lshlrev_b32", "v7", "4", "v7"))
    a(v3("v_lshl_add_u32", "v7", "v6", "7", "v7"))
    a(v3("v_mul_u32_u24", "v8", "0xc00", "v5"))
    a(salu("s_lshr_b32 s23, s38, 1", ["s23", "scc"], ["s38"]))
    a(salu("s_mul_i32 s23, s23, 12288", ["s23"], ["s23"]))
    a(salu(f"s_add_u32 s23, s23, {PST}", ["s23", "scc"], ["s23"]))
    a(v3("v_add3_u32", f"v{P_RA[0]}", "v7", "v8", "s23"))
    a(v3("v_xor_b32", f"v{P_RA[1]}", "64", f"v{P_RA[0]}"))
    a(salu("s_and_b32 s24, s38, 1", ["s24", "scc"], ["s38"]))
    a(salu(f"s_cmp_ge_u32 s{S_J}, {NJM}", ["scc"], [f"s{S_J}"]))
    a(salu(f"s_addc_u32 s26, s{S_J}, s3", ["s26", "scc"], [f"s{S_J}", "s3", "scc"]))
    a(salu(f"s_cmp_ge_u32 s{S_J}, {NJM}", ["scc"], [f"s{S_J}"]))
    a(salu("s_addc_u32 s26, s26, 0", ["s26", "scc"], ["s26", "scc"]))
    a(salu(f"s_cmp_lg_u32 s38, {o.fw}", ["scc"], ["s38"]))
    a(salu("s_cselect_b32 s26, 0x1000, s26", ["s26"], ["scc", "s26"]))
    a(v3("v_mov_b32", "v9", "1"))
    a(salu(f"s_cmp_ge_u32 s{S_J}, {NJM}", ["scc"], [f"s{S_J}"]))
    a(raw("s_cbranch_scc1 L_pm_n"))

    def a_read(k):
        for h in range(2):
            d = P_A + 24 * h + 4 * k
            a(Inst(f"ds_read_b128 {T('v', d, 4)}, v{P_RA[k & 1]} offset:{1024 * (k >> 1) + 512 * h}", "dsr", defs=R('v', d, 4), uses=[f"v{P_RA[k & 1]}"]))

    def finish(acc, out, scale):
        for r in range(4):
            if scale:
                for e in range(2):
                    a(v3("v_mul_f32", f"v{acc + 2 * r + e}", f"0x{f32bits(ALPHA):08x}", f"v{acc + 2 * r + e}"))
            a(cvtpk(out + r, acc + 2 * r, acc + 2 * r + 1))
            a(v3("v_min_u32", f"v{out + r}", "-2", f"v{out + r}"))

    def flag():
        if not o.nofb:
            a(raw("s_barrier"))
        a(salu("s_mov_b64 exec, 1", ["exec"], []))
        a(Inst(f"buffer_store_byte v9, off, s[{S_DBG}:{S_DBG+3}], s26", "vstore", uses=["v9", "s26"]))
        a(salu("s_mov_b64 exec, -1", ["exec"], []))
        if o.pstamp:
            for i in stamp3(52):
                a(i)

    xm, xn = o.order.split(","), o.ordern.split(",")
    for xo in (xm, xn):
        assert sorted("".join(xo).replace("A", "DE")) == ["B", "C", "D", "E"]

    def gate(xo):
        x_small(xo[0])
        behind = 1 + sum({"A": 4, "B": 2, "C": 6, "D": 2, "E": 2}[c] for c in xo[0])
        if o.wstamp:
            for k in range(8):
                a(raw(f"s_waitcnt vmcnt({behind + 7 - k})", "wait"))
                for i in stamp3(22 + k):
                    a(i)
        a(raw(f"s_waitcnt vmcnt({behind})", "wait"))
        if o.pstamp:
            for i in stamp3(57):
                a(i)
        a(raw("s_barrier"))
    a(salu("s_lshl_b32 s24, s24, 9", ["s24", "scc"], ["s24"]))
    a(salu(f"s_add_u32 s24, s24, {PST + 24576}", ["s24", "scc"], ["s24"]))
    a(v3("v_add3_u32", f"v{P_RB[0]}", "v7", "v8", "s24"))
    a(v3("v_xor_b32", f"v{P_RB[1]}", "64", f"v{P_RB[0]}"))
    gate(xm)
    def m_read(k):
        d = P_B + 4 * k
        a(Inst(f"ds_read_b128 {T('v', d, 4)}, v{P_RB[k & 1]} offset:{1024 * (k >> 1)}", "dsr", defs=R('v', d, 4), uses=[f"v{P_RB[k & 1]}"]))
        a_read(k)
    for k in range(5):
        m_read(k)
    x_small(xm[1])
    for k in range(6):
        a(raw(f"s_waitcnt lgkmcnt({min(15 - 3 * k, 12)})", "wait"))
        for h in range(2):
            a(mfma("v", P_C + 4 * h, "v", P_A + 24 * h + 4 * k, "v", P_B + 4 * k, k == 0))
        if k == 0:
            m_read(5)
    finish(P_C, P_O, True)
    a(Inst(f"buffer_store_dwordx4 {T('v', P_O, 4)}, v{V_LDS[0]}, s[12:15], s{S_PSO} offen", "vstore",
           uses=R('v', P_O, 4) + [f"v{V_LDS[0]}", f"s{S_PSO}"], wide=True))
    flag()
    x_small(xm[2])
    a(raw("s_branch L_np3"))
    a(raw("L_pm_n:", "label"))
    a(v3("v_lshrrev_b32", "v7", "1", "v6"))
    a(v3("v_and_b32", "v8", "2", "v5"))
    a(v3("v_xor_b32", "v7", "v7", "v8"))
    a(v3("v_and_b32", "v8", "1", "v4"))
    a(v3("v_xor_b32", "v8", "s24", "v8"))
    a(v3("v_lshl_add_u32", "v7", "v8", "2", "v7"))
    a(v3("v_lshlrev_b32", "v7", "4", "v7"))
    a(v3("v_and_b32", "v8", "1", "v3"))
    a(v3("v_lshl_add_u32", "v7", "v8", "3", "v7"))
    a(v3("v_lshl_add_u32", "v7", "v5", "7", "v7"))
    a(v3("v_lshl_add_u32", "v7", "v4", "10", "v7"))
    a(v3("v_add_u32", f"v{P_RB[0]}", str(PST + 24576), "v7"))
    a(v3("v_xor_b32", f"v{P_RB[1]}", "32", f"v{P_RB[0]}"))
    a(salu(f"s_cmp_eq_u32 s{S_PSC}, 2", ["scc"], [f"s{S_PSC}"]))
    a(salu("s_cselect_b32 s23, 2, 3", ["s23"], ["scc"]))
    a(salu("s_cselect_b32 s25, 3, 7", ["s25"], ["scc"]))
    a(salu("s_cselect_b32 s27, 49152, 0", ["s27"], ["scc"]))
    a(salu(f"s_cselect_b32 s43, 0, s{S_PSC}", ["s43"], ["scc", f"s{S_PSC}"]))
    a(salu("s_lshl1_add_u32 s43, s43, s24", ["s43", "scc"], ["s43", "s24"]))
    a(salu("s_lshl_b32 s43, s43, 5", ["s43", "scc"], ["s43"]))
    a(salu(f"s_add_u32 s{S_PSO}, s{S_PSO}, s27", [f"s{S_PSO}", "scc"], [f"s{S_PSO}", "s27"]))
    a(v3("v_and_b32", "v7", "s25", "v3"))
    a(v3("v_mul_u32_u24", "v7", "0x1800", "v7"))
    a(v3("v_lshl_add_u32", "v7", "v4", "8", "v7"))
    for u in range(2):
        a(v3("v_add_u32", "v8", "s43", "v3"))
        if u:
            a(v3("v_add_u32", "v8", "16", "v8"))
        a(v3("v_lshrrev_b32", "v8", "s23", "v8"))
        a(v3("v_lshl_add_u32", f"v{P_SO[u]}", "v8", "4", "v7"))
    gate(xn)
    for k in range(6):
        a_read(k)
        for u in range(2):
            for j in range(2):
                d = P_U + 24 * u + 4 * k + 2 * j
                a(Inst(f"ds_read_b64_tr_b16 {T('v', d, 2)}, v{P_RB[u]} offset:{4096 * k + 512 * j}", "dsr", defs=R('v', d, 2), uses=[f"v{P_RB[u]}"]))
        if k == 1:
            x_small(xn[1])
        if k >= 2:
            a(raw("s_waitcnt lgkmcnt(12)", "wait"))
            for u in range(2):
                for h in range(2):
                    a(mfma("v", P_C + 8 * u + 4 * h, "v", P_A + 24 * h + 4 * (k - 2), "v", P_U + 24 * u + 4 * (k - 2), k == 2))
    for k in (4, 5):
        a(raw(f"s_waitcnt lgkmcnt({6 * (5 - k)})", "wait"))
        for u in range(2):
            for h in range(2):
                a(mfma("v", P_C + 8 * u + 4 * h, "v", P_A + 24 * h + 4 * k, "v", P_U + 24 * u + 4 * k, False))
    for u in range(2):
        finish(P_C + 8 * u, P_B + 4 * u, False)
        a(Inst(f"buffer_store_dwordx4 {T('v', P_B + 4 * u, 4)}, v{P_SO[u]}, s[12:15], s{S_PSO} offen", "vstore",
               uses=R('v', P_B + 4 * u, 4) + [f"v{P_SO[u]}", f"s{S_PSO}"], wide=True))
    flag()
    x_small(xn[2])
    a(raw("s_branch L_np3"))


def gen_alone(o):
    p = []
    a = p.append
    J, MAT, CTX, SS, T0, T1, T2, IT = 44, 45, 46, 47, 42, 43, 27, 30
    a(raw("L_alone:", "label"))
    a(raw("s_waitcnt vmcnt(0) lgkmcnt(0)", "wait"))
    a(salu(f"s_lshl_b32 s{T0}, s2, 2", [f"s{T0}", "scc"], ["s2"]))
    a(salu(f"s_add_u32 s{T0}, s{T0}, s38", [f"s{T0}", "scc"], [f"s{T0}", "s38"]))
    a(salu(f"s_mul_i32 s{T0}, s{T0}, {SLOT}", [f"s{T0}"], [f"s{T0}"]))
    a(salu(f"s_add_u32 s{T0}, s{T0}, {WS_PRIV}", [f"s{T0}", "scc"], [f"s{T0}"]))
    ws_srd(a, T0)
    srd(a, 64, S_KA + 2, 192 * 576 * 2)
    srd(a, 68, S_KA + 4, 192 * 192 * 2)
    a(v3("v_lshrrev_b32", "v5", "2", "v3"))
    a(v3("v_and_b32", "v6", "3", "v3"))
    a(v3("v_lshl_add_u32", "v5", "v5", "3", "v6"))
    a(v3("v_mul_u32_u24", "v5", "0x480", "v5"))
    a(v3("v_lshl_add_u32", "v5", "v4", "4", "v5"))
    a(salu(f"s_mov_b32 s{IT}, 0", [f"s{IT}"], []))
    a(raw("L_al_loop:", "label"))
    a(salu(f"s_cmp_ge_u32 s{IT}, 18", ["scc"], [f"s{IT}"]))
    a(salu(f"s_cselect_b32 s{MAT}, 1, 0", [f"s{MAT}"], ["scc"]))
    a(salu(f"s_cselect_b32 s{T0}, 18, 0", [f"s{T0}"], ["scc"]))
    a(salu(f"s_sub_u32 s{J}, s{IT}, s{T0}", [f"s{J}", "scc"], [f"s{IT}", f"s{T0}"]))
    a(salu(f"s_lshr_b32 s{T0}, s{S_ROT}, 10", [f"s{T0}", "scc"], [f"s{S_ROT}"]))
    a(salu(f"s_add_u32 s{J}, s{J}, s{T0}", [f"s{J}", "scc"], [f"s{J}", f"s{T0}"]))
    a(salu(f"s_sub_u32 s{T0}, s{J}, 72", [f"s{T0}", "scc"], [f"s{J}"]))
    a(salu(f"s_cselect_b32 s{J}, s{J}, s{T0}", [f"s{J}"], ["scc", f"s{J}", f"s{T0}"]))
    a(salu(f"s_mul_i32 s{CTX}, s{J}, 43", [f"s{CTX}"], [f"s{J}"]))
    a(salu(f"s_lshr_b32 s{CTX}, s{CTX}, 8", [f"s{CTX}", "scc"], [f"s{CTX}"]))
    assert all((r * 43) >> 8 == r // 6 for r in range(72))
    a(salu(f"s_mul_i32 s{SS}, s{CTX}, 6", [f"s{SS}"], [f"s{CTX}"]))
    a(salu(f"s_sub_u32 s{SS}, s{J}, s{SS}", [f"s{SS}", "scc"], [f"s{J}", f"s{SS}"]))
    a(salu(f"s_mul_i32 s{T0}, s{MAT}, 72", [f"s{T0}"], [f"s{MAT}"]))
    a(salu(f"s_add_u32 s{J}, s{J}, s{T0}", [f"s{J}", "scc"], [f"s{J}", f"s{T0}"]))
    a(salu(f"s_lshl_b32 s{S_PSO}, s{J}, 10", [f"s{S_PSO}", "scc"], [f"s{J}"]))
    a(salu(f"s_mul_i32 s{T0}, s{SS}, 36864", [f"s{T0}"], [f"s{SS}"]))
    a(salu(f"s_mul_i32 s{T1}, s{MAT}, 768", [f"s{T1}"], [f"s{MAT}"]))
    a(salu(f"s_add_u32 s{T0}, s{T0}, s{T1}", [f"s{T0}", "scc"], [f"s{T0}", f"s{T1}"]))
    a(salu(f"s_add_u32 s{T1}, s{T0}, 4608", [f"s{T1}", "scc"], [f"s{T0}"]))
    for k in range(6):
        for h in range(2):
            d = P_A + 24 * h + 4 * k
            a(Inst(f"buffer_load_dwordx4 {T('v', d, 4)}, v5, s[64:67], s{(T0, T1)[h]} offen offset:{64 * k}", "vload",
                   defs=R('v', d, 4), uses=["v5", f"s{T0}", f"s{T1}"]))
    a(salu(f"s_cmp_eq_u32 s{MAT}, 1", ["scc"], [f"s{MAT}"]))
    a(raw("s_cbranch_scc1 L_al_n"))
    a(salu(f"s_lshr_b32 s{T0}, s{CTX}, 1", [f"s{T0}", "scc"], [f"s{CTX}"]))
    a(salu(f"s_mul_i32 s{T0}, s{T0}, 36864", [f"s{T0}"], [f"s{T0}"]))
    a(salu(f"s_and_b32 s{T1}, s{CTX}, 1", [f"s{T1}", "scc"], [f"s{CTX}"]))
    a(salu(f"s_mul_i32 s{T1}, s{T1}, 4608", [f"s{T1}"], [f"s{T1}"]))
    a(salu(f"s_add_u32 s{T0}, s{T0}, s{T1}", [f"s{T0}", "scc"], [f"s{T0}", f"s{T1}"]))
    a(salu(f"s_add_u32 s{T0}, s{T0}, 384", [f"s{T0}", "scc"], [f"s{T0}"]))
    for k in range(6):
        a(Inst(f"buffer_load_dwordx4 {T('v', P_B + 4 * k, 4)}, v5, s[64:67], s{T0} offen offset:{64 * k}", "vload",
               defs=R('v', P_B + 4 * k, 4), uses=["v5", f"s{T0}"]))
    a(salu(f"s_mov_b32 s{S_PSC}, 0x{f32bits(ALPHA):08x}", [f"s{S_PSC}"], []))
    a(raw("s_waitcnt vmcnt(0)", "wait"))
    a(raw("s_branch L_al_mm"))
    a(raw("L_al_n:", "label"))
    a(salu(f"s_cmp_lt_u32 s{CTX}, 8", ["scc"], [f"s{CTX}"]))
    a(salu(f"s_cselect_b32 s{T0}, 3, 2", [f"s{T0}"], ["scc"]))
    a(salu(f"s_cselect_b32 s{T1}, 0, 120", [f"s{T1}"], ["scc"]))
    a(salu(f"s_add_u32 s{T1}, s{T1}, s{CTX}", [f"s{T1}", "scc"], [f"s{T1}", f"s{CTX}"]))
    a(v3("v_lshlrev_b32", "v6", f"s{T0}", "v3"))
    a(v3("v_add_u32", "v6", f"s{T1}", "v6"))
    a(v3("v_lshlrev_b32", "v6", "1", "v6"))
    a(v3("v_mul_u32_u24", "v7", "0xc00", "v4"))
    a(v3("v_add_u32", "v6", "v6", "v7"))
    for k in range(6):
        a(salu(f"s_mov_b32 s{T2}, {k * 12288}", [f"s{T2}"], []))
        for j in range(8):
            r = P_U + 8 * k + j
            a(Inst(f"buffer_load_ushort v{r}, v6, s[68:71], s{T2} offen offset:{384 * j}", "vload", defs=[f"v{r}"], uses=["v6", f"s{T2}"]))
    a(salu(f"s_mov_b32 s{S_PSC}, 1.0", [f"s{S_PSC}"], []))
    a(raw("s_waitcnt vmcnt(0)", "wait"))
    for r in range(24):
        a(v3("v_lshl_or_b32", f"v{P_B + r}", f"v{P_U + 2 * r + 1}", "16", f"v{P_U + 2 * r}"))
    a(raw("L_al_mm:", "label"))
    a(raw("s_nop 1", "nop"))
    for k in range(6):
        for h in range(2):
            a(mfma("v", P_C + 4 * h, "v", P_A + 24 * h + 4 * k, "v", P_B + 4 * k, k == 0))
    for r in range(8):
        a(v3("v_mul_f32", f"v{P_C + r}", f"s{S_PSC}", f"v{P_C + r}"))
    for r in range(4):
        a(cvtpk(P_O + r, P_C + 2 * r, P_C + 2 * r + 1))
        a(v3("v_min_u32", f"v{P_O + r}", "-2", f"v{P_O + r}"))
    a(Inst(f"buffer_store_dwordx4 {T('v', P_O, 4)}, v{V_LDS[0]}, s[12:15], s{S_PSO} offen sc1", "vstore",
           uses=R('v', P_O, 4) + [f"v{V_LDS[0]}", f"s{S_PSO}"], wide=True))
    a(raw("s_waitcnt vmcnt(0)", "wait"))
    a(salu(f"s_add_u32 s{IT}, s{IT}, 1", [f"s{IT}", "scc"], [f"s{IT}"]))
    a(salu(f"s_cmp_lt_u32 s{IT}, 36", ["scc"], [f"s{IT}"]))
    a(raw("s_cbranch_scc1 L_al_loop"))
    a(v3("v_mov_b32", f"v{V_EXP}", "0"))
    a(salu("s_mov_b32 s37, 0x10000", ["s37"], []))
    a(raw("s_branch L_ldm"))
    return p


XS = [0, 72]
AX49, AT49, AW = 144, 168, 192
NRING = 12
SB = 0
ACC = 64
TBF = 88
OPA = 100
VBF = 124
V_LDS = [220, 221, 222]
V_F = [223, 224, 225]
V_ST = {"H": (232, 233), "V": (234, 235), "Q": (236, 237), "I": (238, 239)}
V_SP = (240, 241)
V_CT = (242, 243)
AP = {1: 240, 2: 248}
V_Q3 = 250
S_TW = 73
S_XS = 76
NBASE = 73728
DSW_BUSY, ST_BUSY, LD_GRP = 40, 40, 1
DROP, PFLAGS = [], [None, None]
CHAIN = set()
V_NINF = 244
ZP, S_ZP = [], 70
V_TMP = [[245, 246, 247, 248, 249], [250, 251, 252, 253, 254]]
V_TIME = 255
S_WCUR, S_LB, S_CB, S_K, S_ROW = 16, 17, 18, 19, 20
S_IT = 28
S_M0, S_M1, S_GM, S_SH, S_SPO, S_GO = 48, 50, 52, 54, 55, 74
S_SPA, S_SPB = 56, 60


def xr(xs, t, s):
    return XS[xs] + 24 * t + 4 * s


def xop(xs, t, s):
    return AX49 + 4 * s if t == 3 else xr(xs, t, s)


def lds_at(idx):
    base, imm = divmod((idx % 144) * 1024, 65536)
    return V_LDS[base], imm


def wfrag_read(idx, slot=None, extra=(), **kw):
    va, imm = lds_at(idx)
    d = AW + 4 * (idx % NRING if slot is None else slot)
    return Inst(f"ds_read_b128 {T('a', d, 4)}, v{va} offset:{imm}", "dsr", defs=R('a', d, 4),
                uses=[f"v{va}"] + list(extra), **kw)


class Ring:
    def __init__(self, seq, have=None):
        self.seq = seq
        self.slot = [have[i] for i in seq[:NRING]] if have else list(range(NRING))
        self.pos = 0
        self.gate = lambda idx: []

    def fill(self, extra=()):
        return [wfrag_read(i, self.slot[p], extra) for p, i in enumerate(self.seq[:NRING])]

    def take(self):
        p = self.pos
        self.pos += 1
        sl = self.slot[p]
        self.slot.append(sl)
        nxt = [wfrag_read(self.seq[p + NRING], sl, self.gate(self.seq[p + NRING]))] if p + NRING < len(self.seq) else []
        return AW + 4 * sl, nxt


def xload(xs, t, s, sbase, flags="", sr=4, **kw):
    d = xr(xs, t, s)
    return Inst(f"buffer_load_dwordx4 {T('a', d, 4)}, v{V_F[t]}, s[{sr}:{sr+3}], s{sbase} offen offset:{64 * s}" + flags,
                "vload", defs=R('a', d, 4), uses=[f"v{V_F[t]}", f"s{sbase}", f"s{sr+2}"], **kw)


def xloads(xs, sbase, flags, rel=None, step=0):
    out = []
    k = 0
    for j in range(3):
        for t in range(3):
            for u in range(2):
                kw = {}
                if rel is not None:
                    at = rel + step * (k - k % LD_GRP) + 16 * (k % LD_GRP)
                    kw = dict(release=at, deadline=at + 48)
                out.append(xload(xs, t, 2 * j + u, sbase, flags, **kw))
                k += 1
    return out


def vb(ct):
    return VBF + 8 * ct


E1 = []


def opk(q, i, part):
    if q == 3:
        return TBF + 4 * i if part == 0 else V_Q3 + 2 * i
    if E1 and E1[0] == 2 and q == 2:
        return ACC + 2 * i if part else [OPA + 16, OPA + 20, TBF, TBF + 4][i]
    if E1 and E1[0] and q < 2:
        if part:
            return OPA + 8 * q + 2 * i
        if q:
            return OPA + 16 + 4 * i if i < 2 else 256 + AP[1] + 4 * (i - 2)
    return OPA + 4 * i if part == 0 else OPA + 16 + 2 * i


def o_mf(q, pr, acc=None, held=False):
    acc = SB + 16 * q + 8 if acc is None else acc
    bank, pb = ("a", AP[q]) if held else ("v", SB + 16 * q)
    out = []
    for ks, e in ([(0, 0), (1, 0), (0, 1), (1, 1)] if "o" in CHAIN else [(0, 0), (0, 1), (1, 0), (1, 1)]):
        out.append(mfma("v", acc + 4 * e, bank, pb + 4 * ks, "v", vb(2 * pr + e) + 4 * ks, ks == 0))
    return out


def o_pack(q, pr, acc=None):
    acc = SB + 16 * q + 8 if acc is None else acc
    out = []
    for i in range(2 if q == 3 else 4):
        d = opk(q, i, 0) + pr if pr < 4 else opk(q, i, 1) + pr - 4
        if d >= 256:
            out.append(cvtpk(acc + i, acc + i, acc + 4 + i))
            out.append(valu(f"v_accvgpr_write_b32 a{d - 256}, v{acc + i}", [f"a{d - 256}"], [f"v{acc + i}"]))
        else:
            out.append(cvtpk(d, acc + i, acc + 4 + i))
    return out


def o_store(q, part, flags="", rel=None, step=0):
    out = []
    n = (4, 2)[part]
    for i in range(2 if q == 3 else 4):
        d = opk(q, i, part)
        if q == 3:
            vo, row, imm, sr = V_SP[part], None, 0, (S_SPA, S_SPB)[i]
        else:
            kind, pp = STRIPS[4 * q + i]
            vo, sr = V_ST[kind][part], 8
            row, imm = {"H": (pp, 0), "V": (0, pp * 384), "Q": (4, 4 * 384), "I": (4, 0)}[kind]
        so = f"s{S_SPO}" if row is None else f"s{S_ROW + row}"
        if part in DROP and q != 3:
            sr = 80
        if PFLAGS[part] is not None:
            flags = PFLAGS[part]
        bk = "av"[d < 256]
        d &= 255
        out.append(Inst(f"buffer_store_dwordx{n} {T(bk, d, n)}, v{vo}, s[{sr}:{sr+3}], {so} offen offset:{imm + 256 * part}{flags}",
                        "vstore", uses=R(bk, d, n) + [f"v{vo}", so, f"s{sr+2}"], wide=(n == 4)))
        out[-1].cost, out[-1].real, out[-1].busy = 8, 4 + 4 * n, ST_BUSY
        if rel is not None:
            out[-1].release = rel + step * i
    return out


def xlane(op, m0, m1):
    p = []
    for sw in ("v_permlane32_swap_b32", "v_permlane16_swap_b32"):
        p.append(v3("v_mov_b32", f"v{m1}", f"v{m0}"))
        p.append(valu(f"{sw} v{m0}, v{m1}", [f"v{m0}", f"v{m1}"], [f"v{m0}", f"v{m1}"], kind="perm"))
        p.append(v3(op, f"v{m0}", f"v{m0}", f"v{m1}"))
    return p


def softmax(q, tset, part=3, hold=False):
    b = SB + 16 * q
    m0, m1, s0, s1, rr = V_TMP[tset]
    p = []
    p.append(cnd(f"v{b + 12}", f"v{V_NINF}", f"v{b + 12}", S_M0))
    p.append(cnd(f"v{b + 12}", f"v{b + 12}", f"v{b + 13}", S_M1))
    regs = [b + r for r in range(13)]
    m3 = lambda d, x, y, z: v3("v_max3_f32", f"v{d}", f"v{x}", f"v{y}", f"v{z}")
    p.append(m3(m0, regs[0], regs[1], regs[2]))
    p.append(m3(m1, regs[3], regs[4], regs[5]))
    p.append(m3(m0, m0, regs[6], regs[7]))
    p.append(m3(m1, m1, regs[8], regs[9]))
    p.append(m3(m0, m0, regs[10], regs[11]))
    p.append(m3(m0, m0, m1, regs[12]))
    p.extend(xlane("v_max_f32", m0, m1))
    for r in regs:
        p.append(v3("v_sub_f32", f"v{r}", f"v{r}", f"v{m0}"))
        p.append(valu(f"v_exp_f32 v{r}, v{r}", [f"v{r}"], [f"v{r}"], kind="trans"))
    p.append(v3("v_add_f32", f"v{s0}", f"v{regs[0]}", f"v{regs[1]}"))
    p.append(v3("v_add_f32", f"v{s1}", f"v{regs[2]}", f"v{regs[3]}"))
    for k in range(4, 13):
        s = (s0, s1)[k & 1]
        p.append(v3("v_add_f32", f"v{s}", f"v{s}", f"v{regs[k]}"))
    p.append(v3("v_add_f32", f"v{s0}", f"v{s0}", f"v{s1}"))
    p.extend(xlane("v_add_f32", s0, s1))
    p.append(valu(f"v_rcp_f32 v{rr}, v{s0}", [f"v{rr}"], [f"v{s0}"], kind="trans"))
    if q == 3 and ZP:
        p.append(valu(f"v_cndmask_b32 v{rr}, 0, v{rr}, s[{S_ZP}:{S_ZP+1}]", [f"v{rr}"], [f"v{rr}", f"s{S_ZP}", f"s{S_ZP+1}"]))
    if part == 1:
        return p
    if part == 2:
        p = []
    for k in range(0, 12, 2):
        p.append(v3("v_mul_f32", f"v{regs[k]}", f"v{regs[k]}", f"v{rr}"))
        p.append(v3("v_mul_f32", f"v{regs[k + 1]}", f"v{regs[k + 1]}", f"v{rr}"))
        p.append(cvtpk(b + k // 2, regs[k], regs[k + 1]))
    p.append(v3("v_mul_f32", f"v{regs[12]}", f"v{regs[12]}", f"v{rr}"))
    p.append(cvtpk(b + 6, regs[12], None))
    p.append(v3("v_lshlrev_b32", f"v{b + 6}", f"s{S_SH}", f"v{b + 6}"))
    if not hold:
        p.append(v3("v_mov_b32", f"v{b + 7}", "0"))
    return p


def p_hold(q):
    return [valu(f"v_accvgpr_write_b32 a{AP[q] + r}, v{SB + 16 * q + r}", [f"a{AP[q] + r}"], [f"v{SB + 16 * q + r}"])
            for r in range(7)]


def win_base(dst, w, tmp):
    return [
        salu(f"s_mul_hi_u32 s{tmp}, s{w}, s29", [f"s{tmp}"], [f"s{w}", "s29"]),
        salu(f"s_mul_i32 s{dst}, s{tmp}, 73", [f"s{dst}"], [f"s{tmp}"]),
        salu(f"s_sub_u32 s{dst}, s{w}, s{dst}", [f"s{dst}", "scc"], [f"s{w}", f"s{dst}"]),
        salu(f"s_mul_i32 s{dst}, s{dst}, 2688", [f"s{dst}"], [f"s{dst}"]),
        salu(f"s_mul_i32 s{tmp}, s{tmp}, {WINROW}", [f"s{tmp}"], [f"s{tmp}"]),
        salu(f"s_add_u32 s{dst}, s{dst}, s{tmp}", [f"s{dst}", "scc"], [f"s{dst}", f"s{tmp}"]),
    ]


def row_bases(o=None):
    out = [] if o is None or o.nostore else [salu("s_mov_b32 s10, s31", ["s10"], ["s31"])]
    out += [salu(f"s_mov_b32 s{S_ROW}, s{S_CB}", [f"s{S_ROW}"], [f"s{S_CB}"])]
    for r in range(1, 7):
        out.append(salu(f"s_add_u32 s{S_ROW + r}, s{S_CB}, {r * ROWB}", [f"s{S_ROW + r}", "scc"], [f"s{S_CB}"]))
    out.append(salu(f"s_sub_u32 s{S_SPO}, s{S_ROW + 6}, s{S_GO}", [f"s{S_SPO}", "scc"], [f"s{S_ROW + 6}", f"s{S_GO}"]))
    out.append(salu(f"s_add_u32 s{S_SPO}, s{S_SPO}, {6 * 384}", [f"s{S_SPO}", "scc"], [f"s{S_SPO}"]))
    return out


def slot_masks():
    k = S_K
    return [
        salu(f"s_and_b32 s30, s{k}, 3", ["s30", "scc"], [f"s{k}"]),
        salu(f"s_mul_i32 s{S_GO}, s30, 384", [f"s{S_GO}"], ["s30"]),
        salu("s_lshl_b32 s30, s30, 4", ["s30", "scc"], ["s30"]),
        salu(f"s_lshl_b64 s[{S_GM}:{S_GM+1}], s[40:41], s30", [f"s{S_GM}", f"s{S_GM+1}", "scc"], ["s40", "s41", "s30"]),
        salu(f"s_cmp_lt_u32 s{k}, 4", ["scc"], [f"s{k}"]),
        salu(f"s_cselect_b64 s[{S_M0}:{S_M0+1}], s[{S_GM}:{S_GM+1}], 0", [f"s{S_M0}", f"s{S_M0+1}"], ["scc", f"s{S_GM}", f"s{S_GM+1}"]),
        salu(f"s_cselect_b64 s[{S_M1}:{S_M1+1}], 0, s[{S_GM}:{S_GM+1}]", [f"s{S_M1}", f"s{S_M1+1}"], ["scc", f"s{S_GM}", f"s{S_GM+1}"]),
        salu(f"s_cselect_b32 s{S_SH}, 0, 16", [f"s{S_SH}"], ["scc"]),
        salu(f"s_cselect_b32 s{S_SPA+2}, s31, 0", [f"s{S_SPA+2}"], ["scc", "s31"]),
        salu(f"s_cselect_b32 s{S_SPB+2}, 0, s31", [f"s{S_SPB+2}"], ["scc", "s31"]),
    ] + ([
        salu(f"s_lshr_b32 s{S_ZP}, s30, 2", [f"s{S_ZP}", "scc"], ["s30"]),
        salu(f"s_lshr_b32 s{S_ZP+1}, s{k}, 2", [f"s{S_ZP+1}", "scc"], [f"s{k}"]),
        salu(f"s_add_u32 s{S_ZP}, s{S_ZP}, s{S_ZP+1}", [f"s{S_ZP}", "scc"], [f"s{S_ZP}", f"s{S_ZP+1}"]),
        salu(f"s_lshl_b32 s{S_ZP}, 0x10001, s{S_ZP}", [f"s{S_ZP}", "scc"], [f"s{S_ZP}"]),
        salu(f"s_mov_b32 s{S_ZP+1}, s{S_ZP}", [f"s{S_ZP+1}"], [f"s{S_ZP}"]),
    ] if ZP else []) + [
        salu(f"s_add_u32 s{k}, s{k}, 1", [f"s{k}", "scc"], [f"s{k}"]),
        cnd(f"v{V_SP[0]}", f"v{V_NINF}", f"v{V_ST['H'][0]}", S_GM),
        cnd(f"v{V_SP[1]}", f"v{V_NINF}", f"v{V_ST['H'][1]}", S_GM),
    ]


def carry_head(o):
    p = cvt_v(11)
    for q in (2,) if o.e1 else (1, 2):
        if q in o.defer:
            p += softmax(q, q & 1, 2, True)
        p += p_hold(q)
    return p


def carry_30(o):
    p = o_mf(3, 5) + o_mf(0, 5) + o_pack(3, 5) + o_pack(0, 5)
    if o.e1:
        p += o_mf(1, 5) + o_pack(1, 5)
    p += o_store(3, 1, o.st_flags) + o_store(0, 1, o.st_flags)
    if o.e1:
        p += o_store(1, 1, o.st_flags)
    return p


def carry_grp(o, g, acc, pace=False):
    q, pr = 1 + g // 6, g % 6
    p = o_mf(q, pr, acc, True) + o_pack(q, pr, acc)
    if pr in (3, 5):
        rel, step = None, 0
        if pace and q == 2:
            rel, step = [int(x) for x in (o.q2p0, o.q2p1)[pr >> 2].split(",")]
        p += o_store(q, pr >> 2, o.st_flags, rel, step)
    return p


def cvt_v(ct):
    out = []
    for t in range(3):
        acc = ACC + 12 * (ct & 1) + 4 * t
        for h in range(2):
            out.append(cvtpk(vb(ct) + 2 * t + h, acc + 2 * h, acc + 2 * h + 1))
    return out


def s3(xs):
    order = [(s, kt) for kt in range(4) for s in range(6)] if "s" in CHAIN else [(s, kt) for s in range(6) for kt in range(4)]
    return [mfma("v", SB + 48 + 4 * kt, "a", xop(xs, kt, s), "a", AT49 + 4 * s, s == 0) for s, kt in order]


CT = ["L_b1", "L_b1+8192", "L_main_done-8064"]


def code_touch(k, rel):
    b = 84 + 2 * k
    return [Inst(f"global_load_dword v{V_CT[1]}, v{V_CT[0]}, s[{b}:{b+1}]", "vload", defs=["~ct"], uses=[f"v{V_CT[0]}"],
                 release=rel, deadline=rel + 48, tag="pf")]


def gen_body(o, xs):
    p = []
    ext = p.extend
    NM = 624
    if o.ct and xs == 0:
        for k in range(3):
            ext(code_touch(k, o.ct + 200 * k))
    p.append(salu(f"s_{'add' if o.up else 'sub'}_u32 s{S_WCUR}, s{S_WCUR}, 1024", [f"s{S_WCUR}", "scc"], [f"s{S_WCUR}"], deadline=0))
    if o.up and o.w0:
        p.append(salu(f"s_sub_u32 s27, s{S_WCUR}, 5120", ["s27", "scc"], [f"s{S_WCUR}"], deadline=0))
        p.append(salu(f"s_min_u32 s{S_WCUR}, s{S_WCUR}, s27", [f"s{S_WCUR}", "scc"], [f"s{S_WCUR}", "s27"], deadline=0))
    ext(win_base(S_LB, S_WCUR, 27))
    if xs == 0:
        p.append(salu(f"s_cmp_lt_u32 s{S_K}, 4", ["scc"], [f"s{S_K}"]))
        p.append(salu(f"s_cselect_b32 s6, {'0' if o.noload else 's31'}, 0", ["s6"], ["scc", "s31"]))
    ext(xloads(xs ^ 1, S_LB, o.ld_flags, o.ld_rel, o.ld_step))
    ext(carry_head(o))

    def chain(mat, ct):
        out = []
        if "t" in CHAIN:
            order = [(t, s) for t in range(3) for s in range(6)]
        elif "h" in CHAIN:
            order = [(t, s) for h in range(2) for t in range(3) for s in range(3 * h, 3 * h + 3)]
        else:
            order = [(t, s) for s in range(6) for t in range(3)]
        for t, s in order:
            idx = 72 * mat + 6 * ct + s
            w = AW + 4 * (idx % NRING)
            acc = ACC + 12 * (ct & 1) + 4 * t
            if mat == 0:
                out.append(mfma("v", acc, "a", w, "a", xr(xs, t, s), s == 0))
            else:
                out.append(mfma("v", acc, "a", xr(xs, t, s), "a", w, s == 0))
            if t == 2:
                kw = {}
                if idx + NRING >= 144:
                    kw = dict(deadline=NM * 16 + (16 if "t" in CHAIN else 48) * (idx + NRING - 144) - 220)
                out.append(wfrag_read(idx + NRING, **kw))
        return out

    def cvt_t(ct):
        out = []
        for t in range(3):
            acc = ACC + 12 * (ct & 1) + 4 * t
            for h in range(2):
                out.append(cvtpk(TBF + 4 * t + 2 * (ct & 1) + h, acc + 2 * h, acc + 2 * h + 1))
        return out

    def s_mf(sp):
        return [mfma("v", SB + 16 * q + 4 * kt, "a", xop(xs, kt, sp), "v", TBF + 4 * q, sp == 0)
                for q in range(3) for kt in range(4)]

    def o_grp(pr):
        out = o_mf(3, pr) + o_mf(0, pr) + o_pack(3, pr) + o_pack(0, pr)
        if pr == 3:
            out += o_store(3, 0, o.st_flags) + o_store(0, 0, o.st_flags)
        return out

    grp = iter(range(6 if o.e1 else 0, 12))
    places = iter(range(12))
    cpl = [int(x) for x in o.cpl.split(",")]

    def carried():
        if o.e1 and next(places) not in cpl:
            return []
        return carry_grp(o, next(grp), SB + 56, True)

    ext(chain(0, 0))
    ext(carry_30(o))
    ext(slot_masks())
    ext(cvt_t(0))
    ext(chain(0, 1))
    ext(s3(xs))
    ext(softmax(3, 1))
    ext(cvt_t(1))
    for ct in range(2, 12):
        ext(chain(0, ct))
        if ct >= 4 and ct % 2 == 0:
            ext(carried())
        if ct % 2 == 0:
            ext(s_mf(ct // 2 - 1))
        ext(cvt_t(ct))
        if ct >= 4:
            ext(carried())
    ext(row_bases(o if xs == 0 else None))
    p.append(salu(f"s_mov_b32 s{S_CB}, s{S_LB}", [f"s{S_CB}"], [f"s{S_LB}"]))
    ext(chain(1, 0))
    ext(s_mf(5))
    for q in range(3):
        ext(softmax(q, q & 1, 1 if q in o.defer else 3, q > (1 if o.e1 else 0)))
    ext(cvt_v(0))
    after = dict(zip([int(x) for x in o.after.split(",")], range(5)))
    oseq = {int(x.split(":")[0]): x.split(":")[1] for x in o.oseq.split(",")}
    nxt = {0: 0, 1: 0, 3: 0}
    for ct in range(1, 12):
        ext(chain(1, ct))
        if o.e1:
            for q in [int(c) for c in oseq.get(ct, "")]:
                pr = nxt[q]
                nxt[q] += 1
                assert 2 * pr + 2 <= ct
                ext(o_mf(q, pr) + o_pack(q, pr))
                if pr == 3:
                    st = o_store(q, 0, o.st_flags)
                    for i in st:
                        i.busy = o.busy0
                    ext(st)
        elif ct in after:
            ext(o_grp(after[ct]))
        if ct < 11:
            ext(cvt_v(ct))
    assert sum(i.kind == "mfma" for i in p) == NM
    assert not o.e1 or all(v == 5 for v in nxt.values())
    for i in p:
        if i.kind != "mfma" and i.deadline is None and i.kind != "dsr":
            i.deadline = NM * 16 - 24
    for k in o.rm.split(","):
        if k == "ring":
            p = [i for i in p if i.kind != "dsr"]
        elif k:
            p = [i for i in p if i.kind != k]
    return p


def gen_epi(o):
    if o.epi_flags is not None:
        import copy
        o = copy.copy(o)
        o.st_flags = " " + o.epi_flags if o.epi_flags else ""
    p = carry_head(o)
    if o.e1:
        E1[0] = 2
        p += carry_30(o)
        for g in range(6, 12):
            p += carry_grp(o, g, SB + 32 + 8 * (g % 2))
        return p
    for g in range(3):
        p += carry_grp(o, g, SB + 16 + 8 * (g % 4))
    p += carry_30(o)
    for g in range(3, 12):
        p += carry_grp(o, g, SB + 16 + 8 * (g % 4))
    return p


XSTAGED = [(0, 0), (0, 1), (1, 0), (1, 1), (2, 0), (2, 1), (1, 2), (2, 2)]
V_R0 = (226, 227)
V_NA = OPA
V_NS = VBF


def n_load(k, **kw):
    return Inst(f"buffer_load_dwordx4 {T('v', V_NS + 4 * k, 4)}, v{V_NA + k // 3}, s[12:15], 0 offen offset:{1024 * (k % 3)} sc1", "vload",
                defs=R('v', V_NS + 4 * k, 4), uses=[f"v{V_NA + k // 3}"], **kw)


def gen_shared(o, q):
    xs = 1
    p = []
    ext = p.extend
    own = [2 * q, 2 * q + 1] if q < 3 else [6, 7, 8, 9]
    solo = [ct for ct in range(10) if ct not in own]
    F = [SB + 16 * a for a in range(4) if a != q]
    v_x8 = V_TMP[(q & 1) ^ 1][0]
    st_imm = STAGE - 0x20000
    plan = [("v", ct) for ct in own]
    sp = [("s", solo[k], solo[k + 1]) for k in range(0, len(solo), 2)]
    if q == 3:
        n = o.pre3
        plan += sp[:n] + [("x",)] + sp[n:2] + [("v", 10), ("o", 3), ("o", 4), sp[2], ("o", 0), ("o", 1), ("v", 11), ("o", 2), ("o", 5)]
        assert solo == [0, 1, 2, 3, 4, 5]
    else:
        oth = [pr for pr in range(5) if pr != q]
        n = o.pre
        plan += sp[:n] + [("x",)] + sp[n:2] + [("v", 10), ("o", q), ("o", oth[0]), sp[2],
                 ("o", oth[1]), sp[3], ("o", oth[2]), ("v", 11), ("o", oth[3]), ("o", 5)]
    seq = [6 * (2 * c + e) + s for c in range(6) for s in range(6) for e in range(2)]
    for st in plan:
        if st[0] == "v":
            seq += [72 + 6 * st[1] + s for s in range(6)]
        elif st[0] == "s":
            seq += [72 + 6 * ct + s for s in range(6) for ct in st[1:]]
    assert sorted(seq) == list(range(144))
    seq += list(range(NRING))
    ring = Ring(seq)
    ring.gate = lambda idx: ["~b2"] if idx >= 72 else []
    p.append(Inst("s_barrier", "other", defs=["~b1"], deadline=0))
    xrd = {}
    for f, (t, j) in enumerate(XSTAGED):
        for u in range(2):
            d = xr(xs, t, 2 * j + u)
            xrd[t, 2 * j + u] = Inst(f"ds_read_b128 {T('a', d, 4)}, v{V_R0[u]} offset:{2048 * f}", "dsr", defs=R('a', d, 4),
                                     uses=[f"v{V_R0[u]}", "~b1"])
    fill = ring.fill(["~b1"])
    first = sorted(xrd, key=lambda k: (k[0] != q, k[1], k[0]))
    nq = sum(k[0] == q for k in xrd)
    for k in range(6):
        ext(fill[2 * k:2 * k + 2])
        if k < nq:
            p.append(xrd[first[k]])
    ext(xrd[k] for k in first[nq:])
    for k in range(o.mdep, 18):
        at = o.nl_rel + o.nl_step * (k - o.mdep)
        p.append(n_load(k, release=at, deadline=at + 48))
    nwr = []
    for k in range(18):
        w = Inst(f"ds_write_b128 v{V_NA + k // 3}, {T('v', V_NS + 4 * k, 4)} offset:{1024 * (k % 3)}", "dsw", defs=[f"~n{k}"],
                 uses=R('v', V_NS + 4 * k, 4) + [f"v{V_NA + k // 3}", "~b1"], release=o.nw_rel + o.nw_step * k)
        w.real, w.busy = 20, DSW_BUSY
        if o.nwhot:
            w.deadline = w.release
        p.append(w)
        nwr.append(f"~n{k}")
    v_chk = V_TMP[(q & 1) ^ 1][1]
    p.append(v3("v_mov_b32", f"v{v_chk}", "0"))
    for k in range(18):
        for h in range(2):
            chk = v3("v_max3_u32", f"v{v_chk}", f"v{v_chk}", f"v{V_NS + 4 * k + 2 * h}", f"v{V_NS + 4 * k + 2 * h + 1}")
            chk.release = o.nw_rel + o.nw_step * k
            p.append(chk)
    p.append(valu(f"v_cmp_eq_u32 vcc, -1, v{v_chk}", ["vcc"], [f"v{v_chk}"]))
    for ct in range(12):
        p.append(v3("v_mov_b32", f"v{vb(ct) + 7}", "0"))
    ext(xloads(0, S_LB, o.ld_flags, o.x0_rel - o.x0_step * o.n_early, o.x0_step)[o.n_early:])
    p.append(v3("v_lshrrev_b32", f"v{v_x8}", "1", f"v{V_LDS[0]}"))
    p.append(v3("v_add_u32", f"v{v_x8}", "0x20000", f"v{v_x8}"))

    def s_step(c):
        if q < 3:
            return [mfma("v", SB + 16 * q + 4 * kt, "a", xop(xs, kt, c), "v", TBF + 4 * (c & 1), c == 0) for kt in range(4)]
        return [mfma("v", SB + 48 + 4 * kt, "a", xop(xs, kt, c), "a", AT49 + 4 * c, c == 0) for kt in range(4)]

    for c in range(6):
        for s in range(6):
            for e in range(2):
                if ring.pos + NRING == 72:
                    p.append(Inst(f"s_nop 1\n    s_cbranch_vccnz L_again\nL_back{q}:", "other", defs=["~ok"], uses=nwr + ["vcc"]))
                    p.append(Inst("s_waitcnt lgkmcnt(0)", "wait", defs=["~wN"], uses=nwr + ["~ok"]))
                    p.append(Inst("s_barrier", "other", defs=["~b2"], uses=["~wN"]))
                w, nxt = ring.take()
                p.append(mfma("v", F[0] + 8 * (c & 1) + 4 * e, "a", w, "a", AX49 + 4 * s, s == 0))
                if q < 3:
                    p.append(mfma("v", ACC + 8 * (c % 3) + 4 * e, "a", w, "a", xr(xs, q, s), s == 0))
                ext(nxt)
            if c and s == (2 if q < 3 else 4):
                ext(s_step(c - 1))
        for e in range(2):
            for h in range(2):
                if q < 3:
                    acc = ACC + 8 * (c % 3) + 4 * e
                    p.append(cvtpk(TBF + 4 * (c & 1) + 2 * e + h, acc + 2 * h, acc + 2 * h + 1))
        for e in range(2):
            for h in range(2):
                acc = F[0] + 8 * (c & 1) + 4 * e
                tmp = F[1] + 4 * (c & 1) + 2 * e + h
                p.append(cvtpk(tmp, acc + 2 * h, acc + 2 * h + 1))
                d = AT49 + 4 * c + 2 * e + h
                p.append(valu(f"v_accvgpr_write_b32 a{d}, v{tmp}", [f"a{d}"], [f"v{tmp}"]))
    a49 = iter([F[0] + 4 * (k % 4) for k in range(12)])
    oacc = iter([F[1], F[2], F[2] + 8, F[1] + 8, F[1], F[2]])
    wr = []
    done = []
    for k, st in enumerate(plan):
        if st[0] == "v":
            ct = st[1]
            a = next(a49)
            for s in range(6):
                w, nxt = ring.take()
                for t in range(3):
                    p.append(mfma("v", ACC + 12 * (ct & 1) + 4 * t, "a", xr(xs, t, s), "a", w, s == 0))
                p.append(mfma("v", a, "a", AX49 + 4 * s, "a", w, s == 0))
                ext(nxt)
                if k == 0 and s == o.tail_s:
                    ext(s_step(5))
                    ext(softmax(q, q & 1))
            ext(cvt_v(ct))
            p.append(cvtpk(vb(ct) + 6, a, a + 1))
            if ct in own:
                for va, off, h, n in ((V_LDS[2], 1024 * ct, 0, 4), (v_x8, 10240 + 512 * ct, 1, 2)):
                    w = Inst(f"ds_write_b{32 * n} v{va}, {T('v', vb(ct) + 4 * h, n)} offset:{st_imm + off}", "dsw", defs=[f"~x{ct}{h}"],
                             uses=R('v', vb(ct) + 4 * h, n) + [f"v{va}", "~b2"])
                    w.real, w.busy = 4 + 4 * n, DSW_BUSY
                    p.append(w)
                    wr.append(f"~x{ct}{h}")
        elif st[0] == "s":
            aa = [next(a49), next(a49)]
            for s in range(6):
                for a in aa:
                    w, nxt = ring.take()
                    p.append(mfma("v", a, "a", AX49 + 4 * s, "a", w, s == 0))
                    ext(nxt)
            for a, ct in zip(aa, st[1:]):
                p.append(cvtpk(vb(ct) + 6, a, a + 1))
        elif st[0] == "x":
            p.append(Inst("s_waitcnt lgkmcnt(0)", "wait", defs=["~wB"], uses=wr))
            p.append(Inst("s_barrier", "other", defs=["~b3"], uses=["~wB"]))
            for pr in [x[1] for x in plan if x[0] == "o"]:
                for ct in (2 * pr, 2 * pr + 1):
                    if ct in solo:
                        for va, off, h, n in ((V_LDS[2], 1024 * ct, 0, 4), (v_x8, 10240 + 512 * ct, 1, 2)):
                            p.append(Inst(f"ds_read_b{32 * n} {T('v', vb(ct) + 4 * h, n)}, v{va} offset:{st_imm + off}", "dsr",
                                          defs=R('v', vb(ct) + 4 * h, n), uses=[f"v{va}", "~b3"]))
        else:
            pr = st[1]
            a = next(oacc)
            ext(o_mf(q, pr, a))
            ext(o_pack(q, pr, a))
            done.append(pr)
            for part, grp2 in ((0, (0, 1, 2, 3)), (1, (4, 5))):
                if pr in grp2 and all(g in done for g in grp2):
                    ext(o_store(q, part, o.st_flags))
    p.append(salu("s_mov_b32 s10, 0", ["s10"], []))
    p.append(salu(f"s_mov_b32 s{S_SPB+2}, 0", [f"s{S_SPB+2}"], []))
    p.append(salu(f"s_mov_b32 s{S_CB}, s{S_LB}", [f"s{S_CB}"], [f"s{S_LB}"]))
    return p


def kind_offsets(a, g, regs):
    h, v, qq, ii, tmp = regs
    a(v3("v_mul_u32_u24", h, "0x180", g))
    a(v3("v_mul_lo_u32", v, g, "s39"))
    a(v3("v_lshrrev_b32", qq, "1", g))
    a(v3("v_mul_lo_u32", qq, qq, "s39"))
    a(v3("v_and_b32", ii, "1", g))
    a(v3("v_mul_u32_u24", ii, "0x180", ii))
    a(v3("v_add_u32", qq, qq, ii))
    for k in range(4):
        r, c = I_TOK[k]
        off = (r - 4) * ROWB + c * 384
        if k == 0:
            a(v3("v_mov_b32", ii, str(off)))
        else:
            a(valu(f"v_cmp_eq_u32 vcc, {k}, {g}", ["vcc"], [g]))
            a(v3("v_mov_b32", tmp, str(off)))
            a(valu(f"v_cndmask_b32 {ii}, {ii}, {tmp}, vcc", [ii], [ii, tmp, "vcc"]))


def gen_prologue(o):
    p = []
    a = p.append
    a(raw("s_cmp_lt_u32 s2, 256", "salu", ["scc"], ["s2"]))
    a(raw("s_cbranch_scc1 L_go"))
    a(raw("s_endpgm"))
    a(raw("L_go:", "label"))
    a(raw(f"s_load_dwordx8 s[{S_KA}:{S_KA+7}], s[0:1], 0"))
    a(raw(f"s_load_dwordx4 s[{S_KB}:{S_KB+3}], s[0:1], 32"))
    if o.diag:
        a(raw("s_memtime s[44:45]"))
        a(raw("s_memrealtime s[46:47]"))
    a(v3("v_and_b32", "v1", "63", "v0"))
    a(v3("v_lshrrev_b32", "v2", "6", "v0"))
    a(v3("v_and_b32", "v3", "15", "v1"))
    a(valu("v_readfirstlane_b32 s38, v2", ["s38"], ["v2"]))
    a(v3("v_lshrrev_b32", "v4", "4", "v1"))
    a(v3("v_lshlrev_b32", f"v{V_LDS[0]}", "4", "v1"))
    a(raw("s_getpc_b64 s[90:91]", "salu", ["s90", "s91"]))
    a(raw("L_here:", "label"))
    a(v3("v_lshlrev_b32", f"v{V_CT[0]}", "7", "v1"))
    a(raw("s_getreg_b32 s3, hwreg(HW_REG_XCC_ID, 0, 4)", "salu", ["s3"]))
    a(salu(f"s_lshr_b32 s{S_J}, s2, 3", [f"s{S_J}", "scc"], ["s2"]))
    if not o.nomap:
        a(salu(f"s_cmp_ge_u32 s{S_J}, {32 - NJN}", ["scc"], [f"s{S_J}"]))
        a(salu(f"s_cselect_b32 s20, {NJM + NJN - 32}, {NJN}", ["s20"], ["scc"]))
        a(salu(f"s_cmp_ge_u32 s{S_J}, {NJM}", ["scc"], [f"s{S_J}"]))
        a(salu("s_cselect_b32 s20, s20, 0", ["s20"], ["scc", "s20"]))
        a(salu(f"s_add_u32 s{S_J}, s{S_J}, s20", [f"s{S_J}", "scc"], [f"s{S_J}", "s20"]))
    if not o.notouch:
        a(salu(f"s_cmp_lg_u32 s38, {o.tw}", ["scc"], ["s38"]))
        a(raw("s_cbranch_scc1 L_nt0"))
        a(salu(f"s_lshl_b32 s20, s{S_J}, 7", ["s20", "scc"], [f"s{S_J}"]))
        a(v3("v_lshl_add_u32", "v5", "v1", "12", "s20"))
        a(v3("v_min_u32", "v5", "L_main_done-L_here", "v5"))
        a(salu(f"s_mov_b64 exec, {(1 << o.tl) - 1}", ["exec"], []))
        a(Inst(f"global_load_dword v{V_CT[1]}, v5, s[90:91]", "vload", defs=[f"v{V_CT[1]}"], uses=["v5", "s90", "s91"]))
        a(salu("s_mov_b64 exec, -1", ["exec"], []))
        a(raw("L_nt0:", "label"))
        rest = -(-(448 - 32 * o.tl) // 20)
        if rest > 0:
            a(salu(f"s_cmp_lt_u32 s{S_J}, {NJM + NJN}", ["scc"], [f"s{S_J}"]))
            a(raw("s_cbranch_scc1 L_nt"))
            a(salu(f"s_lshl2_add_u32 s20, s{S_J}, s38", ["s20", "scc"], [f"s{S_J}", "s38"]))
            a(salu(f"s_mul_i32 s20, s20, {128 * rest}", ["s20"], ["s20"]))
            a(salu(f"s_add_u32 s20, s20, {(4096 * o.tl - 128 * rest * 4 * (NJM + NJN)) & 0xffffffff}", ["s20", "scc"], ["s20"]))
            a(v3("v_add_u32", "v5", "s20", f"v{V_CT[0]}"))
            a(v3("v_min_u32", "v5", "L_main_done-L_here", "v5"))
            a(salu(f"s_mov_b64 exec, {(1 << rest) - 1}", ["exec"], []))
            a(Inst(f"global_load_dword v{V_CT[1]}, v5, s[90:91]", "vload", defs=[f"v{V_CT[1]}"], uses=["v5", "s90", "s91"]))
            a(salu("s_mov_b64 exec, -1", ["exec"], []))
    a(raw("L_nt:", "label"))
    prod_pre(a)
    def win_block():
        a(salu("s_lshl_b32 s16, s2, 2", ["s16", "scc"], ["s2"]))
        a(salu(f"s_mov_b32 s29, {MAGIC73}", ["s29"], []))
        a(salu(f"s_mov_b32 s31, {XBYTES}", ["s31"], []))
        a(salu("s_add_u32 s16, s16, s38", ["s16", "scc"], ["s16", "s38"]))
        if not o.up or o.w0:
            a(salu(f"s_add_u32 s16, s16, {1024 * o.w0 if o.up else 4096}", ["s16", "scc"], ["s16"]))
        a(salu(f"s_add_u32 s{S_TW}, s2, 5120", [f"s{S_TW}", "scc"], ["s2"]))
        a(v3("v_mov_b32", f"v{V_NINF}", "0xff800000"))
        a(v3("v_lshrrev_b32", "v45", "2", "v3"))
        a(v3("v_and_b32", "v46", "3", "v3"))
        a(v3("v_lshl_add_u32", "v43", "v46", "2", "v45"))
        a(v3("v_lshlrev_b32", "v40", "10", "v43"))
        a(v3("v_add_u32" if o.up else "v_sub_u32", "v40", "s16", "v40"))
        if o.up and o.w0:
            a(v3("v_subrev_u32", "v44", "0x1400", "v40"))
            a(v3("v_min_u32", "v40", "v40", "v44"))
            a(valu("v_cmp_lt_u32 vcc, 5, v43", ["vcc"], ["v43"]))
            a(valu(f"v_cndmask_b32 v40, v40, v{V_NINF}, vcc", ["v40"], ["v40", f"v{V_NINF}", "vcc"]))
        a(v3("v_mov_b32", "v44", f"s{S_TW}"))
        a(valu("v_cmp_eq_u32 vcc, 5, v43", ["vcc"], ["v43"]))
        a(valu("v_cndmask_b32 v40, v40, v44, vcc", ["v40"], ["v40", "v44", "vcc"]))
        a(v3("v_mul_hi_u32", "v41", "v40", "s29"))
        a(v3("v_mul_u32_u24", "v42", "73", "v41"))
        a(v3("v_sub_u32", "v42", "v40", "v42"))
        a(v3("v_mul_u32_u24", "v42", "0xa80", "v42"))
        a(salu(f"s_mov_b32 s30, {WINROW}", ["s30"], []))
        a(v3("v_mul_lo_u32", "v41", "v41", "s30"))
        a(v3("v_add_u32", "v41", "v41", "v42"))
        a(v3("v_lshl_add_u32", "v41", "v4", "4", "v41"))
        a(v3("v_add_u32", "v41", str(6 * ROWB + 6 * 384), "v41"))
        a(valu(f"v_cmp_gt_u32 vcc, {NWIN}, v40", ["vcc"], ["v40"]))
        a(valu(f"v_cndmask_b32 v14, v{V_NINF}, v41, vcc", ["v14"], [f"v{V_NINF}", "v41", "vcc"]))
    if o.wpre:
        win_block()
    a(salu(f"s_mul_i32 s42, s3, {SLOT}", ["s42"], ["s3"]))
    a(salu(f"s_add_u32 s42, s42, {WS_SLOT}", ["s42", "scc"], ["s42"]))
    if o.diag:
        a(salu("s_mov_b32 s74, s3", ["s74"], ["s3"]))
    a(salu("s_lshl_b32 s3, s3, 5", ["s3", "scc"], ["s3"]))
    a(salu(f"s_cmp_ge_u32 s{S_J}, {NJM + NJN}", ["scc"], [f"s{S_J}"]))
    a(raw("s_waitcnt lgkmcnt(0)", "wait"))
    if o.diag:
        a(v3("v_mov_b32", f"v{V_TIME}", "s44"))
        a(valu(f"v_writelane_b32 v{V_TIME}, s46, 62", [f"v{V_TIME}"], ["s46"]))
        a(valu(f"v_writelane_b32 v{V_TIME}, s74, 43", [f"v{V_TIME}"], ["s74"]))
    if o.pstamp:
        p.extend(stamp3(54))
    a(raw("s_cbranch_scc1 L_np0"))
    prod_load(o, a)
    a(raw("s_branch L_np1"))
    a(raw("L_np0:", "label"))
    ws_srd(a, 42)
    a(Inst("buffer_load_dword v30, off, s[12:15], 0 sc1", "vload", defs=["v30"]))
    a(raw("L_np1:", "label"))
    srd(a, S_DBG, S_KB, "256")
    a(Inst(f"buffer_load_dword v31, off, s[{S_DBG}:{S_DBG+3}], s3 sc1", "vload", defs=["v31"], uses=["s3"]))
    if o.pstamp:
        p.extend(stamp3(53))
    if not o.wpre:
        win_block()
    srd(a, 4, S_KA, "s31")
    a(salu("s_lshr_b32 s40, s2, 3", ["s40", "scc"], ["s2"]))
    a(salu("s_mul_i32 s43, s38, 6", ["s43"], ["s38"]))
    a(salu("s_add_u32 s42, s40, s43", ["s42", "scc"], ["s40", "s43"]))
    for _ in range(2):
        a(salu("s_sub_u32 s43, s42, 24", ["s43", "scc"], ["s42"]))
        a(salu("s_cselect_b32 s42, s42, s43", ["s42"], ["scc", "s42", "s43"]))
    a(salu(f"s_mul_i32 s{S_ROT}, s42, 3072", [f"s{S_ROT}"], ["s42"]))
    p.extend(win_base(S_LB, S_WCUR, 30))
    p.extend(win_base(S_CB, S_TW, 30))
    a(salu(f"s_mov_b32 s39, {ROWB}", ["s39"], []))
    kind_offsets(a, "v45", ("v5", "v6", "v7", "v8", "v9"))
    KO = {"H": "v5", "V": "v6", "Q": "v7", "I": "v8"}
    for i in range(1, 4):
        a(valu(f"v_cmp_eq_u32 s[{64 + 2 * i}:{65 + 2 * i}], {i}, v46", [f"s{64 + 2 * i}", f"s{65 + 2 * i}"], ["v46"]))
    a(v3("v_lshlrev_b32", "v12", "4", "v4"))
    a(v3("v_mul_lo_u32", "v13", "v46", "s39"))
    a(v3("v_add3_u32", f"v{V_F[0]}", "v13", "v5", "v12"))
    for t in (1, 2):
        f = f"v{V_F[t]}"
        for i in range(4):
            kind, pp = STRIPS[4 * t + i]
            base = {"H": pp * ROWB, "V": pp * 384, "Q": 4 * ROWB + 4 * 384, "I": 4 * ROWB}[kind]
            a(v3("v_add_u32", f if i == 0 else "v9", str(base), KO[kind]))
            if i:
                a(cnd(f, f, "v9", 64 + 2 * i))
        a(v3("v_add_u32", f, f, "v12"))
    for w in range(1, 4):
        a(valu(f"v_cmp_eq_u32 s[{64 + 2 * w}:{65 + 2 * w}], {w}, v2", [f"s{64 + 2 * w}", f"s{65 + 2 * w}"], ["v2"]))
    a(cnd("v15", f"v{V_F[0]}", f"v{V_F[1]}", 66))
    a(cnd("v15", "v15", f"v{V_F[2]}", 68))
    a(v3("v_add_u32", "v16", "0x80", "v15"))
    a(v3("v_add_u32", "v9", "0x100", f"v{V_F[1]}"))
    a(cnd("v15", "v15", "v9", 70))
    a(v3("v_add_u32", "v9", "0x100", f"v{V_F[2]}"))
    a(cnd("v16", "v16", "v9", 70))
    a(v3("v_lshrrev_b32", "v5", "1", "v1"))
    a(v3("v_and_b32", "v5", "28", "v5"))
    for c in range(2):
        for hf in range(2):
            a(Inst(f"ds_bpermute_b32 v{17 + 2 * c + hf}, v5, v{15 + c} offset:{32 * hf}", "dsr", defs=[f"v{17 + 2 * c + hf}"], uses=["v5", f"v{15 + c}"]))
    a(v3("v_and_b32", "v12", "7", "v1"))
    a(v3("v_xor_b32", "v12", "v12", "v4"))
    a(v3("v_lshlrev_b32", "v12", "4", "v12"))
    a(v3("v_xor_b32", "v13", "64", "v12"))
    a(salu("s_lshl_b32 s41, s38, 12", ["s41", "scc"], ["s38"]))
    a(salu(f"s_add_u32 s41, s41, {STAGE}", ["s41", "scc"], ["s41"]))
    a(salu(f"s_cmp_lt_u32 s{S_TW}, {NWIN}", ["scc"], [f"s{S_TW}"]))
    a(salu("s_cselect_b32 s30, s31, 0", ["s30"], ["scc", "s31"]))
    a(raw("s_waitcnt lgkmcnt(0)", "wait"))
    if o.pstamp:
        p.extend(stamp3(55))
    srd(a, S_XS, S_KA, "s30")
    for i in range(4):
        a(v3("v_add_u32", f"v{17 + i}", f"v{17 + i}", ("v12", "v13")[i & 1]))

    def x_small(parts):
        for c in parts:
            if c in "ADE":
                for i in {"A": range(4), "D": (0, 1), "E": (2, 3)}[c]:
                    a(salu(f"s_add_u32 m0, s41, {1024 * i}", ["m0", "scc"], ["s41"]))
                    a(Inst(f"buffer_load_dwordx4 v{17 + i}, s[{S_XS}:{S_XS+3}], s{S_CB} offen lds", "ldsdma", uses=[f"v{17 + i}", f"s{S_CB}", "m0"]))
            elif c == "B":
                for s in (4, 5):
                    a(xload(1, 0, s, S_CB, sr=S_XS))
            else:
                for s in range(6):
                    a(Inst(f"buffer_load_dwordx4 {T('a', AX49 + 4 * s, 4)}, v14, s[4:7], 0 offen offset:{64 * s}", "vload",
                           defs=R('a', AX49 + 4 * s, 4), uses=["v14"]))

    a(salu(f"s_cmp_ge_u32 s{S_J}, {NJM + NJN}", ["scc"], [f"s{S_J}"]))
    a(raw("s_cbranch_scc1 L_np2"))
    prod_make(o, a, x_small)
    a(raw("L_np2:", "label"))
    x_small("ABC")
    a(raw("L_np3:", "label"))
    if o.xstamp:
        for k in range(13):
            a(raw(f"s_waitcnt vmcnt({12 - k})", "wait"))
            p.extend(stamp3(22 + k))
    if o.pstamp:
        p.extend(stamp3(56))
    if o.early_after:
        a(raw("s_waitcnt vmcnt(0)", "wait"))
    p.extend(xloads(0, S_LB, o.ld_flags)[:o.n_early])
    a(v3("v_lshrrev_b32", "v5", "1", "v3"))
    a(v3("v_xor_b32", "v5", "v5", "v4"))
    a(v3("v_lshlrev_b32", "v5", "4", "v5"))
    a(v3("v_lshl_add_u32", "v5", "v3", "7", "v5"))
    a(v3("v_add_u32", f"v{V_R0[0]}", str(STAGE), "v5"))
    a(v3("v_xor_b32", f"v{V_R0[1]}", "64", f"v{V_R0[0]}"))
    a(v3("v_add_u32", f"v{V_LDS[1]}", "0x10000", f"v{V_LDS[0]}"))
    a(v3("v_add_u32", f"v{V_LDS[2]}", "0x20000", f"v{V_LDS[0]}"))
    srd(a, 8, S_KA + 6, "0" if o.nostore else "s30")
    srd(a, S_SPA, S_KA + 6, "0")
    srd(a, S_SPB, S_KA + 6, "0" if o.nostore else "s30")
    V_N16, V_N8 = 15, 16
    a(v3("v_lshlrev_b32", f"v{V_N16}", "4", "v3"))
    a(v3("v_lshlrev_b32", f"v{V_N8}", "3", "v3"))
    kind_offsets(a, "v4", ("v5", "v6", "v7", "v8", "v9"))
    for kind, src in KO.items():
        a(v3("v_add_u32", f"v{V_ST[kind][0]}", src, f"v{V_N16}"))
        a(v3("v_add_u32", f"v{V_ST[kind][1]}", src, f"v{V_N8}"))
    for q in (1, 2):
        a(valu(f"v_accvgpr_write_b32 a{AP[q] + 7}, 0", [f"a{AP[q] + 7}"], []))
    for r, val in ((S_M0, "0"), (S_M0 + 1, "0"), (S_M1, "0xffff0000"), (S_M1 + 1, "0"), (S_SH, "16"), (S_GO, "384"), (S_K, "0"),
                   (40, "0xffff"), (41, "0")):
        a(salu(f"s_mov_b32 s{r}, {val}", [f"s{r}"], []))
    a(cnd(f"v{V_SP[0]}", f"v{V_NINF}", f"v{V_ST['H'][0]}", S_M1))
    a(cnd(f"v{V_SP[1]}", f"v{V_NINF}", f"v{V_ST['H'][1]}", S_M1))
    p.extend(row_bases())
    if o.ct:
        for k, ex in enumerate(CT):
            a(salu(f"s_add_u32 s{84 + 2 * k}, s90, {ex}-L_here", [f"s{84 + 2 * k}", "scc"], ["s90"]))
            a(salu(f"s_addc_u32 s{85 + 2 * k}, s91, 0", [f"s{85 + 2 * k}", "scc"], ["s91", "scc"]))
    if o.diag:
        a(salu(f"s_mov_b32 s{S_IT}, 1", [f"s{S_IT}"], []))
        a(salu("s_mov_b32 s72, 10", ["s72"], []))
    a(salu(f"s_mov_b32 s37, {o.polls}", ["s37"], []))
    a(v3("v_lshlrev_b32", f"v{V_POLL}", "2", "v1"))
    a(valu("v_cmp_gt_u32 vcc, 8, v1", ["vcc"], ["v1"]))
    a(valu(f"v_cndmask_b32 v{V_POLL}, v{V_NINF}, v{V_POLL}, vcc", [f"v{V_POLL}"], [f"v{V_NINF}", f"v{V_POLL}", "vcc"]))
    a(v3("v_mov_b32", f"v{V_EXP}", "0x01010101"))
    a(salu("s_mov_b32 s27, 0x0101", ["s27"], []))
    a(valu(f"v_writelane_b32 v{V_EXP}, s27, 4", [f"v{V_EXP}"], ["s27"]))
    a(valu(f"v_writelane_b32 v{V_EXP}, 1, 7", [f"v{V_EXP}"], []))
    D = f"s[{S_DBG}:{S_DBG+3}]"

    def look(r=V_FLG):
        a(Inst(f"buffer_load_dword v{r}, v{V_POLL}, {D}, s3 offen {o.lflag}", "vload", defs=[f"v{r}"], uses=[f"v{V_POLL}", "s3"]))

    def test(mask, r=V_FLG):
        a(valu(f"v_cmp_gt_u32 vcc, v{V_EXP}, v{r}", ["vcc"], [f"v{V_EXP}", f"v{r}"]))
        a(salu(f"s_and_b32 s27, vcc_lo, {mask}", ["s27", "scc"], ["vcc"]))

    def poll(lab, mask):
        look(V_FLG)
        a(raw(f"{lab}:", "label"))
        look(V_FL2)
        a(raw("s_waitcnt vmcnt(1)", "wait"))
        test(mask, V_FLG)
        a(raw(f"s_cbranch_scc0 {lab}_x"))
        a(salu("s_sub_u32 s37, s37, 1", ["s37", "scc"], ["s37"]))
        a(raw("s_cbranch_scc1 L_alone"))
        look(V_FLG)
        a(raw("s_waitcnt vmcnt(1)", "wait"))
        test(mask, V_FL2)
        a(raw(f"s_cbranch_scc1 {lab}"))
        a(raw(f"{lab}_x:", "label"))
    a(salu(f"s_mov_b32 s{S_GRP}, s{S_ROT}", [f"s{S_GRP}"], [f"s{S_ROT}"]))
    for g in range(6):
        if g:
            a(salu(f"s_add_u32 s{S_GRP + g}, s{S_GRP + g - 1}, 3072", [f"s{S_GRP + g}", "scc"], [f"s{S_GRP + g - 1}"]))
            a(salu(f"s_cmp_eq_u32 s{S_GRP + g}, {NBASE}", ["scc"], [f"s{S_GRP + g}"]))
            a(salu(f"s_cselect_b32 s{S_GRP + g}, 0, s{S_GRP + g}", [f"s{S_GRP + g}"], ["scc", f"s{S_GRP + g}"]))
        a(v3("v_add_u32", f"v{21 + g}", f"s{S_GRP + g}", f"v{V_LDS[0]}"))
        a(v3("v_add_u32", f"v{V_NA + g}", str(NBASE), f"v{21 + g}"))
    if o.pstamp:
        p.extend(stamp3(58))
    poll("L_pm", 0x1f)
    a(raw("L_ldm:", "label"))
    if o.pstamp:
        p.extend(stamp3(59))
    mreg = lambda k: 32 + 4 * k if k < 17 else 108
    DEP = o.mdep

    def m_load(k):
        a(Inst(f"buffer_load_dwordx4 {T('v', mreg(k), 4)}, v{21 + k // 3}, s[12:15], 0 offen offset:{1024 * (k % 3)} sc1", "vload",
               defs=R('v', mreg(k), 4), uses=[f"v{21 + k // 3}"]))
        if k == 17 - DEP:
            look()

    def m_put(k, behind):
        a(raw(f"s_waitcnt vmcnt({behind})", "wait"))
        if o.pstamp and k == 0:
            p.extend(stamp3(60))
        d = mreg(k)
        a(Inst(f"ds_write_b128 v{21 + k // 3}, {T('v', d, 4)} offset:{1024 * (k % 3)}", "dsw", uses=R('v', d, 4) + [f"v{21 + k // 3}"]))
        for h in range(2):
            a(v3("v_max3_u32", f"v{V_CHK}", f"v{V_CHK}", f"v{d + 2 * h}", f"v{d + 2 * h + 1}"))

    def m_check(lab):
        a(valu(f"v_cmp_eq_u32 vcc, -1, v{V_CHK}", ["vcc"], [f"v{V_CHK}"]))
        a(raw("s_nop 1", "nop"))
        a(raw(f"s_cbranch_vccz {lab}"))
        a(raw("s_waitcnt vmcnt(0) lgkmcnt(0)", "wait"))
        if o.diag:
            a(salu("s_sub_u32 s37, s37, 0x1000000", ["s37", "scc"], ["s37"]))
        a(salu(f"s_add_u32 s{S_K}, s{S_K}, 1", [f"s{S_K}", "scc"], [f"s{S_K}"]))
        a(salu(f"s_cmp_lt_u32 s{S_K}, 0x4000", ["scc"], [f"s{S_K}"]))
        a(raw("s_cbranch_scc1 L_ldm"))
    for k in range(DEP):
        m_load(k)
    a(v3("v_mov_b32", f"v{V_CHK}", "0"))
    for k in range(18 - DEP):
        m_put(k, DEP - 1 + (k <= 17 - DEP < k + DEP))
        m_load(k + DEP)
    a(raw(f"s_waitcnt vmcnt({DEP})", "wait"))
    test(0xe0)
    a(raw("s_cbranch_scc1 L_nlate"))
    for k in range(18 - DEP, 18):
        m_put(k, DEP - 1)
        a(n_load(k - 18 + DEP))
    m_check("L_mok")
    a(raw("s_branch L_mok"))
    a(raw("L_nlate:", "label"))
    if o.diag:
        a(valu(f"v_writelane_b32 v{V_TIME}, s37, 40", [f"v{V_TIME}"], ["s37"]))
    for k in range(18 - DEP, 18):
        m_put(k, 17 - k)
    m_check("L_mok2")
    a(raw("L_mok2:", "label"))
    poll("L_pn", 0xe0)
    for k in range(DEP):
        a(n_load(k))
    a(raw("L_mok:", "label"))
    a(salu(f"s_mov_b32 s{S_K}, 0", [f"s{S_K}"], []))
    if ZP:
        a(salu(f"s_mov_b32 s{S_ZP}, 0x200020", [f"s{S_ZP}"], []))
        a(salu(f"s_mov_b32 s{S_ZP+1}, 0x200020", [f"s{S_ZP+1}"], []))
    if o.pstamp:
        a(valu(f"v_writelane_b32 v{V_TIME}, s37, 41", [f"v{V_TIME}"], ["s37"]))
    if o.samerole:
        a(raw("s_branch L_sh1"))
    for q in range(3):
        a(salu(f"s_cmp_eq_u32 s38, {q}", ["scc"], ["s38"]))
        a(raw(f"s_cbranch_scc1 L_sh{q}"))
    return p


def gen_again(o):
    p = []
    a = p.append
    chk = V_TMP[0][4]
    a(raw("L_again:", "label"))
    a(raw("s_waitcnt vmcnt(0) lgkmcnt(0)", "wait"))
    a(valu(f"v_accvgpr_write_b32 a{AP[1]}, v{chk}", [f"a{AP[1]}"], [f"v{chk}"]))
    a(salu("s_mov_b32 s27, 0x4000", ["s27"], []))
    a(raw("L_ag_loop:", "label"))
    a(v3("v_mov_b32", f"v{chk}", "0"))
    for k in range(18):
        a(Inst(f"buffer_load_dwordx4 {T('v', V_NS + 4 * k, 4)}, v{V_NA + k // 3}, s[12:15], 0 offen offset:{1024 * (k % 3)} sc1", "vload",
               defs=R('v', V_NS + 4 * k, 4), uses=[f"v{V_NA + k // 3}"]))
    a(raw("s_waitcnt vmcnt(0)", "wait"))
    for r in range(0, 72, 2):
        a(v3("v_max3_u32", f"v{chk}", f"v{chk}", f"v{V_NS + r}", f"v{V_NS + r + 1}"))
    a(valu(f"v_cmp_eq_u32 vcc, -1, v{chk}", ["vcc"], [f"v{chk}"]))
    a(salu("s_sub_u32 s27, s27, 1", ["s27", "scc"], ["s27"]))
    a(raw("s_cbranch_scc1 L_ag_x"))
    a(raw("s_nop 1", "nop"))
    a(raw("s_cbranch_vccnz L_ag_loop"))
    a(raw("L_ag_x:", "label"))
    for k in range(18):
        a(Inst(f"ds_write_b128 v{V_NA + k // 3}, {T('v', V_NS + 4 * k, 4)} offset:{1024 * (k % 3)}", "dsw",
               uses=R('v', V_NS + 4 * k, 4) + [f"v{V_NA + k // 3}"]))
    a(raw("s_waitcnt lgkmcnt(0)", "wait"))
    for ct in range(12):
        a(v3("v_mov_b32", f"v{vb(ct) + 7}", "0"))
    a(valu(f"v_accvgpr_read_b32 v{chk}, a{AP[1]}", [f"v{chk}"], [f"a{AP[1]}"]))
    if o.diag:
        a(valu(f"v_writelane_b32 v{V_TIME}, s27, 42", [f"v{V_TIME}"], ["s27"]))
    a(raw("s_nop 4", "nop"))
    for q in range(3):
        a(salu(f"s_cmp_eq_u32 s38, {q}", ["scc"], ["s38"]))
        a(raw(f"s_cbranch_scc1 L_back{q}"))
    a(raw("s_branch L_back3"))
    return p


def gen_reset():
    return [v3("v_lshrrev_b32", f"v{V_CT[0]}", "2", f"v{V_LDS[0]}"), v3("v_mov_b32", f"v{V_CT[1]}", "0"),
            salu("s_mov_b64 exec, 0xff", ["exec"], []),
            Inst(f"buffer_store_dword v{V_CT[1]}, v{V_CT[0]}, s[{S_DBG}:{S_DBG+3}], s3 offen", "vstore", uses=[f"v{V_CT[0]}", f"v{V_CT[1]}", "s3"]),
            salu("s_mov_b64 exec, -1", ["exec"], [])]


def stamp3(lane):
    return [raw("s_memtime s[44:45]"), raw("s_waitcnt lgkmcnt(0)", "wait"),
            valu(f"v_writelane_b32 v{V_TIME}, s44, {lane}", [f"v{V_TIME}"], ["s44"])]


def stamp():
    return [raw("s_memtime s[44:45]"), raw("s_memrealtime s[46:47]"), salu(f"s_mov_b32 m0, s{S_IT}", ["m0"], [f"s{S_IT}"]), raw("s_waitcnt lgkmcnt(0)", "wait"),
            valu(f"v_writelane_b32 v{V_TIME}, s44, m0", [f"v{V_TIME}"], ["s44", "m0"]),
            salu(f"s_add_u32 m0, s{S_IT}, 43", ["m0", "scc"], [f"s{S_IT}"]),
            valu(f"v_writelane_b32 v{V_TIME}, s46, m0", [f"v{V_TIME}"], ["s46", "m0"]),
            salu(f"s_add_u32 s{S_IT}, s{S_IT}, 1", [f"s{S_IT}", "scc"], [f"s{S_IT}"])]


def stamp2():
    return [raw("s_memtime s[44:45]"), salu("s_mov_b32 m0, s72", ["m0"], ["s72"]), raw("s_waitcnt lgkmcnt(0)", "wait"),
            valu(f"v_writelane_b32 v{V_TIME}, s44, m0", [f"v{V_TIME}"], ["s44", "m0"]),
            salu("s_add_u32 s72, s72, 1", ["s72", "~scc"], ["s72"])]


def add_stamps(body, pts):
    out = []
    k = 0
    for i in body:
        if i.kind == "mfma":
            if k in pts:
                st = stamp2()
                st[-1] = raw("s_addk_i32 s72, 1", "salu", ["s72"], ["s72"])
                out.extend(st)
            k += 1
        out.append(i)
    return out


def texts(l):
    return [i.text for i in l]


def gen_main(o):
    pro = insert_nops(gen_prologue(o))
    pts = [int(x) for x in o.pts.split(",")] if o.pts else None

    def build(prog):
        body, cyc = schedule2(prog, verbose=o.verbose, urgent=o.urgent)
        if not o.verbose:
            print("; model cycles", cyc)
        return body, cyc

    def waits(body, cyc, pre):
        return insert_waits(body, pre=pre, early_lgkm=(o.early, cyc) if o.early else 0,
                            early_vm=(o.early_vm, cyc) if o.early_vm else 0)

    head = lambda: stamp() if o.diag else []
    shared = []
    E1.append(False)
    for q in range(4):
        t, c = build(gen_shared(o, q))
        if o.tpts:
            t = add_stamps(t, [int(x) for x in o.tpts.split(",")])
        t = [raw(f"s_waitcnt vmcnt({o.mdep}) lgkmcnt(0)", "wait")] + (stamp3(61) if o.pstamp else []) + t
        last = max(k for k, i in enumerate(t) if i.kind == "vload")
        nst = sum(i.kind == "vstore" for i in t[last:])
        t += (stamp3(39) if o.pstamp else []) + [raw(f"s_waitcnt vmcnt({nst}) lgkmcnt(0)", "wait")]
        t = insert_waits(t, pre=[n_load(k) for k in range(o.mdep)], early_lgkm=(o.early, 1 << 30))
        shared.append(insert_nops(t, pre=[pro]))
    bodies = []
    E1[0] = o.e1
    for xs in range(2):
        body, cyc = build(gen_body(o, xs))
        if pts:
            body = add_stamps(body, pts)
        tail = [salu(f"s_cmp_eq_u32 s{S_K}, 5", ["scc"], [f"s{S_K}"]), raw("s_cbranch_scc1 L_epi")] if xs == 0 else [raw("s_branch L_b0")]
        bodies.append(head() + body + tail)
    w = [waits(bodies[0], cyc, []), None]
    for it in range(3):
        w[1] = waits(bodies[1], cyc, w[0])
        w[0] = waits(bodies[0], cyc, w[1])
    w = [hoist_waits(x) for x in w]
    n = [insert_nops(w[0], pre=shared), None]
    for it in range(3):
        n[1] = insert_nops(w[1], pre=[n[0]])
        n[0] = insert_nops(w[0], pre=shared + [n[1]])
    for i in w[0]:
        i.time = None
    epi = insert_nops(insert_waits(head() + build(gen_epi(o))[0], pre=w[0]), pre=[n[0]])
    print('; replay', model_time(n[1]), model_time(n[0]))
    fin = [] if o.noreset else insert_nops(gen_reset(), pre=[epi])
    rst = list(fin)
    if o.diag:
        srd(fin.append, 12, S_KB + 2, str(WS_TIME_OFF + 1024 * 256))
        fin += stamp()
        fin += [raw("s_waitcnt vmcnt(0)", "wait")] + stamp()
        fin += [raw("s_memrealtime s[46:47]"), raw("s_waitcnt lgkmcnt(0)", "wait"),
                valu(f"v_writelane_b32 v{V_TIME}, s46, 63", [f"v{V_TIME}"], ["s46"])]
        fin += [v3("v_lshrrev_b32", "v0", "2", f"v{V_LDS[0]}"),
                salu("s_lshl_b32 s42, s2, 2", ["s42", "scc"], ["s2"]),
                salu("s_add_u32 s42, s42, s38", ["s42", "scc"], ["s42", "s38"]),
                salu("s_lshl_b32 s42, s42, 8", ["s42", "scc"], ["s42"]),
                salu(f"s_add_u32 s42, s42, {WS_TIME_OFF}", ["s42", "scc"], ["s42"]),
                Inst(f"buffer_store_dword v{V_TIME}, v0, s[12:15], s42 offen", "vstore", uses=[f"v{V_TIME}", "v0", "s42"])]
        if o.dbgst >= 0:
            fin += [valu(f"v_readlane_b32 s43, v{V_TIME}, 62", ["s43"], [f"v{V_TIME}"]),
                    raw("s_nop 4", "nop"),
                    salu("s_sub_u32 s43, s46, s43", ["s43", "scc"], ["s46", "s43"]),
                    valu(f"v_readlane_b32 s42, v{V_TIME}, 0", ["s42"], [f"v{V_TIME}"]),
                    raw("s_nop 4", "nop"),
                    v3("v_subrev_u32", f"v{V_TIME}", "s42", f"v{V_TIME}"),
                    valu(f"v_writelane_b32 v{V_TIME}, s43, 0", [f"v{V_TIME}"], ["s43"]),
                    salu("s_lshl_b32 s43, s2, 2", ["s43", "scc"], ["s2"]),
                    salu("s_add_u32 s43, s43, s38", ["s43", "scc"], ["s43", "s38"]),
                    salu(f"s_cmp_eq_u32 s43, {o.dbgst}", ["scc"], ["s43"]),
                    salu("s_cselect_b32 s43, 16, 0x1000", ["s43"], ["scc"]),
                    salu("s_mov_b64 exec, 0x1ff", ["exec"], []),
                    Inst(f"buffer_store_dword v{V_TIME}, v0, s[{S_DBG}:{S_DBG+3}], s43 offen", "vstore", uses=[f"v{V_TIME}", "v0", "s43"])]
        if o.spin:
            T, la, lb, mult, wv = [int(x) for x in o.spin.split(",")]
            fin += [valu(f"v_readlane_b32 s40, v{V_TIME}, 62", ["s40"], [f"v{V_TIME}"]),
                    valu(f"v_readlane_b32 s41, v{V_TIME}, {la}", ["s41"], [f"v{V_TIME}"]),
                    valu(f"v_readlane_b32 s42, v{V_TIME}, {lb}", ["s42"], [f"v{V_TIME}"]),
                    raw("s_nop 4", "nop"),
                    salu("s_sub_u32 s42, s42, s41", ["s42", "scc"], ["s42", "s41"]),
                    salu(f"s_mul_i32 s42, s42, {mult}", ["s42"], ["s42"]),
                    salu("s_min_u32 s42, s42, 30000", ["s42", "scc"], ["s42"]),
                    salu("s_lshl_b32 s43, s2, 2", ["s43", "scc"], ["s2"]),
                    salu("s_add_u32 s43, s43, s38", ["s43", "scc"], ["s43", "s38"]),
                    salu(f"s_cmp_eq_u32 s43, {wv}", ["scc"], ["s43"]),
                    salu("s_cselect_b32 s42, s42, -500", ["s42"], ["scc", "s42"]),
                    salu(f"s_add_u32 s42, s42, {T * 100}", ["s42", "scc"], ["s42"]),
                    raw("L_spin:", "label"),
                    raw("s_sleep 4"),
                    raw("s_memrealtime s[46:47]"), raw("s_waitcnt lgkmcnt(0)", "wait"),
                    salu("s_sub_u32 s43, s46, s40", ["s43", "scc"], ["s46", "s40"]),
                    salu("s_cmp_lt_u32 s43, s42", ["scc"], ["s43", "s42"]),
                    raw("s_cbranch_scc1 L_spin")]
        fin = insert_nops(fin)
    stats = {}
    for i in n[0]:
        stats[i.kind] = stats.get(i.kind, 0) + 1
    print("; body stats", stats, file=sys.stderr)
    out = emit(pro) + "\n" + emit(shared[3]) + "\n    s_branch L_b0\n"
    for q in range(3):
        out += f".p2align 6\nL_sh{q}:\n" + emit(shared[q]) + "\n"
        if q < 2:
            out += "    s_branch L_b0\n"
    out += "L_b0:\n" + emit(n[0]) + "\nL_b1:\n" + emit(n[1]) + "\n.p2align 6\nL_epi:\n"
    out += emit(epi) + "\n" + emit(fin) + "\nL_main_done:\n    s_endpgm\n"
    return out + emit(insert_nops(gen_again(o))) + "\n" + emit(insert_nops(gen_alone(o))) + "\n"


def merge_waits(x, y):
    def split(l):
        out, cur = [], {}
        for i in l:
            if i.kind == "wait" and not i.defs and not i.uses:
                for nm, v in re.findall(r"(vmcnt|lgkmcnt)\((\d+)\)", i.text):
                    cur[nm] = min(cur.get(nm, 99), int(v))
            else:
                out.append((cur, i))
                cur = {}
        return out
    a, b = split(x), split(y)
    assert [i.text for _, i in a] == [i.text for _, i in b]
    out = []
    for (wa, i), (wb, _) in zip(a, b):
        m = {k: min(wa.get(k, 99), wb.get(k, 99)) for k in set(wa) | set(wb)}
        if m:
            w = Inst("s_waitcnt " + " ".join(f"{k}({m[k]})" for k in ("vmcnt", "lgkmcnt") if k in m), "wait")
            w.time = i.time
            out.append(w)
        out.append(i)
    return out


def emit(insts):
    out = []
    for i in insts:
        out.append(i.text if i.kind == "label" else "    " + i.text)
    return "\n".join(out)


HEADER = """; Swin window attention: folded projections (M = a*Wq*Wk^T, N = Wv*Wo), one wave per window.
; @launch grid=(256,1,1) block=(256,1,1) lds=163840
.amdgcn_target "amdgcn-amd-amdhsa--gfx950"
.text
"""

KD = """.amdhsa_kernel {k}
  .amdhsa_next_free_vgpr {nv}
  .amdhsa_next_free_sgpr {ns}
  .amdhsa_accum_offset {ao}
  .amdhsa_group_segment_fixed_size 0
  .amdhsa_kernarg_size 48
  .amdhsa_user_sgpr_count 2
  .amdhsa_user_sgpr_kernarg_segment_ptr 1
  .amdhsa_system_sgpr_workgroup_id_x 1
.end_amdhsa_kernel
"""


def main():
    ap = argparse.ArgumentParser()
    ap.add_argument("-o", default="cdna_kernels/" + NAME + ".s")
    ap.add_argument("--diag", action="store_true")
    ap.add_argument("--pts", default="")
    ap.add_argument("--rm", default="")
    ap.add_argument("--ct", type=int, default=8000)
    ap.add_argument("--tpts", default="")
    ap.add_argument("--early", type=int, default=230)
    ap.add_argument("--early_vm", type=int, default=0)
    ap.add_argument("--ld_rel", type=int, default=300)
    ap.add_argument("--ld_step", type=int, default=400)
    ap.add_argument("--tail_s", type=int, default=1)
    ap.add_argument("--order", default="DE,,BC")
    ap.add_argument("--ordern", default=",,DEBC")
    ap.add_argument("--nl_rel", type=int, default=64)
    ap.add_argument("--nl_step", type=int, default=64)
    ap.add_argument("--nw_rel", type=int, default=200)
    ap.add_argument("--nw_step", type=int, default=64)
    ap.add_argument("--x0_rel", type=int, default=1200)
    ap.add_argument("--x0_step", type=int, default=150)
    ap.add_argument("--pw", type=int, default=3)
    ap.add_argument("--lw", type=int, default=0)
    ap.add_argument("--n_early", type=int, default=0)
    ap.add_argument("--psleep", type=int, default=0)
    ap.add_argument("--leaders", default="18")
    ap.add_argument("--own", type=int, default=0)
    ap.add_argument("--quiet", type=int, default=0)
    ap.add_argument("--mdep", type=int, default=8)
    ap.add_argument("--lflag", default="sc1")
    ap.add_argument("--defer", default="12")
    ap.add_argument("--after", default="5,6,7,8,10")
    ap.add_argument("--oseq", default="5:30,6:301,7:1301,8:301,10:301")
    ap.add_argument("--cpl", default="1,3,5,7,9,11")
    ap.add_argument("--busy0", type=int, default=100)
    ap.add_argument("--urgent", type=int, default=0)
    ap.add_argument("--touch_rep", type=int, default=1)
    ap.add_argument("--ld_grp", type=int, default=2)
    ap.add_argument("--q2p0", default="5400,500")
    ap.add_argument("--q2p1", default="7400,350")
    ap.add_argument("--dsw_busy", type=int, default=40)
    ap.add_argument("--st_busy", type=int, default=150)
    ap.add_argument("--ld_flags", default="")
    ap.add_argument("--st_flags", default="sc0 sc1")
    ap.add_argument("--st_flags0")
    ap.add_argument("--epi_flags")
    ap.add_argument("--st_flags1")
    ap.add_argument("--drop", default="")
    ap.add_argument("--polls", type=int, default=256)
    ap.add_argument("--tw", type=int, default=0)
    ap.add_argument("--tl", type=int, default=2)
    ap.add_argument("--w0", type=int, default=0)
    ap.add_argument("--pre", type=int, default=0)
    ap.add_argument("--pre3", type=int, default=2)
    ap.add_argument("--clr", default="sc1")
    ap.add_argument("--fw", type=int, default=3)
    ap.add_argument("--chain", default="hos")
    ap.add_argument("--spin", default="")
    ap.add_argument("--dbgst", type=int, default=-1)
    for f in ("noload", "nostore", "pstamp", "verbose", "notouch", "nowarm", "early_after", "samerole", "noreset", "wstamp", "noclear", "wpre", "nofb", "nomap", "xstamp", "up", "nwhot", "zp", "e1"):
        ap.add_argument("--" + f, action="store_true")
    o = ap.parse_args()
    o.defer = [int(c) for c in o.defer if not (o.e1 and c == "1")]
    if o.clr:
        o.clr = " " + o.clr
    if o.ld_flags:
        o.ld_flags = " " + o.ld_flags
    if o.st_flags:
        o.st_flags = " " + o.st_flags
    global DSW_BUSY, ST_BUSY, LD_GRP
    DROP.extend(int(c) for c in o.drop)
    CHAIN.update(o.chain)
    if o.zp:
        ZP.append(1)
    for k, f in enumerate((o.st_flags0, o.st_flags1)):
        if f is not None:
            PFLAGS[k] = " " + f if f else ""
    DSW_BUSY, ST_BUSY, LD_GRP = o.dsw_busy, o.st_busy, o.ld_grp
    old = sys.stdout
    sys.stdout = sys.stderr
    main_text = gen_main(o)
    sys.stdout = old
    s = HEADER.format(name=NAME)
    k = NAME + "_kernel"
    s += f".globl {k}\n.p2align 12\n.type {k},@function\n{k}:\n"
    s += main_text
    s += '.section .rodata,"a"\n.p2align 6\n'
    s += KD.format(k=k, nv=512, ns=102, ao=256)
    open(o.o, "w").write(s)


if __name__ == "__main__":
    main()
```
